```python
import torch

def _softmax(x, axis=-1):
    return torch.softmax(x, dim=axis)
def _gelu(x):
    return torch.nn.functional.gelu(x, approximate="tanh")
def _silu(x):
    return torch.nn.functional.silu(x)
def _sigmoid(x):
    return torch.sigmoid(x)
def _layernorm(x, axis=-1, eps=1e-5):
    m = x.mean(dim=axis, keepdim=True)
    v = x.var(dim=axis, keepdim=True, unbiased=False)
    return (x - m) / torch.sqrt(v + eps)
def _scatter_add(tgt, idx, src, axis=0):
    return tgt.clone().index_add_(axis, idx, src)
def _segment_sum(src, seg, n):
    out = torch.zeros((n,) + src.shape[1:], dtype=src.dtype)
    return out.index_add_(0, seg, src)
def _pad(x, pw):
    flat = tuple(v for pair in reversed(pw) for v in pair)
    return torch.nn.functional.pad(x, flat)

kernel_name = 'interleave_layers__gqa_block_cached__sliding_block_cached__decode'

def setup_inputs():

    _w = (lambda a: (lambda t: t.to(torch.bfloat16) if t.is_floating_point() else t)(torch.as_tensor(a)))
    def _A_setup():
        B, Sq, D = 1, 1, 448
        Hq, Hkv, Sk, Dh = 16, 8, 16384, 256
        assert Hq % Hkv == 0, (Hq, Hkv)
        return {
            "x": _w((lambda *s: torch.randn(*s, dtype=torch.bfloat16) * 0.1)(B, Sq, D)),
            "k_cache": _w((lambda *s: torch.randn(*s, dtype=torch.bfloat16) * 0.8)(B, Hkv, Sk, Dh)),
            "v_cache": _w((lambda *s: torch.randn(*s, dtype=torch.bfloat16) * 3.2)(B, Hkv, Sk, Dh)),
            "wq": _w((lambda *s: torch.randn(*s, dtype=torch.bfloat16) * 0.8)(D, Hq * Dh) * (D ** -0.5)),
            "wo": _w((lambda *s: torch.randn(*s, dtype=torch.bfloat16) * 3.2)(Hq * Dh, D) * ((Hq * Dh) ** -0.5)),
        }
    _A_in = _A_setup()

    def _B_setup():
        B, Sq, D = 1, 1, 448
        Hq, Hkv, Sk, Dh = 16, 8, 16384, 256
        assert Hq % Hkv == 0, (Hq, Hkv)
        return {
            "x": _w((lambda *s: torch.randn(*s, dtype=torch.bfloat16) * 0.1)(B, Sq, D)),
            "k_cache": _w((lambda *s: torch.randn(*s, dtype=torch.bfloat16) * 1.6)(B, Hkv, Sk, Dh)),
            "v_cache": _w((lambda *s: torch.randn(*s, dtype=torch.bfloat16) * 1.6)(B, Hkv, Sk, Dh)),
            "wq": _w((lambda *s: torch.randn(*s, dtype=torch.bfloat16) * 1.6)(D, Hq * Dh) * (D ** -0.5)),
            "wo": _w((lambda *s: torch.randn(*s, dtype=torch.bfloat16) * 1.6)(Hq * Dh, D) * ((Hq * Dh) ** -0.5)),
        }
    _B_in = _B_setup()

    return {
        "A_x": _A_in["x"],
        "A_k_cache": _A_in["k_cache"],
        "A_v_cache": _A_in["v_cache"],
        "A_wq": _A_in["wq"],
        "A_wo": _A_in["wo"],
        "B_x": _B_in["x"],
        "B_k_cache": _B_in["k_cache"],
        "B_v_cache": _B_in["v_cache"],
        "B_wq": _B_in["wq"],
        "B_wo": _B_in["wo"],
    }

def reference(A_x, A_k_cache, A_v_cache, A_wq, A_wo, B_x, B_k_cache, B_v_cache, B_wq, B_wo):
    def _A_ref(x, k_cache, v_cache, wq, wo):
        B, Sq, D = x.shape
        Hq, Dh = 16, 256
        Hkv = k_cache.shape[1]
        rep = Hq // Hkv
        q = (lambda x, *d: x.permute(*d))((x @ wq).reshape(B, Sq, Hq, Dh), 0, 2, 1, 3)
        k = (lambda x, n, axis: torch.repeat_interleave(x, n, dim=axis))(k_cache, rep, axis=1)
        v = (lambda x, n, axis: torch.repeat_interleave(x, n, dim=axis))(v_cache, rep, axis=1)
        scores = torch.einsum("bhqd,bhkd->bhqk", q, k) * (Dh ** -0.5)
        p = _softmax(scores, axis=-1)
        o = torch.einsum("bhqk,bhkd->bhqd", p, v)
        return (lambda x, *d: x.permute(*d))(o, 0, 2, 1, 3).reshape(B, Sq, Hq * Dh) @ wo

    def _B_ref(x, k_cache, v_cache, wq, wo):
        B, Sq, D = x.shape
        Hq, Dh = 16, 256
        Hkv, Sk = k_cache.shape[1], k_cache.shape[2]
        W = min(4096, max(256, Sk // 4))
        rep = Hq // Hkv
        q = (lambda x, *d: x.permute(*d))((x @ wq).reshape(B, Sq, Hq, Dh), 0, 2, 1, 3)
        k = (lambda x, n, axis: torch.repeat_interleave(x, n, dim=axis))(k_cache[:, :, Sk - W:, :], rep, axis=1)
        v = (lambda x, n, axis: torch.repeat_interleave(x, n, dim=axis))(v_cache[:, :, Sk - W:, :], rep, axis=1)
        scores = torch.einsum("bhqd,bhkd->bhqk", q, k) * (Dh ** -0.5)
        p = _softmax(scores, axis=-1)
        o = torch.einsum("bhqk,bhkd->bhqd", p, v)
        return (lambda x, *d: x.permute(*d))(o, 0, 2, 1, 3).reshape(B, Sq, Hq * Dh) @ wo

    x = A_x
    x = x + _A_ref(_layernorm(x, axis=-1), A_k_cache, A_v_cache, A_wq, A_wo)
    x = x + _B_ref(_layernorm(x, axis=-1), B_k_cache, B_v_cache, B_wq, B_wo)
    x = x + _A_ref(_layernorm(x, axis=-1), A_k_cache, A_v_cache, A_wq, A_wo)
    x = x + _B_ref(_layernorm(x, axis=-1), B_k_cache, B_v_cache, B_wq, B_wo)
    return x
```

```python
import sys, os, struct

PROFILE = int(os.environ.get("PROFILE", "0"))
NAME = "interleave_layers__gqa_block_cached__sliding_block_cached__decode"

WS_Q = 0
WS_ML = 32768
WS_Y = 49152
WS_PO = 196608
PO_L = 16 * 28 * 1024
WS_STAMP = 4 << 20
WS_SIZE = 283117312
SPIN_MAX = 1 << 18

CSCALE = struct.unpack("<I", struct.pack("<f", 1.4426950408889634 / 16.0))[0]
NEG_INF = 0xFF800000


def f2u(x):
    return struct.unpack("<I", struct.pack("<f", x))[0]


class Asm:
    def __init__(self):
        self.L = []
        self.nlabel = 0

    def __call__(self, s):
        for line in s.split("\n"):
            line = line.strip()
            if line:
                self.L.append(line)

    def label(self, base):
        self.nlabel += 1
        return f"L_{base}_{self.nlabel}"


A = Asm()


def vr(r, n=4):
    if isinstance(r, int):
        r = ("v", r)
    k, i = r
    return f"{k}[{i}:{i+n-1}]" if n > 1 else f"{k}{i}"


def radd(r, d):
    if isinstance(r, int):
        return r + d
    return (r[0], r[1] + d)


DPPF = "row_mask:0xf bank_mask:0xf"

sWAVE = 3
SRD_KA, SRD_VA, SRD_KB, SRD_VB, SRD_WS, SRD_DBG = 4, 8, 12, 16, 20, 24
SRD_WQA, SRD_WOA, SRD_WQB, SRD_WOB = 4, 8, 12, 16
SRD_X, SRD_OUT = 28, 32
sOFFA, sOFFA36, sOFFB, sOFFB9 = 28, 29, 30, 31
sBIASA, sBIASB = 32, 33
sC = 36
sLDSW = 37
sT0, sT1, sT2, sT3 = 38, 39, 40, 41
sLAYER = 42
sSPIN = 43
sQOFF, sPOOFF, sMLOFF, sYOFF = 44, 45, 46, 47
sG, sSP = 48, 49
sYST, sQST = 50, 51
KARG = 52
sSTAMP = 60

nstamp = [0]


def srd(r):
    return f"s[{r}:{r+3}]"


def stamp(idx):
    if PROFILE:
        assert idx < 20
        if idx == 0:
            for i in range(1, 20):
                A(f"s_mov_b64 s[{sSTAMP+2*i}:{sSTAMP+2*i+1}], 0")
        A(f"s_memrealtime s[{sSTAMP+2*idx}:{sSTAMP+2*idx+1}]\ns_waitcnt lgkmcnt(0)")


def mk_srd(dst, ptr, size):
    A(f"s_mov_b32 s{dst}, s{ptr}\ns_and_b32 s{dst+1}, s{ptr+1}, 0xffff\ns_mov_b32 s{dst+2}, {size}\ns_mov_b32 s{dst+3}, 0x20000")


def emit_masks(vlane, m0, t0, t1):
    A(f"v_and_b32 v{t0}, 1, v{vlane}")
    A(f"v_lshlrev_b32 v{t0}, 4, v{t0}")
    A(f"v_mov_b32 v{t1}, 0xffff")
    A(f"v_lshlrev_b32 v{t0}, v{t0}, v{t1}")
    A(f"v_bfe_u32 v{t1}, v{vlane}, 1, 2")
    for r in range(4):
        A(f"v_cmp_eq_u32 vcc, {r}, v{t1}")
        A("s_nop 1")
        A(f"v_cndmask_b32 v{m0+r}, 0, v{t0}, vcc")


def xrow_reduce(op, v, t):
    A(f"v_mov_b32 v{t}, v{v}\ns_nop 1\nv_permlane32_swap_b32 v{v}, v{t}\n{op} v{v}, v{v}, v{t}")
    A(f"v_mov_b32 v{t}, v{v}\ns_nop 1\nv_permlane16_swap_b32 v{v}, v{t}\n{op} v{v}, v{v}, v{t}")


def sentinel_check(regs, t, retry_label):
    regs = list(regs)
    A(f"v_max3_u32 v{t}, v{regs[0]}, v{regs[1]}, v{regs[2]}")
    i = 3
    while i + 1 < len(regs):
        A(f"v_max3_u32 v{t}, v{t}, v{regs[i]}, v{regs[i+1]}")
        i += 2
    if i < len(regs):
        A(f"v_max_u32 v{t}, v{t}, v{regs[i]}")
    A(f"v_cmp_eq_u32 vcc, -1, v{t}")
    A("s_nop 0")
    A(f"s_cmp_lg_u64 vcc, 0\ns_cbranch_scc1 {retry_label}")


def spin_guard(giveup_label):
    A(f"s_sub_u32 s{sSPIN}, s{sSPIN}, 1\ns_cmp_eq_u32 s{sSPIN}, 0\ns_cbranch_scc1 {giveup_label}")


hdr = open(f"cdna_kernels/{NAME}.s.ref").read().split("\n")
head = [l for l in hdr if l.startswith(";") and "@launch" not in l]
OUT = list(head)
OUT.append("; @launch grid=(256,1,1) block=(256,1,1) lds=163840")
OUT.append('.amdgcn_target "amdgcn-amd-amdhsa--gfx950"')
OUT.append(".text")
OUT.append(f".globl {NAME}_kernel")
OUT.append(".p2align 8")
OUT.append(f".type {NAME}_kernel,@function")
OUT.append(f"{NAME}_kernel:")

A("s_cmp_ge_u32 s2, 256\ns_cbranch_scc1 L_end")
A(f"s_load_dwordx16 s[{KARG}:{KARG+15}], s[0:1], 0")
A(f"s_load_dwordx8 s[{KARG+16}:{KARG+23}], s[0:1], 64")
A(f"s_load_dwordx2 s[{KARG+24}:{KARG+25}], s[0:1], 96")
pAX, pAK, pAV, pAWQ, pAWO, pBX, pBK, pBV, pBWQ, pBWO, pOUT, pDBG, pWS = [KARG + 2 * i for i in range(13)]
A("v_lshrrev_b32 v1, 6, v0\nv_and_b32 v0, 63, v0")
A(f"v_readfirstlane_b32 s{sWAVE}, v1")
A(f"s_and_b32 s{sG}, s2, 7\ns_lshr_b32 s{sSP}, s2, 3")
A(f"s_mov_b32 s{sC}, {CSCALE}\ns_mov_b32 s{sSPIN}, {SPIN_MAX}\ns_mov_b32 s{sLAYER}, 0")
A("s_waitcnt lgkmcnt(0)")
mk_srd(SRD_WS, pWS, WS_SIZE)
mk_srd(SRD_DBG, pDBG, 256)
A(f"s_cmp_lt_u32 s{sSP}, 4\ns_cbranch_scc1 L_chain")

vK, vV, vKd, vVd, vL, vQ, vT = 1, 2, 3, 4, 5, 6, 7
MASK = 8
QA = 12
DT = 20
vCM, vLS, vMX, vPO, vX = 32, 33, 34, 35, 36
SC = 37
STG_A = [56, 60, 64, 68]
NSLOT = 19
XBASE = 4 * NSLOT * 2048
MLBASE = XBASE + 6144


def half(h):
    return ("v", 72 + 8 * h) if h < 23 else ("a", 8 * (h - 23))


NKA = 37
NVREG = 18
KVBYTES = 67108864

mk_srd(SRD_KA, pAK, KVBYTES)
mk_srd(SRD_VA, pAV, KVBYTES)
mk_srd(SRD_KB, pBK, KVBYTES)
mk_srd(SRD_VB, pBV, KVBYTES)
A(f"s_sub_u32 s{sSP}, s{sSP}, 4")
A(f"s_lshl_b32 s{sT0}, s{sSP}, 2\ns_add_u32 s{sT0}, s{sT0}, s{sWAVE}")
A(f"s_lshl_b32 s{sT3}, s{sG}, 23")
A(f"s_mul_i32 s{sT1}, s{sT0}, 36\ns_min_u32 s{sT2}, s{sT0}, 64\ns_add_u32 s{sT1}, s{sT1}, s{sT2}")
A(f"s_lshl_b32 s{sT1}, s{sT1}, 11\ns_add_u32 s{sOFFA}, s{sT1}, s{sT3}")
A(f"s_cmp_lt_u32 s{sT0}, 64")
A(f"s_cselect_b32 s{sT1}, 36, 35")
A(f"s_cselect_b32 s{sBIASA}, 0, {NEG_INF}")
A(f"s_lshl_b32 s{sT1}, s{sT1}, 11")
A(f"s_add_u32 s{sOFFA36}, s{sOFFA}, s{sT1}")
A(f"s_mul_i32 s{sT1}, s{sT0}, 9\ns_max_u32 s{sT2}, s{sT0}, 96\ns_sub_u32 s{sT2}, s{sT2}, 96\ns_add_u32 s{sT1}, s{sT1}, s{sT2}")
A(f"s_lshl_b32 s{sT1}, s{sT1}, 11\ns_add_u32 s{sT1}, s{sT1}, s{sT3}\ns_add_u32 s{sOFFB}, s{sT1}, {12288*512}")
A(f"s_cmp_ge_u32 s{sT0}, 96")
A(f"s_cselect_b32 s{sT1}, 9, 8")
A(f"s_cselect_b32 s{sBIASB}, 0, {NEG_INF}")
A(f"s_lshl_b32 s{sT1}, s{sT1}, 11")
A(f"s_add_u32 s{sOFFB9}, s{sOFFB}, s{sT1}")
A(f"s_mul_i32 s{sLDSW}, s{sWAVE}, {NSLOT*2048}")
A(f"v_lshrrev_b32 v20, 4, v0       ; s / row")
A(f"v_and_b32 v21, 15, v0          ; j")
A(f"v_and_b32 v22, 3, v0           ; c")
A(f"v_bfe_u32 v23, v0, 2, 2        ; a")
A(f"v_lshl_add_u32 v24, v20, 2, v22   ; 4s+c")
A(f"v_lshlrev_b32 v24, 4, v24")
A(f"v_lshl_add_u32 v{vK}, v23, 9, v24")
A(f"v_lshlrev_b32 v25, 4, v21")
A(f"v_lshl_add_u32 v{vV}, v20, 9, v25")
A(f"v_add_u32 v{vKd}, 768, v{vK}\nv_add_u32 v{vVd}, 768, v{vV}")
A(f"v_lshlrev_b32 v26, 4, v0\nv_add_u32 v{vL}, s{sLDSW}, v26\nv_add_u32 v{vX}, {XBASE}, v26")
A(f"v_lshrrev_b32 v27, 3, v21      ; head(j)")
A(f"v_lshl_add_u32 v{vQ}, v27, 9, v24")
A(f"v_lshrrev_b32 v27, 5, v0\nv_mul_u32_u24 v27, 28672, v27\nv_lshl_add_u32 v27, v21, 5, v27")
A(f"v_and_b32 v28, 1, v20\nv_lshl_add_u32 v{vPO}, v28, 4, v27")
A(f"s_lshl_b32 s{sQOFF}, s{sG}, 10")
A(f"s_mul_i32 s{sPOOFF}, s{sG}, 56\ns_add_u32 s{sPOOFF}, s{sPOOFF}, s{sSP}\ns_lshl_b32 s{sPOOFF}, s{sPOOFF}, 10\ns_add_u32 s{sPOOFF}, s{sPOOFF}, {WS_PO}")
A(f"s_lshl_b32 s{sMLOFF}, s{sG}, 9\ns_lshl_b32 s{sT0}, s{sSP}, 3\ns_add_u32 s{sMLOFF}, s{sMLOFF}, s{sT0}\ns_add_u32 s{sMLOFF}, s{sMLOFF}, {WS_ML}")
stamp(0)

A(f"s_cmp_eq_u32 s{sWAVE}, 3\ns_cbranch_scc0 L_att_noclear")
A("v_mov_b32 v12, -1\nv_mov_b32 v13, -1\nv_mov_b32 v14, -1\nv_mov_b32 v15, -1")
for l in range(4):
    for h in range(2):
        A(f"s_add_u32 s{sT0}, s{sPOOFF}, {l*PO_L + h*28672}")
        A(f"buffer_store_dwordx4 v[12:15], v26, {srd(SRD_WS)}, s{sT0} offen sc1")
A("v_and_b32 v16, 1, v0\nv_lshlrev_b32 v16, 8, v16\nv_bfe_u32 v17, v0, 1, 2\nv_lshl_add_u32 v16, v17, 12, v16")
A("s_mov_b64 exec, 0xff")
A(f"buffer_store_dwordx2 v[12:13], v16, {srd(SRD_WS)}, s{sMLOFF} offen sc1")
A("s_waitcnt vmcnt(0)")
A("s_mov_b64 exec, 1")
A("v_mov_b32 v16, 128\nv_mov_b32 v17, 1")
A(f"buffer_atomic_add v17, v16, {srd(SRD_DBG)}, 0 offen")
A("s_mov_b64 exec, -1")
A("s_waitcnt vmcnt(0)")
A("L_att_noclear:")
emit_masks(0, MASK, 20, 21)


def ld_items_reg(srdr, voff, soff_base, ulist, regs_of):
    items = []
    i = 0
    while i < len(ulist):
        u = ulist[i]
        pair = ulist[i:i + 2]
        pre = f"s_add_u32 s{sT0}, s{soff_base}, {u*2048}"
        first = True
        for k, uu in enumerate(pair):
            for m in range(2):
                txt = f"buffer_load_dwordx4 {vr(radd(regs_of(uu), 4*m))}, v{voff}, {srd(srdr)}, s{sT0} offen offset:{k*2048+m*256} nt"
                if first:
                    txt = pre + "\n" + txt
                    first = False
                items.append((txt, uu))
        i += 2
    return items


def ld_items_lds(srdr, voff, voffd, soff_base, ulist, slot_of):
    items = []
    i = 0
    while i < len(ulist):
        u = ulist[i]
        pair = ulist[i:i + 2]
        d = u * 2048 - 768
        pre = (f"s_add_u32 s{sT1}, s{soff_base}, {d}" if d >= 0 else f"s_sub_u32 s{sT1}, s{soff_base}, {-d}")
        pre += f"\ns_add_u32 s{sT2}, s{sLDSW}, {slot_of(u)*2048}\ns_mov_b32 m0, s{sT2}\ns_nop 0"
        first = True
        for k, uu in enumerate(pair):
            assert slot_of(uu) == slot_of(u) + k
            for m in range(2):
                v = voffd if m == 0 else voff
                txt = f"buffer_load_dwordx4 v{v}, {srd(srdr)}, s{sT1} offen offset:{k*2048+m*1024} nt lds"
                if first:
                    txt = pre + "\n" + txt
                    first = False
                items.append((txt, uu))
        i += 2
    return items


def qk_groups(n, ksrc, bias_sgpr, stg):
    G = []
    nC = (n + 1) // 2
    G.append((f"v_mov_b32 v{vMX}, {NEG_INF}" + (f"\nv_mov_b32 v{SC+nC-1}, {NEG_INF}" if n & 1 else ""), None))
    reads = [(u, m) for u in range(n) if ksrc(u)[0] == "lds" for m in range(2)]
    rpos = {rm: i for i, rm in enumerate(reads)}
    issued = [0]

    def issue_reads(upto, out):
        while issued[0] < min(upto, len(reads)):
            u, m = reads[issued[0]]
            q = stg[issued[0] % len(stg)]
            out.append((f"ds_read_b128 {vr(q)}, v{vL} offset:{ksrc(u)[1]*2048+m*1024}", ksrc(u)[2]))
            issued[0] += 1

    pre = []
    issue_reads(len(stg), pre)

    def bops(u):
        d = DT + 4 * (u % 3)
        c = SC + u // 2
        bm = 0x5 if (u & 1) == 0 else 0xA
        t = f"v_mov_b32_dpp v{d}, v{d} quad_perm:[0,0,0,0] {DPPF}\n"
        t += f"v_add_f32_dpp v{d}, v{d+1}, v{d} quad_perm:[1,1,1,1] {DPPF}\n"
        t += f"v_add_f32_dpp v{d}, v{d+2}, v{d} quad_perm:[2,2,2,2] {DPPF}\n"
        if u == n - 1:
            t += f"v_add_f32 v{d}, s{bias_sgpr}, v{d}\n"
        t += f"v_add_f32_dpp v{c}, v{d+3}, v{d} quad_perm:[3,3,3,3] row_mask:0xf bank_mask:{bm:#x}\n"
        if (u & 1) or u == n - 1:
            t += f"v_max_f32 v{vMX}, v{vMX}, v{c}\n"
        return t

    body = []
    for u in range(n):
        d = DT + 4 * (u % 3)
        src = ksrc(u)
        if src[0] == "reg":
            t = f"v_mfma_f32_16x16x32_bf16 {vr(d)}, {vr(src[1])}, {vr(QA)}, 0\n"
            t += f"v_mfma_f32_16x16x32_bf16 {vr(d)}, {vr(radd(src[1],4))}, {vr(QA+4)}, {vr(d)}"
            body.append((t, src[2]))
        else:
            for m in range(2):
                i = rpos[(u, m)]
                q = stg[i % len(stg)]
                t = f"s_waitcnt lgkmcnt({issued[0]-i-1})\n"
                t += f"v_mfma_f32_16x16x32_bf16 {vr(d)}, {vr(q)}, {vr(QA+4*m)}, {'0' if m == 0 else vr(d)}"
                body.append((t, None))
                issue_reads(i + 1 + len(stg), body)
        if u >= 2:
            body.append((("s_nop 3\n" if u == 2 else "") + bops(u - 2), None))
    body.append((bops(n - 2), None))
    body.append((bops(n - 1), None))
    return G, pre, body


def max_group():
    t = "s_nop 1\n"
    t += f"v_max_f32_dpp v{vMX}, v{vMX}, v{vMX} row_half_mirror {DPPF}\n"
    t += f"v_mov_b32 v{vT}, v{vMX}\ns_nop 1\nv_permlane32_swap_b32 v{vMX}, v{vT}\nv_max_f32 v{vMX}, v{vMX}, v{vT}\n"
    t += f"v_mov_b32 v{vT}, v{vMX}\ns_nop 1\nv_permlane16_swap_b32 v{vMX}, v{vT}\nv_max_f32 v{vMX}, v{vMX}, v{vT}\n"
    t += f"v_mul_f32 v{vCM}, s{sC}, v{vMX}\nv_mov_b32 v{vLS}, 0"
    return (t, None)


def pv_groups(order, vsrc, stg):
    T = [DT, DT + 4]
    PP = [DT + 8, DT + 9]
    n = len(order)
    reads = [(u, m) for u in order if vsrc(u)[0] == "lds" for m in range(2)]
    rpos = {rm: i for i, rm in enumerate(reads)}
    issued = [0]
    body = []

    def issue_reads(upto):
        while issued[0] < min(upto, len(reads)):
            u, m = reads[issued[0]]
            q = stg[issued[0] % len(stg)]
            body.append((f"ds_read_b128 {vr(q)}, v{vL} offset:{vsrc(u)[1]*2048+m*1024}", vsrc(u)[2], None))
            issued[0] += 1

    pairs = []
    for u in order:
        if u // 2 not in pairs:
            pairs.append(u // 2)
    pidx = {k: i for i, k in enumerate(pairs)}

    def E(k):
        c = SC + k
        return f"v_fma_f32 v{c}, v{c}, s{sC}, -v{vCM}\nv_exp_f32 v{c}, v{c}\n"

    def F(k):
        c = SC + k
        return f"v_add_f32 v{vLS}, v{vLS}, v{c}\nv_cvt_pk_bf16_f32 v{PP[pidx[k]&1]}, v{c}, v{c}\n"

    def Gm(i):
        u = order[i]
        pp = PP[pidx[u // 2] & 1]
        rho = u & 1
        t = ""
        for r in range(4):
            if (r >> 1) == rho:
                t += f"v_and_b32 v{T[i&1]+r}, v{pp}, v{MASK+r}\n"
        for r in range(4):
            if (r >> 1) != rho:
                sh = "row_shr:4" if rho == 0 else "row_shl:4"
                t += f"v_and_b32_dpp v{T[i&1]+r}, v{pp}, v{MASK+r} {sh} {DPPF} bound_ctrl:0\n"
        return t

    t = E(pairs[0])
    if len(pairs) > 1:
        t += E(pairs[1])
    else:
        t += "s_nop 0\n"
    t += F(pairs[0]) + Gm(0)
    body.append((t, None, None))
    edone = min(2, len(pairs))
    fdone = 1
    first_lds_started = False
    for i in range(n):
        u = order[i]
        nxt = [order[j] for j in range(i, min(n, i + 3))]
        if not first_lds_started and any(vsrc(x)[0] == "lds" for x in nxt):
            issue_reads(len(stg))
            first_lds_started = True
        t = ""
        if i + 1 < n:
            k1 = pidx[order[i + 1] // 2]
            if k1 >= fdone:
                t += F(pairs[k1])
                fdone = k1 + 1
                if edone < len(pairs):
                    t += E(pairs[edone])
                    edone += 1
            t += Gm(i + 1)
        else:
            t += "s_nop 1\n"
        body.append((t, None, None))
        src = vsrc(u)
        for m in range(2):
            acc = QA + 4 * m
            cin = "0" if i == 0 else vr(acc)
            if src[0] == "reg":
                body.append((f"v_mfma_f32_16x16x32_bf16 {vr(acc)}, {vr(T[i&1])}, {vr(radd(src[1],4*m))}, {cin}", src[2], None))
            else:
                j = rpos[(u, m)]
                q = stg[j % len(stg)]
                body.append((f"s_waitcnt lgkmcnt({issued[0]-j-1})\nv_mfma_f32_16x16x32_bf16 {vr(acc)}, {vr(T[i&1])}, {vr(q)}, {cin}", None, u if m == 1 else None))
                issue_reads(j + 1 + len(stg))
    return body


def emit_groups(gs):
    for g in gs:
        A(g[0])


def q_loads():
    return (f"buffer_load_dwordx4 {vr(QA)}, v{vQ}, {srd(SRD_WS)}, s{sQOFF} offen sc1\n"
            f"buffer_load_dwordx4 {vr(QA+4)}, v{vQ}, {srd(SRD_WS)}, s{sQOFF} offen offset:256 sc1")


def poll_q_blocking():
    lp, done = A.label("qpoll"), A.label("qdone")
    A(f"{lp}:")
    spin_guard(done)
    A(q_loads())
    A("s_waitcnt vmcnt(0)")
    sentinel_check(range(QA, QA + 8), vT, lp)
    A(f"{done}:")
    A("s_nop 1")


VL_UNITS = list(range(NVREG, NKA))
vslot = lambda u: u - NVREG
loads = []
it = ld_items_lds(SRD_VA, vV, vVd, sOFFA, VL_UNITS[:-1], vslot)
loads += [(t, ("V", u), None) for t, u in it]
it = ld_items_lds(SRD_VA, vV, vVd, sOFFA36, [0], lambda u: vslot(36))
loads += [(t, ("V", 36), None) for t, u in it]
it = ld_items_reg(SRD_KA, vK, sOFFA, list(range(36)), half)
kl = [(t, ("K", u), None) for t, u in it]
it = ld_items_reg(SRD_KA, vK, sOFFA36, [0], lambda u: half(36))
kl += [(t, ("K", 36), None) for t, u in it]
ca_load = (f"v_mov_b32 v{vT}, 0\nbuffer_load_dword v{vCM}, v{vT}, {srd(SRD_DBG)}, 0 offen sc1", ("CA",), None)
loads += kl[:8] + [ca_load] + kl[8:24]
QPOS = len(loads)
loads += kl[24:]
it = ld_items_reg(SRD_VA, vV, sOFFA, list(range(NVREG)), lambda u: half(NKA + u))
loads += [(t, ("V", u), None) for t, u in it]
NA_LOADS = len(loads)
BV9 = 42
STG_B = [50, 56, 60, 64, 68]


def b_loads():
    bl = []
    it = ld_items_lds(SRD_KB, vK, vKd, sOFFB, list(range(8)), lambda u: u)
    bl += [(t, ("BK", u), u | 1) for t, u in it]
    it = ld_items_lds(SRD_KB, vK, vKd, sOFFB, [8], lambda u: u)
    bl += [(t, ("BK", u), u) for t, u in it]
    it = ld_items_lds(SRD_KB, vK, vKd, sOFFB9, [0], lambda u: 9)
    bl += [(t, ("BK", 9), 9) for t, u in it]
    it = ld_items_lds(SRD_VB, vV, vVd, sOFFB, list(range(9)), lambda u: 10 + u)
    bl += [(t, ("BV", u), min(18, (10 + u) | 1)) for t, u in it]
    it = ld_items_reg(SRD_VB, vV, sOFFB9, [0], lambda u: BV9)
    bl += [(t, ("BV", 9), None) for t, u in it]
    return bl


BL = b_loads()
NB_EARLY = 8
loads += BL[:NB_EARLY]

ksrcA = lambda u: ("reg", half(u), ("K", u))
vsrcA = lambda u: ("reg", half(NKA + u), ("V", u)) if u < NVREG else ("lds", vslot(u), ("V", u))

g0, pre, body = qk_groups(NKA, ksrcA, sBIASA, STG_A)
comp = [(t, n, None) for t, n in g0 + pre + body] + [max_group() + (None,)]
comp += pv_groups(VL_UNITS + list(range(NVREG)), vsrcA, STG_A)

LAG = 10
last_of = {}
nissued = 0
released = set()
ci = 0


def emit_comp(g):
    t, need, rel = g
    if need is not None:
        n = nissued - last_of[need] - 1
        A(f"s_waitcnt vmcnt({min(n, 63)})")
    A(t)
    if rel is not None:
        released.add(vslot(rel))


qready = False
li = 0
while li < len(loads):
    if li == QPOS:
        n = nissued - last_of[("CA",)] - 1
        ok, lp = A.label("caok"), A.label("calp")
        A(f"s_waitcnt vmcnt({n})\nv_readfirstlane_b32 s{sT3}, v{vCM}\ns_cmp_ge_u32 s{sT3}, 32\ns_cbranch_scc1 {ok}")
        A(f"{lp}:")
        spin_guard(ok)
        A(f"buffer_load_dword v{vCM}, v{vT}, {srd(SRD_DBG)}, 0 offen sc1\ns_waitcnt vmcnt(0)\nv_readfirstlane_b32 s{sT3}, v{vCM}\ns_cmp_ge_u32 s{sT3}, 32\ns_cbranch_scc0 {lp}")
        A(f"{ok}:")
        A(q_loads())
        nissued += 2
        last_of[("Q",)] = nissued - 1
    if li == QPOS + 12:
        n = nissued - last_of[("Q",)] - 1
        slow, ok = A.label("qslow"), A.label("qok")
        A(f"s_waitcnt vmcnt({n})")
        sentinel_check(range(QA, QA + 8), vT, slow)
        A(f"s_branch {ok}\n{slow}:")
        poll_q_blocking()
        A(f"{ok}:")
        stamp(1)
        qready = True
    t, tag, req = loads[li]
    if req is not None and req not in released:
        emit_comp(comp[ci])
        ci += 1
        continue
    A(t)
    last_of[tag] = nissued
    nissued += 1
    li += 1
    if qready:
        cnt = 0
        while ci < len(comp) and cnt < 6:
            need = comp[ci][1]
            if need is not None and (need not in last_of or nissued - last_of[need] - 1 < LAG or
                                     (li < len(loads) and loads[li][1] == need)):
                break
            emit_comp(comp[ci])
            ci += 1
            cnt += 1
stamp(2)
while ci < len(comp):
    emit_comp(comp[ci])
    ci += 1

A("L_reduce:")
R0 = SC
A(f"v_add_f32_dpp v{vLS}, v{vLS}, v{vLS} row_half_mirror {DPPF}")
xrow_reduce("v_add_f32", vLS, vT)
A(f"v_bfe_u32 v{R0}, v0, 3, 1\nv_lshlrev_b32 v{R0}, 5, v{R0}\ns_lshl_b32 s{sT0}, s{sWAVE}, 3\ns_add_u32 s{sT0}, s{sT0}, {MLBASE}\nv_add_u32 v{R0}, s{sT0}, v{R0}")
A(f"ds_write_b64 v{R0}, v[{vCM}:{vLS}]")
A(f"v_lshrrev_b32 v{R0+1}, 5, v0\nv_lshlrev_b32 v{R0+1}, 5, v{R0+1}\nv_add_u32 v{R0+1}, {MLBASE}, v{R0+1}")
A(f"s_cmp_lt_u32 s{sWAVE}, 2\ns_cbranch_scc1 L_red_01")
A(f"s_lshl_b32 s{sT0}, s{sWAVE}, 10\ns_sub_u32 s{sT0}, s{sT0}, 1024\nv_add_u32 v{R0+2}, s{sT0}, v{vX}")
A(f"ds_write_b128 v{R0+2}, {vr(QA)}\nds_write_b128 v{R0+2}, {vr(QA+4)} offset:3072")
A("s_waitcnt lgkmcnt(0)\ns_barrier\ns_branch L_red_done")
A("L_red_01:")
A(f"s_cmp_eq_u32 s{sWAVE}, 0\ns_cbranch_scc1 L_red_0")
A(f"ds_write_b128 v{vX}, {vr(QA)}")
A(f"v_add_u32 v{R0+2}, 3072, v{vX}")
A("s_waitcnt lgkmcnt(0)")
for r in range(4):
    A(f"v_mov_b32 v{QA+r}, v{QA+4+r}")
A("s_branch L_red_c")
A("L_red_0:")
A(f"ds_write_b128 v{vX}, {vr(QA+4)} offset:3072")
A(f"v_mov_b32 v{R0+2}, v{vX}")
A("s_waitcnt lgkmcnt(0)")
A("L_red_c:")
A("s_barrier")
ML = 56
XR = 20
A(f"ds_read_b128 {vr(ML)}, v{R0+1}\nds_read_b128 {vr(ML+4)}, v{R0+1} offset:16")
for s in range(3):
    A(f"ds_read_b128 {vr(XR+4*s)}, v{R0+2} offset:{1024*s}")
Mx, F0 = 64, 66
A("s_waitcnt lgkmcnt(3)")
A(f"v_max3_f32 v{Mx}, v{ML}, v{ML+2}, v{ML+4}\nv_max_f32 v{Mx}, v{Mx}, v{ML+6}")
for w in range(4):
    A(f"v_sub_f32 v{F0+w}, v{ML+2*w}, v{Mx}")
for w in range(4):
    A(f"v_exp_f32 v{F0+w}, v{F0+w}")
A(f"s_cmp_eq_u32 s{sWAVE}, 0")
A(f"v_mul_f32 v{Mx+1}, v{F0}, v{ML+1}")
for w in range(1, 4):
    A(f"v_fmac_f32 v{Mx+1}, v{F0+w}, v{ML+2*w+1}")
A("s_cbranch_scc1 L_red_sw")
A(f"v_mov_b32 v{vT}, v{F0}\nv_mov_b32 v{F0}, v{F0+1}\nv_mov_b32 v{F0+1}, v{vT}")
A("L_red_sw:")
for r in range(4):
    A(f"v_mul_f32 v{QA+r}, v{F0}, v{QA+r}")
A("s_waitcnt lgkmcnt(0)")
for s in range(3):
    for r in range(4):
        A(f"v_fmac_f32 v{QA+r}, v{F0+1+s}, v{XR+4*s+r}")
for r in range(4):
    A(f"v_min_u32 v{QA+r}, -2, v{QA+r}")
A(f"s_lshl_b32 s{sT0}, s{sWAVE}, 9\ns_add_u32 s{sT0}, s{sT0}, s{sPOOFF}")
A(f"buffer_store_dwordx4 {vr(QA)}, v{vPO}, {srd(SRD_WS)}, s{sT0} offen sc1")
A(f"s_cmp_eq_u32 s{sWAVE}, 0\ns_cbranch_scc0 L_red_done")
A(f"v_min_u32 v{Mx}, -2, v{Mx}\nv_min_u32 v{Mx+1}, -2, v{Mx+1}")
A(f"v_lshrrev_b32 v{vT}, 5, v0\nv_lshlrev_b32 v{vT}, 8, v{vT}")
A("s_mov_b32 exec_lo, 1\ns_mov_b32 exec_hi, 1")
A(f"buffer_store_dwordx2 v[{Mx}:{Mx+1}], v{vT}, {srd(SRD_WS)}, s{sMLOFF} offen sc1")
A("s_mov_b64 exec, -1")
A("L_red_done:")
A(f"s_add_u32 s{sQOFF}, s{sQOFF}, 8192\ns_add_u32 s{sPOOFF}, s{sPOOFF}, {PO_L}\ns_add_u32 s{sMLOFF}, s{sMLOFF}, 4096")
A(f"s_add_u32 s{sLAYER}, s{sLAYER}, 1")
A(f"s_cmp_eq_u32 s{sLAYER}, 2\ns_cbranch_scc1 L_after2")
A(f"s_cmp_eq_u32 s{sLAYER}, 3\ns_cbranch_scc1 L_after3")
A(f"s_cmp_eq_u32 s{sLAYER}, 4\ns_cbranch_scc1 L_att_end")
stamp(3)
A("s_branch L_bl_rest")
A("L_after3:")
stamp(9)
for t, tag, req in BL[:NB_EARLY]:
    A(t)
A("L_bl_rest:")
for t, tag, req in BL[NB_EARLY:]:
    A(t)
A("s_waitcnt vmcnt(0)")
if PROFILE:
    A(f"s_cmp_eq_u32 s{sLAYER}, 1\ns_cbranch_scc0 L_ps1")
    stamp(4)
    A("s_branch L_ps2\nL_ps1:")
    stamp(10)
    A("L_ps2:")
ksrcB = lambda u: ("lds", u, None)
vsrcB = lambda u: ("lds", 10 + u, None) if u < 9 else ("reg", BV9, None)
g0, pre, body = qk_groups(10, ksrcB, sBIASB, STG_B)
emit_groups(g0)
emit_groups(pre)
poll_q_blocking()
if PROFILE:
    A(f"s_cmp_eq_u32 s{sLAYER}, 1\ns_cbranch_scc0 L_ps3")
    stamp(5)
    A("s_branch L_ps4\nL_ps3:")
    stamp(11)
    A("L_ps4:")
emit_groups(body)
emit_groups([max_group()])
emit_groups(pv_groups(list(range(10)), vsrcB, STG_B))
A("s_branch L_reduce")

A("L_after2:")
stamp(6)
for t, tag, req in loads[:2 * NSLOT]:
    A(t)
nul = lambda f: (lambda u: f(u)[:2] + (None,))
g0, pre, body = qk_groups(NKA, nul(ksrcA), sBIASA, STG_A)
emit_groups(g0)
poll_q_blocking()
stamp(7)
emit_groups(body)
emit_groups([max_group()])
stamp(8)
emit_groups(pv_groups(list(range(NKA)), nul(vsrcA), STG_A))
A("s_branch L_reduce")

A("L_att_end:")
stamp(12)
A("s_branch L_fin")

A("L_chain:")
cWq, cWo, cPOg, cMLg, cL16, cXl, cT = 1, 2, 3, 4, 5, 6, 7
cX = 12
cVAL = 19
cTT = [20, 24]
cACC = 28
cG = 36
cN = 68
cM = 84
cYst, cQst, cSCR, cXSw, cCol = 84, 85, 86, 87, 88
WQ = {0: ("a", 0), 1: ("a", 112)}
WO0 = {0: ("v", 96), 1: ("v", 160)}


def wo1(t):
    return ("v", 224 + 4 * t) if t < 8 else ("a", 224 + 4 * (t - 8))


CSCR = 131072
YX = CSCR
XS = CSCR + 4096
QX = CSCR + 8192
sCH = sSP
WQB = 448 * 4096 * 2

mk_srd(SRD_WQA, pAWQ, WQB)
mk_srd(SRD_WOA, pAWO, WQB)
mk_srd(SRD_WQB, pBWQ, WQB)
mk_srd(SRD_WOB, pBWO, WQB)
mk_srd(SRD_X, pAX, 896)
mk_srd(SRD_OUT, pOUT, 896)
A(f"s_lshl_b32 s{sT0}, s{sG}, 2\ns_add_u32 s{sCH}, s{sT0}, s{sSP}")
A("v_lshrrev_b32 v20, 4, v0       ; s / row")
A("v_and_b32 v21, 15, v0          ; j / c16")
A("v_lshlrev_b32 v22, 4, v21      ; j*16")
A(f"v_lshl_add_u32 v{cWq}, v20, 17, v22")
A(f"v_mul_u32_u24 v{cWo}, 896, v20\nv_add_u32 v{cWo}, v{cWo}, v22")
A(f"s_lshl_b32 s{sT0}, s{sWAVE}, 2\nv_add_u32 v23, s{sT0}, v21\nv_and_b32 v23, 15, v23\nv_lshl_add_u32 v23, v20, 4, v23")
A(f"v_lshlrev_b32 v{cCol}, 1, v23")
A(f"v_lshlrev_b32 v{cXl}, 2, v23\nv_add_u32 v{cXl}, {XS}, v{cXl}")
for k in range(7):
    A(f"buffer_load_ushort v{cX+k}, v{cCol}, {srd(SRD_X)}, 0 offen offset:{128*k}")


def wq_loads(which):
    s = SRD_WQA if which == 0 else SRD_WQB
    A(f"s_lshl_b32 s{sT0}, s{sWAVE}, 15\ns_lshl_b32 s{sT1}, s{sCH}, 8\ns_add_u32 s{sT0}, s{sT0}, s{sT1}")
    for k in range(7):
        for cc in range(4):
            A(f"s_add_u32 s{sT1}, s{sT0}, {(64*k+cc)*8192}")
            A(f"buffer_load_dwordx4 {vr(radd(WQ[which], 4*(4*k+cc)))}, v{cWq}, {srd(s)}, s{sT1} offen nt")


def wo_loads(which):
    s = SRD_WOA if which == 0 else SRD_WOB
    A(f"s_lshr_b32 s{sT0}, s{sCH}, 1\ns_lshl_b32 s{sT0}, s{sT0}, 2\ns_add_u32 s{sT0}, s{sT0}, s{sWAVE}\ns_mul_i32 s{sT0}, s{sT0}, {64*896}")
    A(f"s_and_b32 s{sT1}, s{sCH}, 1\ns_mul_i32 s{sT1}, s{sT1}, 448\ns_add_u32 s{sT0}, s{sT0}, s{sT1}")
    A(f"s_lshl_b32 s{sT2}, s{sWAVE}, 14\ns_add_u32 s{sT2}, s{sT2}, {which*65536}")
    for t in range(16):
        A(f"s_add_u32 s{sT1}, s{sT0}, {4*t*896}")
        A(f"buffer_load_dwordx4 {vr(radd(WO0[which], 4*t))}, v{cWo}, {srd(s)}, s{sT1} offen nt")
        A(f"s_add_u32 s{sT1}, s{sT1}, 256\ns_add_u32 s{sT3}, s{sT2}, {t*1024}\ns_mov_b32 m0, s{sT3}\ns_nop 0")
        A(f"buffer_load_dwordx4 v{cWo}, {srd(s)}, s{sT1} offen nt lds")


stamp(0)
A(f"v_lshlrev_b32 v{cL16}, 4, v0")
A(f"s_lshl_b32 s{sYST}, s{sCH}, 10\ns_add_u32 s{sYST}, s{sYST}, {WS_Y}")
A(f"s_lshl_b32 s{sQST}, s{sCH}, 8")
A(f"s_cmp_eq_u32 s{sWAVE}, 3\ns_cbranch_scc0 L_ch_noclear")
A("v_mov_b32 v24, -1\nv_mov_b32 v25, -1\nv_mov_b32 v26, -1\nv_mov_b32 v27, -1")
for l in range(4):
    A(f"s_add_u32 s{sT0}, s{sYST}, {l*32768}")
    A(f"buffer_store_dwordx4 v[24:27], v{cL16}, {srd(SRD_WS)}, s{sT0} offen sc1")
A("v_lshl_add_u32 v28, v20, 13, v22")
A(f"buffer_store_dwordx4 v[24:27], v28, {srd(SRD_WS)}, s{sQST} offen sc1")
A("s_waitcnt vmcnt(0)")
A("s_mov_b64 exec, 1")
A("v_mov_b32 v28, 0\nv_mov_b32 v29, 1")
A(f"buffer_atomic_add v29, v28, {srd(SRD_DBG)}, 0 offen")
A("s_mov_b64 exec, -1")
A("L_ch_noclear:")
wq_loads(0)
A(f"v_mul_u32_u24 v{cPOg}, 7168, v20\nv_add_u32 v{cPOg}, v{cPOg}, v22\ns_lshl_b32 s{sT0}, s{sWAVE}, 8\nv_add_u32 v{cPOg}, s{sT0}, v{cPOg}")
A(f"v_min_u32 v23, 6, v21\nv_mul_u32_u24 v24, 7, v20\nv_add_u32 v23, v23, v24\nv_lshlrev_b32 v{cMLg}, 3, v23")
A(f"v_cmp_gt_u32 vcc, 7, v21\ns_nop 1\nv_cndmask_b32 v{cVAL}, 0, 1.0, vcc")
A(f"v_lshrrev_b32 v23, 5, v0\nv_lshlrev_b32 v23, 9, v23\nv_lshl_add_u32 v23, v21, 5, v23\nv_and_b32 v24, 1, v20\nv_lshl_add_u32 v{cYst}, v24, 4, v23")
A(f"v_lshlrev_b32 v23, 3, v24\nv_add_u32 v{cQst}, v22, v23")
A(f"v_add_u32 v{cSCR}, {CSCR}, v{cL16}")
A(f"s_lshr_b32 s{sT0}, s{sWAVE}, 1\ns_lshl_b32 s{sT0}, s{sT0}, 11\ns_and_b32 s{sT1}, s{sWAVE}, 1\ns_mul_i32 s{sT1}, s{sT1}, 896\ns_add_u32 s{sT0}, s{sT0}, s{sT1}\ns_add_u32 s{sT0}, s{sT0}, {XS}")
A(f"v_add_u32 v{cXSw}, s{sT0}, v{cL16}")
A(f"s_lshr_b32 s{sT0}, s{sCH}, 1\ns_mul_i32 s{sPOOFF}, s{sT0}, 28672\ns_add_u32 s{sPOOFF}, s{sPOOFF}, {WS_PO}")
A(f"s_lshl_b32 s{sMLOFF}, s{sT0}, 8\ns_add_u32 s{sMLOFF}, s{sMLOFF}, {WS_ML}")
A(f"s_lshr_b32 s{sT0}, s{sWAVE}, 1\ns_lshl_b32 s{sT0}, s{sT0}, 14\ns_and_b32 s{sT1}, s{sWAVE}, 1\ns_lshl_b32 s{sT1}, s{sT1}, 10\ns_add_u32 s{sYOFF}, s{sT0}, s{sT1}\ns_add_u32 s{sYOFF}, s{sYOFF}, {WS_Y}")
emit_masks(0, MASK, 20, 21)
wo_loads(0)
A("s_waitcnt vmcnt(32)")
for k in range(7):
    A(f"v_lshlrev_b32 v{cX+k}, 16, v{cX+k}")
stamp(1)
A("s_branch L_ch_ln")


def full_reduce2(a, b, t):
    for ctl in ("quad_perm:[1,0,3,2]", "quad_perm:[2,3,0,1]", "row_half_mirror", "row_mirror"):
        A("s_nop 0")
        A(f"v_add_f32_dpp v{a}, v{a}, v{a} {ctl} {DPPF}")
        A(f"v_add_f32_dpp v{b}, v{b}, v{b} {ctl} {DPPF}")
    for sw in ("v_permlane32_swap_b32", "v_permlane16_swap_b32"):
        A(f"v_mov_b32 v{t}, v{a}\nv_mov_b32 v{t+1}, v{b}\ns_nop 1")
        A(f"{sw} v{a}, v{t}\n{sw} v{b}, v{t+1}")
        A(f"v_add_f32 v{a}, v{a}, v{t}\nv_add_f32 v{b}, v{b}, v{t+1}")


def bf16r(dst, src):
    A(f"v_cvt_pk_bf16_f32 v{dst}, v{src}, v{src}\nv_and_b32 v{dst}, 0xffff0000, v{dst}")


A("L_ch_stageA:")
A(f"s_and_b32 s{sT0}, s{sLAYER}, 1\ns_lshl_b32 s{sT0}, s{sT0}, 16\ns_lshl_b32 s{sT1}, s{sWAVE}, 14\ns_add_u32 s{sT0}, s{sT0}, s{sT1}")
A(f"v_add_u32 v{cT}, s{sT0}, v{cL16}")
for t in range(16):
    A(f"ds_read_b128 {vr(wo1(t))}, v{cT} offset:{t*1024}")
A("s_waitcnt lgkmcnt(0)")
A(f"s_add_u32 s{sT0}, s{sPOOFF}, 4096")
cML = cG + 28
A("L_sa_poll:")
spin_guard("L_sa_go")
A(f"buffer_load_dwordx2 v[{cML}:{cML+1}], v{cMLg}, {srd(SRD_WS)}, s{sMLOFF} offen sc1")
for u in range(7):
    so = sPOOFF if u < 4 else sT0
    A(f"buffer_load_dwordx4 {vr(cG+4*u)}, v{cPOg}, {srd(SRD_WS)}, s{so} offen offset:{(u%4)*1024} sc1")
A("s_waitcnt vmcnt(0)")
sentinel_check(range(cG, cG + 30), cT, "L_sa_poll")
A("L_sa_go:")
if PROFILE:
    for l in range(4):
        lb = A.label("ps")
        A(f"s_cmp_eq_u32 s{sLAYER}, {l}\ns_cbranch_scc0 {lb}")
        stamp(3 + 4 * l)
        A(f"{lb}:")
mM, mW, mL = cN, cN + 1, cN + 2
A(f"v_max_f32_dpp v{mM}, v{cML}, v{cML} quad_perm:[1,0,3,2] {DPPF}")
for ctl in ("quad_perm:[2,3,0,1]", "row_half_mirror"):
    A(f"s_nop 1\nv_max_f32_dpp v{mM}, v{mM}, v{mM} {ctl} {DPPF}")
xrow_reduce("v_max_f32", mM, cT)
A(f"v_sub_f32 v{mW}, v{cML}, v{mM}\nv_exp_f32 v{mW}, v{mW}\nv_mul_f32 v{mL}, v{cML+1}, v{cVAL}\nv_mul_f32 v{mL}, v{mL}, v{mW}")
oa = cN + 4
red_steps = [f"v_add_f32_dpp v{mL}, v{mL}, v{mL} {c} {DPPF}" for c in
             ("quad_perm:[1,0,3,2]", "quad_perm:[2,3,0,1]", "row_half_mirror", "row_mirror")]
A("s_nop 0")
for u in range(7):
    for r in range(4):
        op = "v_mul_f32_dpp" if u == 0 else "v_fmac_f32_dpp"
        A(f"{op} v{oa+r}, v{mW}, v{cG+4*u+r} row_newbcast:{u} {DPPF}")
    if u < 4:
        A(red_steps[u])
xrow_reduce("v_add_f32", mL, cT)
A(f"v_rcp_f32 v{mL}, v{mL}")
A(f"v_permlane32_swap_b32 v{oa}, v{oa+2}\nv_permlane32_swap_b32 v{oa+1}, v{oa+3}")
A(f"v_add_f32 v{oa}, v{oa}, v{oa+2}\nv_add_f32 v{oa+1}, v{oa+1}, v{oa+3}\ns_nop 1")
A(f"v_permlane16_swap_b32 v{oa}, v{oa+1}\nv_add_f32 v{oa}, v{oa}, v{oa+1}")
A(f"v_mul_f32 v{oa}, v{oa}, v{mL}\nv_cvt_pk_bf16_f32 v{oa}, v{oa}, v{oa}\ns_nop 1")
A(f"s_and_b32 s{sT0}, s{sLAYER}, 1\ns_cmp_eq_u32 s{sT0}, 1\ns_cbranch_scc1 L_sa_B")
for which in range(2):
    if which == 1:
        A("L_sa_B:")

    def gm(t):
        for r in range(4):
            A(f"v_and_b32_dpp v{cTT[t&1]+r}, v{oa}, v{MASK+r} row_newbcast:{t} {DPPF}")
    gm(0)
    for t in range(16):
        if t + 1 < 16:
            gm(t + 1)
        else:
            A("s_nop 1")
        A(f"v_mfma_f32_16x16x32_bf16 {vr(cACC)}, {vr(cTT[t&1])}, {vr(radd(WO0[which],4*t))}, {'0' if t == 0 else vr(cACC)}")
        A(f"v_mfma_f32_16x16x32_bf16 {vr(cACC+4)}, {vr(cTT[t&1])}, {vr(wo1(t))}, {'0' if t == 0 else vr(cACC+4)}")
    if which == 0:
        A("s_branch L_sa_red")
A("L_sa_red:")
A(f"s_lshl_b32 s{sT0}, s{sWAVE}, 10\nv_add_u32 v{cT}, s{sT0}, v{cSCR}")
A("s_mov_b32 exec_lo, 0\ns_nop 5")
for r in range(4):
    A(f"v_mov_b32 v{cACC+r}, v{cACC+4+r}")
A("s_mov_b32 exec_lo, -1")
A(f"s_cmp_eq_u32 s{sWAVE}, 0\ns_cbranch_scc1 L_sa_w0")
A(f"ds_write_b128 v{cT}, {vr(cACC)}\ns_waitcnt lgkmcnt(0)\ns_barrier\ns_branch L_sb")
A("L_sa_w0:\ns_barrier")
for s in range(1, 4):
    A(f"ds_read_b128 {vr(cG+4*s)}, v{cSCR} offset:{1024*s}")
for s in range(1, 4):
    A(f"s_waitcnt lgkmcnt({3-s})")
    for r in range(4):
        A(f"v_add_f32 v{cACC+r}, v{cACC+r}, v{cG+4*s+r}")
for r in range(4):
    A(f"v_min_u32 v{cACC+r}, -2, v{cACC+r}")
A(f"buffer_store_dwordx4 {vr(cACC)}, v{cYst}, {srd(SRD_WS)}, s{sYST} offen sc1")
A("L_sb:")
if PROFILE:
    for l in range(4):
        lb = A.label("ps")
        A(f"s_cmp_eq_u32 s{sLAYER}, {l}\ns_cbranch_scc0 {lb}")
        stamp(4 + 4 * l)
        A(f"{lb}:")
A(f"s_cmp_eq_u32 s{sLAYER}, 3\ns_cbranch_scc0 L_sb_go0\ns_cmp_eq_u32 s{sCH}, 0\ns_cbranch_scc0 L_fin\nL_sb_go0:")
for i in range(1, 4):
    A(f"s_add_u32 s{sT0+i-1}, s{sYOFF}, {4096*i}")
A("L_sb_poll:")
spin_guard("L_sb_go")
for i in range(8):
    so = sYOFF if i < 2 else sT0 + (i // 2) - 1
    A(f"buffer_load_dwordx4 {vr(cG+4*i)}, v{cL16}, {srd(SRD_WS)}, s{so} offen offset:{(i%2)*2048} sc1")
A("s_waitcnt vmcnt(0)")
sentinel_check(range(cG, cG + 32), cT, "L_sb_poll")
A("L_sb_go:")
if PROFILE:
    for l in range(4):
        lb = A.label("ps")
        A(f"s_cmp_eq_u32 s{sLAYER}, {l}\ns_cbranch_scc0 {lb}")
        stamp(5 + 4 * l)
        A(f"{lb}:")
for st in (4, 2, 1):
    for i in range(st):
        for r in range(4):
            A(f"v_add_f32 v{cG+4*i+r}, v{cG+4*i+r}, v{cG+4*(i+st)+r}")
A("s_mov_b32 exec_hi, 0x00ffffff")
A(f"ds_write_b128 v{cXSw}, {vr(cG)}")
A("s_mov_b32 exec_hi, -1")
A("s_waitcnt lgkmcnt(0)\ns_barrier")
for k in range(7):
    A(f"ds_read2st64_b32 v[{cN+2*k}:{cN+2*k+1}], v{cXl} offset0:{k} offset1:{k+8}")
for k in range(7):
    A(f"s_waitcnt lgkmcnt({6-k})")
    A(f"v_add_f32 v{cN+2*k}, v{cN+2*k}, v{cN+2*k+1}")
    bf16r(cN + 2 * k, cN + 2 * k)
    A(f"v_add_f32 v{cX+k}, v{cX+k}, v{cN+2*k}")
    bf16r(cX + k, cX + k)
A(f"s_add_u32 s{sLAYER}, s{sLAYER}, 1")
A(f"s_add_u32 s{sPOOFF}, s{sPOOFF}, {PO_L}\ns_add_u32 s{sMLOFF}, s{sMLOFF}, 4096\ns_add_u32 s{sYOFF}, s{sYOFF}, 32768\ns_add_u32 s{sYST}, s{sYST}, 32768\ns_add_u32 s{sQST}, s{sQST}, 8192")
A(f"s_cmp_eq_u32 s{sLAYER}, 4\ns_cbranch_scc0 L_ch_ln")
A(f"s_cmp_eq_u32 s{sWAVE}, 0\ns_cbranch_scc0 L_fin")
for k in range(7):
    A(f"buffer_store_short_d16_hi v{cX+k}, v{cCol}, {srd(SRD_OUT)}, 0 offen offset:{128*k}")
stamp(19)
A("s_branch L_fin")
A("L_ch_ln:")
s1, s2, tq = cN, cN + 1, cN + 2
dk = cN + 4
A("s_nop 0")
A(f"v_readfirstlane_b32 s{sT0}, v{cX}\ns_nop 1")
for k in range(7):
    A(f"v_subrev_f32 v{dk+k}, s{sT0}, v{cX+k}")
A(f"v_add_f32 v{s1}, v{dk}, v{dk+1}\nv_mul_f32 v{s2}, v{dk}, v{dk}")
for k in range(1, 7):
    if k >= 2:
        A(f"v_add_f32 v{s1}, v{s1}, v{dk+k}")
    A(f"v_fmac_f32 v{s2}, v{dk+k}, v{dk+k}")
A("s_nop 0")
full_reduce2(s1, s2, tq)
A(f"v_mul_f32 v{s1}, {f2u(1.0/448.0)}, v{s1}")
A(f"v_mul_f32 v{s2}, {f2u(1.0/448.0)}, v{s2}")
A(f"v_fma_f32 v{s2}, -v{s1}, v{s1}, v{s2}")
A(f"v_max_f32 v{s2}, 0, v{s2}")
A(f"v_add_f32 v{s1}, s{sT0}, v{s1}")
bf16r(s2, s2)
bf16r(s1, s1)
A(f"v_add_f32 v{s2}, {f2u(1e-5)}, v{s2}")
bf16r(s2, s2)
A(f"v_sqrt_f32 v{s2}, v{s2}")
for k in range(7):
    A(f"v_sub_f32 v{dk+k}, v{cX+k}, v{s1}")
bf16r(s2, s2)
A(f"v_rcp_f32 v{s2}, v{s2}")
for k in range(7):
    bf16r(dk + k, dk + k)
for k in range(7):
    A(f"v_mul_f32 v{dk+k}, v{dk+k}, v{s2}")
for k in range(7):
    A(f"v_cvt_pk_bf16_f32 v{dk+k}, v{dk+k}, v{dk+k}")
A(f"s_and_b32 s{sT0}, s{sLAYER}, 1\ns_cmp_eq_u32 s{sT0}, 1\ns_cbranch_scc1 L_qp_B")
for which in range(2):
    if which == 1:
        A("L_qp_B:")

    def gq(i):
        for r in range(4):
            A(f"v_and_b32_dpp v{cTT[i&1]+r}, v{dk+i//4}, v{MASK+r} row_newbcast:{i%4} {DPPF}")
    gq(0)
    for i in range(28):
        if i + 1 < 28:
            gq(i + 1)
        else:
            A("s_nop 1")
        A(f"v_mfma_f32_16x16x32_bf16 {vr(cACC)}, {vr(cTT[i&1])}, {vr(radd(WQ[which],4*i))}, {'0' if i == 0 else vr(cACC)}")
    if which == 0:
        A("s_branch L_qp_red")
A("L_qp_red:")
A(f"s_lshl_b32 s{sT0}, s{sWAVE}, 10\nv_add_u32 v{cT}, s{sT0}, v{cSCR}")
A(f"s_cmp_eq_u32 s{sWAVE}, 0\ns_cbranch_scc1 L_qp_w0")
A("s_nop 4")
A(f"ds_write_b128 v{cT}, {vr(cACC)} offset:8192\ns_waitcnt lgkmcnt(0)\ns_barrier\ns_branch L_qp_done")
A("L_qp_w0:\ns_barrier")
for s in range(1, 4):
    A(f"ds_read_b128 {vr(cG+4*s)}, v{cSCR} offset:{8192+1024*s}")
A("s_nop 2")
for s in range(1, 4):
    A(f"s_waitcnt lgkmcnt({3-s})")
    for r in range(4):
        A(f"v_add_f32 v{cACC+r}, v{cACC+r}, v{cG+4*s+r}")
A(f"v_cvt_pk_bf16_f32 v{cACC}, v{cACC}, v{cACC+1}\nv_cvt_pk_bf16_f32 v{cACC+1}, v{cACC+2}, v{cACC+3}")
A(f"v_min_u32 v{cACC}, -2, v{cACC}\nv_min_u32 v{cACC+1}, -2, v{cACC+1}")
A("s_mov_b32 exec_hi, 0")
A(f"buffer_store_dwordx2 v[{cACC}:{cACC+1}], v{cQst}, {srd(SRD_WS)}, s{sQST} offen sc1")
A("s_mov_b32 exec_hi, -1")
A("L_qp_done:")
if PROFILE:
    for l in range(4):
        lb = A.label("ps")
        A(f"s_cmp_eq_u32 s{sLAYER}, {l}\ns_cbranch_scc0 {lb}")
        stamp(2 + 4 * l)
        A(f"{lb}:")
A(f"s_cmp_eq_u32 s{sLAYER}, 0\ns_cbranch_scc0 L_ch_stageA")
wq_loads(1)
wo_loads(1)
A("L_ch_cnt:")
spin_guard("L_ch_cnt_ok")
A(f"v_mov_b32 v{cT}, 0")
A(f"buffer_load_dword v{cG}, v{cT}, {srd(SRD_DBG)}, 0 offen sc1\nbuffer_load_dword v{cG+1}, v{cT}, {srd(SRD_DBG)}, 0 offen offset:128 sc1")
A(f"s_waitcnt vmcnt(0)\nv_readfirstlane_b32 s{sT0}, v{cG}\nv_readfirstlane_b32 s{sT1}, v{cG+1}")
A(f"s_cmp_ge_u32 s{sT0}, 32\ns_cbranch_scc0 L_ch_cnt\ns_cmp_ge_u32 s{sT1}, 224\ns_cbranch_scc0 L_ch_cnt")
A("L_ch_cnt_ok:")
A("L_ch_pre:")
spin_guard("L_ch_stageA")
A("s_sleep 4")
A(f"buffer_load_dwordx2 v[{cML}:{cML+1}], v{cMLg}, {srd(SRD_WS)}, s{sMLOFF} offen sc1\ns_waitcnt vmcnt(0)")
A(f"v_cmp_ne_u32 vcc, -1, v{cML}\ns_nop 0\ns_cmp_lg_u64 vcc, 0\ns_cbranch_scc0 L_ch_pre")
A("s_branch L_ch_stageA")

A("L_fin:")
if PROFILE:
    A(f"s_mul_i32 s{sT0}, s2, 640\ns_mul_i32 s{sT1}, s{sWAVE}, 160\ns_add_u32 s{sT0}, s{sT0}, s{sT1}\ns_add_u32 s{sT0}, s{sT0}, {WS_STAMP}")
    A("s_mov_b64 exec, 1\nv_mov_b32 v1, 0")
    for i in range(10):
        for r in range(4):
            A(f"v_mov_b32 v{4+r}, s{sSTAMP+4*i+r}")
        A(f"buffer_store_dwordx4 v[4:7], v1, {srd(SRD_WS)}, s{sT0} offen offset:{16*i}\ns_nop 1")
A("L_end:")
A("s_endpgm")

for l in A.L:
    OUT.append(l if l.endswith(":") else "    " + l)
OUT.append('.section .rodata,"a"')
OUT.append(".p2align 6")
OUT.append(f".amdhsa_kernel {NAME}_kernel")
OUT.append("""  .amdhsa_next_free_vgpr 512
  .amdhsa_next_free_sgpr 102
  .amdhsa_accum_offset 256
  .amdhsa_group_segment_fixed_size 0
  .amdhsa_kernarg_size 104
  .amdhsa_user_sgpr_count 2
  .amdhsa_user_sgpr_kernarg_segment_ptr 1
  .amdhsa_system_sgpr_workgroup_id_x 1
  .amdhsa_float_denorm_mode_32 3
.end_amdhsa_kernel""")
out = sys.argv[1] if len(sys.argv) > 1 else f"cdna_kernels/{NAME}.s"
open(out, "w").write("\n".join(OUT) + "\n")
print("wrote", out, len(A.L), "lines")
```

```python
import sys, os, struct

PROFILE = int(os.environ.get("PROFILE", "0"))
NAME = "interleave_layers__gqa_block_cached__sliding_block_cached__decode"

WS_Q = 0
WS_ML = 32768
WS_Y = 49152
WS_PO = 196608
PO_L = 16 * 28 * 1024
WS_STAMP = 4 << 20
WS_SIZE = 283117312
SPIN_MAX = 1 << 18

CSCALE = struct.unpack("<I", struct.pack("<f", 1.4426950408889634 / 16.0))[0]
NEG_INF = 0xFF800000


def f2u(x):
    return struct.unpack("<I", struct.pack("<f", x))[0]


class Asm:
    def __init__(self):
        self.L = []
        self.nlabel = 0

    def __call__(self, s):
        for line in s.split("\n"):
            line = line.strip()
            if line:
                self.L.append(line)

    def label(self, base):
        self.nlabel += 1
        return f"L_{base}_{self.nlabel}"


A = Asm()


def vr(r, n=4):
    if isinstance(r, int):
        r = ("v", r)
    k, i = r
    return f"{k}[{i}:{i+n-1}]" if n > 1 else f"{k}{i}"


def radd(r, d):
    if isinstance(r, int):
        return r + d
    return (r[0], r[1] + d)


DPPF = "row_mask:0xf bank_mask:0xf"

sWAVE = 3
SRD_KA, SRD_VA, SRD_KB, SRD_VB, SRD_WS, SRD_DBG = 4, 8, 12, 16, 20, 24
SRD_WQA, SRD_WOA, SRD_WQB, SRD_WOB = 4, 8, 12, 16
SRD_X, SRD_OUT = 28, 32
sOFFA, sOFFA36, sOFFB, sOFFB9 = 28, 29, 30, 31
sBIASA, sBIASB = 32, 33
sC = 36
sLDSW = 37
sT0, sT1, sT2, sT3 = 38, 39, 40, 41
sLAYER = 42
sSPIN = 43
sQOFF, sPOOFF, sMLOFF, sYOFF = 44, 45, 46, 47
sG, sSP = 48, 49
sYST, sQST = 50, 51
KARG = 52
sSTAMP = 60

nstamp = [0]


def srd(r):
    return f"s[{r}:{r+3}]"


def stamp(idx):
    if PROFILE:
        assert idx < 20
        if idx == 0:
            for i in range(1, 20):
                A(f"s_mov_b64 s[{sSTAMP+2*i}:{sSTAMP+2*i+1}], 0")
        A(f"s_memrealtime s[{sSTAMP+2*idx}:{sSTAMP+2*idx+1}]\ns_waitcnt lgkmcnt(0)")


def mk_srd(dst, ptr, size):
    A(f"s_mov_b32 s{dst}, s{ptr}\ns_and_b32 s{dst+1}, s{ptr+1}, 0xffff\ns_mov_b32 s{dst+2}, {size}\ns_mov_b32 s{dst+3}, 0x20000")


def emit_masks(vlane, m0, t0, t1):
    A(f"v_and_b32 v{t0}, 1, v{vlane}")
    A(f"v_lshlrev_b32 v{t0}, 4, v{t0}")
    A(f"v_mov_b32 v{t1}, 0xffff")
    A(f"v_lshlrev_b32 v{t0}, v{t0}, v{t1}")
    A(f"v_bfe_u32 v{t1}, v{vlane}, 1, 2")
    for r in range(4):
        A(f"v_cmp_eq_u32 vcc, {r}, v{t1}")
        A("s_nop 1")
        A(f"v_cndmask_b32 v{m0+r}, 0, v{t0}, vcc")


def xrow_reduce(op, v, t):
    A(f"v_mov_b32 v{t}, v{v}\ns_nop 1\nv_permlane32_swap_b32 v{v}, v{t}\n{op} v{v}, v{v}, v{t}")
    A(f"v_mov_b32 v{t}, v{v}\ns_nop 1\nv_permlane16_swap_b32 v{v}, v{t}\n{op} v{v}, v{v}, v{t}")


def sentinel_check(regs, t, retry_label):
    regs = list(regs)
    A(f"v_max3_u32 v{t}, v{regs[0]}, v{regs[1]}, v{regs[2]}")
    i = 3
    while i + 1 < len(regs):
        A(f"v_max3_u32 v{t}, v{t}, v{regs[i]}, v{regs[i+1]}")
        i += 2
    if i < len(regs):
        A(f"v_max_u32 v{t}, v{t}, v{regs[i]}")
    A(f"v_cmp_eq_u32 vcc, -1, v{t}")
    A("s_nop 0")
    A(f"s_cmp_lg_u64 vcc, 0\ns_cbranch_scc1 {retry_label}")


def spin_guard(giveup_label):
    A(f"s_sub_u32 s{sSPIN}, s{sSPIN}, 1\ns_cmp_eq_u32 s{sSPIN}, 0\ns_cbranch_scc1 {giveup_label}")


hdr = open(f"cdna_kernels/{NAME}.s.ref").read().split("\n")
head = [l for l in hdr if l.startswith(";") and "@launch" not in l]
OUT = list(head)
OUT.append("; @launch grid=(256,1,1) block=(256,1,1) lds=163840")
OUT.append('.amdgcn_target "amdgcn-amd-amdhsa--gfx950"')
OUT.append(".text")
OUT.append(f".globl {NAME}_kernel")
OUT.append(".p2align 8")
OUT.append(f".type {NAME}_kernel,@function")
OUT.append(f"{NAME}_kernel:")

if PROFILE:
    A("s_memrealtime s[100:101]")
A("s_cmp_ge_u32 s2, 256\ns_cbranch_scc1 L_end")
A(f"s_load_dwordx16 s[{KARG}:{KARG+15}], s[0:1], 0")
A(f"s_load_dwordx8 s[{KARG+16}:{KARG+23}], s[0:1], 64")
A(f"s_load_dwordx2 s[{KARG+24}:{KARG+25}], s[0:1], 96")
pAX, pAK, pAV, pAWQ, pAWO, pBX, pBK, pBV, pBWQ, pBWO, pOUT, pDBG, pWS = [KARG + 2 * i for i in range(13)]
A("v_lshrrev_b32 v1, 6, v0\nv_and_b32 v0, 63, v0")
A(f"v_readfirstlane_b32 s{sWAVE}, v1")
A(f"s_and_b32 s{sG}, s2, 7\ns_lshr_b32 s{sSP}, s2, 3")
A(f"s_mov_b32 s{sC}, {CSCALE}\ns_mov_b32 s{sSPIN}, {SPIN_MAX}\ns_mov_b32 s{sLAYER}, 0")
A("s_waitcnt lgkmcnt(0)")
mk_srd(SRD_WS, pWS, WS_SIZE)
mk_srd(SRD_DBG, pDBG, 256)
A(f"s_cmp_lt_u32 s{sSP}, 4\ns_cbranch_scc1 L_chain")

vK, vV, vKd, vVd, vL, vQ, vT = 1, 2, 3, 4, 5, 6, 7
MASK = 8
QA = 12
DT = 20
vCM, vLS, vMX, vPO, vX = 32, 33, 34, 35, 36
SC = 37
STG_A = [56, 60, 64, 68]
NSLOT = 19
XBASE = 4 * NSLOT * 2048
MLBASE = XBASE + 6144


def half(h):
    return ("v", 72 + 8 * h) if h < 23 else ("a", 8 * (h - 23))


NKA = 37
NVREG = 18
KVBYTES = 67108864

mk_srd(SRD_KA, pAK, KVBYTES)
mk_srd(SRD_VA, pAV, KVBYTES)
mk_srd(SRD_KB, pBK, KVBYTES)
mk_srd(SRD_VB, pBV, KVBYTES)
A(f"s_sub_u32 s{sSP}, s{sSP}, 4")
A(f"s_lshl_b32 s{sT0}, s{sSP}, 2\ns_add_u32 s{sT0}, s{sT0}, s{sWAVE}")
A(f"s_lshl_b32 s{sT3}, s{sG}, 23")
A(f"s_mul_i32 s{sT1}, s{sT0}, 36\ns_min_u32 s{sT2}, s{sT0}, 64\ns_add_u32 s{sT1}, s{sT1}, s{sT2}")
A(f"s_lshl_b32 s{sT1}, s{sT1}, 11\ns_add_u32 s{sOFFA}, s{sT1}, s{sT3}")
A(f"s_cmp_lt_u32 s{sT0}, 64")
A(f"s_cselect_b32 s{sT1}, 36, 35")
A(f"s_cselect_b32 s{sBIASA}, 0, {NEG_INF}")
A(f"s_lshl_b32 s{sT1}, s{sT1}, 11")
A(f"s_add_u32 s{sOFFA36}, s{sOFFA}, s{sT1}")
A(f"s_mul_i32 s{sT1}, s{sT0}, 9\ns_max_u32 s{sT2}, s{sT0}, 96\ns_sub_u32 s{sT2}, s{sT2}, 96\ns_add_u32 s{sT1}, s{sT1}, s{sT2}")
A(f"s_lshl_b32 s{sT1}, s{sT1}, 11\ns_add_u32 s{sT1}, s{sT1}, s{sT3}\ns_add_u32 s{sOFFB}, s{sT1}, {12288*512}")
A(f"s_cmp_ge_u32 s{sT0}, 96")
A(f"s_cselect_b32 s{sT1}, 9, 8")
A(f"s_cselect_b32 s{sBIASB}, 0, {NEG_INF}")
A(f"s_lshl_b32 s{sT1}, s{sT1}, 11")
A(f"s_add_u32 s{sOFFB9}, s{sOFFB}, s{sT1}")
A(f"s_mul_i32 s{sLDSW}, s{sWAVE}, {NSLOT*2048}")
A(f"v_lshrrev_b32 v20, 4, v0       ; s / row")
A(f"v_and_b32 v21, 15, v0          ; j")
A(f"v_and_b32 v22, 3, v0           ; c")
A(f"v_bfe_u32 v23, v0, 2, 2        ; a")
A(f"v_lshl_add_u32 v24, v20, 2, v22   ; 4s+c")
A(f"v_lshlrev_b32 v24, 4, v24")
A(f"v_lshl_add_u32 v{vK}, v23, 9, v24")
A(f"v_lshlrev_b32 v25, 4, v21")
A(f"v_lshl_add_u32 v{vV}, v20, 9, v25")
A(f"v_add_u32 v{vKd}, 768, v{vK}\nv_add_u32 v{vVd}, 768, v{vV}")
A(f"v_lshlrev_b32 v26, 4, v0\nv_add_u32 v{vL}, s{sLDSW}, v26\nv_add_u32 v{vX}, {XBASE}, v26")
A(f"v_lshrrev_b32 v27, 3, v21      ; head(j)")
A(f"v_lshl_add_u32 v{vQ}, v27, 9, v24")
A(f"v_lshrrev_b32 v27, 5, v0\nv_mul_u32_u24 v27, 28672, v27\nv_lshl_add_u32 v27, v21, 5, v27")
A(f"v_and_b32 v28, 1, v20\nv_lshl_add_u32 v{vPO}, v28, 4, v27")
A(f"s_lshl_b32 s{sQOFF}, s{sG}, 10")
A(f"s_mul_i32 s{sPOOFF}, s{sG}, 56\ns_add_u32 s{sPOOFF}, s{sPOOFF}, s{sSP}\ns_lshl_b32 s{sPOOFF}, s{sPOOFF}, 10\ns_add_u32 s{sPOOFF}, s{sPOOFF}, {WS_PO}")
A(f"s_lshl_b32 s{sMLOFF}, s{sG}, 9\ns_lshl_b32 s{sT0}, s{sSP}, 3\ns_add_u32 s{sMLOFF}, s{sMLOFF}, s{sT0}\ns_add_u32 s{sMLOFF}, s{sMLOFF}, {WS_ML}")
stamp(0)

A(f"s_cmp_eq_u32 s{sWAVE}, 3\ns_cbranch_scc0 L_att_noclear")
A("v_mov_b32 v12, -1\nv_mov_b32 v13, -1\nv_mov_b32 v14, -1\nv_mov_b32 v15, -1")
for l in range(4):
    for h in range(2):
        A(f"s_add_u32 s{sT0}, s{sPOOFF}, {l*PO_L + h*28672}")
        A(f"buffer_store_dwordx4 v[12:15], v26, {srd(SRD_WS)}, s{sT0} offen sc1")
A("v_and_b32 v16, 1, v0\nv_lshlrev_b32 v16, 8, v16\nv_bfe_u32 v17, v0, 1, 2\nv_lshl_add_u32 v16, v17, 12, v16")
A("s_mov_b64 exec, 0xff")
A(f"buffer_store_dwordx2 v[12:13], v16, {srd(SRD_WS)}, s{sMLOFF} offen sc1")
A("s_waitcnt vmcnt(0)")
A("s_mov_b64 exec, 1")
A("v_mov_b32 v16, 128\nv_mov_b32 v17, 1")
A(f"buffer_atomic_add v17, v16, {srd(SRD_DBG)}, 0 offen")
A("s_mov_b64 exec, -1")
A("s_waitcnt vmcnt(0)")
A("L_att_noclear:")
emit_masks(0, MASK, 20, 21)


def ld_items_reg(srdr, voff, soff_base, ulist, regs_of):
    items = []
    i = 0
    while i < len(ulist):
        u = ulist[i]
        pair = ulist[i:i + 2]
        pre = f"s_add_u32 s{sT0}, s{soff_base}, {u*2048}"
        first = True
        for k, uu in enumerate(pair):
            for m in range(2):
                txt = f"buffer_load_dwordx4 {vr(radd(regs_of(uu), 4*m))}, v{voff}, {srd(srdr)}, s{sT0} offen offset:{k*2048+m*256} nt"
                if first:
                    txt = pre + "\n" + txt
                    first = False
                items.append((txt, uu))
        i += 2
    return items


def ld_items_lds(srdr, voff, voffd, soff_base, ulist, slot_of):
    items = []
    i = 0
    while i < len(ulist):
        u = ulist[i]
        pair = ulist[i:i + 2]
        d = u * 2048 - 768
        pre = (f"s_add_u32 s{sT1}, s{soff_base}, {d}" if d >= 0 else f"s_sub_u32 s{sT1}, s{soff_base}, {-d}")
        pre += f"\ns_add_u32 s{sT2}, s{sLDSW}, {slot_of(u)*2048}\ns_mov_b32 m0, s{sT2}\ns_nop 0"
        first = True
        for k, uu in enumerate(pair):
            assert slot_of(uu) == slot_of(u) + k
            for m in range(2):
                v = voffd if m == 0 else voff
                txt = f"buffer_load_dwordx4 v{v}, {srd(srdr)}, s{sT1} offen offset:{k*2048+m*1024} nt lds"
                if first:
                    txt = pre + "\n" + txt
                    first = False
                items.append((txt, uu))
        i += 2
    return items


def qk_groups(n, ksrc, bias_sgpr, stg):
    G = []
    nC = (n + 1) // 2
    G.append((f"v_mov_b32 v{vMX}, {NEG_INF}" + (f"\nv_mov_b32 v{SC+nC-1}, {NEG_INF}" if n & 1 else ""), None))
    reads = [(u, m) for u in range(n) if ksrc(u)[0] == "lds" for m in range(2)]
    rpos = {rm: i for i, rm in enumerate(reads)}
    issued = [0]

    def issue_reads(upto, out):
        while issued[0] < min(upto, len(reads)):
            u, m = reads[issued[0]]
            q = stg[issued[0] % len(stg)]
            out.append((f"ds_read_b128 {vr(q)}, v{vL} offset:{ksrc(u)[1]*2048+m*1024}", ksrc(u)[2]))
            issued[0] += 1

    pre = []
    issue_reads(len(stg), pre)

    def bops(u):
        d = DT + 4 * (u % 3)
        c = SC + u // 2
        bm = 0x5 if (u & 1) == 0 else 0xA
        t = f"v_mov_b32_dpp v{d}, v{d} quad_perm:[0,0,0,0] {DPPF}\n"
        t += f"v_add_f32_dpp v{d}, v{d+1}, v{d} quad_perm:[1,1,1,1] {DPPF}\n"
        t += f"v_add_f32_dpp v{d}, v{d+2}, v{d} quad_perm:[2,2,2,2] {DPPF}\n"
        if u == n - 1:
            t += f"v_add_f32 v{d}, s{bias_sgpr}, v{d}\n"
        t += f"v_add_f32_dpp v{c}, v{d+3}, v{d} quad_perm:[3,3,3,3] row_mask:0xf bank_mask:{bm:#x}\n"
        if (u & 1) or u == n - 1:
            t += f"v_max_f32 v{vMX}, v{vMX}, v{c}\n"
        return t

    body = []
    for u in range(n):
        d = DT + 4 * (u % 3)
        src = ksrc(u)
        if src[0] == "reg":
            t = f"v_mfma_f32_16x16x32_bf16 {vr(d)}, {vr(src[1])}, {vr(QA)}, 0\n"
            t += f"v_mfma_f32_16x16x32_bf16 {vr(d)}, {vr(radd(src[1],4))}, {vr(QA+4)}, {vr(d)}"
            body.append((t, src[2]))
        else:
            for m in range(2):
                i = rpos[(u, m)]
                q = stg[i % len(stg)]
                t = f"s_waitcnt lgkmcnt({issued[0]-i-1})\n"
                t += f"v_mfma_f32_16x16x32_bf16 {vr(d)}, {vr(q)}, {vr(QA+4*m)}, {'0' if m == 0 else vr(d)}"
                body.append((t, None))
                issue_reads(i + 1 + len(stg), body)
        if u >= 2:
            body.append((("s_nop 3\n" if u == 2 else "") + bops(u - 2), None))
    body.append((bops(n - 2), None))
    body.append((bops(n - 1), None))
    return G, pre, body


def max_group():
    t = "s_nop 1\n"
    t += f"v_max_f32_dpp v{vMX}, v{vMX}, v{vMX} row_half_mirror {DPPF}\n"
    t += f"v_mov_b32 v{vT}, v{vMX}\ns_nop 1\nv_permlane32_swap_b32 v{vMX}, v{vT}\nv_max_f32 v{vMX}, v{vMX}, v{vT}\n"
    t += f"v_mov_b32 v{vT}, v{vMX}\ns_nop 1\nv_permlane16_swap_b32 v{vMX}, v{vT}\nv_max_f32 v{vMX}, v{vMX}, v{vT}\n"
    t += f"v_mul_f32 v{vCM}, s{sC}, v{vMX}\nv_mov_b32 v{vLS}, 0"
    return (t, None)


def pv_groups(order, vsrc, stg):
    T = [DT, DT + 4]
    PP = [DT + 8, DT + 9]
    n = len(order)
    reads = [(u, m) for u in order if vsrc(u)[0] == "lds" for m in range(2)]
    rpos = {rm: i for i, rm in enumerate(reads)}
    issued = [0]
    body = []

    def issue_reads(upto):
        while issued[0] < min(upto, len(reads)):
            u, m = reads[issued[0]]
            q = stg[issued[0] % len(stg)]
            body.append((f"ds_read_b128 {vr(q)}, v{vL} offset:{vsrc(u)[1]*2048+m*1024}", vsrc(u)[2], None))
            issued[0] += 1

    pairs = []
    for u in order:
        if u // 2 not in pairs:
            pairs.append(u // 2)
    pidx = {k: i for i, k in enumerate(pairs)}

    def E(k):
        c = SC + k
        return f"v_fma_f32 v{c}, v{c}, s{sC}, -v{vCM}\nv_exp_f32 v{c}, v{c}\n"

    def F(k):
        c = SC + k
        return f"v_add_f32 v{vLS}, v{vLS}, v{c}\nv_cvt_pk_bf16_f32 v{PP[pidx[k]&1]}, v{c}, v{c}\n"

    def Gm(i):
        u = order[i]
        pp = PP[pidx[u // 2] & 1]
        rho = u & 1
        t = ""
        for r in range(4):
            if (r >> 1) == rho:
                t += f"v_and_b32 v{T[i&1]+r}, v{pp}, v{MASK+r}\n"
        for r in range(4):
            if (r >> 1) != rho:
                sh = "row_shr:4" if rho == 0 else "row_shl:4"
                t += f"v_and_b32_dpp v{T[i&1]+r}, v{pp}, v{MASK+r} {sh} {DPPF} bound_ctrl:0\n"
        return t

    t = E(pairs[0])
    if len(pairs) > 1:
        t += E(pairs[1])
    else:
        t += "s_nop 0\n"
    t += F(pairs[0]) + Gm(0)
    body.append((t, None, None))
    edone = min(2, len(pairs))
    fdone = 1
    first_lds_started = False
    for i in range(n):
        u = order[i]
        nxt = [order[j] for j in range(i, min(n, i + 3))]
        if not first_lds_started and any(vsrc(x)[0] == "lds" for x in nxt):
            issue_reads(len(stg))
            first_lds_started = True
        t = ""
        if i + 1 < n:
            k1 = pidx[order[i + 1] // 2]
            if k1 >= fdone:
                t += F(pairs[k1])
                fdone = k1 + 1
                if edone < len(pairs):
                    t += E(pairs[edone])
                    edone += 1
            t += Gm(i + 1)
        else:
            t += "s_nop 1\n"
        body.append((t, None, None))
        src = vsrc(u)
        for m in range(2):
            acc = QA + 4 * m
            cin = "0" if i == 0 else vr(acc)
            if src[0] == "reg":
                body.append((f"v_mfma_f32_16x16x32_bf16 {vr(acc)}, {vr(T[i&1])}, {vr(radd(src[1],4*m))}, {cin}", src[2], None))
            else:
                j = rpos[(u, m)]
                q = stg[j % len(stg)]
                body.append((f"s_waitcnt lgkmcnt({issued[0]-j-1})\nv_mfma_f32_16x16x32_bf16 {vr(acc)}, {vr(T[i&1])}, {vr(q)}, {cin}", None, u if m == 1 else None))
                issue_reads(j + 1 + len(stg))
    return body


def emit_groups(gs):
    for g in gs:
        A(g[0])


def q_loads():
    return (f"buffer_load_dwordx4 {vr(QA)}, v{vQ}, {srd(SRD_WS)}, s{sQOFF} offen sc1\n"
            f"buffer_load_dwordx4 {vr(QA+4)}, v{vQ}, {srd(SRD_WS)}, s{sQOFF} offen offset:256 sc1")


def poll_q_blocking():
    lp, done = A.label("qpoll"), A.label("qdone")
    A(f"{lp}:")
    spin_guard(done)
    A(q_loads())
    A("s_waitcnt vmcnt(0)")
    sentinel_check(range(QA, QA + 8), vT, lp)
    A(f"{done}:")
    A("s_nop 1")


VL_UNITS = list(range(NVREG, NKA))
vslot = lambda u: u - NVREG
loads = []
it = ld_items_lds(SRD_VA, vV, vVd, sOFFA, VL_UNITS[:-1], vslot)
loads += [(t, ("V", u), None) for t, u in it]
it = ld_items_lds(SRD_VA, vV, vVd, sOFFA36, [0], lambda u: vslot(36))
loads += [(t, ("V", 36), None) for t, u in it]
it = ld_items_reg(SRD_KA, vK, sOFFA, list(range(36)), half)
kl = [(t, ("K", u), None) for t, u in it]
it = ld_items_reg(SRD_KA, vK, sOFFA36, [0], lambda u: half(36))
kl += [(t, ("K", 36), None) for t, u in it]
ca_load = (f"v_mov_b32 v{vT}, 0\nbuffer_load_dword v{vCM}, v{vT}, {srd(SRD_DBG)}, 0 offen sc1", ("CA",), None)
loads += kl[:8] + [ca_load] + kl[8:24]
QPOS = len(loads)
loads += kl[24:]
it = ld_items_reg(SRD_VA, vV, sOFFA, list(range(NVREG)), lambda u: half(NKA + u))
loads += [(t, ("V", u), None) for t, u in it]
NA_LOADS = len(loads)
BV9 = 42
STG_B = [50, 56, 60, 64, 68]


def b_loads():
    bl = []
    it = ld_items_lds(SRD_KB, vK, vKd, sOFFB, list(range(8)), lambda u: u)
    bl += [(t, ("BK", u), u | 1) for t, u in it]
    it = ld_items_lds(SRD_KB, vK, vKd, sOFFB, [8], lambda u: u)
    bl += [(t, ("BK", u), u) for t, u in it]
    it = ld_items_lds(SRD_KB, vK, vKd, sOFFB9, [0], lambda u: 9)
    bl += [(t, ("BK", 9), 9) for t, u in it]
    it = ld_items_lds(SRD_VB, vV, vVd, sOFFB, list(range(9)), lambda u: 10 + u)
    bl += [(t, ("BV", u), min(18, (10 + u) | 1)) for t, u in it]
    it = ld_items_reg(SRD_VB, vV, sOFFB9, [0], lambda u: BV9)
    bl += [(t, ("BV", 9), None) for t, u in it]
    return bl


BL = b_loads()
NB_EARLY = 8
loads += BL[:NB_EARLY]

ksrcA = lambda u: ("reg", half(u), ("K", u))
vsrcA = lambda u: ("reg", half(NKA + u), ("V", u)) if u < NVREG else ("lds", vslot(u), ("V", u))

g0, pre, body = qk_groups(NKA, ksrcA, sBIASA, STG_A)
comp = [(t, n, None) for t, n in g0 + pre + body] + [max_group() + (None,)]
comp += pv_groups(VL_UNITS + list(range(NVREG)), vsrcA, STG_A)

LAG = 10
last_of = {}
nissued = 0
released = set()
ci = 0


def emit_comp(g):
    t, need, rel = g
    if need is not None:
        n = nissued - last_of[need] - 1
        A(f"s_waitcnt vmcnt({min(n, 63)})")
    A(t)
    if rel is not None:
        released.add(vslot(rel))


qready = False
li = 0
while li < len(loads):
    if li == QPOS:
        n = nissued - last_of[("CA",)] - 1
        ok, lp = A.label("caok"), A.label("calp")
        A(f"s_waitcnt vmcnt({n})\nv_readfirstlane_b32 s{sT3}, v{vCM}\ns_cmp_ge_u32 s{sT3}, 32\ns_cbranch_scc1 {ok}")
        A(f"{lp}:")
        spin_guard(ok)
        A(f"buffer_load_dword v{vCM}, v{vT}, {srd(SRD_DBG)}, 0 offen sc1\ns_waitcnt vmcnt(0)\nv_readfirstlane_b32 s{sT3}, v{vCM}\ns_cmp_ge_u32 s{sT3}, 32\ns_cbranch_scc0 {lp}")
        A(f"{ok}:")
        A(q_loads())
        nissued += 2
        last_of[("Q",)] = nissued - 1
    if li == QPOS + 12:
        n = nissued - last_of[("Q",)] - 1
        slow, ok = A.label("qslow"), A.label("qok")
        A(f"s_waitcnt vmcnt({n})")
        sentinel_check(range(QA, QA + 8), vT, slow)
        A(f"s_branch {ok}\n{slow}:")
        poll_q_blocking()
        A(f"{ok}:")
        stamp(1)
        qready = True
    t, tag, req = loads[li]
    if req is not None and req not in released:
        emit_comp(comp[ci])
        ci += 1
        continue
    A(t)
    last_of[tag] = nissued
    nissued += 1
    li += 1
    if qready:
        cnt = 0
        while ci < len(comp) and cnt < 6:
            need = comp[ci][1]
            if need is not None and (need not in last_of or nissued - last_of[need] - 1 < LAG or
                                     (li < len(loads) and loads[li][1] == need)):
                break
            emit_comp(comp[ci])
            ci += 1
            cnt += 1
stamp(2)
while ci < len(comp):
    emit_comp(comp[ci])
    ci += 1

A("L_reduce:")
R0 = SC
A(f"v_add_f32_dpp v{vLS}, v{vLS}, v{vLS} row_half_mirror {DPPF}")
xrow_reduce("v_add_f32", vLS, vT)
A(f"v_bfe_u32 v{R0}, v0, 3, 1\nv_lshlrev_b32 v{R0}, 5, v{R0}\ns_lshl_b32 s{sT0}, s{sWAVE}, 3\ns_add_u32 s{sT0}, s{sT0}, {MLBASE}\nv_add_u32 v{R0}, s{sT0}, v{R0}")
A(f"ds_write_b64 v{R0}, v[{vCM}:{vLS}]")
A(f"v_lshrrev_b32 v{R0+1}, 5, v0\nv_lshlrev_b32 v{R0+1}, 5, v{R0+1}\nv_add_u32 v{R0+1}, {MLBASE}, v{R0+1}")
A(f"s_cmp_lt_u32 s{sWAVE}, 2\ns_cbranch_scc1 L_red_01")
A(f"s_lshl_b32 s{sT0}, s{sWAVE}, 10\ns_sub_u32 s{sT0}, s{sT0}, 1024\nv_add_u32 v{R0+2}, s{sT0}, v{vX}")
A(f"ds_write_b128 v{R0+2}, {vr(QA)}\nds_write_b128 v{R0+2}, {vr(QA+4)} offset:3072")
A("s_waitcnt lgkmcnt(0)\ns_barrier\ns_branch L_red_done")
A("L_red_01:")
A(f"s_cmp_eq_u32 s{sWAVE}, 0\ns_cbranch_scc1 L_red_0")
A(f"ds_write_b128 v{vX}, {vr(QA)}")
A(f"v_add_u32 v{R0+2}, 3072, v{vX}")
A("s_waitcnt lgkmcnt(0)")
for r in range(4):
    A(f"v_mov_b32 v{QA+r}, v{QA+4+r}")
A("s_branch L_red_c")
A("L_red_0:")
A(f"ds_write_b128 v{vX}, {vr(QA+4)} offset:3072")
A(f"v_mov_b32 v{R0+2}, v{vX}")
A("s_waitcnt lgkmcnt(0)")
A("L_red_c:")
A("s_barrier")
ML = 56
XR = 20
A(f"ds_read_b128 {vr(ML)}, v{R0+1}\nds_read_b128 {vr(ML+4)}, v{R0+1} offset:16")
for s in range(3):
    A(f"ds_read_b128 {vr(XR+4*s)}, v{R0+2} offset:{1024*s}")
Mx, F0 = 64, 66
A("s_waitcnt lgkmcnt(3)")
A(f"v_max3_f32 v{Mx}, v{ML}, v{ML+2}, v{ML+4}\nv_max_f32 v{Mx}, v{Mx}, v{ML+6}")
for w in range(4):
    A(f"v_sub_f32 v{F0+w}, v{ML+2*w}, v{Mx}")
for w in range(4):
    A(f"v_exp_f32 v{F0+w}, v{F0+w}")
A(f"s_cmp_eq_u32 s{sWAVE}, 0")
A(f"v_mul_f32 v{Mx+1}, v{F0}, v{ML+1}")
for w in range(1, 4):
    A(f"v_fmac_f32 v{Mx+1}, v{F0+w}, v{ML+2*w+1}")
A("s_cbranch_scc1 L_red_sw")
A(f"v_mov_b32 v{vT}, v{F0}\nv_mov_b32 v{F0}, v{F0+1}\nv_mov_b32 v{F0+1}, v{vT}")
A("L_red_sw:")
for r in range(4):
    A(f"v_mul_f32 v{QA+r}, v{F0}, v{QA+r}")
A("s_waitcnt lgkmcnt(0)")
for s in range(3):
    for r in range(4):
        A(f"v_fmac_f32 v{QA+r}, v{F0+1+s}, v{XR+4*s+r}")
for r in range(4):
    A(f"v_min_u32 v{QA+r}, -2, v{QA+r}")
A(f"s_lshl_b32 s{sT0}, s{sWAVE}, 9\ns_add_u32 s{sT0}, s{sT0}, s{sPOOFF}")
A(f"buffer_store_dwordx4 {vr(QA)}, v{vPO}, {srd(SRD_WS)}, s{sT0} offen sc1")
A(f"s_cmp_eq_u32 s{sWAVE}, 0\ns_cbranch_scc0 L_red_done")
A(f"v_min_u32 v{Mx}, -2, v{Mx}\nv_min_u32 v{Mx+1}, -2, v{Mx+1}")
A(f"v_lshrrev_b32 v{vT}, 5, v0\nv_lshlrev_b32 v{vT}, 8, v{vT}")
A("s_mov_b32 exec_lo, 1\ns_mov_b32 exec_hi, 1")
A(f"buffer_store_dwordx2 v[{Mx}:{Mx+1}], v{vT}, {srd(SRD_WS)}, s{sMLOFF} offen sc1")
A("s_mov_b64 exec, -1")
A("L_red_done:")
A(f"s_add_u32 s{sQOFF}, s{sQOFF}, 8192\ns_add_u32 s{sPOOFF}, s{sPOOFF}, {PO_L}\ns_add_u32 s{sMLOFF}, s{sMLOFF}, 4096")
A(f"s_add_u32 s{sLAYER}, s{sLAYER}, 1")
A(f"s_cmp_eq_u32 s{sLAYER}, 2\ns_cbranch_scc1 L_after2")
A(f"s_cmp_eq_u32 s{sLAYER}, 3\ns_cbranch_scc1 L_after3")
A(f"s_cmp_eq_u32 s{sLAYER}, 4\ns_cbranch_scc1 L_att_end")
stamp(3)
A("s_branch L_bl_rest")
A("L_after3:")
stamp(9)
for t, tag, req in BL[:NB_EARLY]:
    A(t)
A("L_bl_rest:")
for t, tag, req in BL[NB_EARLY:]:
    A(t)
A("s_waitcnt vmcnt(0)")
if PROFILE:
    A(f"s_cmp_eq_u32 s{sLAYER}, 1\ns_cbranch_scc0 L_ps1")
    stamp(4)
    A("s_branch L_ps2\nL_ps1:")
    stamp(10)
    A("L_ps2:")
ksrcB = lambda u: ("lds", u, None)
vsrcB = lambda u: ("lds", 10 + u, None) if u < 9 else ("reg", BV9, None)
g0, pre, body = qk_groups(10, ksrcB, sBIASB, STG_B)
emit_groups(g0)
emit_groups(pre)
poll_q_blocking()
if PROFILE:
    A(f"s_cmp_eq_u32 s{sLAYER}, 1\ns_cbranch_scc0 L_ps3")
    stamp(5)
    A("s_branch L_ps4\nL_ps3:")
    stamp(11)
    A("L_ps4:")
emit_groups(body)
emit_groups([max_group()])
emit_groups(pv_groups(list(range(10)), vsrcB, STG_B))
A("s_branch L_reduce")

A("L_after2:")
stamp(6)
for t, tag, req in loads[:2 * NSLOT]:
    A(t)
nul = lambda f: (lambda u: f(u)[:2] + (None,))
g0, pre, body = qk_groups(NKA, nul(ksrcA), sBIASA, STG_A)
emit_groups(g0)
poll_q_blocking()
stamp(7)
emit_groups(body)
emit_groups([max_group()])
stamp(8)
emit_groups(pv_groups(list(range(NKA)), nul(vsrcA), STG_A))
A("s_branch L_reduce")

A("L_att_end:")
stamp(12)
A("s_branch L_fin")

A("L_chain:")
cWq, cWo, cPOg, cMLg, cL16, cXl, cT = 1, 2, 3, 4, 5, 6, 7
cX = 12
cVAL = 19
cTT = [20, 24]
cACC = 28
cG = 36
cN = 68
cM = 84
cYst, cQst, cSCR, cXSw, cCol = 84, 85, 86, 87, 88
WQ = {0: ("a", 0), 1: ("a", 112)}
WO0 = {0: ("v", 96), 1: ("v", 160)}


def wo1(t):
    return ("v", 224 + 4 * t) if t < 8 else ("a", 224 + 4 * (t - 8))


CSCR = 131072
YX = CSCR
XS = CSCR + 4096
QX = CSCR + 8192
sCH = sSP
WQB = 448 * 4096 * 2

mk_srd(SRD_WQA, pAWQ, WQB)
mk_srd(SRD_WOA, pAWO, WQB)
mk_srd(SRD_WQB, pBWQ, WQB)
mk_srd(SRD_WOB, pBWO, WQB)
mk_srd(SRD_X, pAX, 896)
mk_srd(SRD_OUT, pOUT, 896)
A(f"s_lshl_b32 s{sT0}, s{sG}, 2\ns_add_u32 s{sCH}, s{sT0}, s{sSP}")
A("v_lshrrev_b32 v20, 4, v0       ; s / row")
A("v_and_b32 v21, 15, v0          ; j / c16")
A("v_lshlrev_b32 v22, 4, v21      ; j*16")
A(f"v_lshl_add_u32 v{cWq}, v20, 17, v22")
A(f"v_mul_u32_u24 v{cWo}, 896, v20\nv_add_u32 v{cWo}, v{cWo}, v22")
A(f"s_lshl_b32 s{sT0}, s{sWAVE}, 2\nv_add_u32 v23, s{sT0}, v21\nv_and_b32 v23, 15, v23\nv_lshl_add_u32 v23, v20, 4, v23")
A(f"v_lshlrev_b32 v{cCol}, 1, v23")
A(f"v_lshlrev_b32 v{cXl}, 2, v23\nv_add_u32 v{cXl}, {XS}, v{cXl}")
for k in range(7):
    A(f"buffer_load_ushort v{cX+k}, v{cCol}, {srd(SRD_X)}, 0 offen offset:{128*k}")


def wq_loads(which):
    s = SRD_WQA if which == 0 else SRD_WQB
    A(f"s_lshl_b32 s{sT0}, s{sWAVE}, 15\ns_lshl_b32 s{sT1}, s{sCH}, 8\ns_add_u32 s{sT0}, s{sT0}, s{sT1}")
    for k in range(7):
        for cc in range(4):
            A(f"s_add_u32 s{sT1}, s{sT0}, {(64*k+cc)*8192}")
            A(f"buffer_load_dwordx4 {vr(radd(WQ[which], 4*(4*k+cc)))}, v{cWq}, {srd(s)}, s{sT1} offen nt")


def wo_loads(which):
    s = SRD_WOA if which == 0 else SRD_WOB
    A(f"s_lshr_b32 s{sT0}, s{sCH}, 1\ns_lshl_b32 s{sT0}, s{sT0}, 2\ns_add_u32 s{sT0}, s{sT0}, s{sWAVE}\ns_mul_i32 s{sT0}, s{sT0}, {64*896}")
    A(f"s_and_b32 s{sT1}, s{sCH}, 1\ns_mul_i32 s{sT1}, s{sT1}, 448\ns_add_u32 s{sT0}, s{sT0}, s{sT1}")
    A(f"s_lshl_b32 s{sT2}, s{sWAVE}, 14\ns_add_u32 s{sT2}, s{sT2}, {which*65536}")
    for t in range(16):
        A(f"s_add_u32 s{sT1}, s{sT0}, {4*t*896}")
        A(f"buffer_load_dwordx4 {vr(radd(WO0[which], 4*t))}, v{cWo}, {srd(s)}, s{sT1} offen nt")
        A(f"s_add_u32 s{sT1}, s{sT1}, 256\ns_add_u32 s{sT3}, s{sT2}, {t*1024}\ns_mov_b32 m0, s{sT3}\ns_nop 0")
        A(f"buffer_load_dwordx4 v{cWo}, {srd(s)}, s{sT1} offen nt lds")


stamp(0)
A(f"v_lshlrev_b32 v{cL16}, 4, v0")
A(f"s_lshl_b32 s{sYST}, s{sCH}, 10\ns_add_u32 s{sYST}, s{sYST}, {WS_Y}")
A(f"s_lshl_b32 s{sQST}, s{sCH}, 8")
A(f"s_cmp_eq_u32 s{sWAVE}, 3\ns_cbranch_scc0 L_ch_noclear")
A("v_mov_b32 v24, -1\nv_mov_b32 v25, -1\nv_mov_b32 v26, -1\nv_mov_b32 v27, -1")
for l in range(4):
    A(f"s_add_u32 s{sT0}, s{sYST}, {l*32768}")
    A(f"buffer_store_dwordx4 v[24:27], v{cL16}, {srd(SRD_WS)}, s{sT0} offen sc1")
A("v_lshl_add_u32 v28, v20, 13, v22")
A(f"buffer_store_dwordx4 v[24:27], v28, {srd(SRD_WS)}, s{sQST} offen sc1")
A("s_waitcnt vmcnt(0)")
A("s_mov_b64 exec, 1")
A("v_mov_b32 v28, 0\nv_mov_b32 v29, 1")
A(f"buffer_atomic_add v29, v28, {srd(SRD_DBG)}, 0 offen")
A("s_mov_b64 exec, -1")
A("L_ch_noclear:")
wq_loads(0)
A(f"v_mul_u32_u24 v{cPOg}, 7168, v20\nv_add_u32 v{cPOg}, v{cPOg}, v22\ns_lshl_b32 s{sT0}, s{sWAVE}, 8\nv_add_u32 v{cPOg}, s{sT0}, v{cPOg}")
A(f"v_min_u32 v23, 6, v21\nv_mul_u32_u24 v24, 7, v20\nv_add_u32 v23, v23, v24\nv_lshlrev_b32 v{cMLg}, 3, v23")
A(f"v_cmp_gt_u32 vcc, 7, v21\ns_nop 1\nv_cndmask_b32 v{cVAL}, 0, 1.0, vcc")
A(f"v_lshrrev_b32 v23, 5, v0\nv_lshlrev_b32 v23, 9, v23\nv_lshl_add_u32 v23, v21, 5, v23\nv_and_b32 v24, 1, v20\nv_lshl_add_u32 v{cYst}, v24, 4, v23")
A(f"v_lshlrev_b32 v23, 3, v24\nv_add_u32 v{cQst}, v22, v23")
A(f"v_add_u32 v{cSCR}, {CSCR}, v{cL16}")
A(f"s_lshr_b32 s{sT0}, s{sWAVE}, 1\ns_lshl_b32 s{sT0}, s{sT0}, 11\ns_and_b32 s{sT1}, s{sWAVE}, 1\ns_mul_i32 s{sT1}, s{sT1}, 896\ns_add_u32 s{sT0}, s{sT0}, s{sT1}\ns_add_u32 s{sT0}, s{sT0}, {XS}")
A(f"v_add_u32 v{cXSw}, s{sT0}, v{cL16}")
A(f"s_lshr_b32 s{sT0}, s{sCH}, 1\ns_mul_i32 s{sPOOFF}, s{sT0}, 28672\ns_add_u32 s{sPOOFF}, s{sPOOFF}, {WS_PO}")
A(f"s_lshl_b32 s{sMLOFF}, s{sT0}, 8\ns_add_u32 s{sMLOFF}, s{sMLOFF}, {WS_ML}")
A(f"s_lshr_b32 s{sT0}, s{sWAVE}, 1\ns_lshl_b32 s{sT0}, s{sT0}, 14\ns_and_b32 s{sT1}, s{sWAVE}, 1\ns_lshl_b32 s{sT1}, s{sT1}, 10\ns_add_u32 s{sYOFF}, s{sT0}, s{sT1}\ns_add_u32 s{sYOFF}, s{sYOFF}, {WS_Y}")
emit_masks(0, MASK, 20, 21)
wo_loads(0)
A("s_waitcnt vmcnt(32)")
for k in range(7):
    A(f"v_lshlrev_b32 v{cX+k}, 16, v{cX+k}")
stamp(1)
A("s_branch L_ch_ln")


def full_reduce2(a, b, t):
    for ctl in ("quad_perm:[1,0,3,2]", "quad_perm:[2,3,0,1]", "row_half_mirror", "row_mirror"):
        A("s_nop 0")
        A(f"v_add_f32_dpp v{a}, v{a}, v{a} {ctl} {DPPF}")
        A(f"v_add_f32_dpp v{b}, v{b}, v{b} {ctl} {DPPF}")
    for sw in ("v_permlane32_swap_b32", "v_permlane16_swap_b32"):
        A(f"v_mov_b32 v{t}, v{a}\nv_mov_b32 v{t+1}, v{b}\ns_nop 1")
        A(f"{sw} v{a}, v{t}\n{sw} v{b}, v{t+1}")
        A(f"v_add_f32 v{a}, v{a}, v{t}\nv_add_f32 v{b}, v{b}, v{t+1}")


def bf16r(dst, src):
    A(f"v_cvt_pk_bf16_f32 v{dst}, v{src}, v{src}\nv_and_b32 v{dst}, 0xffff0000, v{dst}")


A("L_ch_stageA:")
A(f"s_and_b32 s{sT0}, s{sLAYER}, 1\ns_lshl_b32 s{sT0}, s{sT0}, 16\ns_lshl_b32 s{sT1}, s{sWAVE}, 14\ns_add_u32 s{sT0}, s{sT0}, s{sT1}")
A(f"v_add_u32 v{cT}, s{sT0}, v{cL16}")
for t in range(16):
    A(f"ds_read_b128 {vr(wo1(t))}, v{cT} offset:{t*1024}")
A("s_waitcnt lgkmcnt(0)")
A(f"s_add_u32 s{sT0}, s{sPOOFF}, 4096")
cML = cG + 28
A("L_sa_poll:")
spin_guard("L_sa_go")
A(f"buffer_load_dwordx2 v[{cML}:{cML+1}], v{cMLg}, {srd(SRD_WS)}, s{sMLOFF} offen sc1")
for u in range(7):
    so = sPOOFF if u < 4 else sT0
    A(f"buffer_load_dwordx4 {vr(cG+4*u)}, v{cPOg}, {srd(SRD_WS)}, s{so} offen offset:{(u%4)*1024} sc1")
A("s_waitcnt vmcnt(0)")
sentinel_check(range(cG, cG + 30), cT, "L_sa_poll")
A("L_sa_go:")
if PROFILE:
    for l in range(4):
        lb = A.label("ps")
        A(f"s_cmp_eq_u32 s{sLAYER}, {l}\ns_cbranch_scc0 {lb}")
        stamp(3 + 4 * l)
        A(f"{lb}:")
mM, mW, mL = cN, cN + 1, cN + 2
A(f"v_max_f32_dpp v{mM}, v{cML}, v{cML} quad_perm:[1,0,3,2] {DPPF}")
for ctl in ("quad_perm:[2,3,0,1]", "row_half_mirror"):
    A(f"s_nop 1\nv_max_f32_dpp v{mM}, v{mM}, v{mM} {ctl} {DPPF}")
xrow_reduce("v_max_f32", mM, cT)
A(f"v_sub_f32 v{mW}, v{cML}, v{mM}\nv_exp_f32 v{mW}, v{mW}\nv_mul_f32 v{mL}, v{cML+1}, v{cVAL}\nv_mul_f32 v{mL}, v{mL}, v{mW}")
oa = cN + 4
red_steps = [f"v_add_f32_dpp v{mL}, v{mL}, v{mL} {c} {DPPF}" for c in
             ("quad_perm:[1,0,3,2]", "quad_perm:[2,3,0,1]", "row_half_mirror", "row_mirror")]
A("s_nop 0")
for u in range(7):
    for r in range(4):
        op = "v_mul_f32_dpp" if u == 0 else "v_fmac_f32_dpp"
        A(f"{op} v{oa+r}, v{mW}, v{cG+4*u+r} row_newbcast:{u} {DPPF}")
    if u < 4:
        A(red_steps[u])
xrow_reduce("v_add_f32", mL, cT)
A(f"v_rcp_f32 v{mL}, v{mL}")
A(f"v_permlane32_swap_b32 v{oa}, v{oa+2}\nv_permlane32_swap_b32 v{oa+1}, v{oa+3}")
A(f"v_add_f32 v{oa}, v{oa}, v{oa+2}\nv_add_f32 v{oa+1}, v{oa+1}, v{oa+3}\ns_nop 1")
A(f"v_permlane16_swap_b32 v{oa}, v{oa+1}\nv_add_f32 v{oa}, v{oa}, v{oa+1}")
A(f"v_mul_f32 v{oa}, v{oa}, v{mL}\nv_cvt_pk_bf16_f32 v{oa}, v{oa}, v{oa}\ns_nop 1")
A(f"s_and_b32 s{sT0}, s{sLAYER}, 1\ns_cmp_eq_u32 s{sT0}, 1\ns_cbranch_scc1 L_sa_B")
for which in range(2):
    if which == 1:
        A("L_sa_B:")

    def gm(t):
        for r in range(4):
            A(f"v_and_b32_dpp v{cTT[t&1]+r}, v{oa}, v{MASK+r} row_newbcast:{t} {DPPF}")
    gm(0)
    for t in range(16):
        if t + 1 < 16:
            gm(t + 1)
        else:
            A("s_nop 1")
        A(f"v_mfma_f32_16x16x32_bf16 {vr(cACC)}, {vr(cTT[t&1])}, {vr(radd(WO0[which],4*t))}, {'0' if t == 0 else vr(cACC)}")
        A(f"v_mfma_f32_16x16x32_bf16 {vr(cACC+4)}, {vr(cTT[t&1])}, {vr(wo1(t))}, {'0' if t == 0 else vr(cACC+4)}")
    if which == 0:
        A("s_branch L_sa_red")
A("L_sa_red:")
A(f"s_lshl_b32 s{sT0}, s{sWAVE}, 10\nv_add_u32 v{cT}, s{sT0}, v{cSCR}")
A("s_mov_b32 exec_lo, 0\ns_nop 5")
for r in range(4):
    A(f"v_mov_b32 v{cACC+r}, v{cACC+4+r}")
A("s_mov_b32 exec_lo, -1")
A(f"s_cmp_eq_u32 s{sWAVE}, 0\ns_cbranch_scc1 L_sa_w0")
A(f"ds_write_b128 v{cT}, {vr(cACC)}\ns_waitcnt lgkmcnt(0)\ns_barrier\ns_branch L_sb")
A("L_sa_w0:\ns_barrier")
for s in range(1, 4):
    A(f"ds_read_b128 {vr(cG+4*s)}, v{cSCR} offset:{1024*s}")
for s in range(1, 4):
    A(f"s_waitcnt lgkmcnt({3-s})")
    for r in range(4):
        A(f"v_add_f32 v{cACC+r}, v{cACC+r}, v{cG+4*s+r}")
for r in range(4):
    A(f"v_min_u32 v{cACC+r}, -2, v{cACC+r}")
A(f"buffer_store_dwordx4 {vr(cACC)}, v{cYst}, {srd(SRD_WS)}, s{sYST} offen sc1")
A("L_sb:")
if PROFILE:
    for l in range(4):
        lb = A.label("ps")
        A(f"s_cmp_eq_u32 s{sLAYER}, {l}\ns_cbranch_scc0 {lb}")
        stamp(4 + 4 * l)
        A(f"{lb}:")
A(f"s_cmp_eq_u32 s{sLAYER}, 3\ns_cbranch_scc0 L_sb_go0\ns_cmp_eq_u32 s{sCH}, 0\ns_cbranch_scc0 L_fin\nL_sb_go0:")
for i in range(1, 4):
    A(f"s_add_u32 s{sT0+i-1}, s{sYOFF}, {4096*i}")
A("L_sb_poll:")
spin_guard("L_sb_go")
for i in range(8):
    so = sYOFF if i < 2 else sT0 + (i // 2) - 1
    A(f"buffer_load_dwordx4 {vr(cG+4*i)}, v{cL16}, {srd(SRD_WS)}, s{so} offen offset:{(i%2)*2048} sc1")
A("s_waitcnt vmcnt(0)")
sentinel_check(range(cG, cG + 32), cT, "L_sb_poll")
A("L_sb_go:")
if PROFILE:
    for l in range(4):
        lb = A.label("ps")
        A(f"s_cmp_eq_u32 s{sLAYER}, {l}\ns_cbranch_scc0 {lb}")
        stamp(5 + 4 * l)
        A(f"{lb}:")
for st in (4, 2, 1):
    for i in range(st):
        for r in range(4):
            A(f"v_add_f32 v{cG+4*i+r}, v{cG+4*i+r}, v{cG+4*(i+st)+r}")
A("s_mov_b32 exec_hi, 0x00ffffff")
A(f"ds_write_b128 v{cXSw}, {vr(cG)}")
A("s_mov_b32 exec_hi, -1")
A("s_waitcnt lgkmcnt(0)\ns_barrier")
for k in range(7):
    A(f"ds_read2st64_b32 v[{cN+2*k}:{cN+2*k+1}], v{cXl} offset0:{k} offset1:{k+8}")
for k in range(7):
    A(f"s_waitcnt lgkmcnt({6-k})")
    A(f"v_add_f32 v{cN+2*k}, v{cN+2*k}, v{cN+2*k+1}")
    bf16r(cN + 2 * k, cN + 2 * k)
    A(f"v_add_f32 v{cX+k}, v{cX+k}, v{cN+2*k}")
    bf16r(cX + k, cX + k)
A(f"s_add_u32 s{sLAYER}, s{sLAYER}, 1")
A(f"s_add_u32 s{sPOOFF}, s{sPOOFF}, {PO_L}\ns_add_u32 s{sMLOFF}, s{sMLOFF}, 4096\ns_add_u32 s{sYOFF}, s{sYOFF}, 32768\ns_add_u32 s{sYST}, s{sYST}, 32768\ns_add_u32 s{sQST}, s{sQST}, 8192")
A(f"s_cmp_eq_u32 s{sLAYER}, 4\ns_cbranch_scc0 L_ch_ln")
A(f"s_cmp_eq_u32 s{sWAVE}, 0\ns_cbranch_scc0 L_fin")
for k in range(7):
    A(f"buffer_store_short_d16_hi v{cX+k}, v{cCol}, {srd(SRD_OUT)}, 0 offen offset:{128*k}")
stamp(19)
A("s_branch L_fin")
A("L_ch_ln:")
s1, s2, tq = cN, cN + 1, cN + 2
dk = cN + 4
A("s_nop 0")
A(f"v_readfirstlane_b32 s{sT0}, v{cX}\ns_nop 1")
for k in range(7):
    A(f"v_subrev_f32 v{dk+k}, s{sT0}, v{cX+k}")
A(f"v_add_f32 v{s1}, v{dk}, v{dk+1}\nv_mul_f32 v{s2}, v{dk}, v{dk}")
for k in range(1, 7):
    if k >= 2:
        A(f"v_add_f32 v{s1}, v{s1}, v{dk+k}")
    A(f"v_fmac_f32 v{s2}, v{dk+k}, v{dk+k}")
A("s_nop 0")
full_reduce2(s1, s2, tq)
A(f"v_mul_f32 v{s1}, {f2u(1.0/448.0)}, v{s1}")
A(f"v_mul_f32 v{s2}, {f2u(1.0/448.0)}, v{s2}")
A(f"v_fma_f32 v{s2}, -v{s1}, v{s1}, v{s2}")
A(f"v_max_f32 v{s2}, 0, v{s2}")
A(f"v_add_f32 v{s1}, s{sT0}, v{s1}")
bf16r(s2, s2)
bf16r(s1, s1)
A(f"v_add_f32 v{s2}, {f2u(1e-5)}, v{s2}")
bf16r(s2, s2)
A(f"v_sqrt_f32 v{s2}, v{s2}")
for k in range(7):
    A(f"v_sub_f32 v{dk+k}, v{cX+k}, v{s1}")
bf16r(s2, s2)
A(f"v_rcp_f32 v{s2}, v{s2}")
for k in range(7):
    bf16r(dk + k, dk + k)
for k in range(7):
    A(f"v_mul_f32 v{dk+k}, v{dk+k}, v{s2}")
for k in range(7):
    A(f"v_cvt_pk_bf16_f32 v{dk+k}, v{dk+k}, v{dk+k}")
A(f"s_and_b32 s{sT0}, s{sLAYER}, 1\ns_cmp_eq_u32 s{sT0}, 1\ns_cbranch_scc1 L_qp_B")
for which in range(2):
    if which == 1:
        A("L_qp_B:")

    def gq(i):
        for r in range(4):
            A(f"v_and_b32_dpp v{cTT[i&1]+r}, v{dk+i//4}, v{MASK+r} row_newbcast:{i%4} {DPPF}")
    gq(0)
    for i in range(28):
        if i + 1 < 28:
            gq(i + 1)
        else:
            A("s_nop 1")
        A(f"v_mfma_f32_16x16x32_bf16 {vr(cACC)}, {vr(cTT[i&1])}, {vr(radd(WQ[which],4*i))}, {'0' if i == 0 else vr(cACC)}")
    if which == 0:
        A("s_branch L_qp_red")
A("L_qp_red:")
A(f"s_lshl_b32 s{sT0}, s{sWAVE}, 10\nv_add_u32 v{cT}, s{sT0}, v{cSCR}")
A(f"s_cmp_eq_u32 s{sWAVE}, 0\ns_cbranch_scc1 L_qp_w0")
A("s_nop 4")
A(f"ds_write_b128 v{cT}, {vr(cACC)} offset:8192\ns_waitcnt lgkmcnt(0)\ns_barrier\ns_branch L_qp_done")
A("L_qp_w0:\ns_barrier")
for s in range(1, 4):
    A(f"ds_read_b128 {vr(cG+4*s)}, v{cSCR} offset:{8192+1024*s}")
A("s_nop 2")
for s in range(1, 4):
    A(f"s_waitcnt lgkmcnt({3-s})")
    for r in range(4):
        A(f"v_add_f32 v{cACC+r}, v{cACC+r}, v{cG+4*s+r}")
A(f"v_cvt_pk_bf16_f32 v{cACC}, v{cACC}, v{cACC+1}\nv_cvt_pk_bf16_f32 v{cACC+1}, v{cACC+2}, v{cACC+3}")
A(f"v_min_u32 v{cACC}, -2, v{cACC}\nv_min_u32 v{cACC+1}, -2, v{cACC+1}")
A("s_mov_b32 exec_hi, 0")
A(f"buffer_store_dwordx2 v[{cACC}:{cACC+1}], v{cQst}, {srd(SRD_WS)}, s{sQST} offen sc1")
A("s_mov_b32 exec_hi, -1")
A("L_qp_done:")
if PROFILE:
    for l in range(4):
        lb = A.label("ps")
        A(f"s_cmp_eq_u32 s{sLAYER}, {l}\ns_cbranch_scc0 {lb}")
        stamp(2 + 4 * l)
        A(f"{lb}:")
A(f"s_cmp_eq_u32 s{sLAYER}, 0\ns_cbranch_scc0 L_ch_stageA")
wq_loads(1)
wo_loads(1)
A("L_ch_cnt:")
spin_guard("L_ch_cnt_ok")
A(f"v_mov_b32 v{cT}, 0")
A(f"buffer_load_dword v{cG}, v{cT}, {srd(SRD_DBG)}, 0 offen sc1\nbuffer_load_dword v{cG+1}, v{cT}, {srd(SRD_DBG)}, 0 offen offset:128 sc1")
A(f"s_waitcnt vmcnt(0)\nv_readfirstlane_b32 s{sT0}, v{cG}\nv_readfirstlane_b32 s{sT1}, v{cG+1}")
A(f"s_cmp_ge_u32 s{sT0}, 32\ns_cbranch_scc0 L_ch_cnt\ns_cmp_ge_u32 s{sT1}, 224\ns_cbranch_scc0 L_ch_cnt")
A("L_ch_cnt_ok:")
A("L_ch_pre:")
spin_guard("L_ch_stageA")
A("s_sleep 4")
A(f"buffer_load_dwordx2 v[{cML}:{cML+1}], v{cMLg}, {srd(SRD_WS)}, s{sMLOFF} offen sc1\ns_waitcnt vmcnt(0)")
A(f"v_cmp_ne_u32 vcc, -1, v{cML}\ns_nop 0\ns_cmp_lg_u64 vcc, 0\ns_cbranch_scc0 L_ch_pre")
A("s_branch L_ch_stageA")

A("L_fin:")
if PROFILE:
    A(f"s_mov_b64 s[{sSTAMP+36}:{sSTAMP+37}], s[100:101]")
    A(f"s_mul_i32 s{sT0}, s2, 640\ns_mul_i32 s{sT1}, s{sWAVE}, 160\ns_add_u32 s{sT0}, s{sT0}, s{sT1}\ns_add_u32 s{sT0}, s{sT0}, {WS_STAMP}")
    A("s_mov_b64 exec, 1\nv_mov_b32 v1, 0")
    for i in range(10):
        for r in range(4):
            A(f"v_mov_b32 v{4+r}, s{sSTAMP+4*i+r}")
        A(f"buffer_store_dwordx4 v[4:7], v1, {srd(SRD_WS)}, s{sT0} offen offset:{16*i}\ns_nop 1")
if PROFILE:
    A(f"s_cmp_eq_u32 s{sWAVE}, 0\ns_cbranch_scc0 L_end")
    A("s_cmp_eq_u32 s2, 0\ns_cbranch_scc0 L_dbg2")
    for i, st in enumerate([18, 2, 3, 6, 7, 10, 11, 14, 15, 19]):
        A(f"v_mov_b32 v4, s{sSTAMP+2*st}\nbuffer_store_dword v4, v1, {srd(SRD_DBG)}, 0 offen offset:{4+4*i}\ns_nop 1")
    A("s_branch L_end\nL_dbg2:")
    A("s_cmp_eq_u32 s2, 100\ns_cbranch_scc0 L_end")
    for i, st in enumerate([18, 1, 3, 4, 10]):
        A(f"v_mov_b32 v4, s{sSTAMP+2*st}\nbuffer_store_dword v4, v1, {srd(SRD_DBG)}, 0 offen offset:{44+4*i}\ns_nop 1")
A("L_end:")
A("s_endpgm")

for l in A.L:
    OUT.append(l if l.endswith(":") else "    " + l)
OUT.append('.section .rodata,"a"')
OUT.append(".p2align 6")
OUT.append(f".amdhsa_kernel {NAME}_kernel")
OUT.append("""  .amdhsa_next_free_vgpr 512
  .amdhsa_next_free_sgpr 102
  .amdhsa_accum_offset 256
  .amdhsa_group_segment_fixed_size 0
  .amdhsa_kernarg_size 104
  .amdhsa_user_sgpr_count 2
  .amdhsa_user_sgpr_kernarg_segment_ptr 1
  .amdhsa_system_sgpr_workgroup_id_x 1
  .amdhsa_float_denorm_mode_32 3
.end_amdhsa_kernel""")
out = sys.argv[1] if len(sys.argv) > 1 else f"cdna_kernels/{NAME}.s"
open(out, "w").write("\n".join(OUT) + "\n")
print("wrote", out, len(A.L), "lines")
```

```python
import sys, os, struct

PROFILE = int(os.environ.get("PROFILE", "0"))
NAME = "interleave_layers__gqa_block_cached__sliding_block_cached__decode"

WS_Q = 0
WS_ML = 32768
WS_Y = 49152
WS_PO = 196608
PO_L = 16 * 28 * 1024
WS_STAMP = 4 << 20
WS_SIZE = 283117312
SPIN_MAX = 1 << 18

CSCALE = struct.unpack("<I", struct.pack("<f", 1.4426950408889634 / 16.0))[0]
NEG_INF = 0xFF800000


def f2u(x):
    return struct.unpack("<I", struct.pack("<f", x))[0]


class Asm:
    def __init__(self):
        self.L = []
        self.nlabel = 0

    def __call__(self, s):
        for line in s.split("\n"):
            line = line.strip()
            if line:
                self.L.append(line)

    def label(self, base):
        self.nlabel += 1
        return f"L_{base}_{self.nlabel}"


A = Asm()


def vr(r, n=4):
    if isinstance(r, int):
        r = ("v", r)
    k, i = r
    return f"{k}[{i}:{i+n-1}]" if n > 1 else f"{k}{i}"


def radd(r, d):
    if isinstance(r, int):
        return r + d
    return (r[0], r[1] + d)


DPPF = "row_mask:0xf bank_mask:0xf"

sWAVE = 3
SRD_KA, SRD_VA, SRD_KB, SRD_VB, SRD_WS, SRD_DBG = 4, 8, 12, 16, 20, 24
SRD_WQA, SRD_WOA, SRD_WQB, SRD_WOB = 4, 8, 12, 16
SRD_X, SRD_OUT = 28, 32
sOFFA, sOFFA36, sOFFB, sOFFB9 = 28, 29, 30, 31
sBIASA, sBIASB = 32, 33
sC = 36
sLDSW = 37
sT0, sT1, sT2, sT3 = 38, 39, 40, 41
sLAYER = 42
sSPIN = 43
sQOFF, sPOOFF, sMLOFF, sYOFF = 44, 45, 46, 47
sG, sSP = 48, 49
sYST, sQST = 50, 51
KARG = 52
sSTAMP = 60

nstamp = [0]


def srd(r):
    return f"s[{r}:{r+3}]"


def stamp(idx):
    if PROFILE:
        assert idx < 20
        if idx == 0:
            for i in range(1, 20):
                A(f"s_mov_b64 s[{sSTAMP+2*i}:{sSTAMP+2*i+1}], 0")
        A(f"s_memrealtime s[{sSTAMP+2*idx}:{sSTAMP+2*idx+1}]\ns_waitcnt lgkmcnt(0)")


def mk_srd(dst, ptr, size):
    A(f"s_mov_b32 s{dst}, s{ptr}\ns_and_b32 s{dst+1}, s{ptr+1}, 0xffff\ns_mov_b32 s{dst+2}, {size}\ns_mov_b32 s{dst+3}, 0x20000")


def emit_masks(vlane, m0, t0, t1):
    A(f"v_and_b32 v{t0}, 1, v{vlane}")
    A(f"v_lshlrev_b32 v{t0}, 4, v{t0}")
    A(f"v_mov_b32 v{t1}, 0xffff")
    A(f"v_lshlrev_b32 v{t0}, v{t0}, v{t1}")
    A(f"v_bfe_u32 v{t1}, v{vlane}, 1, 2")
    for r in range(4):
        A(f"v_cmp_eq_u32 vcc, {r}, v{t1}")
        A("s_nop 1")
        A(f"v_cndmask_b32 v{m0+r}, 0, v{t0}, vcc")


def xrow_reduce(op, v, t):
    A(f"v_mov_b32 v{t}, v{v}\ns_nop 1\nv_permlane32_swap_b32 v{v}, v{t}\n{op} v{v}, v{v}, v{t}")
    A(f"v_mov_b32 v{t}, v{v}\ns_nop 1\nv_permlane16_swap_b32 v{v}, v{t}\n{op} v{v}, v{v}, v{t}")


def sentinel_check(regs, t, retry_label):
    regs = list(regs)
    A(f"v_max3_u32 v{t}, v{regs[0]}, v{regs[1]}, v{regs[2]}")
    i = 3
    while i + 1 < len(regs):
        A(f"v_max3_u32 v{t}, v{t}, v{regs[i]}, v{regs[i+1]}")
        i += 2
    if i < len(regs):
        A(f"v_max_u32 v{t}, v{t}, v{regs[i]}")
    A(f"v_cmp_eq_u32 vcc, -1, v{t}")
    A("s_nop 0")
    A(f"s_cmp_lg_u64 vcc, 0\ns_cbranch_scc1 {retry_label}")


def spin_guard(giveup_label):
    A(f"s_sub_u32 s{sSPIN}, s{sSPIN}, 1\ns_cmp_eq_u32 s{sSPIN}, 0\ns_cbranch_scc1 {giveup_label}")


hdr = open(f"cdna_kernels/{NAME}.s.ref").read().split("\n")
head = [l for l in hdr if l.startswith(";") and "@launch" not in l]
OUT = list(head)
OUT.append("; @launch grid=(256,1,1) block=(256,1,1) lds=163840")
OUT.append('.amdgcn_target "amdgcn-amd-amdhsa--gfx950"')
OUT.append(".text")
OUT.append(f".globl {NAME}_kernel")
OUT.append(".p2align 8")
OUT.append(f".type {NAME}_kernel,@function")
OUT.append(f"{NAME}_kernel:")

if PROFILE:
    A("s_memrealtime s[100:101]")
A("s_cmp_ge_u32 s2, 256\ns_cbranch_scc1 L_end")
A(f"s_load_dwordx16 s[{KARG}:{KARG+15}], s[0:1], 0")
A(f"s_load_dwordx8 s[{KARG+16}:{KARG+23}], s[0:1], 64")
A(f"s_load_dwordx2 s[{KARG+24}:{KARG+25}], s[0:1], 96")
pAX, pAK, pAV, pAWQ, pAWO, pBX, pBK, pBV, pBWQ, pBWO, pOUT, pDBG, pWS = [KARG + 2 * i for i in range(13)]
A("v_lshrrev_b32 v1, 6, v0\nv_and_b32 v0, 63, v0")
A(f"v_readfirstlane_b32 s{sWAVE}, v1")
A(f"s_and_b32 s{sG}, s2, 7\ns_lshr_b32 s{sSP}, s2, 3")
A(f"s_mov_b32 s{sC}, {CSCALE}\ns_mov_b32 s{sSPIN}, {SPIN_MAX}\ns_mov_b32 s{sLAYER}, 0")
A("s_waitcnt lgkmcnt(0)")
mk_srd(SRD_WS, pWS, WS_SIZE)
mk_srd(SRD_DBG, pDBG, 256)
A(f"s_cmp_lt_u32 s{sSP}, 4\ns_cbranch_scc1 L_chain")

vK, vV, vKd, vVd, vL, vQ, vT = 1, 2, 3, 4, 5, 6, 7
MASK = 8
QA = 12
DT = 20
vCM, vLS, vMX, vPO, vX = 32, 33, 34, 35, 36
SC = 37
STG_A = [56, 60, 64, 68]
NSLOT = 19
XBASE = 4 * NSLOT * 2048
MLBASE = XBASE + 6144


def half(h):
    return ("v", 72 + 8 * h) if h < 23 else ("a", 8 * (h - 23))


NKA = 37
NVREG = 18
KVBYTES = 67108864

mk_srd(SRD_KA, pAK, KVBYTES)
mk_srd(SRD_VA, pAV, KVBYTES)
mk_srd(SRD_KB, pBK, KVBYTES)
mk_srd(SRD_VB, pBV, KVBYTES)
A(f"s_sub_u32 s{sSP}, s{sSP}, 4")
A(f"s_lshl_b32 s{sT0}, s{sSP}, 2\ns_add_u32 s{sT0}, s{sT0}, s{sWAVE}")
A(f"s_lshl_b32 s{sT3}, s{sG}, 23")
A(f"s_mul_i32 s{sT1}, s{sT0}, 36\ns_min_u32 s{sT2}, s{sT0}, 64\ns_add_u32 s{sT1}, s{sT1}, s{sT2}")
A(f"s_lshl_b32 s{sT1}, s{sT1}, 11\ns_add_u32 s{sOFFA}, s{sT1}, s{sT3}")
A(f"s_cmp_lt_u32 s{sT0}, 64")
A(f"s_cselect_b32 s{sT1}, 36, 35")
A(f"s_cselect_b32 s{sBIASA}, 0, {NEG_INF}")
A(f"s_lshl_b32 s{sT1}, s{sT1}, 11")
A(f"s_add_u32 s{sOFFA36}, s{sOFFA}, s{sT1}")
A(f"s_mul_i32 s{sT1}, s{sT0}, 9\ns_max_u32 s{sT2}, s{sT0}, 96\ns_sub_u32 s{sT2}, s{sT2}, 96\ns_add_u32 s{sT1}, s{sT1}, s{sT2}")
A(f"s_lshl_b32 s{sT1}, s{sT1}, 11\ns_add_u32 s{sT1}, s{sT1}, s{sT3}\ns_add_u32 s{sOFFB}, s{sT1}, {12288*512}")
A(f"s_cmp_ge_u32 s{sT0}, 96")
A(f"s_cselect_b32 s{sT1}, 9, 8")
A(f"s_cselect_b32 s{sBIASB}, 0, {NEG_INF}")
A(f"s_lshl_b32 s{sT1}, s{sT1}, 11")
A(f"s_add_u32 s{sOFFB9}, s{sOFFB}, s{sT1}")
A(f"s_mul_i32 s{sLDSW}, s{sWAVE}, {NSLOT*2048}")
A(f"v_lshrrev_b32 v20, 4, v0       ; s / row")
A(f"v_and_b32 v21, 15, v0          ; j")
A(f"v_and_b32 v22, 3, v0           ; c")
A(f"v_bfe_u32 v23, v0, 2, 2        ; a")
A(f"v_lshl_add_u32 v24, v20, 2, v22   ; 4s+c")
A(f"v_lshlrev_b32 v24, 4, v24")
A(f"v_lshl_add_u32 v{vK}, v23, 9, v24")
A(f"v_lshlrev_b32 v25, 4, v21")
A(f"v_lshl_add_u32 v{vV}, v20, 9, v25")
A(f"v_add_u32 v{vKd}, 768, v{vK}\nv_add_u32 v{vVd}, 768, v{vV}")
A(f"v_lshlrev_b32 v26, 4, v0\nv_add_u32 v{vL}, s{sLDSW}, v26\nv_add_u32 v{vX}, {XBASE}, v26")
A(f"v_lshrrev_b32 v27, 3, v21      ; head(j)")
A(f"v_lshl_add_u32 v{vQ}, v27, 9, v24")
A(f"v_lshrrev_b32 v27, 5, v0\nv_mul_u32_u24 v27, 28672, v27\nv_lshl_add_u32 v27, v21, 5, v27")
A(f"v_and_b32 v28, 1, v20\nv_lshl_add_u32 v{vPO}, v28, 4, v27")
A(f"s_lshl_b32 s{sQOFF}, s{sG}, 10")
A(f"s_mul_i32 s{sPOOFF}, s{sG}, 56\ns_add_u32 s{sPOOFF}, s{sPOOFF}, s{sSP}\ns_lshl_b32 s{sPOOFF}, s{sPOOFF}, 10\ns_add_u32 s{sPOOFF}, s{sPOOFF}, {WS_PO}")
A(f"s_lshl_b32 s{sMLOFF}, s{sG}, 9\ns_lshl_b32 s{sT0}, s{sSP}, 3\ns_add_u32 s{sMLOFF}, s{sMLOFF}, s{sT0}\ns_add_u32 s{sMLOFF}, s{sMLOFF}, {WS_ML}")
stamp(0)

A(f"s_cmp_eq_u32 s{sWAVE}, 3\ns_cbranch_scc0 L_att_noclear")
A("v_mov_b32 v12, -1\nv_mov_b32 v13, -1\nv_mov_b32 v14, -1\nv_mov_b32 v15, -1")
for l in range(4):
    for h in range(2):
        A(f"s_add_u32 s{sT0}, s{sPOOFF}, {l*PO_L + h*28672}")
        A(f"buffer_store_dwordx4 v[12:15], v26, {srd(SRD_WS)}, s{sT0} offen sc1")
A("v_and_b32 v16, 1, v0\nv_lshlrev_b32 v16, 8, v16\nv_bfe_u32 v17, v0, 1, 2\nv_lshl_add_u32 v16, v17, 12, v16")
A("s_mov_b64 exec, 0xff")
A(f"buffer_store_dwordx2 v[12:13], v16, {srd(SRD_WS)}, s{sMLOFF} offen sc1")
A("s_waitcnt vmcnt(0)")
A("s_mov_b64 exec, 1")
A("v_mov_b32 v16, 128\nv_mov_b32 v17, 1")
A(f"buffer_atomic_add v17, v16, {srd(SRD_DBG)}, 0 offen")
A("s_mov_b64 exec, -1")
A("s_waitcnt vmcnt(0)")
A("L_att_noclear:")
emit_masks(0, MASK, 20, 21)


def ld_items_reg(srdr, voff, soff_base, ulist, regs_of):
    items = []
    i = 0
    while i < len(ulist):
        u = ulist[i]
        pair = ulist[i:i + 2]
        pre = f"s_add_u32 s{sT0}, s{soff_base}, {u*2048}"
        first = True
        for k, uu in enumerate(pair):
            for m in range(2):
                txt = f"buffer_load_dwordx4 {vr(radd(regs_of(uu), 4*m))}, v{voff}, {srd(srdr)}, s{sT0} offen offset:{k*2048+m*256} nt"
                if first:
                    txt = pre + "\n" + txt
                    first = False
                items.append((txt, uu))
        i += 2
    return items


def ld_items_lds(srdr, voff, voffd, soff_base, ulist, slot_of):
    items = []
    i = 0
    while i < len(ulist):
        u = ulist[i]
        pair = ulist[i:i + 2]
        d = u * 2048 - 768
        pre = (f"s_add_u32 s{sT1}, s{soff_base}, {d}" if d >= 0 else f"s_sub_u32 s{sT1}, s{soff_base}, {-d}")
        pre += f"\ns_add_u32 s{sT2}, s{sLDSW}, {slot_of(u)*2048}\ns_mov_b32 m0, s{sT2}\ns_nop 0"
        first = True
        for k, uu in enumerate(pair):
            assert slot_of(uu) == slot_of(u) + k
            for m in range(2):
                v = voffd if m == 0 else voff
                txt = f"buffer_load_dwordx4 v{v}, {srd(srdr)}, s{sT1} offen offset:{k*2048+m*1024} nt lds"
                if first:
                    txt = pre + "\n" + txt
                    first = False
                items.append((txt, uu))
        i += 2
    return items


def qk_groups(n, ksrc, bias_sgpr, stg):
    G = []
    nC = (n + 1) // 2
    G.append((f"v_mov_b32 v{vMX}, {NEG_INF}" + (f"\nv_mov_b32 v{SC+nC-1}, {NEG_INF}" if n & 1 else ""), None))
    reads = [(u, m) for u in range(n) if ksrc(u)[0] == "lds" for m in range(2)]
    rpos = {rm: i for i, rm in enumerate(reads)}
    issued = [0]

    def issue_reads(upto, out):
        while issued[0] < min(upto, len(reads)):
            u, m = reads[issued[0]]
            q = stg[issued[0] % len(stg)]
            out.append((f"ds_read_b128 {vr(q)}, v{vL} offset:{ksrc(u)[1]*2048+m*1024}", ksrc(u)[2]))
            issued[0] += 1

    pre = []
    issue_reads(len(stg), pre)

    def bops(u):
        d = DT + 4 * (u % 3)
        c = SC + u // 2
        bm = 0x5 if (u & 1) == 0 else 0xA
        t = f"v_mov_b32_dpp v{d}, v{d} quad_perm:[0,0,0,0] {DPPF}\n"
        t += f"v_add_f32_dpp v{d}, v{d+1}, v{d} quad_perm:[1,1,1,1] {DPPF}\n"
        t += f"v_add_f32_dpp v{d}, v{d+2}, v{d} quad_perm:[2,2,2,2] {DPPF}\n"
        if u == n - 1:
            t += f"v_add_f32 v{d}, s{bias_sgpr}, v{d}\n"
        t += f"v_add_f32_dpp v{c}, v{d+3}, v{d} quad_perm:[3,3,3,3] row_mask:0xf bank_mask:{bm:#x}\n"
        if (u & 1) or u == n - 1:
            t += f"v_max_f32 v{vMX}, v{vMX}, v{c}\n"
        return t

    body = []
    for u in range(n):
        d = DT + 4 * (u % 3)
        src = ksrc(u)
        if src[0] == "reg":
            t = f"v_mfma_f32_16x16x32_bf16 {vr(d)}, {vr(src[1])}, {vr(QA)}, 0\n"
            t += f"v_mfma_f32_16x16x32_bf16 {vr(d)}, {vr(radd(src[1],4))}, {vr(QA+4)}, {vr(d)}"
            body.append((t, src[2]))
        else:
            for m in range(2):
                i = rpos[(u, m)]
                q = stg[i % len(stg)]
                t = f"s_waitcnt lgkmcnt({issued[0]-i-1})\n"
                t += f"v_mfma_f32_16x16x32_bf16 {vr(d)}, {vr(q)}, {vr(QA+4*m)}, {'0' if m == 0 else vr(d)}"
                body.append((t, None))
                issue_reads(i + 1 + len(stg), body)
        if u >= 2:
            body.append((("s_nop 3\n" if u == 2 else "") + bops(u - 2), None))
    body.append((bops(n - 2), None))
    body.append((bops(n - 1), None))
    return G, pre, body


def max_group():
    t = "s_nop 1\n"
    t += f"v_max_f32_dpp v{vMX}, v{vMX}, v{vMX} row_half_mirror {DPPF}\n"
    t += f"v_mov_b32 v{vT}, v{vMX}\ns_nop 1\nv_permlane32_swap_b32 v{vMX}, v{vT}\nv_max_f32 v{vMX}, v{vMX}, v{vT}\n"
    t += f"v_mov_b32 v{vT}, v{vMX}\ns_nop 1\nv_permlane16_swap_b32 v{vMX}, v{vT}\nv_max_f32 v{vMX}, v{vMX}, v{vT}\n"
    t += f"v_mul_f32 v{vCM}, s{sC}, v{vMX}\nv_mov_b32 v{vLS}, 0"
    return (t, None)


def pv_groups(order, vsrc, stg):
    T = [DT, DT + 4]
    PP = [DT + 8, DT + 9]
    n = len(order)
    reads = [(u, m) for u in order if vsrc(u)[0] == "lds" for m in range(2)]
    rpos = {rm: i for i, rm in enumerate(reads)}
    issued = [0]
    body = []

    def issue_reads(upto):
        while issued[0] < min(upto, len(reads)):
            u, m = reads[issued[0]]
            q = stg[issued[0] % len(stg)]
            body.append((f"ds_read_b128 {vr(q)}, v{vL} offset:{vsrc(u)[1]*2048+m*1024}", vsrc(u)[2], None))
            issued[0] += 1

    pairs = []
    for u in order:
        if u // 2 not in pairs:
            pairs.append(u // 2)
    pidx = {k: i for i, k in enumerate(pairs)}

    def E(k):
        c = SC + k
        return f"v_fma_f32 v{c}, v{c}, s{sC}, -v{vCM}\nv_exp_f32 v{c}, v{c}\n"

    def F(k):
        c = SC + k
        return f"v_add_f32 v{vLS}, v{vLS}, v{c}\nv_cvt_pk_bf16_f32 v{PP[pidx[k]&1]}, v{c}, v{c}\n"

    def Gm(i):
        u = order[i]
        pp = PP[pidx[u // 2] & 1]
        rho = u & 1
        t = ""
        for r in range(4):
            if (r >> 1) == rho:
                t += f"v_and_b32 v{T[i&1]+r}, v{pp}, v{MASK+r}\n"
        for r in range(4):
            if (r >> 1) != rho:
                sh = "row_shr:4" if rho == 0 else "row_shl:4"
                t += f"v_and_b32_dpp v{T[i&1]+r}, v{pp}, v{MASK+r} {sh} {DPPF} bound_ctrl:0\n"
        return t

    t = E(pairs[0])
    if len(pairs) > 1:
        t += E(pairs[1])
    else:
        t += "s_nop 0\n"
    t += F(pairs[0]) + Gm(0)
    body.append((t, None, None))
    edone = min(2, len(pairs))
    fdone = 1
    first_lds_started = False
    for i in range(n):
        u = order[i]
        nxt = [order[j] for j in range(i, min(n, i + 3))]
        if not first_lds_started and any(vsrc(x)[0] == "lds" for x in nxt):
            issue_reads(len(stg))
            first_lds_started = True
        t = ""
        if i + 1 < n:
            k1 = pidx[order[i + 1] // 2]
            if k1 >= fdone:
                t += F(pairs[k1])
                fdone = k1 + 1
                if edone < len(pairs):
                    t += E(pairs[edone])
                    edone += 1
            t += Gm(i + 1)
        else:
            t += "s_nop 1\n"
        body.append((t, None, None))
        src = vsrc(u)
        for m in range(2):
            acc = QA + 4 * m
            cin = "0" if i == 0 else vr(acc)
            if src[0] == "reg":
                body.append((f"v_mfma_f32_16x16x32_bf16 {vr(acc)}, {vr(T[i&1])}, {vr(radd(src[1],4*m))}, {cin}", src[2], None))
            else:
                j = rpos[(u, m)]
                q = stg[j % len(stg)]
                body.append((f"s_waitcnt lgkmcnt({issued[0]-j-1})\nv_mfma_f32_16x16x32_bf16 {vr(acc)}, {vr(T[i&1])}, {vr(q)}, {cin}", None, u if m == 1 else None))
                issue_reads(j + 1 + len(stg))
    return body


def emit_groups(gs):
    for g in gs:
        A(g[0])


def q_loads():
    return (f"buffer_load_dwordx4 {vr(QA)}, v{vQ}, {srd(SRD_WS)}, s{sQOFF} offen sc1\n"
            f"buffer_load_dwordx4 {vr(QA+4)}, v{vQ}, {srd(SRD_WS)}, s{sQOFF} offen offset:256 sc1")


def poll_q_blocking():
    lp, done = A.label("qpoll"), A.label("qdone")
    A(f"{lp}:")
    spin_guard(done)
    A(q_loads())
    A("s_waitcnt vmcnt(0)")
    sentinel_check(range(QA, QA + 8), vT, lp)
    A(f"{done}:")
    A("s_nop 1")


VL_UNITS = list(range(NVREG, NKA))
vslot = lambda u: u - NVREG
loads = []
it = ld_items_lds(SRD_VA, vV, vVd, sOFFA, VL_UNITS[:-1], vslot)
loads += [(t, ("V", u), None) for t, u in it]
it = ld_items_lds(SRD_VA, vV, vVd, sOFFA36, [0], lambda u: vslot(36))
loads += [(t, ("V", 36), None) for t, u in it]
it = ld_items_reg(SRD_KA, vK, sOFFA, list(range(36)), half)
kl = [(t, ("K", u), None) for t, u in it]
it = ld_items_reg(SRD_KA, vK, sOFFA36, [0], lambda u: half(36))
kl += [(t, ("K", 36), None) for t, u in it]
ca_load = (f"v_mov_b32 v{vT}, 0\nbuffer_load_dword v{vCM}, v{vT}, {srd(SRD_DBG)}, 0 offen sc1", ("CA",), None)
loads += kl[:8] + [ca_load] + kl[8:24]
QPOS = len(loads)
loads += kl[24:]
it = ld_items_reg(SRD_VA, vV, sOFFA, list(range(NVREG)), lambda u: half(NKA + u))
loads += [(t, ("V", u), None) for t, u in it]
NA_LOADS = len(loads)
BV9 = 42
STG_B = [50, 56, 60, 64, 68]


def b_loads():
    bl = []
    it = ld_items_lds(SRD_KB, vK, vKd, sOFFB, list(range(8)), lambda u: u)
    bl += [(t, ("BK", u), u | 1) for t, u in it]
    it = ld_items_lds(SRD_KB, vK, vKd, sOFFB, [8], lambda u: u)
    bl += [(t, ("BK", u), u) for t, u in it]
    it = ld_items_lds(SRD_KB, vK, vKd, sOFFB9, [0], lambda u: 9)
    bl += [(t, ("BK", 9), 9) for t, u in it]
    it = ld_items_lds(SRD_VB, vV, vVd, sOFFB, list(range(9)), lambda u: 10 + u)
    bl += [(t, ("BV", u), min(18, (10 + u) | 1)) for t, u in it]
    it = ld_items_reg(SRD_VB, vV, sOFFB9, [0], lambda u: BV9)
    bl += [(t, ("BV", 9), None) for t, u in it]
    return bl


BL = b_loads()
NB_EARLY = 8
loads += BL[:NB_EARLY]

ksrcA = lambda u: ("reg", half(u), ("K", u))
vsrcA = lambda u: ("reg", half(NKA + u), ("V", u)) if u < NVREG else ("lds", vslot(u), ("V", u))

g0, pre, body = qk_groups(NKA, ksrcA, sBIASA, STG_A)
comp = [(t, n, None) for t, n in g0 + pre + body] + [max_group() + (None,)]
comp += pv_groups(VL_UNITS + list(range(NVREG)), vsrcA, STG_A)

LAG = 10
last_of = {}
nissued = 0
released = set()
ci = 0


def emit_comp(g):
    t, need, rel = g
    if need is not None:
        n = nissued - last_of[need] - 1
        A(f"s_waitcnt vmcnt({min(n, 63)})")
    A(t)
    if rel is not None:
        released.add(vslot(rel))


qready = False
li = 0
while li < len(loads):
    if li == QPOS:
        n = nissued - last_of[("CA",)] - 1
        ok, lp = A.label("caok"), A.label("calp")
        A(f"s_waitcnt vmcnt({n})\nv_readfirstlane_b32 s{sT3}, v{vCM}\ns_cmp_ge_u32 s{sT3}, 32\ns_cbranch_scc1 {ok}")
        A(f"{lp}:")
        spin_guard(ok)
        A(f"buffer_load_dword v{vCM}, v{vT}, {srd(SRD_DBG)}, 0 offen sc1\ns_waitcnt vmcnt(0)\nv_readfirstlane_b32 s{sT3}, v{vCM}\ns_cmp_ge_u32 s{sT3}, 32\ns_cbranch_scc0 {lp}")
        A(f"{ok}:")
        A(q_loads())
        nissued += 2
        last_of[("Q",)] = nissued - 1
    if li == QPOS + 12:
        n = nissued - last_of[("Q",)] - 1
        slow, ok = A.label("qslow"), A.label("qok")
        A(f"s_waitcnt vmcnt({n})")
        sentinel_check(range(QA, QA + 8), vT, slow)
        A(f"s_branch {ok}\n{slow}:")
        poll_q_blocking()
        A(f"{ok}:")
        stamp(1)
        qready = True
    t, tag, req = loads[li]
    if req is not None and req not in released:
        emit_comp(comp[ci])
        ci += 1
        continue
    A(t)
    last_of[tag] = nissued
    nissued += 1
    li += 1
    if qready:
        cnt = 0
        while ci < len(comp) and cnt < 6:
            need = comp[ci][1]
            if need is not None and (need not in last_of or nissued - last_of[need] - 1 < LAG or
                                     (li < len(loads) and loads[li][1] == need)):
                break
            emit_comp(comp[ci])
            ci += 1
            cnt += 1
stamp(2)
while ci < len(comp):
    emit_comp(comp[ci])
    ci += 1

A("L_reduce:")
R0 = SC
A(f"v_add_f32_dpp v{vLS}, v{vLS}, v{vLS} row_half_mirror {DPPF}")
xrow_reduce("v_add_f32", vLS, vT)
A(f"v_bfe_u32 v{R0}, v0, 3, 1\nv_lshlrev_b32 v{R0}, 5, v{R0}\ns_lshl_b32 s{sT0}, s{sWAVE}, 3\ns_add_u32 s{sT0}, s{sT0}, {MLBASE}\nv_add_u32 v{R0}, s{sT0}, v{R0}")
A(f"ds_write_b64 v{R0}, v[{vCM}:{vLS}]")
A(f"v_lshrrev_b32 v{R0+1}, 5, v0\nv_lshlrev_b32 v{R0+1}, 5, v{R0+1}\nv_add_u32 v{R0+1}, {MLBASE}, v{R0+1}")
A(f"s_cmp_lt_u32 s{sWAVE}, 2\ns_cbranch_scc1 L_red_01")
A(f"s_lshl_b32 s{sT0}, s{sWAVE}, 10\ns_sub_u32 s{sT0}, s{sT0}, 1024\nv_add_u32 v{R0+2}, s{sT0}, v{vX}")
A(f"ds_write_b128 v{R0+2}, {vr(QA)}\nds_write_b128 v{R0+2}, {vr(QA+4)} offset:3072")
A("s_waitcnt lgkmcnt(0)\ns_barrier\ns_branch L_red_done")
A("L_red_01:")
A(f"s_cmp_eq_u32 s{sWAVE}, 0\ns_cbranch_scc1 L_red_0")
A(f"ds_write_b128 v{vX}, {vr(QA)}")
A(f"v_add_u32 v{R0+2}, 3072, v{vX}")
A("s_waitcnt lgkmcnt(0)")
for r in range(4):
    A(f"v_mov_b32 v{QA+r}, v{QA+4+r}")
A("s_branch L_red_c")
A("L_red_0:")
A(f"ds_write_b128 v{vX}, {vr(QA+4)} offset:3072")
A(f"v_mov_b32 v{R0+2}, v{vX}")
A("s_waitcnt lgkmcnt(0)")
A("L_red_c:")
A("s_barrier")
ML = 56
XR = 20
A(f"ds_read_b128 {vr(ML)}, v{R0+1}\nds_read_b128 {vr(ML+4)}, v{R0+1} offset:16")
for s in range(3):
    A(f"ds_read_b128 {vr(XR+4*s)}, v{R0+2} offset:{1024*s}")
Mx, F0 = 64, 66
A("s_waitcnt lgkmcnt(3)")
A(f"v_max3_f32 v{Mx}, v{ML}, v{ML+2}, v{ML+4}\nv_max_f32 v{Mx}, v{Mx}, v{ML+6}")
for w in range(4):
    A(f"v_sub_f32 v{F0+w}, v{ML+2*w}, v{Mx}")
for w in range(4):
    A(f"v_exp_f32 v{F0+w}, v{F0+w}")
A(f"s_cmp_eq_u32 s{sWAVE}, 0")
A(f"v_mul_f32 v{Mx+1}, v{F0}, v{ML+1}")
for w in range(1, 4):
    A(f"v_fmac_f32 v{Mx+1}, v{F0+w}, v{ML+2*w+1}")
A("s_cbranch_scc1 L_red_sw")
A(f"v_mov_b32 v{vT}, v{F0}\nv_mov_b32 v{F0}, v{F0+1}\nv_mov_b32 v{F0+1}, v{vT}")
A("L_red_sw:")
for r in range(4):
    A(f"v_mul_f32 v{QA+r}, v{F0}, v{QA+r}")
A("s_waitcnt lgkmcnt(0)")
for s in range(3):
    for r in range(4):
        A(f"v_fmac_f32 v{QA+r}, v{F0+1+s}, v{XR+4*s+r}")
for r in range(4):
    A(f"v_min_u32 v{QA+r}, -2, v{QA+r}")
A(f"s_lshl_b32 s{sT0}, s{sWAVE}, 9\ns_add_u32 s{sT0}, s{sT0}, s{sPOOFF}")
A(f"buffer_store_dwordx4 {vr(QA)}, v{vPO}, {srd(SRD_WS)}, s{sT0} offen sc1")
A(f"s_cmp_eq_u32 s{sWAVE}, 0\ns_cbranch_scc0 L_red_done")
A(f"v_min_u32 v{Mx}, -2, v{Mx}\nv_min_u32 v{Mx+1}, -2, v{Mx+1}")
A(f"v_lshrrev_b32 v{vT}, 5, v0\nv_lshlrev_b32 v{vT}, 8, v{vT}")
A("s_mov_b32 exec_lo, 1\ns_mov_b32 exec_hi, 1")
A(f"buffer_store_dwordx2 v[{Mx}:{Mx+1}], v{vT}, {srd(SRD_WS)}, s{sMLOFF} offen sc1")
A("s_mov_b64 exec, -1")
A("L_red_done:")
A(f"s_add_u32 s{sQOFF}, s{sQOFF}, 8192\ns_add_u32 s{sPOOFF}, s{sPOOFF}, {PO_L}\ns_add_u32 s{sMLOFF}, s{sMLOFF}, 4096")
A(f"s_add_u32 s{sLAYER}, s{sLAYER}, 1")
A(f"s_cmp_eq_u32 s{sLAYER}, 2\ns_cbranch_scc1 L_after2")
A(f"s_cmp_eq_u32 s{sLAYER}, 3\ns_cbranch_scc1 L_after3")
A(f"s_cmp_eq_u32 s{sLAYER}, 4\ns_cbranch_scc1 L_att_end")
stamp(3)
A("s_branch L_bl_rest")
A("L_after3:")
stamp(9)
for t, tag, req in BL[:NB_EARLY]:
    A(t)
A("L_bl_rest:")
for t, tag, req in BL[NB_EARLY:]:
    A(t)
A("s_waitcnt vmcnt(0)")
if PROFILE:
    A(f"s_cmp_eq_u32 s{sLAYER}, 1\ns_cbranch_scc0 L_ps1")
    stamp(4)
    A("s_branch L_ps2\nL_ps1:")
    stamp(10)
    A("L_ps2:")
ksrcB = lambda u: ("lds", u, None)
vsrcB = lambda u: ("lds", 10 + u, None) if u < 9 else ("reg", BV9, None)
g0, pre, body = qk_groups(10, ksrcB, sBIASB, STG_B)
emit_groups(g0)
emit_groups(pre)
poll_q_blocking()
if PROFILE:
    A(f"s_cmp_eq_u32 s{sLAYER}, 1\ns_cbranch_scc0 L_ps3")
    stamp(5)
    A("s_branch L_ps4\nL_ps3:")
    stamp(11)
    A("L_ps4:")
emit_groups(body)
emit_groups([max_group()])
emit_groups(pv_groups(list(range(10)), vsrcB, STG_B))
A("s_branch L_reduce")

A("L_after2:")
stamp(6)
for t, tag, req in loads[:2 * NSLOT]:
    A(t)
nul = lambda f: (lambda u: f(u)[:2] + (None,))
g0, pre, body = qk_groups(NKA, nul(ksrcA), sBIASA, STG_A)
emit_groups(g0)
poll_q_blocking()
stamp(7)
emit_groups(body)
emit_groups([max_group()])
stamp(8)
emit_groups(pv_groups(list(range(NKA)), nul(vsrcA), STG_A))
A("s_branch L_reduce")

A("L_att_end:")
stamp(12)
A("s_branch L_fin")

A("L_chain:")
cWq, cWo, cPOg, cMLg, cL16, cXl, cT = 1, 2, 3, 4, 5, 6, 7
cX = 12
cVAL = 19
cTT = [20, 24]
cACC = 28
cG = 36
cN = 68
cM = 84
cYst, cQst, cSCR, cXSw, cCol = 84, 85, 86, 87, 88
WQ = {0: ("a", 0), 1: ("a", 112)}
WO0 = {0: ("v", 96), 1: ("v", 160)}


def wo1(t):
    return ("v", 224 + 4 * t) if t < 8 else ("a", 224 + 4 * (t - 8))


CSCR = 131072
YX = CSCR
XS = CSCR + 4096
QX = CSCR + 8192
sCH = sSP
WQB = 448 * 4096 * 2

mk_srd(SRD_WQA, pAWQ, WQB)
mk_srd(SRD_WOA, pAWO, WQB)
mk_srd(SRD_WQB, pBWQ, WQB)
mk_srd(SRD_WOB, pBWO, WQB)
mk_srd(SRD_X, pAX, 896)
mk_srd(SRD_OUT, pOUT, 896)
A(f"s_lshl_b32 s{sT0}, s{sG}, 2\ns_add_u32 s{sCH}, s{sT0}, s{sSP}")
A("v_lshrrev_b32 v20, 4, v0       ; s / row")
A("v_and_b32 v21, 15, v0          ; j / c16")
A("v_lshlrev_b32 v22, 4, v21      ; j*16")
A(f"v_lshl_add_u32 v{cWq}, v20, 17, v22")
A(f"v_mul_u32_u24 v{cWo}, 896, v20\nv_add_u32 v{cWo}, v{cWo}, v22")
A(f"s_lshl_b32 s{sT0}, s{sWAVE}, 2\nv_add_u32 v23, s{sT0}, v21\nv_and_b32 v23, 15, v23\nv_lshl_add_u32 v23, v20, 4, v23")
A(f"v_lshlrev_b32 v{cCol}, 1, v23")
A(f"v_lshlrev_b32 v{cXl}, 2, v23\nv_add_u32 v{cXl}, {XS}, v{cXl}")
for k in range(7):
    A(f"buffer_load_ushort v{cX+k}, v{cCol}, {srd(SRD_X)}, 0 offen offset:{128*k}")


def wq_loads(which):
    s = SRD_WQA if which == 0 else SRD_WQB
    A(f"s_lshl_b32 s{sT0}, s{sWAVE}, 15\ns_lshl_b32 s{sT1}, s{sCH}, 8\ns_add_u32 s{sT0}, s{sT0}, s{sT1}")
    for k in range(7):
        for cc in range(4):
            A(f"s_add_u32 s{sT1}, s{sT0}, {(64*k+cc)*8192}")
            A(f"buffer_load_dwordx4 {vr(radd(WQ[which], 4*(4*k+cc)))}, v{cWq}, {srd(s)}, s{sT1} offen nt")


def wo_loads(which):
    s = SRD_WOA if which == 0 else SRD_WOB
    A(f"s_lshr_b32 s{sT0}, s{sCH}, 1\ns_lshl_b32 s{sT0}, s{sT0}, 2\ns_add_u32 s{sT0}, s{sT0}, s{sWAVE}\ns_mul_i32 s{sT0}, s{sT0}, {64*896}")
    A(f"s_and_b32 s{sT1}, s{sCH}, 1\ns_mul_i32 s{sT1}, s{sT1}, 448\ns_add_u32 s{sT0}, s{sT0}, s{sT1}")
    A(f"s_lshl_b32 s{sT2}, s{sWAVE}, 14\ns_add_u32 s{sT2}, s{sT2}, {which*65536}")
    for t in range(16):
        A(f"s_add_u32 s{sT1}, s{sT0}, {4*t*896}")
        A(f"buffer_load_dwordx4 {vr(radd(WO0[which], 4*t))}, v{cWo}, {srd(s)}, s{sT1} offen nt")
        A(f"s_add_u32 s{sT1}, s{sT1}, 256\ns_add_u32 s{sT3}, s{sT2}, {t*1024}\ns_mov_b32 m0, s{sT3}\ns_nop 0")
        A(f"buffer_load_dwordx4 v{cWo}, {srd(s)}, s{sT1} offen nt lds")


stamp(0)
A(f"v_lshlrev_b32 v{cL16}, 4, v0")
A(f"s_lshl_b32 s{sYST}, s{sCH}, 10\ns_add_u32 s{sYST}, s{sYST}, {WS_Y}")
A(f"s_lshl_b32 s{sQST}, s{sCH}, 8")
A(f"s_cmp_eq_u32 s{sWAVE}, 3\ns_cbranch_scc0 L_ch_noclear")
A("v_mov_b32 v24, -1\nv_mov_b32 v25, -1\nv_mov_b32 v26, -1\nv_mov_b32 v27, -1")
for l in range(4):
    A(f"s_add_u32 s{sT0}, s{sYST}, {l*32768}")
    A(f"buffer_store_dwordx4 v[24:27], v{cL16}, {srd(SRD_WS)}, s{sT0} offen sc1")
A("v_lshl_add_u32 v28, v20, 13, v22")
A(f"buffer_store_dwordx4 v[24:27], v28, {srd(SRD_WS)}, s{sQST} offen sc1")
A("s_waitcnt vmcnt(0)")
A("s_mov_b64 exec, 1")
A("v_mov_b32 v28, 0\nv_mov_b32 v29, 1")
A(f"buffer_atomic_add v29, v28, {srd(SRD_DBG)}, 0 offen")
A("s_mov_b64 exec, -1")
A("L_ch_noclear:")
wq_loads(0)
A(f"v_mul_u32_u24 v{cPOg}, 7168, v20\nv_add_u32 v{cPOg}, v{cPOg}, v22\ns_lshl_b32 s{sT0}, s{sWAVE}, 8\nv_add_u32 v{cPOg}, s{sT0}, v{cPOg}")
A(f"v_min_u32 v23, 6, v21\nv_mul_u32_u24 v24, 7, v20\nv_add_u32 v23, v23, v24\nv_lshlrev_b32 v{cMLg}, 3, v23")
A(f"v_cmp_gt_u32 vcc, 7, v21\ns_nop 1\nv_cndmask_b32 v{cVAL}, 0, 1.0, vcc")
A(f"v_lshrrev_b32 v23, 5, v0\nv_lshlrev_b32 v23, 9, v23\nv_lshl_add_u32 v23, v21, 5, v23\nv_and_b32 v24, 1, v20\nv_lshl_add_u32 v{cYst}, v24, 4, v23")
A(f"v_lshlrev_b32 v23, 3, v24\nv_add_u32 v{cQst}, v22, v23")
A(f"v_add_u32 v{cSCR}, {CSCR}, v{cL16}")
A(f"s_lshr_b32 s{sT0}, s{sWAVE}, 1\ns_lshl_b32 s{sT0}, s{sT0}, 11\ns_and_b32 s{sT1}, s{sWAVE}, 1\ns_mul_i32 s{sT1}, s{sT1}, 896\ns_add_u32 s{sT0}, s{sT0}, s{sT1}\ns_add_u32 s{sT0}, s{sT0}, {XS}")
A(f"v_add_u32 v{cXSw}, s{sT0}, v{cL16}")
A(f"s_lshr_b32 s{sT0}, s{sCH}, 1\ns_mul_i32 s{sPOOFF}, s{sT0}, 28672\ns_add_u32 s{sPOOFF}, s{sPOOFF}, {WS_PO}")
A(f"s_lshl_b32 s{sMLOFF}, s{sT0}, 8\ns_add_u32 s{sMLOFF}, s{sMLOFF}, {WS_ML}")
A(f"s_lshr_b32 s{sT0}, s{sWAVE}, 1\ns_lshl_b32 s{sT0}, s{sT0}, 14\ns_and_b32 s{sT1}, s{sWAVE}, 1\ns_lshl_b32 s{sT1}, s{sT1}, 10\ns_add_u32 s{sYOFF}, s{sT0}, s{sT1}\ns_add_u32 s{sYOFF}, s{sYOFF}, {WS_Y}")
emit_masks(0, MASK, 20, 21)
wo_loads(0)
A("s_waitcnt vmcnt(32)")
for k in range(7):
    A(f"v_lshlrev_b32 v{cX+k}, 16, v{cX+k}")
stamp(1)
A("s_branch L_ch_ln")


def full_reduce2(a, b, t):
    for ctl in ("quad_perm:[1,0,3,2]", "quad_perm:[2,3,0,1]", "row_half_mirror", "row_mirror"):
        A("s_nop 0")
        A(f"v_add_f32_dpp v{a}, v{a}, v{a} {ctl} {DPPF}")
        A(f"v_add_f32_dpp v{b}, v{b}, v{b} {ctl} {DPPF}")
    for sw in ("v_permlane32_swap_b32", "v_permlane16_swap_b32"):
        A(f"v_mov_b32 v{t}, v{a}\nv_mov_b32 v{t+1}, v{b}\ns_nop 1")
        A(f"{sw} v{a}, v{t}\n{sw} v{b}, v{t+1}")
        A(f"v_add_f32 v{a}, v{a}, v{t}\nv_add_f32 v{b}, v{b}, v{t+1}")


def bf16r(dst, src):
    A(f"v_cvt_pk_bf16_f32 v{dst}, v{src}, v{src}\nv_and_b32 v{dst}, 0xffff0000, v{dst}")


A("L_ch_stageA:")
A(f"s_and_b32 s{sT0}, s{sLAYER}, 1\ns_lshl_b32 s{sT0}, s{sT0}, 16\ns_lshl_b32 s{sT1}, s{sWAVE}, 14\ns_add_u32 s{sT0}, s{sT0}, s{sT1}")
A(f"v_add_u32 v{cT}, s{sT0}, v{cL16}")
for t in range(16):
    A(f"ds_read_b128 {vr(wo1(t))}, v{cT} offset:{t*1024}")
A("s_waitcnt lgkmcnt(0)")
A(f"s_add_u32 s{sT0}, s{sPOOFF}, 4096")
cML = cG + 28
A("L_sa_poll:")
spin_guard("L_sa_go")
A(f"buffer_load_dwordx2 v[{cML}:{cML+1}], v{cMLg}, {srd(SRD_WS)}, s{sMLOFF} offen sc1")
for u in range(7):
    so = sPOOFF if u < 4 else sT0
    A(f"buffer_load_dwordx4 {vr(cG+4*u)}, v{cPOg}, {srd(SRD_WS)}, s{so} offen offset:{(u%4)*1024} sc1")
A("s_waitcnt vmcnt(0)")
sentinel_check(range(cG, cG + 30), cT, "L_sa_poll")
A("L_sa_go:")
if PROFILE:
    for l in range(4):
        lb = A.label("ps")
        A(f"s_cmp_eq_u32 s{sLAYER}, {l}\ns_cbranch_scc0 {lb}")
        stamp(3 + 4 * l)
        A(f"{lb}:")
mM, mW, mL = cN, cN + 1, cN + 2
A(f"v_max_f32_dpp v{mM}, v{cML}, v{cML} quad_perm:[1,0,3,2] {DPPF}")
for ctl in ("quad_perm:[2,3,0,1]", "row_half_mirror"):
    A(f"s_nop 1\nv_max_f32_dpp v{mM}, v{mM}, v{mM} {ctl} {DPPF}")
xrow_reduce("v_max_f32", mM, cT)
A(f"v_sub_f32 v{mW}, v{cML}, v{mM}\nv_exp_f32 v{mW}, v{mW}\nv_mul_f32 v{mL}, v{cML+1}, v{cVAL}\nv_mul_f32 v{mL}, v{mL}, v{mW}")
oa = cN + 4
red_steps = [f"v_add_f32_dpp v{mL}, v{mL}, v{mL} {c} {DPPF}" for c in
             ("quad_perm:[1,0,3,2]", "quad_perm:[2,3,0,1]", "row_half_mirror", "row_mirror")]
A("s_nop 0")
for u in range(7):
    for r in range(4):
        op = "v_mul_f32_dpp" if u == 0 else "v_fmac_f32_dpp"
        A(f"{op} v{oa+r}, v{mW}, v{cG+4*u+r} row_newbcast:{u} {DPPF}")
    if u < 4:
        A(red_steps[u])
xrow_reduce("v_add_f32", mL, cT)
A(f"v_rcp_f32 v{mL}, v{mL}")
A(f"v_permlane32_swap_b32 v{oa}, v{oa+2}\nv_permlane32_swap_b32 v{oa+1}, v{oa+3}")
A(f"v_add_f32 v{oa}, v{oa}, v{oa+2}\nv_add_f32 v{oa+1}, v{oa+1}, v{oa+3}\ns_nop 1")
A(f"v_permlane16_swap_b32 v{oa}, v{oa+1}\nv_add_f32 v{oa}, v{oa}, v{oa+1}")
A(f"v_mul_f32 v{oa}, v{oa}, v{mL}\nv_cvt_pk_bf16_f32 v{oa}, v{oa}, v{oa}\ns_nop 1")
A(f"s_and_b32 s{sT0}, s{sLAYER}, 1\ns_cmp_eq_u32 s{sT0}, 1\ns_cbranch_scc1 L_sa_B")
for which in range(2):
    if which == 1:
        A("L_sa_B:")

    def gm(t):
        for r in range(4):
            A(f"v_and_b32_dpp v{cTT[t&1]+r}, v{oa}, v{MASK+r} row_newbcast:{t} {DPPF}")
    gm(0)
    for t in range(16):
        if t + 1 < 16:
            gm(t + 1)
        else:
            A("s_nop 1")
        A(f"v_mfma_f32_16x16x32_bf16 {vr(cACC)}, {vr(cTT[t&1])}, {vr(radd(WO0[which],4*t))}, {'0' if t == 0 else vr(cACC)}")
        A(f"v_mfma_f32_16x16x32_bf16 {vr(cACC+4)}, {vr(cTT[t&1])}, {vr(wo1(t))}, {'0' if t == 0 else vr(cACC+4)}")
    if which == 0:
        A("s_branch L_sa_red")
A("L_sa_red:")
A(f"s_lshl_b32 s{sT0}, s{sWAVE}, 10\nv_add_u32 v{cT}, s{sT0}, v{cSCR}")
A("s_mov_b32 exec_lo, 0\ns_nop 5")
for r in range(4):
    A(f"v_mov_b32 v{cACC+r}, v{cACC+4+r}")
A("s_mov_b32 exec_lo, -1")
A(f"s_cmp_eq_u32 s{sWAVE}, 0\ns_cbranch_scc1 L_sa_w0")
A(f"ds_write_b128 v{cT}, {vr(cACC)}\ns_waitcnt lgkmcnt(0)\ns_barrier\ns_branch L_sb")
A("L_sa_w0:\ns_barrier")
for s in range(1, 4):
    A(f"ds_read_b128 {vr(cG+4*s)}, v{cSCR} offset:{1024*s}")
for s in range(1, 4):
    A(f"s_waitcnt lgkmcnt({3-s})")
    for r in range(4):
        A(f"v_add_f32 v{cACC+r}, v{cACC+r}, v{cG+4*s+r}")
for r in range(4):
    A(f"v_min_u32 v{cACC+r}, -2, v{cACC+r}")
A(f"buffer_store_dwordx4 {vr(cACC)}, v{cYst}, {srd(SRD_WS)}, s{sYST} offen sc1")
A("L_sb:")
if PROFILE:
    for l in range(4):
        lb = A.label("ps")
        A(f"s_cmp_eq_u32 s{sLAYER}, {l}\ns_cbranch_scc0 {lb}")
        stamp(4 + 4 * l)
        A(f"{lb}:")
A(f"s_cmp_eq_u32 s{sLAYER}, 3\ns_cbranch_scc0 L_sb_go0\ns_cmp_eq_u32 s{sCH}, 0\ns_cbranch_scc0 L_fin\nL_sb_go0:")
for i in range(1, 4):
    A(f"s_add_u32 s{sT0+i-1}, s{sYOFF}, {4096*i}")
A("L_sb_poll:")
spin_guard("L_sb_go")
for i in range(8):
    so = sYOFF if i < 2 else sT0 + (i // 2) - 1
    A(f"buffer_load_dwordx4 {vr(cG+4*i)}, v{cL16}, {srd(SRD_WS)}, s{so} offen offset:{(i%2)*2048} sc1")
A("s_waitcnt vmcnt(0)")
sentinel_check(range(cG, cG + 32), cT, "L_sb_poll")
A("L_sb_go:")
if PROFILE:
    for l in range(4):
        lb = A.label("ps")
        A(f"s_cmp_eq_u32 s{sLAYER}, {l}\ns_cbranch_scc0 {lb}")
        stamp(5 + 4 * l)
        A(f"{lb}:")
for st in (4, 2, 1):
    for i in range(st):
        for r in range(4):
            A(f"v_add_f32 v{cG+4*i+r}, v{cG+4*i+r}, v{cG+4*(i+st)+r}")
A("s_mov_b32 exec_hi, 0x00ffffff")
A(f"ds_write_b128 v{cXSw}, {vr(cG)}")
A("s_mov_b32 exec_hi, -1")
A("s_waitcnt lgkmcnt(0)\ns_barrier")
for k in range(7):
    A(f"ds_read2st64_b32 v[{cN+2*k}:{cN+2*k+1}], v{cXl} offset0:{k} offset1:{k+8}")
for k in range(7):
    A(f"s_waitcnt lgkmcnt({6-k})")
    A(f"v_add_f32 v{cN+2*k}, v{cN+2*k}, v{cN+2*k+1}")
    bf16r(cN + 2 * k, cN + 2 * k)
    A(f"v_add_f32 v{cX+k}, v{cX+k}, v{cN+2*k}")
    bf16r(cX + k, cX + k)
A(f"s_add_u32 s{sLAYER}, s{sLAYER}, 1")
A(f"s_add_u32 s{sPOOFF}, s{sPOOFF}, {PO_L}\ns_add_u32 s{sMLOFF}, s{sMLOFF}, 4096\ns_add_u32 s{sYOFF}, s{sYOFF}, 32768\ns_add_u32 s{sYST}, s{sYST}, 32768\ns_add_u32 s{sQST}, s{sQST}, 8192")
A(f"s_cmp_eq_u32 s{sLAYER}, 4\ns_cbranch_scc0 L_ch_ln")
A(f"s_cmp_eq_u32 s{sWAVE}, 0\ns_cbranch_scc0 L_fin")
for k in range(7):
    A(f"buffer_store_short_d16_hi v{cX+k}, v{cCol}, {srd(SRD_OUT)}, 0 offen offset:{128*k}")
stamp(19)
if os.environ.get("DIAG"):
    da, db = [int(x) for x in os.environ["DIAG"].split(",")]
    ra = 100 if da == 18 else sSTAMP + 2 * da
    A(f"s_sub_u32 s{sT0}, s{sSTAMP+2*db}, s{ra}\ns_lshl_b32 s{sT0}, s{sT0}, 2\ns_min_u32 s{sT0}, s{sT0}, 100000\ns_add_u32 s{sT0}, s{sT0}, s{sSTAMP+38}")
    A(f"L_diag:\ns_memrealtime s[{sT2}:{sT3}]\ns_waitcnt lgkmcnt(0)\ns_sub_u32 s{sT1}, s{sT2}, s{sT0}\ns_cmp_lt_i32 s{sT1}, 0\ns_cbranch_scc1 L_diag")
A("s_branch L_fin")
A("L_ch_ln:")
s1, s2, tq = cN, cN + 1, cN + 2
dk = cN + 4
A("s_nop 0")
A(f"v_readfirstlane_b32 s{sT0}, v{cX}\ns_nop 1")
for k in range(7):
    A(f"v_subrev_f32 v{dk+k}, s{sT0}, v{cX+k}")
A(f"v_add_f32 v{s1}, v{dk}, v{dk+1}\nv_mul_f32 v{s2}, v{dk}, v{dk}")
for k in range(1, 7):
    if k >= 2:
        A(f"v_add_f32 v{s1}, v{s1}, v{dk+k}")
    A(f"v_fmac_f32 v{s2}, v{dk+k}, v{dk+k}")
A("s_nop 0")
full_reduce2(s1, s2, tq)
A(f"v_mul_f32 v{s1}, {f2u(1.0/448.0)}, v{s1}")
A(f"v_mul_f32 v{s2}, {f2u(1.0/448.0)}, v{s2}")
A(f"v_fma_f32 v{s2}, -v{s1}, v{s1}, v{s2}")
A(f"v_max_f32 v{s2}, 0, v{s2}")
A(f"v_add_f32 v{s1}, s{sT0}, v{s1}")
bf16r(s2, s2)
bf16r(s1, s1)
A(f"v_add_f32 v{s2}, {f2u(1e-5)}, v{s2}")
bf16r(s2, s2)
A(f"v_sqrt_f32 v{s2}, v{s2}")
for k in range(7):
    A(f"v_sub_f32 v{dk+k}, v{cX+k}, v{s1}")
bf16r(s2, s2)
A(f"v_rcp_f32 v{s2}, v{s2}")
for k in range(7):
    bf16r(dk + k, dk + k)
for k in range(7):
    A(f"v_mul_f32 v{dk+k}, v{dk+k}, v{s2}")
for k in range(7):
    A(f"v_cvt_pk_bf16_f32 v{dk+k}, v{dk+k}, v{dk+k}")
A(f"s_and_b32 s{sT0}, s{sLAYER}, 1\ns_cmp_eq_u32 s{sT0}, 1\ns_cbranch_scc1 L_qp_B")
for which in range(2):
    if which == 1:
        A("L_qp_B:")

    def gq(i):
        for r in range(4):
            A(f"v_and_b32_dpp v{cTT[i&1]+r}, v{dk+i//4}, v{MASK+r} row_newbcast:{i%4} {DPPF}")
    gq(0)
    for i in range(28):
        if i + 1 < 28:
            gq(i + 1)
        else:
            A("s_nop 1")
        A(f"v_mfma_f32_16x16x32_bf16 {vr(cACC)}, {vr(cTT[i&1])}, {vr(radd(WQ[which],4*i))}, {'0' if i == 0 else vr(cACC)}")
    if which == 0:
        A("s_branch L_qp_red")
A("L_qp_red:")
A(f"s_lshl_b32 s{sT0}, s{sWAVE}, 10\nv_add_u32 v{cT}, s{sT0}, v{cSCR}")
A(f"s_cmp_eq_u32 s{sWAVE}, 0\ns_cbranch_scc1 L_qp_w0")
A("s_nop 4")
A(f"ds_write_b128 v{cT}, {vr(cACC)} offset:8192\ns_waitcnt lgkmcnt(0)\ns_barrier\ns_branch L_qp_done")
A("L_qp_w0:\ns_barrier")
for s in range(1, 4):
    A(f"ds_read_b128 {vr(cG+4*s)}, v{cSCR} offset:{8192+1024*s}")
A("s_nop 2")
for s in range(1, 4):
    A(f"s_waitcnt lgkmcnt({3-s})")
    for r in range(4):
        A(f"v_add_f32 v{cACC+r}, v{cACC+r}, v{cG+4*s+r}")
A(f"v_cvt_pk_bf16_f32 v{cACC}, v{cACC}, v{cACC+1}\nv_cvt_pk_bf16_f32 v{cACC+1}, v{cACC+2}, v{cACC+3}")
A(f"v_min_u32 v{cACC}, -2, v{cACC}\nv_min_u32 v{cACC+1}, -2, v{cACC+1}")
A("s_mov_b32 exec_hi, 0")
A(f"buffer_store_dwordx2 v[{cACC}:{cACC+1}], v{cQst}, {srd(SRD_WS)}, s{sQST} offen sc1")
A("s_mov_b32 exec_hi, -1")
A("L_qp_done:")
if PROFILE:
    for l in range(4):
        lb = A.label("ps")
        A(f"s_cmp_eq_u32 s{sLAYER}, {l}\ns_cbranch_scc0 {lb}")
        stamp(2 + 4 * l)
        A(f"{lb}:")
A(f"s_cmp_eq_u32 s{sLAYER}, 0\ns_cbranch_scc0 L_ch_stageA")
wq_loads(1)
wo_loads(1)
A("L_ch_cnt:")
spin_guard("L_ch_cnt_ok")
A(f"v_mov_b32 v{cT}, 0")
A(f"buffer_load_dword v{cG}, v{cT}, {srd(SRD_DBG)}, 0 offen sc1\nbuffer_load_dword v{cG+1}, v{cT}, {srd(SRD_DBG)}, 0 offen offset:128 sc1")
A(f"s_waitcnt vmcnt(0)\nv_readfirstlane_b32 s{sT0}, v{cG}\nv_readfirstlane_b32 s{sT1}, v{cG+1}")
A(f"s_cmp_ge_u32 s{sT0}, 32\ns_cbranch_scc0 L_ch_cnt\ns_cmp_ge_u32 s{sT1}, 224\ns_cbranch_scc0 L_ch_cnt")
A("L_ch_cnt_ok:")
A("L_ch_pre:")
spin_guard("L_ch_stageA")
A("s_sleep 4")
A(f"buffer_load_dwordx2 v[{cML}:{cML+1}], v{cMLg}, {srd(SRD_WS)}, s{sMLOFF} offen sc1\ns_waitcnt vmcnt(0)")
A(f"v_cmp_ne_u32 vcc, -1, v{cML}\ns_nop 0\ns_cmp_lg_u64 vcc, 0\ns_cbranch_scc0 L_ch_pre")
A("s_branch L_ch_stageA")

A("L_fin:")
if PROFILE:
    A(f"s_mov_b64 s[{sSTAMP+36}:{sSTAMP+37}], s[100:101]")
    A(f"s_mul_i32 s{sT0}, s2, 640\ns_mul_i32 s{sT1}, s{sWAVE}, 160\ns_add_u32 s{sT0}, s{sT0}, s{sT1}\ns_add_u32 s{sT0}, s{sT0}, {WS_STAMP}")
    A("s_mov_b64 exec, 1\nv_mov_b32 v1, 0")
    for i in range(10):
        for r in range(4):
            A(f"v_mov_b32 v{4+r}, s{sSTAMP+4*i+r}")
        A(f"buffer_store_dwordx4 v[4:7], v1, {srd(SRD_WS)}, s{sT0} offen offset:{16*i}\ns_nop 1")
if PROFILE:
    A(f"s_cmp_eq_u32 s{sWAVE}, 0\ns_cbranch_scc0 L_end")
    A("s_cmp_eq_u32 s2, 0\ns_cbranch_scc0 L_dbg2")
    for i, st in enumerate([18, 2, 3, 6, 7, 10, 11, 14, 15, 19]):
        A(f"v_mov_b32 v4, s{sSTAMP+2*st}\nbuffer_store_dword v4, v1, {srd(SRD_DBG)}, 0 offen offset:{4+4*i}\ns_nop 1")
    A("s_branch L_end\nL_dbg2:")
    A("s_cmp_eq_u32 s2, 100\ns_cbranch_scc0 L_end")
    for i, st in enumerate([18, 1, 3, 4, 10]):
        A(f"v_mov_b32 v4, s{sSTAMP+2*st}\nbuffer_store_dword v4, v1, {srd(SRD_DBG)}, 0 offen offset:{44+4*i}\ns_nop 1")
A("L_end:")
A("s_endpgm")

for l in A.L:
    OUT.append(l if l.endswith(":") else "    " + l)
OUT.append('.section .rodata,"a"')
OUT.append(".p2align 6")
OUT.append(f".amdhsa_kernel {NAME}_kernel")
OUT.append("""  .amdhsa_next_free_vgpr 512
  .amdhsa_next_free_sgpr 102
  .amdhsa_accum_offset 256
  .amdhsa_group_segment_fixed_size 0
  .amdhsa_kernarg_size 104
  .amdhsa_user_sgpr_count 2
  .amdhsa_user_sgpr_kernarg_segment_ptr 1
  .amdhsa_system_sgpr_workgroup_id_x 1
  .amdhsa_float_denorm_mode_32 3
.end_amdhsa_kernel""")
out = sys.argv[1] if len(sys.argv) > 1 else f"cdna_kernels/{NAME}.s"
open(out, "w").write("\n".join(OUT) + "\n")
print("wrote", out, len(A.L), "lines")
```

```python
import sys, os, struct

PROFILE = int(os.environ.get("PROFILE", "0"))
NAME = "interleave_layers__gqa_block_cached__sliding_block_cached__decode"

WS_Q = 0
WS_Y = 49152
WS_PO = 196608
WS_ML = 196608 + 4 * 458752
ML_L = 65536
PO_L = 16 * 28 * 1024
WS_STAMP = 4 << 20
WS_SIZE = 283117312
SPIN_MAX = 1 << 18

CSCALE = struct.unpack("<I", struct.pack("<f", 1.4426950408889634 / 16.0))[0]
NEG_INF = 0xFF800000


def f2u(x):
    return struct.unpack("<I", struct.pack("<f", x))[0]


class Asm:
    def __init__(self):
        self.L = []
        self.nlabel = 0

    def __call__(self, s):
        for line in s.split("\n"):
            line = line.strip()
            if line:
                self.L.append(line)

    def label(self, base):
        self.nlabel += 1
        return f"L_{base}_{self.nlabel}"


A = Asm()


def vr(r, n=4):
    if isinstance(r, int):
        r = ("v", r)
    k, i = r
    return f"{k}[{i}:{i+n-1}]" if n > 1 else f"{k}{i}"


def radd(r, d):
    if isinstance(r, int):
        return r + d
    return (r[0], r[1] + d)


DPPF = "row_mask:0xf bank_mask:0xf"

sWAVE = 3
SRD_KA, SRD_VA, SRD_KB, SRD_VB, SRD_WS, SRD_DBG = 4, 8, 12, 16, 20, 24
SRD_WQA, SRD_WOA, SRD_WQB, SRD_WOB = 4, 8, 12, 16
SRD_X, SRD_OUT = 28, 80
sOFFA, sOFFA36, sOFFB, sOFFB9 = 28, 29, 30, 31
sBIASA, sBIASB = 32, 33
sC = 36
sLDSW = 37
sT0, sT1, sT2, sT3 = 38, 39, 40, 41
sLAYER = 42
sSPIN = 43
sQOFF, sPOOFF, sMLOFF, sYOFF = 44, 45, 46, 47
sG, sSP = 48, 49
sYST, sQST = 50, 51
sOFFB8 = 50
sID, sMODE = 34, 35
KARG = 52
sSTAMP = 60
SRD_OUT = 28
sOUTP = 32

nstamp = [0]


def srd(r):
    return f"s[{r}:{r+3}]"


def stamp(idx):
    if PROFILE:
        assert idx < 20
        if idx == 0:
            for i in range(1, 20):
                A(f"s_mov_b64 s[{sSTAMP+2*i}:{sSTAMP+2*i+1}], 0")
        A(f"s_memrealtime s[{sSTAMP+2*idx}:{sSTAMP+2*idx+1}]\ns_waitcnt lgkmcnt(0)")


def mk_srd(dst, ptr, size):
    A(f"s_mov_b32 s{dst}, s{ptr}\ns_and_b32 s{dst+1}, s{ptr+1}, 0xffff\ns_mov_b32 s{dst+2}, {size}\ns_mov_b32 s{dst+3}, 0x20000")


def emit_masks(vlane, m0, t0, t1):
    A(f"v_and_b32 v{t0}, 1, v{vlane}")
    A(f"v_lshlrev_b32 v{t0}, 4, v{t0}")
    A(f"v_mov_b32 v{t1}, 0xffff")
    A(f"v_lshlrev_b32 v{t0}, v{t0}, v{t1}")
    A(f"v_bfe_u32 v{t1}, v{vlane}, 1, 2")
    for r in range(4):
        A(f"v_cmp_eq_u32 vcc, {r}, v{t1}")
        A("s_nop 1")
        A(f"v_cndmask_b32 v{m0+r}, 0, v{t0}, vcc")


def xrow_reduce(op, v, t):
    A(f"v_mov_b32 v{t}, v{v}\ns_nop 1\nv_permlane32_swap_b32 v{v}, v{t}\n{op} v{v}, v{v}, v{t}")
    A(f"v_mov_b32 v{t}, v{v}\ns_nop 1\nv_permlane16_swap_b32 v{v}, v{t}\n{op} v{v}, v{v}, v{t}")


def sentinel_check(regs, t, retry_label):
    regs = list(regs)
    A(f"v_max3_u32 v{t}, v{regs[0]}, v{regs[1]}, v{regs[2]}")
    i = 3
    while i + 1 < len(regs):
        A(f"v_max3_u32 v{t}, v{t}, v{regs[i]}, v{regs[i+1]}")
        i += 2
    if i < len(regs):
        A(f"v_max_u32 v{t}, v{t}, v{regs[i]}")
    A(f"v_cmp_eq_u32 vcc, -1, v{t}")
    A("s_nop 0")
    A(f"s_cmp_lg_u64 vcc, 0\ns_cbranch_scc1 {retry_label}")


def spin_guard(giveup_label):
    A(f"s_sub_u32 s{sSPIN}, s{sSPIN}, 1\ns_cmp_eq_u32 s{sSPIN}, 0\ns_cbranch_scc1 {giveup_label}")
    if os.environ.get("PSLEEP"):
        A(f"s_sleep {os.environ['PSLEEP']}")


hdr = open(f"cdna_kernels/{NAME}.s.ref").read().split("\n")
head = [l for l in hdr if l.startswith(";") and "@launch" not in l]
OUT = list(head)
OUT.append("; @launch grid=(256,1,1) block=(256,1,1) lds=163840")
OUT.append('.amdgcn_target "amdgcn-amd-amdhsa--gfx950"')
OUT.append(".text")
OUT.append(f".globl {NAME}_kernel")
OUT.append(".p2align 8")
OUT.append(f".type {NAME}_kernel,@function")
OUT.append(f"{NAME}_kernel:")

if PROFILE:
    A("s_memrealtime s[100:101]")
A("s_cmp_ge_u32 s2, 256\ns_cbranch_scc1 L_end")
A(f"s_load_dwordx16 s[{KARG}:{KARG+15}], s[0:1], 0")
A(f"s_load_dwordx8 s[{KARG+16}:{KARG+23}], s[0:1], 64")
A(f"s_load_dwordx2 s[{KARG+24}:{KARG+25}], s[0:1], 96")
pAX, pAK, pAV, pAWQ, pAWO, pBX, pBK, pBV, pBWQ, pBWO, pOUT, pDBG, pWS = [KARG + 2 * i for i in range(13)]
A("v_lshrrev_b32 v1, 6, v0\nv_and_b32 v0, 63, v0")
A(f"v_readfirstlane_b32 s{sWAVE}, v1")
A(f"s_and_b32 s{sG}, s2, 7\ns_lshr_b32 s{sSP}, s2, 3")
if os.environ.get("GROT"):
    A(f"s_add_u32 s{sG}, s{sG}, {os.environ['GROT']}\ns_and_b32 s{sG}, s{sG}, 7")
A(f"s_mov_b32 s{sC}, {CSCALE}\ns_mov_b32 s{sSPIN}, {SPIN_MAX}\ns_mov_b32 s{sLAYER}, 0")
A(f"s_getreg_b32 s{sID}, hwreg(HW_REG_XCC_ID, 0, 4)\ns_min_u32 s{sID}, s{sID}, 14\ns_add_u32 s{sID}, s{sID}, 1\ns_mul_i32 s{sID}, s{sID}, 0x01010101\ns_mov_b32 s{sMODE}, 0")
A("s_waitcnt lgkmcnt(0)")
mk_srd(SRD_WS, pWS, WS_SIZE)
mk_srd(SRD_DBG, pDBG, 256)
A(f"s_cmp_lt_u32 s{sSP}, 4\ns_cbranch_scc1 L_chain")

vK, vV, vKd, vVd, vL, vQ, vT = 1, 2, 3, 4, 5, 6, 7
MASK = 8
QA = 12
DT = 20
vCM, vLS, vMX, vPO, vX = 32, 33, 34, 35, 36
vFA, vFD = 36, 3
SC = 37
STG_A = [56, 60, 64, 68]
NSLOT = 19
XBASE = 4 * NSLOT * 2048
MLBASE = XBASE + 6144


def half(h):
    return ("v", 72 + 8 * h) if h < 23 else ("a", 8 * (h - 23))


NKA = 37
NVREG = 18
KVBYTES = 67108864

mk_srd(SRD_KA, pAK, KVBYTES)
mk_srd(SRD_VA, pAV, KVBYTES)
mk_srd(SRD_KB, pBK, KVBYTES)
mk_srd(SRD_VB, pBV, KVBYTES)
A(f"s_sub_u32 s{sSP}, s{sSP}, 4")
A(f"s_lshl_b32 s{sT3}, s{sG}, 23")
A(f"s_mul_i32 s{sT1}, s{sSP}, 36\ns_min_u32 s{sT2}, s{sSP}, 16\ns_add_u32 s{sT1}, s{sT1}, s{sT2}")
A(f"s_lshl_b32 s{sT1}, s{sT1}, 13\ns_add_u32 s{sT1}, s{sT1}, s{sT3}")
A(f"s_lshl_b32 s{sT0}, s{sWAVE}, 12\ns_add_u32 s{sOFFA}, s{sT1}, s{sT0}")
A(f"s_cmp_lt_u32 s{sSP}, 16")
A(f"s_cselect_b32 s{sT2}, 36, 35")
A(f"s_cselect_b32 s{sBIASA}, 0, {NEG_INF}")
A(f"s_lshl_b32 s{sT2}, s{sT2}, 13\ns_lshl_b32 s{sT0}, s{sWAVE}, 11\ns_add_u32 s{sT2}, s{sT2}, s{sT0}")
A(f"s_add_u32 s{sOFFA36}, s{sT1}, s{sT2}")
A(f"s_mul_i32 s{sT1}, s{sSP}, 9\ns_max_u32 s{sT2}, s{sSP}, 24\ns_sub_u32 s{sT2}, s{sT2}, 24\ns_add_u32 s{sT1}, s{sT1}, s{sT2}")
A(f"s_lshl_b32 s{sT1}, s{sT1}, 13\ns_add_u32 s{sT1}, s{sT1}, s{sT3}\ns_add_u32 s{sT1}, s{sT1}, {12288*512}")
A(f"s_lshl_b32 s{sT2}, s{sWAVE}, 12\ns_add_u32 s{sOFFB}, s{sT1}, s{sT2}")
A(f"s_add_u32 s{sOFFB8}, s{sT1}, s{sT0}\ns_add_u32 s{sOFFB8}, s{sOFFB8}, {32*2048}")
A(f"s_cmp_ge_u32 s{sSP}, 24")
A(f"s_cselect_b32 s{sT1}, 1, 0")
A(f"s_cselect_b32 s{sBIASB}, 0, {NEG_INF}")
A(f"s_lshl_b32 s{sT1}, s{sT1}, 13")
A(f"s_add_u32 s{sOFFB9}, s{sOFFB8}, s{sT1}")
A(f"s_mul_i32 s{sLDSW}, s{sWAVE}, {NSLOT*2048}")
A(f"v_lshrrev_b32 v20, 4, v0       ; s / row")
A(f"v_and_b32 v21, 15, v0          ; j")
A(f"v_and_b32 v22, 3, v0           ; c")
A(f"v_bfe_u32 v23, v0, 2, 2        ; a")
A(f"v_lshl_add_u32 v24, v20, 2, v22   ; 4s+c")
A(f"v_lshlrev_b32 v24, 4, v24")
A(f"v_lshl_add_u32 v{vK}, v23, 9, v24")
A(f"v_lshlrev_b32 v25, 4, v21")
A(f"v_lshl_add_u32 v{vV}, v20, 9, v25")
A(f"v_add_u32 v{vKd}, 768, v{vK}\nv_add_u32 v{vVd}, 768, v{vV}")
A(f"v_lshlrev_b32 v26, 4, v0\nv_add_u32 v{vL}, s{sLDSW}, v26\nv_add_u32 v{vX}, {XBASE}, v26")
A(f"v_lshrrev_b32 v27, 3, v21      ; head(j)")
A(f"v_lshl_add_u32 v{vQ}, v27, 9, v24")
A(f"v_lshrrev_b32 v27, 5, v0\nv_mul_u32_u24 v27, 28672, v27\nv_lshl_add_u32 v27, v21, 5, v27")
A(f"v_and_b32 v28, 1, v20\nv_lshl_add_u32 v{vPO}, v28, 4, v27")
A(f"s_lshl_b32 s{sQOFF}, s{sG}, 10")
A(f"s_mul_i32 s{sPOOFF}, s{sG}, 56\ns_add_u32 s{sPOOFF}, s{sPOOFF}, s{sSP}\ns_lshl_b32 s{sPOOFF}, s{sPOOFF}, 10\ns_add_u32 s{sPOOFF}, s{sPOOFF}, {WS_PO}")
A(f"s_lshl_b32 s{sMLOFF}, s{sG}, 13\ns_lshl_b32 s{sT0}, s{sSP}, 7\ns_add_u32 s{sMLOFF}, s{sMLOFF}, s{sT0}\ns_add_u32 s{sMLOFF}, s{sMLOFF}, {WS_ML}")
stamp(0)

if "c" in os.environ.get("EXP", ""):
    A("s_branch L_nc")
A("v_mov_b32 v12, -1\nv_mov_b32 v13, -1\nv_mov_b32 v14, -1\nv_mov_b32 v15, -1")
A(f"s_mul_i32 s{sT0}, s{sWAVE}, {PO_L}\ns_add_u32 s{sT0}, s{sT0}, s{sPOOFF}\ns_add_u32 s{sT1}, s{sT0}, 28672")
A(f"buffer_store_dwordx4 v[12:15], v26, {srd(SRD_WS)}, s{sT0} offen sc1")
A(f"buffer_store_dwordx4 v[12:15], v26, {srd(SRD_WS)}, s{sT1} offen sc1")
A(f"v_lshlrev_b32 v16, 12, v0\ns_lshl_b32 s{sT0}, s{sWAVE}, 16\ns_add_u32 s{sT0}, s{sT0}, s{sMLOFF}")
A("s_mov_b64 exec, 3")
A(f"buffer_store_dwordx2 v[12:13], v16, {srd(SRD_WS)}, s{sT0} offen sc1")
A("s_mov_b64 exec, -1")
A("L_nc:")
emit_masks(0, MASK, 20, 21)


def ld_items_reg(srdr, voff, soff_base, ulist, regs_of):
    items = []
    i = 0
    while i < len(ulist):
        u = ulist[i]
        pair = ulist[i:i + 2]
        assert u % 2 == 0
        pre = f"s_add_u32 s{sT0}, s{soff_base}, {u*8192}"
        first = True
        for k, uu in enumerate(pair):
            for m in range(2):
                txt = f"buffer_load_dwordx4 {vr(radd(regs_of(uu), 4*m))}, v{voff}, {srd(srdr)}, s{sT0} offen offset:{k*2048+m*256} nt"
                if first:
                    txt = pre + "\n" + txt
                    first = False
                items.append((txt, uu))
        i += 2
    return items


def ld_items_lds(srdr, voff, voffd, soff_base, ulist, slot_of):
    items = []
    i = 0
    while i < len(ulist):
        u = ulist[i]
        pair = ulist[i:i + 2]
        assert u % 2 == 0
        d = u * 8192 - 768
        pre = (f"s_add_u32 s{sT1}, s{soff_base}, {d}" if d >= 0 else f"s_sub_u32 s{sT1}, s{soff_base}, {-d}")
        pre += f"\ns_add_u32 s{sT2}, s{sLDSW}, {slot_of(u)*2048}\ns_mov_b32 m0, s{sT2}\ns_nop 0"
        first = True
        for k, uu in enumerate(pair):
            assert slot_of(uu) == slot_of(u) + k
            for m in range(2):
                v = voffd if m == 0 else voff
                txt = f"buffer_load_dwordx4 v{v}, {srd(srdr)}, s{sT1} offen offset:{k*2048+m*1024} nt lds"
                if first:
                    txt = pre + "\n" + txt
                    first = False
                items.append((txt, uu))
        i += 2
    return items


def qk_groups(n, ksrc, bias_sgpr, stg):
    G = []
    nC = (n + 1) // 2
    G.append((f"v_mov_b32 v{vMX}, {NEG_INF}" + (f"\nv_mov_b32 v{SC+nC-1}, {NEG_INF}" if n & 1 else ""), None))
    reads = [(u, m) for u in range(n) if ksrc(u)[0] == "lds" for m in range(2)]
    rpos = {rm: i for i, rm in enumerate(reads)}
    issued = [0]

    def issue_reads(upto, out):
        while issued[0] < min(upto, len(reads)):
            u, m = reads[issued[0]]
            q = stg[issued[0] % len(stg)]
            out.append((f"ds_read_b128 {vr(q)}, v{vL} offset:{ksrc(u)[1]*2048+m*1024}", ksrc(u)[2]))
            issued[0] += 1

    pre = []
    issue_reads(len(stg), pre)

    def bops(u):
        d = DT + 4 * (u % 3)
        c = SC + u // 2
        bm = 0x5 if (u & 1) == 0 else 0xA
        t = f"v_mov_b32_dpp v{d}, v{d} quad_perm:[0,0,0,0] {DPPF}\n"
        t += f"v_add_f32_dpp v{d}, v{d+1}, v{d} quad_perm:[1,1,1,1] {DPPF}\n"
        t += f"v_add_f32_dpp v{d}, v{d+2}, v{d} quad_perm:[2,2,2,2] {DPPF}\n"
        if u == n - 1:
            t += f"v_add_f32 v{d}, s{bias_sgpr}, v{d}\n"
        t += f"v_add_f32_dpp v{c}, v{d+3}, v{d} quad_perm:[3,3,3,3] row_mask:0xf bank_mask:{bm:#x}\n"
        if (u & 1) or u == n - 1:
            t += f"v_max_f32 v{vMX}, v{vMX}, v{c}\n"
        return t

    body = []
    for u in range(n):
        d = DT + 4 * (u % 3)
        src = ksrc(u)
        b = bops(u - 2).strip().split("\n") if u >= 2 else []
        if u == 2:
            b = ["s_nop 4"] + b
        parts = [b[:len(b) // 2], b[len(b) // 2:]]
        for m in range(2):
            cin = "0" if m == 0 else vr(d)
            if src[0] == "reg":
                t = f"v_mfma_f32_16x16x32_bf16 {vr(d)}, {vr(radd(src[1],4*m))}, {vr(QA+4*m)}, {cin}"
                body.append((t, src[2]))
            else:
                i = rpos[(u, m)]
                q = stg[i % len(stg)]
                t = f"s_waitcnt lgkmcnt({issued[0]-i-1})\n"
                t += f"v_mfma_f32_16x16x32_bf16 {vr(d)}, {vr(q)}, {vr(QA+4*m)}, {cin}"
                body.append((t, None))
                issue_reads(i + 1 + len(stg), body)
            if parts[m]:
                body.append(("\n".join(parts[m]), None))
    body.append((bops(n - 2), None))
    body.append(("s_nop 1\n" + bops(n - 1), None))
    return G, pre, body


def max_group():
    t = "s_nop 1\n"
    t += f"v_max_f32_dpp v{vMX}, v{vMX}, v{vMX} row_half_mirror {DPPF}\n"
    t += f"v_mov_b32 v{vT}, v{vMX}\ns_nop 1\nv_permlane32_swap_b32 v{vMX}, v{vT}\nv_max_f32 v{vMX}, v{vMX}, v{vT}\n"
    t += f"v_mov_b32 v{vT}, v{vMX}\ns_nop 1\nv_permlane16_swap_b32 v{vMX}, v{vT}\nv_max_f32 v{vMX}, v{vMX}, v{vT}\n"
    t += f"v_mul_f32 v{vCM}, s{sC}, v{vMX}\nv_mov_b32 v{vLS}, 0"
    return (t, None)


def pv_groups(order, vsrc, stg):
    T = [DT, DT + 4]
    PP = [DT + 8, DT + 9]
    n = len(order)
    reads = [(u, m) for u in order if vsrc(u)[0] == "lds" for m in range(2)]
    rpos = {rm: i for i, rm in enumerate(reads)}
    issued = [0]
    body = []

    def issue_reads(upto):
        while issued[0] < min(upto, len(reads)):
            u, m = reads[issued[0]]
            q = stg[issued[0] % len(stg)]
            body.append((f"ds_read_b128 {vr(q)}, v{vL} offset:{vsrc(u)[1]*2048+m*1024}", vsrc(u)[2], None))
            issued[0] += 1

    pairs = []
    for u in order:
        if u // 2 not in pairs:
            pairs.append(u // 2)
    pidx = {k: i for i, k in enumerate(pairs)}

    def E(k):
        c = SC + k
        return f"v_fma_f32 v{c}, v{c}, s{sC}, -v{vCM}\nv_exp_f32 v{c}, v{c}\n"

    def F(k):
        c = SC + k
        return f"v_add_f32 v{vLS}, v{vLS}, v{c}\nv_cvt_pk_bf16_f32 v{PP[pidx[k]&1]}, v{c}, v{c}\n"

    def Gm(i):
        u = order[i]
        pp = PP[pidx[u // 2] & 1]
        rho = u & 1
        t = ""
        for r in range(4):
            if (r >> 1) == rho:
                t += f"v_and_b32 v{T[i&1]+r}, v{pp}, v{MASK+r}\n"
        for r in range(4):
            if (r >> 1) != rho:
                sh = "row_shr:4" if rho == 0 else "row_shl:4"
                t += f"v_and_b32_dpp v{T[i&1]+r}, v{pp}, v{MASK+r} {sh} {DPPF} bound_ctrl:0\n"
        return t

    t = E(pairs[0])
    if len(pairs) > 1:
        t += E(pairs[1])
    else:
        t += "s_nop 0\n"
    t += F(pairs[0]) + Gm(0)
    body.append((t, None, None))
    edone = min(2, len(pairs))
    fdone = 1
    first_lds_started = False
    for i in range(n):
        u = order[i]
        nxt = [order[j] for j in range(i, min(n, i + 3))]
        if not first_lds_started and any(vsrc(x)[0] == "lds" for x in nxt):
            issue_reads(len(stg))
            first_lds_started = True
        t = ""
        if i + 1 < n:
            k1 = pidx[order[i + 1] // 2]
            if k1 >= fdone:
                t += F(pairs[k1])
                fdone = k1 + 1
                if edone < len(pairs):
                    t += E(pairs[edone])
                    edone += 1
            t += Gm(i + 1)
        tl = [x for x in t.strip().split("\n") if x]
        parts = [tl[:len(tl) // 2], tl[len(tl) // 2:]]
        if not tl:
            parts[0] = ["s_nop 0"]
        src = vsrc(u)
        for m in range(2):
            acc = QA + 4 * m
            cin = "0" if i == 0 else vr(acc)
            if parts[m]:
                body.append(("\n".join(parts[m]), None, None))
            if src[0] == "reg":
                body.append((f"v_mfma_f32_16x16x32_bf16 {vr(acc)}, {vr(T[i&1])}, {vr(radd(src[1],4*m))}, {cin}", src[2], None))
            else:
                j = rpos[(u, m)]
                q = stg[j % len(stg)]
                body.append((f"s_waitcnt lgkmcnt({issued[0]-j-1})\nv_mfma_f32_16x16x32_bf16 {vr(acc)}, {vr(T[i&1])}, {vr(q)}, {cin}", None, u if m == 1 else None))
                issue_reads(j + 1 + len(stg))
    return body


def emit_groups(gs):
    for g in gs:
        A(g[0])


def q_loads():
    return (f"buffer_load_dwordx4 {vr(QA)}, v{vQ}, {srd(SRD_WS)}, s{sQOFF} offen sc1\n"
            f"buffer_load_dwordx4 {vr(QA+4)}, v{vQ}, {srd(SRD_WS)}, s{sQOFF} offen offset:256 sc1")


def poll_q_blocking():
    lp, done = A.label("qpoll"), A.label("qdone")
    A(f"{lp}:")
    spin_guard(done)
    A(q_loads())
    A("s_waitcnt vmcnt(0)")
    sentinel_check(range(QA, QA + 8), vT, lp)
    A(f"{done}:")
    A("s_nop 1")


VL_UNITS = list(range(NVREG, NKA))
vslot = lambda u: u - NVREG
loads = []
it = ld_items_lds(SRD_VA, vV, vVd, sOFFA, VL_UNITS[:-1], vslot)
loads += [(t, ("V", u), None) for t, u in it]
it = ld_items_lds(SRD_VA, vV, vVd, sOFFA36, [0], lambda u: vslot(36))
loads += [(t, ("V", 36), None) for t, u in it]
it = ld_items_reg(SRD_KA, vK, sOFFA, list(range(36)), half)
kl = [(t, ("K", u), None) for t, u in it]
it = ld_items_reg(SRD_KA, vK, sOFFA36, [0], lambda u: half(36))
kl += [(t, ("K", 36), None) for t, u in it]
ca_load = (f"buffer_load_dword v{vCM}, v{vFA}, {srd(SRD_DBG)}, 0 offen sc1", ("CA",), None)
FPOS = 32
loads += kl[:40] + [ca_load] + kl[40:60]
QPOS = len(loads)
loads += kl[60:]
it = ld_items_reg(SRD_VA, vV, sOFFA, list(range(NVREG)), lambda u: half(NKA + u))
loads += [(t, ("V", u), None) for t, u in it]
NA_LOADS = len(loads)
BV9 = 42
STG_B = [50, 56, 60, 64, 68]


def b_loads():
    bl = []
    it = ld_items_lds(SRD_KB, vK, vKd, sOFFB, list(range(8)), lambda u: u)
    bl += [(t, ("BK", u), u | 1) for t, u in it]
    it = ld_items_lds(SRD_KB, vK, vKd, sOFFB8, [0], lambda u: 8)
    bl += [(t, ("BK", 8), 8) for t, u in it]
    it = ld_items_lds(SRD_KB, vK, vKd, sOFFB9, [0], lambda u: 9)
    bl += [(t, ("BK", 9), 9) for t, u in it]
    it = ld_items_lds(SRD_VB, vV, vVd, sOFFB, list(range(8)), lambda u: 10 + u)
    bl += [(t, ("BV", u), (10 + u) | 1) for t, u in it]
    it = ld_items_lds(SRD_VB, vV, vVd, sOFFB8, [0], lambda u: 18)
    bl += [(t, ("BV", 8), 18) for t, u in it]
    it = ld_items_reg(SRD_VB, vV, sOFFB9, [0], lambda u: BV9)
    bl += [(t, ("BV", 9), None) for t, u in it]
    return bl


BL = b_loads()
BPOL = int(os.environ.get("BPOL", "0"))
BL = [((t.replace(" nt", "") if i >= len(BL) - BPOL else t), tag, req) for i, (t, tag, req) in enumerate(BL)]
GATE = int(os.environ.get('GATE', '16'))
NB_EARLY = int(os.environ.get('NBE', '0'))
loads += BL[:NB_EARLY]

ksrcA = lambda u: ("reg", half(u), ("K", u))
vsrcA = lambda u: ("reg", half(NKA + u), ("V", u)) if u < NVREG else ("lds", vslot(u), ("V", u))

g0, pre, body = qk_groups(NKA, ksrcA, sBIASA, STG_A)
comp = [(t, n, None) for t, n in g0 + pre + body] + [max_group() + (None,)]
comp += pv_groups(VL_UNITS + list(range(NVREG)), vsrcA, STG_A)

EXP = os.environ.get("EXP", "")
if EXP:
    order = loads[:NA_LOADS] + BL
    for i, (t, tag, req) in enumerate(order):
        if tag == ("CA",): continue
        if tag == ("BK", 0) and "s_add" in t:
            stamp(3)
        A(t)
    A("s_waitcnt vmcnt(0)")
    stamp(4)
    A("s_branch L_fin")
THR = int(os.environ.get("THR", "0"))
LAG = int(os.environ.get("LAG", "10"))
last_of = {}
nissued = 0
released = set()
ci = 0


def emit_comp(g):
    t, need, rel = g
    if need is not None:
        n = nissued - last_of[need] - 1
        A(f"s_waitcnt vmcnt({min(n, 63)})")
    A(t)
    if rel is not None:
        released.add(vslot(rel))


qready = False
li = 0
done_pos = set()
LEAD = int(os.environ.get("LEAD", "0"))
MARKS = ([40, 56, 72, 88, 104, 120] if LEAD else [-1] * 6) + [NA_LOADS - GATE] if GATE else []
flow_load = f"buffer_load_ubyte v{vFD}, v{vFA}, {srd(SRD_DBG)}, 0 offen offset:4 sc1"


def flow_wait(k, n):
    ok, lp, ck = A.label("flok"), A.label("fllp"), A.label("flck")
    if n is not None:
        A(f"s_waitcnt vmcnt({n})\ns_branch {ck}")
    A(f"{lp}:")
    spin_guard(ok)
    A(f"{flow_load}\ns_waitcnt vmcnt(0)")
    A(f"{ck}:\nv_cmp_gt_u32 vcc, {k << 4}, v{vFD}\ns_nop 0\ns_cmp_lg_u64 vcc, 0\ns_cbranch_scc0 {ok}\ns_sleep 4\ns_branch {lp}")
    A(f"{ok}:")


A(f"v_and_b32 v{vFA}, 7, v0\nv_lshlrev_b32 v{vFA}, 5, v{vFA}")
while li < len(loads):
    if li == FPOS and li not in done_pos:
        nf = A.label("noflag")
        A(f"s_waitcnt vmcnt(20)\ns_barrier\ns_cmp_eq_u32 s{sWAVE}, 0\ns_cbranch_scc0 {nf}")
        A(f"v_mov_b32 v{vT}, s{sID}\ns_lshl_b64 exec, 1, s{sG}")
        A(f"buffer_store_byte v{vT}, v{vFA}, {srd(SRD_DBG)}, s{sSP} offen offset:4 sc1\ns_mov_b64 exec, -1")
        A(f"{nf}:")
    if li in MARKS and li not in done_pos:
        k = MARKS.index(li) + 1
        nf = A.label("nomark")
        A(f"s_or_b32 s{sT3}, s{sWAVE}, s{sSP}\ns_cmp_eq_u32 s{sT3}, 0\ns_cbranch_scc0 {nf}")
        A(f"s_or_b32 s{sT3}, s{sID}, {k << 4}\nv_mov_b32 v{vT}, s{sT3}\ns_lshl_b64 exec, 1, s{sG}")
        A(f"buffer_store_byte v{vT}, v{vFA}, {srd(SRD_DBG)}, 0 offen offset:4 sc1\ns_mov_b64 exec, -1")
        A(f"{nf}:")
    if LEAD and (li - LEAD + 8) in MARKS[:-1] and li + 8 < NA_LOADS and li not in done_pos:
        A(flow_load)
        last_of[("FL",)] = nissued
        nissued += 1
    if LEAD and (li - LEAD) in MARKS[:-1] and li < NA_LOADS and li not in done_pos:
        k = MARKS.index(li - LEAD) + 1
        flow_wait(k, nissued - last_of[("FL",)] - 1)
    done_pos.add(li)
    if li == QPOS:
        n = nissued - last_of[("CA",)] - 1
        ok, lp, ck = A.label("caok"), A.label("calp"), A.label("cack")
        A(f"s_waitcnt vmcnt({n})\ns_branch {ck}")
        A(f"{lp}:")
        spin_guard(ok)
        A(f"{ca_load[0]}\ns_waitcnt vmcnt(0)")
        A(f"{ck}:\nv_readlane_b32 s{sT3}, v{vCM}, s{sG}")
        A(f"s_cmp_eq_u32 s{sT3}, s{sID}\ns_cselect_b32 s{sMODE}, 1, 0")
        A(f"s_add_u32 s{sT3}, s{sT3}, 0x7f7f7f7f\ns_and_b32 s{sT3}, s{sT3}, 0x80808080\ns_cmp_eq_u32 s{sT3}, 0x80808080\ns_cbranch_scc0 {lp}")
        A(f"{ok}:")
        A(q_loads())
        nissued += 2
        last_of[("Q",)] = nissued - 1
    if li == QPOS + 12:
        n = nissued - last_of[("Q",)] - 1
        slow, ok = A.label("qslow"), A.label("qok")
        A(f"s_waitcnt vmcnt({n})")
        sentinel_check(range(QA, QA + 8), vT, slow)
        A(f"s_branch {ok}\n{slow}:")
        poll_q_blocking()
        A(f"{ok}:")
        stamp(1)
        qready = True
    t, tag, req = loads[li]
    if req is not None and req not in released:
        emit_comp(comp[ci])
        ci += 1
        continue
    A(t)
    if THR:
        A(f"s_waitcnt vmcnt({THR})")
    last_of[tag] = nissued
    nissued += 1
    li += 1
    if qready:
        cnt = 0
        while ci < len(comp) and cnt < 6:
            need = comp[ci][1]
            if need is not None and (need not in last_of or nissued - last_of[need] - 1 < LAG or
                                     (li < len(loads) and loads[li][1] == need)):
                break
            emit_comp(comp[ci])
            ci += 1
            cnt += 1
stamp(2)
A(f"v_lshlrev_b32 v{vX}, 4, v0\nv_add_u32 v{vX}, {XBASE}, v{vX}")
while ci < len(comp):
    emit_comp(comp[ci])
    ci += 1

A("L_reduce:")
R0 = SC
A(f"v_add_f32_dpp v{vLS}, v{vLS}, v{vLS} row_half_mirror {DPPF}")
xrow_reduce("v_add_f32", vLS, vT)
A(f"v_bfe_u32 v{R0}, v0, 3, 1\nv_lshlrev_b32 v{R0}, 5, v{R0}\ns_lshl_b32 s{sT0}, s{sWAVE}, 3\ns_add_u32 s{sT0}, s{sT0}, {MLBASE}\nv_add_u32 v{R0}, s{sT0}, v{R0}")
A(f"ds_write_b64 v{R0}, v[{vCM}:{vLS}]")
A(f"v_lshrrev_b32 v{R0+1}, 5, v0\nv_lshlrev_b32 v{R0+1}, 5, v{R0+1}\nv_add_u32 v{R0+1}, {MLBASE}, v{R0+1}")
A(f"s_cmp_lt_u32 s{sWAVE}, 2\ns_cbranch_scc1 L_red_01")
A(f"s_lshl_b32 s{sT0}, s{sWAVE}, 10\ns_sub_u32 s{sT0}, s{sT0}, 1024\nv_add_u32 v{R0+2}, s{sT0}, v{vX}")
A(f"ds_write_b128 v{R0+2}, {vr(QA)}\nds_write_b128 v{R0+2}, {vr(QA+4)} offset:3072")
A("s_waitcnt lgkmcnt(0)\ns_barrier\ns_branch L_red_done")
A("L_red_01:")
A(f"s_cmp_eq_u32 s{sWAVE}, 0\ns_cbranch_scc1 L_red_0")
A(f"ds_write_b128 v{vX}, {vr(QA)}")
A(f"v_add_u32 v{R0+2}, 3072, v{vX}")
A("s_waitcnt lgkmcnt(0)")
for r in range(4):
    A(f"v_mov_b32 v{QA+r}, v{QA+4+r}")
A("s_branch L_red_c")
A("L_red_0:")
A(f"ds_write_b128 v{vX}, {vr(QA+4)} offset:3072")
A(f"v_mov_b32 v{R0+2}, v{vX}")
A("s_waitcnt lgkmcnt(0)")
A("L_red_c:")
A("s_barrier")
ML = 56
XR = 20
A(f"ds_read_b128 {vr(ML)}, v{R0+1}\nds_read_b128 {vr(ML+4)}, v{R0+1} offset:16")
for s in range(3):
    A(f"ds_read_b128 {vr(XR+4*s)}, v{R0+2} offset:{1024*s}")
Mx, F0 = 64, 66
A("s_waitcnt lgkmcnt(3)")
A(f"v_max3_f32 v{Mx}, v{ML}, v{ML+2}, v{ML+4}\nv_max_f32 v{Mx}, v{Mx}, v{ML+6}")
for w in range(4):
    A(f"v_sub_f32 v{F0+w}, v{ML+2*w}, v{Mx}")
for w in range(4):
    A(f"v_exp_f32 v{F0+w}, v{F0+w}")
A(f"s_cmp_eq_u32 s{sWAVE}, 0")
A(f"v_mul_f32 v{Mx+1}, v{F0}, v{ML+1}")
for w in range(1, 4):
    A(f"v_fmac_f32 v{Mx+1}, v{F0+w}, v{ML+2*w+1}")
A("s_cbranch_scc1 L_red_sw")
A(f"v_mov_b32 v{vT}, v{F0}\nv_mov_b32 v{F0}, v{F0+1}\nv_mov_b32 v{F0+1}, v{vT}")
A("L_red_sw:")
for r in range(4):
    A(f"v_mul_f32 v{QA+r}, v{F0}, v{QA+r}")
A("s_waitcnt lgkmcnt(0)")
for s in range(3):
    for r in range(4):
        A(f"v_fmac_f32 v{QA+r}, v{F0+1+s}, v{XR+4*s+r}")
for r in range(4):
    A(f"v_min_u32 v{QA+r}, -2, v{QA+r}")
A(f"s_lshl_b32 s{sT0}, s{sWAVE}, 9\ns_add_u32 s{sT0}, s{sT0}, s{sPOOFF}")
A(f"s_cmp_eq_u32 s{sMODE}, 1\ns_cbranch_scc0 L_pub_far")
for fl, lab in (("", None), (" sc1", "L_pub_far")):
    if lab:
        A(f"{lab}:")
    A(f"buffer_store_dwordx4 {vr(QA)}, v{vPO}, {srd(SRD_WS)}, s{sT0} offen{fl}")
    A(f"s_cmp_eq_u32 s{sWAVE}, 0\ns_cbranch_scc0 L_red_done")
    A(f"v_min_u32 v{Mx}, -2, v{Mx}\nv_min_u32 v{Mx+1}, -2, v{Mx+1}")
    A(f"v_lshrrev_b32 v{vT}, 5, v0\nv_lshlrev_b32 v{vT}, 12, v{vT}")
    A("s_mov_b32 exec_lo, 1\ns_mov_b32 exec_hi, 1")
    A(f"buffer_store_dwordx2 v[{Mx}:{Mx+1}], v{vT}, {srd(SRD_WS)}, s{sMLOFF} offen{fl}")
    A("s_mov_b64 exec, -1")
    if not lab:
        A("s_branch L_red_done")
A("L_red_done:")
A("s_barrier")
A(f"s_add_u32 s{sQOFF}, s{sQOFF}, 8192\ns_add_u32 s{sPOOFF}, s{sPOOFF}, {PO_L}\ns_add_u32 s{sMLOFF}, s{sMLOFF}, {ML_L}")
A(f"s_add_u32 s{sLAYER}, s{sLAYER}, 1")
A(f"s_cmp_eq_u32 s{sLAYER}, 2\ns_cbranch_scc1 L_after2")
A(f"s_cmp_eq_u32 s{sLAYER}, 3\ns_cbranch_scc1 L_after3")
A(f"s_cmp_eq_u32 s{sLAYER}, 4\ns_cbranch_scc1 L_att_end")
stamp(3)
if GATE:
    vFA = vT
    flow_load = f"buffer_load_ubyte v{vFD}, v{vFA}, {srd(SRD_DBG)}, 0 offen offset:4 sc1"
    A(f"v_and_b32 v{vFA}, 7, v0\nv_lshlrev_b32 v{vFA}, 5, v{vFA}")
    flow_wait(7, None)
    stamp(13)
A(f"v_add_u32 v{vKd}, 768, v{vK}")


def stream_then_q(items, E, st_a, st_b, thr=0, pre=()):
    n = len(items)
    for i, (t, tag, req) in enumerate(items):
        if i == n - E:
            A(q_loads())
        A(t)
        if thr and i < n - E:
            A(f"s_waitcnt vmcnt({thr})")
    if E == 0:
        A(q_loads())
    slow, ok = A.label("qslow"), A.label("qok")
    A(f"s_waitcnt vmcnt({E})")
    stamp(st_a)
    emit_groups(pre)
    sentinel_check(range(QA, QA + 8), vT, slow)
    A(f"s_branch {ok}\n{slow}:")
    poll_q_blocking()
    A(f"{ok}:")
    stamp(st_b)
    younger = {}
    for i, (t, tag, req) in enumerate(items):
        if i >= n - E:
            younger[tag] = n - 1 - i
    return younger


def emit_counted(gs, younger, extra=None, every=1):
    extra = list(extra or [])
    cnt = 0
    for g in gs:
        need = g[1]
        if need in younger:
            A(f"s_waitcnt vmcnt({younger[need]})")
            lim = younger[need]
            for k in [k for k, v in younger.items() if v >= lim]:
                del younger[k]
        A(g[0])
        if "v_mfma" in g[0]:
            cnt += 1
            if extra and cnt % every == 0:
                t, tag, req = extra.pop(0)
                A(t)
                for k in younger:
                    younger[k] += 1
                younger[tag] = 0
    assert not extra


ksrcB = lambda u: ("lds", u, ("BK", u))
vsrcB = lambda u: ("lds", 10 + u, ("BV", u)) if u < 9 else ("reg", BV9, ("BV", u))
g0, pre, body = qk_groups(10, ksrcB, sBIASB, STG_B)
emit_groups(g0)
yg = stream_then_q(BL[NB_EARLY:], int(os.environ.get("E2", "8")), 4, 5, THR, pre)
emit_counted(body + [max_group()] + pv_groups(list(range(10)), vsrcB, STG_B), yg)
A("s_branch L_reduce")

A("L_after2:")
stamp(6)
VLL = loads[:2 * NSLOT]
byslot = lambda lo, hi: [x for x in VLL if lo <= vslot(x[1][1]) < hi]
HB0, HB1 = [int(x) for x in os.environ.get("HB", "0,0").split(",")]
g0, pre, body = qk_groups(NKA, ksrcA, sBIASA, STG_A)
emit_groups(g0)
yg = stream_then_q(byslot(HB1, NSLOT) + byslot(0, HB0), 0, 14, 7)
emit_counted(body, yg, byslot(HB0, HB1), 3)
emit_groups([max_group()])
stamp(8)
b4 = []
for srdr, voff, base, nm in ((SRD_KB, vK, 0, "BK"), (SRD_VB, vV, 10, "BV")):
    b4 += [(t, (nm, u), None) for t, u in ld_items_reg(srdr, voff, sOFFB, list(range(8)), lambda u: half(base + u))]
    b4 += [(t, (nm, 8), None) for t, u in ld_items_reg(srdr, voff, sOFFB8, [0], lambda u: half(base + 8))]
    b4 += [(t, (nm, 9), None) for t, u in ld_items_reg(srdr, voff, sOFFB9, [0], lambda u: half(base + 9))]
NB4 = int(os.environ.get("NB4", "8"))
order3 = list(range(NVREG)) + [NVREG + x for x in list(range(HB1, NSLOT)) + list(range(0, HB1))]
emit_counted(pv_groups(order3, vsrcA, STG_A), yg, b4[:NB4], int(os.environ.get("NB4E", "4")))
A("s_branch L_reduce")

A("L_after3:")
stamp(9)
ksrc4 = lambda u: ("reg", half(u), ("BK", u))
vsrc4 = lambda u: ("reg", half(10 + u), ("BV", u))
g0, pre, body = qk_groups(10, ksrc4, sBIASB, STG_B)
emit_groups(g0)
yg = stream_then_q(b4[NB4:], int(os.environ.get("E4", "8")), 10, 11, int(os.environ.get("THR4", "0")))
emit_counted(body + [max_group()] + pv_groups(list(range(10)), vsrc4, STG_B), yg)
A("s_branch L_reduce")

A("L_att_end:")
stamp(12)
A("s_branch L_fin")

A("L_chain:")
cWq, cWo, cPOg, cMLg, cL16, cYg, cT = 1, 2, 3, 4, 5, 6, 7
cX = 12
cVAL, cYst, cSCR, cXw, cXa, cXs = 14, 15, 16, 17, 18, 19
cTT = [20, 24]
cACC = 28
cG = 36
cN = 68
cXA = 36
cCS = {0: 92, 1: 93}
cQst, cV56 = 94, 95
cWo1 = 91
WQ = {0: ("a", 0), 1: ("a", 112)}
WO0 = {0: ("v", 96), 1: ("v", 160)}
sYG = 52


def wo1(t):
    return ("v", 224 + 4 * t) if t < 8 else ("a", 224 + 4 * (t - 8))


CSCR = 131072
YX = CSCR
XB = CSCR + 4096
sCH = sSP
WQB = 448 * 4096 * 2

if "n" in os.environ.get("EXP", ""):
    A("s_branch L_end")
if "l" in os.environ.get("EXP", ""):
    mk_srd(SRD_KB, pBK, 67108864)
    stamp(0)
    A(f"s_lshl_b32 s{sT0}, s{sG}, 23\ns_mul_i32 s{sT1}, s{sSP}, 491520\ns_add_u32 s{sT0}, s{sT0}, s{sT1}\ns_lshl_b32 s{sT1}, s{sWAVE}, 12\ns_add_u32 s{sT0}, s{sT0}, s{sT1}\nv_lshlrev_b32 v1, 4, v0")
    for i in range(30):
        for n in range(4):
            A(f"buffer_load_dwordx4 a[{(i*16+n*4)%256}:{(i*16+n*4)%256+3}], v1, {srd(SRD_KB)}, s{sT0} offen offset:{n*1024} nt")
        A(f"s_add_u32 s{sT0}, s{sT0}, 16384")
    A("s_waitcnt vmcnt(0)")
    stamp(3)
    A("s_branch L_fin")
mk_srd(SRD_WQA, pAWQ, WQB)
mk_srd(SRD_WOA, pAWO, WQB)
mk_srd(SRD_WQB, pBWQ, WQB)
mk_srd(SRD_WOB, pBWO, WQB)
mk_srd(SRD_X, pAX, 896)
A(f"s_mov_b64 s[{sOUTP}:{sOUTP+1}], s[{pOUT}:{pOUT+1}]")
A(f"s_lshl_b32 s{sT0}, s{sG}, 2\ns_add_u32 s{sCH}, s{sT0}, s{sSP}")
A("v_lshrrev_b32 v20, 4, v0       ; s / row")
A("v_and_b32 v21, 15, v0          ; j / c16")
A("v_lshlrev_b32 v22, 4, v21      ; j*16")
A(f"s_lshr_b32 s{sT0}, s{sWAVE}, 1\ns_lshl_b32 s{sT0}, s{sT0}, 2\nv_or_b32 v23, s{sT0}, v20\nv_lshlrev_b32 v23, 5, v23\nv_xor_b32 v23, v23, v22")
A(f"v_lshl_add_u32 v{cWq}, v20, 13, v23")
A(f"v_mul_u32_u24 v{cWo}, 896, v20\nv_add_u32 v{cWo}, v{cWo}, v22")
A("v_and_b32 v23, 31, v0\nv_min_u32 v23, 27, v23\nv_lshrrev_b32 v24, 5, v0")
A(f"s_mul_i32 s{sT0}, s{sWAVE}, 224\nv_lshlrev_b32 v25, 3, v23\nv_lshl_add_u32 v25, v24, 2, v25\nv_add_u32 v25, s{sT0}, v25")
A(f"buffer_load_dword v{cX}, v25, {srd(SRD_X)}, 0 offen")
A(f"v_add_u32 v{cXw}, {XB}, v25")
A(f"v_lshlrev_b32 v{cYg}, 4, v23\nv_lshl_add_u32 v{cYg}, v24, 11, v{cYg}")


def wq_dma(which):
    s_ = SRD_WQA if which == 0 else SRD_WQB
    A(f"s_lshl_b32 s{sT0}, s{sWAVE}, 15\ns_lshl_b32 s{sT1}, s{sCH}, 8\ns_add_u32 s{sT0}, s{sT0}, s{sT1}\ns_lshl_b32 s{sT2}, s{sWAVE}, 10")
    for ii in range(28):
        A(f"s_add_u32 s{sT1}, s{sT0}, {ii*131072}\ns_add_u32 s{sT3}, s{sT2}, {ii*4096}\ns_mov_b32 m0, s{sT3}\ns_nop 0")
        A(f"buffer_load_dwordx4 v{cWq}, {srd(s_)}, s{sT1} offen nt lds")


def wq_tr(which):
    A("v_lshrrev_b32 v20, 4, v0\nv_bfe_u32 v21, v0, 2, 2\nv_and_b32 v22, 1, v20\nv_lshl_add_u32 v22, v22, 2, v21")
    A(f"s_lshl_b32 s{sT0}, s{sWAVE}, 1\nv_xor_b32 v22, s{sT0}, v22\nv_lshlrev_b32 v22, 5, v22")
    A("v_lshl_add_u32 v20, v20, 3, v21\nv_lshl_add_u32 v20, v20, 8, v22\nv_and_b32 v21, 3, v0\nv_lshl_add_u32 v20, v21, 3, v20")
    A(f"v_xor_b32 v21, 32, v20\nv_add_u32 v22, {7*8192}, v20\nv_add_u32 v23, {7*8192}, v21")
    for kb in range(14):
        for cb in range(2):
            for hf in range(2):
                d = radd(WQ[which], (kb * 2 + cb) * 4 + hf * 2)
                A(f"ds_read_b64_tr_b16 {vr(d, 2)}, v{20 + cb + (0 if kb < 7 else 2)} offset:{(kb%7)*8192+hf*1024}")
        if kb % 3 == 2:
            A("s_waitcnt lgkmcnt(3)")
    A("s_waitcnt lgkmcnt(0)")


def sel_cb(dst):
    A(f"v_mov_b32 v{dst}, v{cACC}\ns_mov_b32 exec_lo, 0xffff0000\ns_mov_b32 exec_hi, 0xffff0000\nv_mov_b32 v{dst}, v{cACC+4}\ns_mov_b64 exec, -1")


def colsum(which):
    for r in range(4):
        A(f"v_mov_b32 v{20+r}, 0x3f803f80")
    A("s_nop 1")
    for kb in range(14):
        for cb in range(2):
            acc = cACC + 4 * cb
            A(f"v_mfma_f32_16x16x32_bf16 {vr(acc)}, v[20:23], {vr(radd(WQ[which], (kb*2+cb)*4))}, {'0' if kb == 0 else vr(acc)}")
    A("s_nop 7")
    sel_cb(cCS[which])


def wo_base():
    A(f"s_lshr_b32 s{sT0}, s{sCH}, 1\ns_lshl_b32 s{sT0}, s{sT0}, 2\ns_add_u32 s{sT0}, s{sT0}, s{sWAVE}\ns_mul_i32 s{sT0}, s{sT0}, {64*896}")
    A(f"s_and_b32 s{sT1}, s{sCH}, 1\ns_lshl_b32 s{sT1}, s{sT1}, 9\ns_add_u32 s{sT0}, s{sT0}, s{sT1}")


def wo0_loads(which, ts):
    s_ = SRD_WOA if which == 0 else SRD_WOB
    wo_base()
    for t in ts:
        A(f"s_add_u32 s{sT1}, s{sT0}, {4*t*896}")
        A(f"buffer_load_dwordx4 {vr(radd(WO0[which], 4*t))}, v{cWo}, {srd(s_)}, s{sT1} offen nt")


def wo1_addr():
    A(f"s_and_b32 s{sT1}, s{sCH}, 1\ns_lshl_b32 s{sT1}, s{sT1}, 7\ns_not_b32 s{sT1}, s{sT1}")
    A(f"v_lshlrev_b32 v{cWo1}, 4, v0\nv_and_b32 v{cWo1}, 0xf0, v{cWo1}\nv_sub_u32 v{cT}, v{cWo}, v{cWo1}\nv_and_b32 v{cWo1}, s{sT1}, v{cWo1}\nv_add_u32 v{cWo1}, v{cWo1}, v{cT}")


def wo1_regs(ts):
    wo1_addr()
    wo_base()
    for t in ts:
        A(f"s_add_u32 s{sT1}, s{sT0}, {4*t*896+256}")
        A(f"buffer_load_dwordx4 {vr(wo1(t))}, v{cWo1}, {srd(SRD_WOA)}, s{sT1} offen nt")


def wo1_dma(which):
    s_ = SRD_WOA if which == 0 else SRD_WOB
    wo_base()
    A(f"s_lshl_b32 s{sT2}, s{sWAVE}, 14\ns_add_u32 s{sT2}, s{sT2}, {which*65536}")
    for t in range(16):
        A(f"s_add_u32 s{sT1}, s{sT0}, {4*t*896+256}\ns_add_u32 s{sT3}, s{sT2}, {t*1024}\ns_mov_b32 m0, s{sT3}\ns_nop 0")
        A(f"buffer_load_dwordx4 v{cWo1}, {srd(s_)}, s{sT1} offen nt lds")


def lstamp(base):
    if PROFILE:
        for l in range(4):
            lb = A.label("ps")
            A(f"s_cmp_eq_u32 s{sLAYER}, {l}\ns_cbranch_scc0 {lb}")
            stamp(base + 4 * l)
            A(f"{lb}:")


stamp(0)
A(f"v_lshlrev_b32 v{cL16}, 4, v0")
A(f"s_lshl_b32 s{sYST}, s{sCH}, 10\ns_add_u32 s{sYST}, s{sYST}, {WS_Y}")
A(f"s_lshl_b32 s{sQST}, s{sCH}, 8")
A("v_mov_b32 v28, -1\nv_mov_b32 v29, -1\nv_mov_b32 v30, -1\nv_mov_b32 v31, -1")
A(f"s_lshl_b32 s{sT0}, s{sWAVE}, 15\ns_add_u32 s{sT0}, s{sT0}, s{sYST}\ns_lshl_b32 s{sT1}, s{sWAVE}, 13\ns_add_u32 s{sT1}, s{sT1}, s{sQST}")
A(f"buffer_store_dwordx4 v[28:31], v{cL16}, {srd(SRD_WS)}, s{sT0} offen sc1")
A("s_mov_b64 exec, 0xffff")
A(f"buffer_store_dwordx4 v[28:31], v{cL16}, {srd(SRD_WS)}, s{sT1} offen sc1")
A("s_mov_b64 exec, -1")
wq_dma(0)
A(f"v_mul_u32_u24 v{cPOg}, 7168, v20\nv_add_u32 v{cPOg}, v{cPOg}, v22\ns_lshl_b32 s{sT0}, s{sWAVE}, 8\nv_add_u32 v{cPOg}, s{sT0}, v{cPOg}")
A(f"v_min_u32 v23, 6, v21\nv_mul_u32_u24 v24, 7, v20\nv_add_u32 v23, v23, v24\nv_lshlrev_b32 v{cMLg}, 7, v23")
A(f"v_cmp_gt_u32 vcc, 7, v21\ns_nop 1\nv_cndmask_b32 v{cVAL}, 0, 1.0, vcc")
A(f"v_cmp_gt_u32 vcc, 56, v0\ns_nop 1\nv_cndmask_b32 v{cV56}, 0, 1.0, vcc")
A(f"v_lshrrev_b32 v23, 5, v0\nv_lshlrev_b32 v23, 9, v23\nv_lshl_add_u32 v23, v21, 5, v23\nv_and_b32 v24, 1, v20\nv_lshl_add_u32 v{cYst}, v24, 4, v23")
A(f"s_lshl_b32 s{sT0}, s{sWAVE}, 6\nv_lshl_add_u32 v{cQst}, v0, 1, s{sT0}")
A(f"v_add_u32 v{cSCR}, {CSCR}, v{cL16}")
A(f"v_lshlrev_b32 v{cXa}, 4, v20\nv_add_u32 v{cXa}, {XB}, v{cXa}")
A(f"v_min_u32 v{cXs}, 55, v0\nv_lshlrev_b32 v{cXs}, 4, v{cXs}\nv_add_u32 v{cXs}, {XB}, v{cXs}")
A(f"s_lshr_b32 s{sT0}, s{sCH}, 1\ns_mul_i32 s{sPOOFF}, s{sT0}, 28672\ns_add_u32 s{sPOOFF}, s{sPOOFF}, {WS_PO}")
A(f"s_lshl_b32 s{sMLOFF}, s{sT0}, 12\ns_add_u32 s{sMLOFF}, s{sMLOFF}, {WS_ML}")
A(f"s_mul_i32 s{sYOFF}, s{sWAVE}, 448\ns_add_u32 s{sYOFF}, s{sYOFF}, {WS_Y}")
emit_masks(0, MASK, 20, 21)
wo0_loads(0, range(8))
A("s_waitcnt vmcnt(8)")
mk_srd(SRD_OUT, sOUTP, 896)
A(f"ds_write_b32 v{cXw}, v{cX}")
A(f"v_and_b32 v{cX+1}, 0xffff0000, v{cX}\nv_lshlrev_b32 v{cX}, 16, v{cX}")
A("s_waitcnt lgkmcnt(0)\ns_barrier")
A(f"s_cmp_eq_u32 s{sWAVE}, 3\ns_cbranch_scc0 L_ch_noflag")
A(f"s_lshl_b32 s{sT0}, s{sG}, 5\ns_and_b32 s{sT1}, s{sCH}, 3\ns_add_u32 s{sT0}, s{sT0}, s{sT1}")
A(f"v_mov_b32 v28, s{sT0}\nv_mov_b32 v29, s{sID}\ns_mov_b64 exec, 1")
A(f"buffer_store_byte v29, v28, {srd(SRD_DBG)}, 0 offen sc1\ns_mov_b64 exec, -1")
A("L_ch_noflag:")
stamp(1)
wq_tr(0)
wo0_loads(0, range(8, 16))
colsum(0)
A("s_branch L_ch_qp")


def bf16r(dst, src):
    A(f"v_cvt_pk_bf16_f32 v{dst}, 0, v{src}")


A("L_ch_stageA:")
A(f"s_and_b32 s{sT0}, s{sLAYER}, 1\ns_lshl_b32 s{sT0}, s{sT0}, 16\ns_lshl_b32 s{sT1}, s{sWAVE}, 14\ns_add_u32 s{sT0}, s{sT0}, s{sT1}")
A(f"v_add_u32 v{cT}, s{sT0}, v{cL16}")
for t in range(16):
    A(f"ds_read_b128 {vr(wo1(t))}, v{cT} offset:{t*1024}")
    if t == 7:
        A("s_waitcnt lgkmcnt(0)")
for i in range(8):
    A(f"s_add_u32 s{sYG+i}, s{sYOFF}, {4096*i}")
A("s_waitcnt lgkmcnt(0)")
A(f"s_add_u32 s{sT0}, s{sPOOFF}, 4096")
cML = cG + 28
A("L_sa_poll:")
spin_guard("L_sa_go")
A(f"buffer_load_dwordx2 v[{cML}:{cML+1}], v{cMLg}, {srd(SRD_WS)}, s{sMLOFF} offen sc1")
for u in range(7):
    so = sPOOFF if u < 4 else sT0
    A(f"buffer_load_dwordx4 {vr(cG+4*u)}, v{cPOg}, {srd(SRD_WS)}, s{so} offen offset:{(u%4)*1024} sc1")
A("s_waitcnt vmcnt(0)")
sentinel_check(range(cG, cG + 30), cT, "L_sa_poll")
A("L_sa_go:")
lstamp(3)
mM, mW, mL = cN, cN + 1, cN + 2
A(f"v_max_f32_dpp v{mM}, v{cML}, v{cML} quad_perm:[1,0,3,2] {DPPF}")
for ctl in ("quad_perm:[2,3,0,1]", "row_half_mirror"):
    A(f"s_nop 1\nv_max_f32_dpp v{mM}, v{mM}, v{mM} {ctl} {DPPF}")
xrow_reduce("v_max_f32", mM, cT)
A(f"v_sub_f32 v{mW}, v{cML}, v{mM}\nv_exp_f32 v{mW}, v{mW}\nv_mul_f32 v{mL}, v{cML+1}, v{cVAL}\nv_mul_f32 v{mL}, v{mL}, v{mW}")
oa = cN + 4
red_steps = [f"v_add_f32_dpp v{mL}, v{mL}, v{mL} {c} {DPPF}" for c in
             ("quad_perm:[1,0,3,2]", "quad_perm:[2,3,0,1]", "row_half_mirror", "row_mirror")]
red_steps[3] += f"\nv_mov_b32 v{cT}, v{mL}"
red_steps.append(f"v_permlane32_swap_b32 v{mL}, v{cT}\nv_add_f32 v{mL}, v{mL}, v{cT}\nv_mov_b32 v{cT}, v{mL}")
red_steps.append(f"v_permlane16_swap_b32 v{mL}, v{cT}\nv_add_f32 v{mL}, v{mL}, v{cT}\nv_rcp_f32 v{mL}, v{mL}")
A("s_nop 0")
for u in range(7):
    for r in range(4):
        op = "v_mul_f32_dpp" if u == 0 else "v_fmac_f32_dpp"
        A(f"{op} v{oa+r}, v{mW}, v{cG+4*u+r} row_newbcast:{u} {DPPF}")
    if u < 6:
        A(red_steps[u])
A("s_nop 0")
A(f"v_permlane32_swap_b32 v{oa}, v{oa+2}\nv_permlane32_swap_b32 v{oa+1}, v{oa+3}")
A(f"v_add_f32 v{oa}, v{oa}, v{oa+2}\nv_add_f32 v{oa+1}, v{oa+1}, v{oa+3}\ns_nop 1")
A(f"v_permlane16_swap_b32 v{oa}, v{oa+1}\nv_add_f32 v{oa}, v{oa}, v{oa+1}")
A(f"v_mul_f32 v{oa}, v{oa}, v{mL}\nv_cvt_pk_bf16_f32 v{oa}, v{oa}, v{oa}")
A(f"s_and_b32 s{sT0}, s{sLAYER}, 1\ns_cmp_eq_u32 s{sT0}, 1\ns_cbranch_scc1 L_sa_B")
for which in range(2):
    if which == 1:
        A("L_sa_B:")

    def gmh(t, hf):
        for r in (0, 1) if hf == 0 else (2, 3):
            A(f"v_and_b32_dpp v{cTT[t&1]+r}, v{oa}, v{MASK+r} row_newbcast:{t} {DPPF}")
    gmh(0, 0)
    gmh(0, 1)
    for t in range(16):
        if t + 1 < 16:
            gmh(t + 1, 0)
        else:
            A("s_nop 0")
        A(f"v_mfma_f32_16x16x32_bf16 {vr(cACC)}, {vr(cTT[t&1])}, {vr(radd(WO0[which],4*t))}, {'0' if t == 0 else vr(cACC)}")
        if t + 1 < 16:
            gmh(t + 1, 1)
        A(f"v_mfma_f32_16x16x32_bf16 {vr(cACC+4)}, {vr(cTT[t&1])}, {vr(wo1(t))}, {'0' if t == 0 else vr(cACC+4)}")
    if which == 0:
        A("s_branch L_sa_red")
A("L_sa_red:")
A(f"s_lshl_b32 s{sT0}, s{sWAVE}, 10\nv_add_u32 v{cT}, s{sT0}, v{cSCR}")
A("s_mov_b32 exec_lo, 0\ns_nop 5")
for r in range(4):
    A(f"v_mov_b32 v{cACC+r}, v{cACC+4+r}")
A("s_mov_b32 exec_lo, -1")
A(f"s_cmp_eq_u32 s{sWAVE}, 0\ns_cbranch_scc1 L_sa_w0")
A(f"ds_write_b128 v{cT}, {vr(cACC)}\ns_waitcnt lgkmcnt(0)\ns_barrier")
H2S = int(os.environ.get("H2S", "8"))
A(f"s_sleep {H2S+2}\ns_branch L_sb")
A("L_sa_w0:\ns_barrier")
for s_ in range(1, 4):
    A(f"ds_read_b128 {vr(cG+4*s_)}, v{cSCR} offset:{1024*s_}")
for s_ in range(1, 4):
    A(f"s_waitcnt lgkmcnt({3-s_})")
    for r in range(0, 4, 2):
        A(f"v_pk_add_f32 v[{cACC+r}:{cACC+r+1}], v[{cACC+r}:{cACC+r+1}], v[{cG+4*s_+r}:{cG+4*s_+r+1}]")
for r in range(4):
    A(f"v_min_u32 v{cACC+r}, -2, v{cACC+r}")
A(f"buffer_store_dwordx4 {vr(cACC)}, v{cYst}, {srd(SRD_WS)}, s{sYST} offen sc1")
lstamp(4)
if H2S:
    A(f"s_sleep {H2S}")
A("L_sb:")
A(f"s_cmp_eq_u32 s{sLAYER}, 3\ns_cbranch_scc0 L_sb_go0\ns_cmp_eq_u32 s{sCH}, 0\ns_cbranch_scc0 L_fin\nL_sb_go0:")


def yload(i):
    return f"buffer_load_dwordx4 {vr(cG+4*i)}, v{cYg}, {srd(SRD_WS)}, s{sYG+i} offen sc1"


for i in range(8):
    A(yload(i))
A("L_sb_poll:")
for i in range(4):
    A(f"s_waitcnt vmcnt({6-2*i})")
    for r in range(0, 4, 2):
        A(f"v_pk_add_f32 v[{cN+4*i+r}:{cN+4*i+r+1}], v[{cG+8*i+r}:{cG+8*i+r+1}], v[{cG+8*i+4+r}:{cG+8*i+4+r+1}]")
    if i & 1:
        for r in range(0, 4, 2):
            A(f"v_pk_add_f32 v[{cN+4*(i-1)+r}:{cN+4*(i-1)+r+1}], v[{cN+4*(i-1)+r}:{cN+4*(i-1)+r+1}], v[{cN+4*i+r}:{cN+4*i+r+1}]")
for r in range(0, 4, 2):
    A(f"v_pk_add_f32 v[{cN+r}:{cN+r+1}], v[{cN+r}:{cN+r+1}], v[{cN+8+r}:{cN+8+r+1}]")
A("s_nop 1")
A(f"v_permlane32_swap_b32 v{cN}, v{cN+2}\nv_permlane32_swap_b32 v{cN+1}, v{cN+3}")
A(f"v_pk_add_f32 v[{cN}:{cN+1}], v[{cN}:{cN+1}], v[{cN+2}:{cN+3}]")
A(f"v_cmp_u_f32 vcc, v{cN}, v{cN+1}")
bf16r(cN, cN)
bf16r(cN + 1, cN + 1)
A("s_cmp_lg_u64 vcc, 0\ns_cbranch_scc0 L_sb_go")
spin_guard("L_sb_go")
A(f"s_mov_b32 s{sT0}, 0")
for i in range(8):
    sk = A.label("ysk")
    g_ = cG + 4 * i
    A(f"v_max3_u32 v{cT}, v{g_}, v{g_+1}, v{g_+2}\nv_max_u32 v{cT}, v{cT}, v{g_+3}\nv_cmp_eq_u32 vcc, -1, v{cT}\ns_nop 0\ns_cmp_lg_u64 vcc, 0\ns_cbranch_scc0 {sk}")
    A(yload(i))
    A(f"s_mov_b32 s{sT0}, 1\n{sk}:")
A(f"s_waitcnt vmcnt(0)\ns_cmp_eq_u32 s{sT0}, 1\ns_cbranch_scc1 L_sb_poll")
A("L_sb_go:")
lstamp(5)
A(f"v_pk_add_f32 v[{cX}:{cX+1}], v[{cX}:{cX+1}], v[{cN}:{cN+1}]")
A(f"v_cvt_pk_bf16_f32 v{cN}, v{cX}, v{cX+1}")
A(f"s_cmp_eq_u32 s{sLAYER}, 3\ns_cbranch_scc1 L_ch_out")
A(f"ds_write_b32 v{cXw}, v{cN}")
A(f"v_and_b32 v{cX+1}, 0xffff0000, v{cN}\nv_lshlrev_b32 v{cX}, 16, v{cN}")
A(f"s_add_u32 s{sLAYER}, s{sLAYER}, 1")
A(f"s_add_u32 s{sPOOFF}, s{sPOOFF}, {PO_L}\ns_add_u32 s{sMLOFF}, s{sMLOFF}, {ML_L}\ns_add_u32 s{sYOFF}, s{sYOFF}, 32768\ns_add_u32 s{sYST}, s{sYST}, 32768\ns_add_u32 s{sQST}, s{sQST}, 8192")
A("s_waitcnt lgkmcnt(0)\ns_barrier")
A("L_ch_qp:")
SV = 20
s1, s2, t0, t1 = 24, 25, 26, 27
A(f"ds_read_b128 {vr(cXA)}, v{cXa}\nds_read_b128 {vr(SV)}, v{cXs}")
for kb in range(1, 14):
    A(f"ds_read_b128 {vr(cXA+4*kb)}, v{cXa} offset:{64*kb}")
st = []
st += [f"v_readfirstlane_b32 s{sT0}, v{cXA}", f"s_lshl_b32 s{sT0}, s{sT0}, 16"]
for r in range(4):
    st += [f"v_lshlrev_b32 v{t0}, 16, v{SV+r}", f"v_and_b32 v{t1}, 0xffff0000, v{SV+r}",
           f"v_subrev_f32 v{t0}, s{sT0}, v{t0}", f"v_subrev_f32 v{t1}, s{sT0}, v{t1}"]
    if r == 0:
        st += [f"v_add_f32 v{s1}, v{t0}, v{t1}", f"v_mul_f32 v{s2}, v{t0}, v{t0}", f"v_fmac_f32 v{s2}, v{t1}, v{t1}"]
    else:
        st += [f"v_add_f32 v{s1}, v{s1}, v{t0}", f"v_fmac_f32 v{s2}, v{t0}, v{t0}", f"v_add_f32 v{s1}, v{s1}, v{t1}", f"v_fmac_f32 v{s2}, v{t1}, v{t1}"]
st += [f"v_mul_f32 v{s1}, v{s1}, v{cV56}", f"v_mul_f32 v{s2}, v{s2}, v{cV56}"]
for ctl in ("quad_perm:[1,0,3,2]", "quad_perm:[2,3,0,1]", "row_half_mirror", "row_mirror"):
    st += ["s_nop 0", f"v_add_f32_dpp v{s1}, v{s1}, v{s1} {ctl} {DPPF}", f"v_add_f32_dpp v{s2}, v{s2}, v{s2} {ctl} {DPPF}"]
for sw in ("v_permlane32_swap_b32", "v_permlane16_swap_b32"):
    st += [f"v_mov_b32 v{t0}, v{s1}", f"v_mov_b32 v{t1}, v{s2}", "s_nop 1", f"{sw} v{s1}, v{t0}", f"{sw} v{s2}, v{t1}",
           f"v_add_f32 v{s1}, v{s1}, v{t0}", f"v_add_f32 v{s2}, v{s2}, v{t1}"]
st += [f"v_mul_f32 v{s1}, {f2u(1.0/448.0)}, v{s1}", f"v_mul_f32 v{s2}, {f2u(1.0/448.0)}, v{s2}",
       f"v_fma_f32 v{s2}, -v{s1}, v{s1}, v{s2}", f"v_max_f32 v{s2}, 0, v{s2}", f"v_add_f32 v{s1}, s{sT0}, v{s1}",
       f"v_cvt_pk_bf16_f32 v{s2}, 0, v{s2}", f"v_cvt_pk_bf16_f32 v{s1}, 0, v{s1}",
       f"v_add_f32 v{s2}, {f2u(1e-5)}, v{s2}", f"v_cvt_pk_bf16_f32 v{s2}, 0, v{s2}", f"v_sqrt_f32 v{s2}, v{s2}", "s_nop 0",
       f"v_cvt_pk_bf16_f32 v{s2}, 0, v{s2}", f"v_rcp_f32 v{s2}, v{s2}"]
A(f"s_and_b32 s{sT1}, s{sLAYER}, 1\ns_cmp_eq_u32 s{sT1}, 1\ns_cbranch_scc1 L_qp_B")
for which in range(2):
    if which == 1:
        A("L_qp_B:")
    sp_ = 0
    nm = 0
    for kb in range(14):
        A(f"s_waitcnt lgkmcnt({13 if kb == 0 else 13-kb})")
        for cb in range(2):
            acc = cACC + 4 * cb
            A(f"v_mfma_f32_16x16x32_bf16 {vr(acc)}, {vr(cXA+4*kb)}, {vr(radd(WQ[which], (kb*2+cb)*4))}, {'0' if kb == 0 else vr(acc)}")
            nm += 1
            upto = min(len(st), (nm * len(st) + 26) // 27)
            while sp_ < upto:
                A(st[sp_])
                sp_ += 1
    A(f"v_mul_f32 v{s1}, v{s1}, v{cCS[which]}")
    if which == 0:
        A("s_branch L_qp_red")
A("L_qp_red:")
A("s_nop 5")
sel_cb(t0)
A(f"v_sub_f32 v{t0}, v{t0}, v{s1}\nv_mul_f32 v{t0}, v{t0}, v{s2}\ns_nop 1")
A(f"v_mov_b32_dpp v{t1}, v{t0} quad_perm:[1,1,3,3] {DPPF}")
A(f"v_cvt_pk_bf16_f32 v{t0}, v{t0}, v{t1}\nv_min_u32 v{t0}, -2, v{t0}")
A("s_mov_b32 exec_lo, 0x55555555\ns_mov_b32 exec_hi, 0")
A(f"s_cmp_eq_u32 s{sMODE}, 1\ns_cbranch_scc0 L_qp_far")
A(f"buffer_store_dword v{t0}, v{cQst}, {srd(SRD_WS)}, s{sQST} offen\ns_branch L_qp_st")
A("L_qp_far:")
A(f"buffer_store_dword v{t0}, v{cQst}, {srd(SRD_WS)}, s{sQST} offen sc1")
A("L_qp_st:")
A("s_mov_b64 exec, -1")
lstamp(2)
A(f"s_cmp_eq_u32 s{sLAYER}, 0\ns_cbranch_scc0 L_ch_stageA")
A("s_barrier")
wq_dma(1)
wo1_regs(range(16))
A("s_waitcnt vmcnt(16)\ns_barrier")
wq_tr(1)
A("s_barrier")
wo0_loads(1, range(16))
wo1_dma(1)
colsum(1)
A(f"s_waitcnt vmcnt(32)\ns_lshl_b32 s{sT1}, s{sWAVE}, 14\nv_add_u32 v{cT}, s{sT1}, v{cL16}")
for t in range(16):
    A(f"ds_write_b128 v{cT}, {vr(wo1(t))} offset:{t*1024}")
A("s_waitcnt lgkmcnt(0)")
if os.environ.get("EXP", ""):
    A("s_waitcnt vmcnt(0)")
    stamp(3)
    A("s_branch L_fin")
A("L_ch_cnt:")
spin_guard("L_ch_cnt_ok")
A(f"v_lshlrev_b32 v{cT}, 2, v0")
A(f"buffer_load_dword v{cG}, v{cT}, {srd(SRD_DBG)}, 0 offen sc1\ns_waitcnt vmcnt(0)")
A(f"v_and_b32 v{cG+1}, 0x0f0f0f0f, v{cG}\nv_cmp_eq_u32 s[{sT0}:{sT1}], s{sID}, v{cG+1}")
A(f"v_add_u32 v{cG+1}, 0x7f7f7f7f, v{cG}\nv_and_b32 v{cG+1}, 0x80808080, v{cG+1}\nv_cmp_ne_u32 vcc, 0x80808080, v{cG+1}")
A(f"s_lshl_b32 s{sT2}, s{sG}, 3\ns_lshr_b64 s[{sT0}:{sT1}], s[{sT0}:{sT1}], s{sT2}\ns_and_b32 s{sT0}, s{sT0}, 0xff\ns_cmp_eq_u32 s{sT0}, 0xff\ns_cselect_b32 s{sMODE}, 1, 0")
A("s_cmp_lg_u64 vcc, 0\ns_cbranch_scc1 L_ch_cnt")
A("L_ch_cnt_ok:")
stamp(18)
A("L_ch_pre:")
spin_guard("L_ch_stageA")
A("s_sleep 16\ns_mov_b64 exec, 1")
A(f"buffer_load_dword v{cML}, v{cMLg}, {srd(SRD_WS)}, s{sMLOFF} offen sc1\ns_waitcnt vmcnt(0)")
A(f"v_readfirstlane_b32 s{sT0}, v{cML}\ns_mov_b64 exec, -1\ns_cmp_eq_u32 s{sT0}, -1\ns_cbranch_scc1 L_ch_pre")
A("s_branch L_ch_stageA")
A("L_ch_out:")
A(f"v_subrev_u32 v{cT}, {XB}, v{cXw}")
A(f"buffer_store_dword v{cN}, v{cT}, {srd(SRD_OUT)}, 0 offen")
stamp(19)
if os.environ.get("DIAG"):
    da, db = [int(x) for x in os.environ["DIAG"].split(",")]
    ra = 100 if da == 99 else sSTAMP + 2 * da
    A(f"s_sub_u32 s{sT0}, s{sSTAMP+2*db}, s{ra}\ns_lshl_b32 s{sT0}, s{sT0}, 2\ns_min_u32 s{sT0}, s{sT0}, 100000\ns_add_u32 s{sT0}, s{sT0}, s{sSTAMP+38}")
    A(f"L_diag:\ns_memrealtime s[{sT2}:{sT3}]\ns_waitcnt lgkmcnt(0)\ns_sub_u32 s{sT1}, s{sT2}, s{sT0}\ns_cmp_lt_i32 s{sT1}, 0\ns_cbranch_scc1 L_diag")

A("L_fin:")
if PROFILE:
    A(f"s_mul_i32 s{sT0}, s2, 640\ns_mul_i32 s{sT1}, s{sWAVE}, 160\ns_add_u32 s{sT0}, s{sT0}, s{sT1}\ns_add_u32 s{sT0}, s{sT0}, {WS_STAMP}")
    A("s_mov_b64 exec, 1\nv_mov_b32 v1, 0")
    for i in range(10):
        for r in range(4):
            A(f"v_mov_b32 v{4+r}, s{sSTAMP+4*i+r}")
        A(f"buffer_store_dwordx4 v[4:7], v1, {srd(SRD_WS)}, s{sT0} offen offset:{16*i}\ns_nop 1")
if PROFILE:
    pass
A("L_end:")
A("s_endpgm")

for l in A.L:
    OUT.append(l if l.endswith(":") else "    " + l)
OUT.append('.section .rodata,"a"')
OUT.append(".p2align 6")
OUT.append(f".amdhsa_kernel {NAME}_kernel")
OUT.append("""  .amdhsa_next_free_vgpr 512
  .amdhsa_next_free_sgpr 102
  .amdhsa_accum_offset 256
  .amdhsa_group_segment_fixed_size 0
  .amdhsa_kernarg_size 104
  .amdhsa_user_sgpr_count 2
  .amdhsa_user_sgpr_kernarg_segment_ptr 1
  .amdhsa_system_sgpr_workgroup_id_x 1
  .amdhsa_float_denorm_mode_32 3
.end_amdhsa_kernel""")
out = sys.argv[1] if len(sys.argv) > 1 else f"cdna_kernels/{NAME}.s"
open(out, "w").write("\n".join(OUT) + "\n")
print("wrote", out, len(A.L), "lines")
```

```python
import sys, os, struct

PROFILE = int(os.environ.get("PROFILE", "0"))
NAME = "interleave_layers__gqa_block_cached__sliding_block_cached__decode"

WS_Q = 0
WS_Y = 49152
WS_PO = 196608
WS_ML = 196608 + 4 * 458752
ML_L = 65536
PO_L = 16 * 28 * 1024
WS_STAMP = 4 << 20
WS_SIZE = 283117312
SPIN_MAX = 1 << 18

CSCALE = struct.unpack("<I", struct.pack("<f", 1.4426950408889634 / 16.0))[0]
NEG_INF = 0xFF800000


def f2u(x):
    return struct.unpack("<I", struct.pack("<f", x))[0]


class Asm:
    def __init__(self):
        self.L = []
        self.nlabel = 0

    def __call__(self, s):
        for line in s.split("\n"):
            line = line.strip()
            if line:
                self.L.append(line)

    def label(self, base):
        self.nlabel += 1
        return f"L_{base}_{self.nlabel}"


A = Asm()


def vr(r, n=4):
    if isinstance(r, int):
        r = ("v", r)
    k, i = r
    return f"{k}[{i}:{i+n-1}]" if n > 1 else f"{k}{i}"


def radd(r, d):
    if isinstance(r, int):
        return r + d
    return (r[0], r[1] + d)


DPPF = "row_mask:0xf bank_mask:0xf"

sWAVE = 3
SRD_KA, SRD_VA, SRD_KB, SRD_VB, SRD_WS, SRD_DBG = 4, 8, 12, 16, 20, 24
SRD_WQA, SRD_WOA, SRD_WQB, SRD_WOB = 4, 8, 12, 16
SRD_X, SRD_OUT = 28, 80
sOFFA, sOFFA36, sOFFB, sOFFB9 = 28, 29, 30, 31
sBIASA, sBIASB = 32, 33
sC = 36
sLDSW = 37
sT0, sT1, sT2, sT3 = 38, 39, 40, 41
sLAYER = 42
sSPIN = 43
sQOFF, sPOOFF, sMLOFF, sYOFF = 44, 45, 46, 47
sG, sSP = 48, 49
sYST, sQST = 50, 51
sOFFB8 = 50
sCL = 47
sID, sMODE = 34, 35
KARG = 52
sSTAMP = 60
SRD_OUT = 28
sOUTP = 32

nstamp = [0]


def srd(r):
    return f"s[{r}:{r+3}]"


def stamp(idx):
    if PROFILE:
        assert idx < 20
        if idx == 0:
            for i in range(1, 20):
                A(f"s_mov_b64 s[{sSTAMP+2*i}:{sSTAMP+2*i+1}], 0")
        A(f"s_memrealtime s[{sSTAMP+2*idx}:{sSTAMP+2*idx+1}]\ns_waitcnt lgkmcnt(0)")


def mk_srd(dst, ptr, size):
    A(f"s_mov_b32 s{dst}, s{ptr}\ns_and_b32 s{dst+1}, s{ptr+1}, 0xffff\ns_mov_b32 s{dst+2}, {size}\ns_mov_b32 s{dst+3}, 0x20000")


def emit_masks(vlane, m0, t0, t1):
    A(f"v_and_b32 v{t0}, 1, v{vlane}")
    A(f"v_lshlrev_b32 v{t0}, 4, v{t0}")
    A(f"v_mov_b32 v{t1}, 0xffff")
    A(f"v_lshlrev_b32 v{t0}, v{t0}, v{t1}")
    A(f"v_bfe_u32 v{t1}, v{vlane}, 1, 2")
    for r in range(4):
        A(f"v_cmp_eq_u32 vcc, {r}, v{t1}")
        A("s_nop 1")
        A(f"v_cndmask_b32 v{m0+r}, 0, v{t0}, vcc")


def xrow_reduce(op, v, t):
    A(f"v_mov_b32 v{t}, v{v}\ns_nop 1\nv_permlane32_swap_b32 v{v}, v{t}\n{op} v{v}, v{v}, v{t}")
    A(f"v_mov_b32 v{t}, v{v}\ns_nop 1\nv_permlane16_swap_b32 v{v}, v{t}\n{op} v{v}, v{v}, v{t}")


def sentinel_check(regs, t, retry_label):
    regs = list(regs)
    A(f"v_max3_u32 v{t}, v{regs[0]}, v{regs[1]}, v{regs[2]}")
    i = 3
    while i + 1 < len(regs):
        A(f"v_max3_u32 v{t}, v{t}, v{regs[i]}, v{regs[i+1]}")
        i += 2
    if i < len(regs):
        A(f"v_max_u32 v{t}, v{t}, v{regs[i]}")
    A(f"v_cmp_eq_u32 vcc, -1, v{t}")
    A("s_nop 0")
    A(f"s_cmp_lg_u64 vcc, 0\ns_cbranch_scc1 {retry_label}")


def spin_guard(giveup_label):
    A(f"s_sub_u32 s{sSPIN}, s{sSPIN}, 1\ns_cmp_eq_u32 s{sSPIN}, 0\ns_cbranch_scc1 {giveup_label}")
    if os.environ.get("PSLEEP"):
        A(f"s_sleep {os.environ['PSLEEP']}")


hdr = open(f"cdna_kernels/{NAME}.s.ref").read().split("\n")
head = [l for l in hdr if l.startswith(";") and "@launch" not in l]
OUT = list(head)
OUT.append("; @launch grid=(256,1,1) block=(256,1,1) lds=163840")
OUT.append('.amdgcn_target "amdgcn-amd-amdhsa--gfx950"')
OUT.append(".text")
OUT.append(f".globl {NAME}_kernel")
OUT.append(".p2align 8")
OUT.append(f".type {NAME}_kernel,@function")
OUT.append(f"{NAME}_kernel:")

if PROFILE:
    A("s_memrealtime s[100:101]")
A("s_cmp_ge_u32 s2, 256\ns_cbranch_scc1 L_end")
A(f"s_load_dwordx16 s[{KARG}:{KARG+15}], s[0:1], 0")
A(f"s_load_dwordx8 s[{KARG+16}:{KARG+23}], s[0:1], 64")
A(f"s_load_dwordx2 s[{KARG+24}:{KARG+25}], s[0:1], 96")
pAX, pAK, pAV, pAWQ, pAWO, pBX, pBK, pBV, pBWQ, pBWO, pOUT, pDBG, pWS = [KARG + 2 * i for i in range(13)]
A("v_lshrrev_b32 v1, 6, v0\nv_and_b32 v0, 63, v0")
A(f"v_readfirstlane_b32 s{sWAVE}, v1")
A(f"s_and_b32 s{sG}, s2, 7\ns_lshr_b32 s{sSP}, s2, 3")
if os.environ.get("GROT"):
    A(f"s_add_u32 s{sG}, s{sG}, {os.environ['GROT']}\ns_and_b32 s{sG}, s{sG}, 7")
A(f"s_mov_b32 s{sC}, {CSCALE}\ns_mov_b32 s{sSPIN}, {SPIN_MAX}\ns_mov_b32 s{sLAYER}, 0")
A(f"s_getreg_b32 s{sID}, hwreg(HW_REG_XCC_ID, 0, 4)\ns_min_u32 s{sID}, s{sID}, 14\ns_add_u32 s{sID}, s{sID}, 1\ns_mul_i32 s{sID}, s{sID}, 0x01010101\ns_mov_b32 s{sMODE}, 0")
A("s_waitcnt lgkmcnt(0)")
mk_srd(SRD_WS, pWS, WS_SIZE)
mk_srd(SRD_DBG, pDBG, 256)
A(f"s_cmp_lt_u32 s{sSP}, 4\ns_cbranch_scc1 L_chain")

vK, vV, vKd, vVd, vL, vQ, vT = 1, 2, 3, 4, 5, 6, 7
MASK = 8
QA = 12
DT = 20
vCM, vLS, vMX, vPO, vX = 32, 33, 34, 35, 36
vFA, vFD = 36, 3
SC = 37
STG_A = [56, 60, 64, 68]
NSLOT = 19
XBASE = 4 * NSLOT * 2048
MLBASE = XBASE + 6144


def half(h):
    return ("v", 72 + 8 * h) if h < 23 else ("a", 8 * (h - 23))


NKA = 37
NVREG = 18
KVBYTES = 67108864

mk_srd(SRD_KA, pAK, KVBYTES)
mk_srd(SRD_VA, pAV, KVBYTES)
mk_srd(SRD_KB, pBK, KVBYTES)
mk_srd(SRD_VB, pBV, KVBYTES)
A(f"s_sub_u32 s{sSP}, s{sSP}, 4")
JMAP = int(os.environ.get("JMAP", "0"))
PSTRIDE = 16384 * (28 if JMAP else 1)
if JMAP:
    A(f"s_lshl_b32 s{sT3}, s{sG}, 23")
    A(f"s_lshl_b32 s{sT1}, s{sSP}, 14\ns_lshl_b32 s{sT0}, s{sWAVE}, 12\ns_add_u32 s{sT1}, s{sT1}, s{sT0}\ns_add_u32 s{sOFFA}, s{sT1}, s{sT3}")
    A(f"s_add_u32 s{sOFFB}, s{sOFFA}, {12288*512}")
    A(f"s_lshl_b32 s{sT1}, s{sSP}, 13\ns_lshl_b32 s{sT0}, s{sWAVE}, 11\ns_add_u32 s{sT1}, s{sT1}, s{sT0}\ns_add_u32 s{sT1}, s{sT1}, s{sT3}")
    A(f"s_add_u32 s{sOFFB8}, s{sT1}, {12288*512 + 4*28*16384}")
    A(f"s_add_u32 s{sT2}, s{sT1}, {18*28*16384}\ns_add_u32 s{sT0}, s{sOFFA}, {17*28*16384}")
    A(f"s_cmp_lt_u32 s{sSP}, 16\ns_cselect_b32 s{sOFFA36}, s{sT2}, s{sT0}\ns_cselect_b32 s{sBIASA}, 0, {NEG_INF}")
    A(f"s_add_u32 s{sT2}, s{sOFFB8}, {28*8192 - 24*8192}")
    A(f"s_cmp_ge_u32 s{sSP}, 24\ns_cselect_b32 s{sOFFB9}, s{sT2}, s{sOFFB8}\ns_cselect_b32 s{sBIASB}, 0, {NEG_INF}")
else:
    A(f"s_lshl_b32 s{sT3}, s{sG}, 23")
    A(f"s_mul_i32 s{sT1}, s{sSP}, 36\ns_min_u32 s{sT2}, s{sSP}, 16\ns_add_u32 s{sT1}, s{sT1}, s{sT2}")
    A(f"s_lshl_b32 s{sT1}, s{sT1}, 13\ns_add_u32 s{sT1}, s{sT1}, s{sT3}")
    A(f"s_lshl_b32 s{sT0}, s{sWAVE}, 12\ns_add_u32 s{sOFFA}, s{sT1}, s{sT0}")
    A(f"s_cmp_lt_u32 s{sSP}, 16")
    A(f"s_cselect_b32 s{sT2}, 36, 35")
    A(f"s_cselect_b32 s{sBIASA}, 0, {NEG_INF}")
    A(f"s_lshl_b32 s{sT2}, s{sT2}, 13\ns_lshl_b32 s{sT0}, s{sWAVE}, 11\ns_add_u32 s{sT2}, s{sT2}, s{sT0}")
    A(f"s_add_u32 s{sOFFA36}, s{sT1}, s{sT2}")
    A(f"s_mul_i32 s{sT1}, s{sSP}, 9\ns_max_u32 s{sT2}, s{sSP}, 24\ns_sub_u32 s{sT2}, s{sT2}, 24\ns_add_u32 s{sT1}, s{sT1}, s{sT2}")
    A(f"s_lshl_b32 s{sT1}, s{sT1}, 13\ns_add_u32 s{sT1}, s{sT1}, s{sT3}\ns_add_u32 s{sT1}, s{sT1}, {12288*512}")
    A(f"s_lshl_b32 s{sT2}, s{sWAVE}, 12\ns_add_u32 s{sOFFB}, s{sT1}, s{sT2}")
    A(f"s_add_u32 s{sOFFB8}, s{sT1}, s{sT0}\ns_add_u32 s{sOFFB8}, s{sOFFB8}, {32*2048}")
    A(f"s_cmp_ge_u32 s{sSP}, 24")
    A(f"s_cselect_b32 s{sT1}, 1, 0")
    A(f"s_cselect_b32 s{sBIASB}, 0, {NEG_INF}")
    A(f"s_lshl_b32 s{sT1}, s{sT1}, 13")
    A(f"s_add_u32 s{sOFFB9}, s{sOFFB8}, s{sT1}")
A(f"s_mul_i32 s{sLDSW}, s{sWAVE}, {NSLOT*2048}")
A(f"v_lshrrev_b32 v20, 4, v0       ; s / row")
A(f"v_and_b32 v21, 15, v0          ; j")
A(f"v_and_b32 v22, 3, v0           ; c")
A(f"v_bfe_u32 v23, v0, 2, 2        ; a")
A(f"v_lshl_add_u32 v24, v20, 2, v22   ; 4s+c")
A(f"v_lshlrev_b32 v24, 4, v24")
A(f"v_lshl_add_u32 v{vK}, v23, 9, v24")
A(f"v_lshlrev_b32 v25, 4, v21")
A(f"v_lshl_add_u32 v{vV}, v20, 9, v25")
A(f"v_add_u32 v{vKd}, 768, v{vK}\nv_add_u32 v{vVd}, 768, v{vV}")
A(f"v_lshlrev_b32 v26, 4, v0\nv_add_u32 v{vL}, s{sLDSW}, v26\nv_add_u32 v{vX}, {XBASE}, v26")
A(f"v_lshrrev_b32 v27, 3, v21      ; head(j)")
A(f"v_lshl_add_u32 v{vQ}, v27, 9, v24")
A(f"v_lshrrev_b32 v27, 5, v0\nv_mul_u32_u24 v27, 28672, v27\nv_lshl_add_u32 v27, v21, 5, v27")
A(f"v_and_b32 v28, 1, v20\nv_lshl_add_u32 v{vPO}, v28, 4, v27")
A(f"s_lshl_b32 s{sQOFF}, s{sG}, 10")
A(f"s_mul_i32 s{sPOOFF}, s{sG}, 56\ns_add_u32 s{sPOOFF}, s{sPOOFF}, s{sSP}\ns_lshl_b32 s{sPOOFF}, s{sPOOFF}, 10\ns_add_u32 s{sPOOFF}, s{sPOOFF}, {WS_PO}")
A(f"s_lshl_b32 s{sMLOFF}, s{sG}, 13\ns_lshl_b32 s{sT0}, s{sSP}, 7\ns_add_u32 s{sMLOFF}, s{sMLOFF}, s{sT0}\ns_add_u32 s{sMLOFF}, s{sMLOFF}, {WS_ML}")
stamp(0)

PRET = int(os.environ.get("PRET", "0"))
if PRET:
    nl = min(64, (320 * 1024) >> PRET)
    nlb = min(64, max(2, (96 * 1024) >> PRET))
    A(f"v_lshlrev_b32 v16, {PRET}, v0")
    A(f"s_cmp_eq_u32 s{sWAVE}, 0\ns_cbranch_scc0 L_pt1")
    A(f"s_mov_b64 exec, {(1 << nl) - 1 if nl < 64 else -1}" if nl <= 32 or nl == 64 else f"s_mov_b32 exec_hi, {(1 << (nl - 32)) - 1}")
    A(f"buffer_load_dword v17, v16, {srd(SRD_KA)}, s{sOFFA} offen nt\nbuffer_load_dword v18, v16, {srd(SRD_VA)}, s{sOFFA} offen nt")
    A(f"s_mov_b64 exec, {(1 << nlb) - 1}")
    A(f"buffer_load_dword v19, v16, {srd(SRD_KB)}, s{sOFFB} offen nt\nbuffer_load_dword v29, v16, {srd(SRD_VB)}, s{sOFFB} offen nt")
    A("s_mov_b64 exec, -1\nL_pt1:")
A(f"v_and_b32 v{vFA}, 7, v0\nv_lshlrev_b32 v{vFA}, 5, v{vFA}")
A(f"s_cmp_eq_u32 s{sWAVE}, 0\ns_cbranch_scc0 L_nc")
A(f"v_mov_b32 v{vT}, s{sID}\ns_lshl_b64 exec, 1, s{sG}")
A(f"buffer_store_byte v{vT}, v{vFA}, {srd(SRD_DBG)}, s{sSP} offen offset:4 sc1\ns_mov_b64 exec, -1")
A("L_nc:")
emit_masks(0, MASK, 20, 21)


def ld_items_reg(srdr, voff, soff_base, ulist, regs_of):
    items = []
    i = 0
    while i < len(ulist):
        u = ulist[i]
        pair = ulist[i:i + 2]
        assert u % 2 == 0
        pre = f"s_add_u32 s{sT0}, s{soff_base}, {(u//2)*PSTRIDE}"
        first = True
        for k, uu in enumerate(pair):
            for m in range(2):
                txt = f"buffer_load_dwordx4 {vr(radd(regs_of(uu), 4*m))}, v{voff}, {srd(srdr)}, s{sT0} offen offset:{k*2048+m*256} nt"
                if first:
                    txt = pre + "\n" + txt
                    first = False
                items.append((txt, uu))
        i += 2
    return items


def ld_items_lds(srdr, voff, voffd, soff_base, ulist, slot_of):
    items = []
    i = 0
    while i < len(ulist):
        u = ulist[i]
        pair = ulist[i:i + 2]
        assert u % 2 == 0
        d = (u // 2) * PSTRIDE - 768
        pre = (f"s_add_u32 s{sT1}, s{soff_base}, {d}" if d >= 0 else f"s_sub_u32 s{sT1}, s{soff_base}, {-d}")
        pre += f"\ns_add_u32 s{sT2}, s{sLDSW}, {slot_of(u)*2048}\ns_mov_b32 m0, s{sT2}\ns_nop 0"
        first = True
        for k, uu in enumerate(pair):
            assert slot_of(uu) == slot_of(u) + k
            for m in range(2):
                v = voffd if m == 0 else voff
                txt = f"buffer_load_dwordx4 v{v}, {srd(srdr)}, s{sT1} offen offset:{k*2048+m*1024} nt lds"
                if first:
                    txt = pre + "\n" + txt
                    first = False
                items.append((txt, uu))
        i += 2
    return items


def qk_groups(n, ksrc, bias_sgpr, stg):
    G = []
    nC = (n + 1) // 2
    G.append((f"v_mov_b32 v{vMX}, {NEG_INF}" + (f"\nv_mov_b32 v{SC+nC-1}, {NEG_INF}" if n & 1 else ""), None))
    reads = [(u, m) for u in range(n) if ksrc(u)[0] == "lds" for m in range(2)]
    rpos = {rm: i for i, rm in enumerate(reads)}
    issued = [0]

    def issue_reads(upto, out):
        while issued[0] < min(upto, len(reads)):
            u, m = reads[issued[0]]
            q = stg[issued[0] % len(stg)]
            out.append((f"ds_read_b128 {vr(q)}, v{vL} offset:{ksrc(u)[1]*2048+m*1024}", ksrc(u)[2]))
            issued[0] += 1

    pre = []
    issue_reads(len(stg), pre)

    def bops(u):
        d = DT + 4 * (u % 3)
        c = SC + u // 2
        bm = 0x5 if (u & 1) == 0 else 0xA
        t = f"v_mov_b32_dpp v{d}, v{d} quad_perm:[0,0,0,0] {DPPF}\n"
        t += f"v_add_f32_dpp v{d}, v{d+1}, v{d} quad_perm:[1,1,1,1] {DPPF}\n"
        t += f"v_add_f32_dpp v{d}, v{d+2}, v{d} quad_perm:[2,2,2,2] {DPPF}\n"
        if u == n - 1:
            t += f"v_add_f32 v{d}, s{bias_sgpr}, v{d}\n"
        t += f"v_add_f32_dpp v{c}, v{d+3}, v{d} quad_perm:[3,3,3,3] row_mask:0xf bank_mask:{bm:#x}\n"
        if (u & 1) or u == n - 1:
            t += f"v_max_f32 v{vMX}, v{vMX}, v{c}\n"
        return t

    body = []
    for u in range(n):
        d = DT + 4 * (u % 3)
        src = ksrc(u)
        b = bops(u - 2).strip().split("\n") if u >= 2 else []
        if u == 2:
            b = ["s_nop 4"] + b
        parts = [b[:len(b) // 2], b[len(b) // 2:]]
        for m in range(2):
            cin = "0" if m == 0 else vr(d)
            if src[0] == "reg":
                t = f"v_mfma_f32_16x16x32_bf16 {vr(d)}, {vr(radd(src[1],4*m))}, {vr(QA+4*m)}, {cin}"
                body.append((t, src[2]))
            else:
                i = rpos[(u, m)]
                q = stg[i % len(stg)]
                t = f"s_waitcnt lgkmcnt({issued[0]-i-1})\n"
                t += f"v_mfma_f32_16x16x32_bf16 {vr(d)}, {vr(q)}, {vr(QA+4*m)}, {cin}"
                body.append((t, None))
                issue_reads(i + 1 + len(stg), body)
            if parts[m]:
                body.append(("\n".join(parts[m]), None))
    body.append((bops(n - 2), None))
    body.append(("s_nop 1\n" + bops(n - 1), None))
    return G, pre, body


def max_group():
    t = "s_nop 1\n"
    t += f"v_max_f32_dpp v{vMX}, v{vMX}, v{vMX} row_half_mirror {DPPF}\n"
    t += f"v_mov_b32 v{vT}, v{vMX}\ns_nop 1\nv_permlane32_swap_b32 v{vMX}, v{vT}\nv_max_f32 v{vMX}, v{vMX}, v{vT}\n"
    t += f"v_mov_b32 v{vT}, v{vMX}\ns_nop 1\nv_permlane16_swap_b32 v{vMX}, v{vT}\nv_max_f32 v{vMX}, v{vMX}, v{vT}\n"
    t += f"v_mul_f32 v{vCM}, s{sC}, v{vMX}\nv_mov_b32 v{vLS}, 0"
    return (t, None)


def pv_groups(order, vsrc, stg):
    T = [DT, DT + 4]
    PP = [DT + 8, DT + 9]
    n = len(order)
    reads = [(u, m) for u in order if vsrc(u)[0] == "lds" for m in range(2)]
    rpos = {rm: i for i, rm in enumerate(reads)}
    issued = [0]
    body = []

    def issue_reads(upto):
        while issued[0] < min(upto, len(reads)):
            u, m = reads[issued[0]]
            q = stg[issued[0] % len(stg)]
            body.append((f"ds_read_b128 {vr(q)}, v{vL} offset:{vsrc(u)[1]*2048+m*1024}", vsrc(u)[2], None))
            issued[0] += 1

    pairs = []
    for u in order:
        if u // 2 not in pairs:
            pairs.append(u // 2)
    pidx = {k: i for i, k in enumerate(pairs)}

    def E(k):
        c = SC + k
        return f"v_fma_f32 v{c}, v{c}, s{sC}, -v{vCM}\nv_exp_f32 v{c}, v{c}\n"

    def F(k):
        c = SC + k
        return f"v_add_f32 v{vLS}, v{vLS}, v{c}\nv_cvt_pk_bf16_f32 v{PP[pidx[k]&1]}, v{c}, v{c}\n"

    def Gm(i):
        u = order[i]
        pp = PP[pidx[u // 2] & 1]
        rho = u & 1
        t = ""
        for r in range(4):
            if (r >> 1) == rho:
                t += f"v_and_b32 v{T[i&1]+r}, v{pp}, v{MASK+r}\n"
        for r in range(4):
            if (r >> 1) != rho:
                sh = "row_shr:4" if rho == 0 else "row_shl:4"
                t += f"v_and_b32_dpp v{T[i&1]+r}, v{pp}, v{MASK+r} {sh} {DPPF} bound_ctrl:0\n"
        return t

    t = E(pairs[0])
    if len(pairs) > 1:
        t += E(pairs[1])
    else:
        t += "s_nop 0\n"
    t += F(pairs[0]) + Gm(0)
    body.append((t, None, None))
    edone = min(2, len(pairs))
    fdone = 1
    first_lds_started = False
    for i in range(n):
        u = order[i]
        nxt = [order[j] for j in range(i, min(n, i + 3))]
        if not first_lds_started and any(vsrc(x)[0] == "lds" for x in nxt):
            issue_reads(len(stg))
            first_lds_started = True
        t = ""
        if i + 1 < n:
            k1 = pidx[order[i + 1] // 2]
            if k1 >= fdone:
                t += F(pairs[k1])
                fdone = k1 + 1
                if edone < len(pairs):
                    t += E(pairs[edone])
                    edone += 1
            t += Gm(i + 1)
        tl = [x for x in t.strip().split("\n") if x]
        parts = [tl[:len(tl) // 2], tl[len(tl) // 2:]]
        if not tl:
            parts[0] = ["s_nop 0"]
        src = vsrc(u)
        for m in range(2):
            acc = QA + 4 * m
            cin = "0" if i == 0 else vr(acc)
            if parts[m]:
                body.append(("\n".join(parts[m]), None, None))
            if src[0] == "reg":
                body.append((f"v_mfma_f32_16x16x32_bf16 {vr(acc)}, {vr(T[i&1])}, {vr(radd(src[1],4*m))}, {cin}", src[2], None))
            else:
                j = rpos[(u, m)]
                q = stg[j % len(stg)]
                body.append((f"s_waitcnt lgkmcnt({issued[0]-j-1})\nv_mfma_f32_16x16x32_bf16 {vr(acc)}, {vr(T[i&1])}, {vr(q)}, {cin}", None, u if m == 1 else None))
                issue_reads(j + 1 + len(stg))
    return body


def emit_groups(gs):
    for g in gs:
        A(g[0])


def clear_next(t4, ta):
    sk, far = A.label("clsk"), A.label("clfar")
    A(f"s_cmp_lt_u32 s{sWAVE}, 2\ns_cbranch_scc1 {sk}")
    for r in range(4):
        A(f"v_mov_b32 v{t4+r}, -1")
    A(f"v_lshlrev_b32 v{ta}, 4, v0")
    A(f"s_sub_u32 s{sT3}, s{sWAVE}, 2\ns_lshl_b32 s{sCL}, s{sT3}, 12\ns_add_u32 s{sCL}, s{sCL}, s{sMLOFF}\ns_add_u32 s{sCL}, s{sCL}, {ML_L}")
    A(f"s_mul_i32 s{sT3}, s{sT3}, 28672\ns_add_u32 s{sT3}, s{sT3}, s{sPOOFF}\ns_add_u32 s{sT3}, s{sT3}, {PO_L}")
    A(f"s_cmp_eq_u32 s{sMODE}, 1\ns_cbranch_scc0 {far}")
    for fl in ("", " sc1"):
        if fl:
            A(f"{far}:")
        A(f"buffer_store_dwordx4 {vr(t4)}, v{ta}, {srd(SRD_WS)}, s{sT3} offen{fl}")
        A(f"s_mov_b64 exec, 1\nbuffer_store_dwordx2 {vr(t4, 2)}, v{ta}, {srd(SRD_WS)}, s{sCL} offen{fl}\ns_mov_b64 exec, -1")
        if not fl:
            A(f"s_branch {sk}")
    A(f"{sk}:\ns_nop 1")


def q_loads():
    return (f"buffer_load_dwordx4 {vr(QA)}, v{vQ}, {srd(SRD_WS)}, s{sQOFF} offen sc1\n"
            f"buffer_load_dwordx4 {vr(QA+4)}, v{vQ}, {srd(SRD_WS)}, s{sQOFF} offen offset:256 sc1")


def poll_q_blocking():
    lp, done = A.label("qpoll"), A.label("qdone")
    A(f"{lp}:")
    spin_guard(done)
    A(q_loads())
    A("s_waitcnt vmcnt(0)")
    sentinel_check(range(QA, QA + 8), vT, lp)
    A(f"{done}:")
    A("s_nop 1")


VL_UNITS = list(range(NVREG, NKA))
vslot = lambda u: u - NVREG
loads = []
it = ld_items_lds(SRD_VA, vV, vVd, sOFFA, VL_UNITS[:-1], vslot)
loads += [(t, ("V", u), None) for t, u in it]
it = ld_items_lds(SRD_VA, vV, vVd, sOFFA36, [0], lambda u: vslot(36))
loads += [(t, ("V", 36), None) for t, u in it]
it = ld_items_reg(SRD_KA, vK, sOFFA, list(range(36)), half)
kl = [(t, ("K", u), None) for t, u in it]
it = ld_items_reg(SRD_KA, vK, sOFFA36, [0], lambda u: half(36))
kl += [(t, ("K", 36), None) for t, u in it]
ca_load = (f"buffer_load_dword v{vCM}, v{vFA}, {srd(SRD_DBG)}, 0 offen sc1", ("CA",), None)
FPOS = 32
NOCA = int(os.environ.get("NOCA", "0"))
loads += kl[:40] + ([] if NOCA else [ca_load]) + kl[40:60]
QPOS = len(loads)
loads += kl[60:]
it = ld_items_reg(SRD_VA, vV, sOFFA, list(range(NVREG)), lambda u: half(NKA + u))
loads += [(t, ("V", u), None) for t, u in it]
NA_LOADS = len(loads)
BV9 = 42
STG_B = [50, 56, 60, 64, 68]


def b_loads():
    bl = []
    it = ld_items_lds(SRD_KB, vK, vKd, sOFFB, list(range(8)), lambda u: u)
    bl += [(t, ("BK", u), u | 1) for t, u in it]
    it = ld_items_lds(SRD_KB, vK, vKd, sOFFB8, [0], lambda u: 8)
    bl += [(t, ("BK", 8), 8) for t, u in it]
    it = ld_items_lds(SRD_KB, vK, vKd, sOFFB9, [0], lambda u: 9)
    bl += [(t, ("BK", 9), 9) for t, u in it]
    it = ld_items_lds(SRD_VB, vV, vVd, sOFFB, list(range(8)), lambda u: 10 + u)
    bl += [(t, ("BV", u), (10 + u) | 1) for t, u in it]
    it = ld_items_lds(SRD_VB, vV, vVd, sOFFB8, [0], lambda u: 18)
    bl += [(t, ("BV", 8), 18) for t, u in it]
    it = ld_items_reg(SRD_VB, vV, sOFFB9, [0], lambda u: BV9)
    bl += [(t, ("BV", 9), None) for t, u in it]
    return bl


BL = b_loads()
BPOL = int(os.environ.get("BPOL", "0"))
BL = [((t.replace(" nt", "") if i >= len(BL) - BPOL else t), tag, req) for i, (t, tag, req) in enumerate(BL)]
GATE = int(os.environ.get('GATE', '0'))
NB_EARLY = int(os.environ.get('NBE', '8'))
loads += BL[:NB_EARLY]

ksrcA = lambda u: ("reg", half(u), ("K", u))
vsrcA = lambda u: ("reg", half(NKA + u), ("V", u)) if u < NVREG else ("lds", vslot(u), ("V", u))

g0, pre, body = qk_groups(NKA, ksrcA, sBIASA, STG_A)
comp = [(t, n, None) for t, n in g0 + pre + body] + [max_group() + (None,)]
comp += pv_groups(VL_UNITS + list(range(NVREG)), vsrcA, STG_A)

EXP = os.environ.get("EXP", "")
if EXP:
    order = loads[:NA_LOADS] + BL
    if "r" in EXP:
        order = [(t, ("K", u), None) for t, u in ld_items_reg(SRD_KA, vV if "v" in EXP else vK, sOFFA, list(range(36)), half)]
        order += [(t, ("V", u), None) for t, u in ld_items_reg(SRD_VA, vV, sOFFA, list(range(36)), lambda u: half(u + 18))]
        order += [(t, ("BK", u), None) for t, u in ld_items_reg(SRD_KB, vV if "v" in EXP else vK, sOFFB, list(range(8)), half)]
        order += [(t, ("BV", u), None) for t, u in ld_items_reg(SRD_VB, vV, sOFFB, list(range(8)), lambda u: half(u + 18))]
    for i, (t, tag, req) in enumerate(order):
        if tag == ("CA",): continue
        if tag == ("BK", 0) and "s_add" in t:
            stamp(3)
        if i in (30, 60, 90, 120): stamp(15 + (30, 60, 90, 120).index(i))
        A(t)
        if os.environ.get("THR"): A(f"s_waitcnt vmcnt({os.environ['THR']})")
    A("s_waitcnt vmcnt(0)")
    stamp(4)
    A("s_branch L_fin")
THR = int(os.environ.get("THR", "4"))
THRX = int(os.environ.get("THRX", "0"))
VPOL = int(os.environ.get("VPOL", "0"))
THR2 = int(os.environ.get("THR2", "0"))
THRB = int(os.environ.get("THRB", "0"))
LAG = int(os.environ.get("LAG", "10"))
last_of = {}
nissued = 0
released = set()
ci = 0


def emit_comp(g):
    t, need, rel = g
    if need is not None:
        n = nissued - last_of[need] - 1
        A(f"s_waitcnt vmcnt({min(n, 63)})")
    A(t)
    if rel is not None:
        released.add(vslot(rel))


qready = False
li = 0
done_pos = set()
LEAD = int(os.environ.get("LEAD", "0"))
ADAPT = int(os.environ.get("ADAPT", "0"))
ATHR = int(os.environ.get("ATHR", "3"))
sTHR = 51
MARKS = ([40, 56, 72, 88, 104, 120] if LEAD else [-1] * 6) + [NA_LOADS - GATE] if GATE else []
if ADAPT:
    MARKS = [34, 50, 66, 82, 98, 114, 130]
    A(f"s_mov_b32 s{sTHR}, 0")


RATE = int(os.environ.get("RATE", "0"))
sRT0, sRT = 52, 54
if RATE:
    A(f"s_mov_b32 s{sTHR}, 0\ns_memrealtime s[{sRT0}:{sRT0+1}]")


def rate_ctl(li):
    if RATE and li % 6 == 0 and 12 <= li:
        A(f"s_memrealtime s[{sRT}:{sRT+1}]")
    if RATE and li % 6 == 1 and 12 <= li:
        A(f"s_waitcnt lgkmcnt(0)\ns_sub_u32 s{sRT}, s{sRT}, s{sRT0}\ns_cmp_lt_u32 s{sRT}, {max(0, (li - int(os.environ.get('ROFF', '4'))) * RATE // 10)}\ns_cselect_b32 s{sTHR}, 1, 0")


def athr():
    if ADAPT or RATE:
        sk = A.label("nt")
        A(f"s_cmp_eq_u32 s{sTHR}, 0\ns_cbranch_scc1 {sk}\ns_waitcnt vmcnt({ATHR})\n{sk}:")


flow_load = f"buffer_load_ubyte v{vFD}, v{vFA}, {srd(SRD_DBG)}, 0 offen offset:4 sc1"


def flow_wait(k, n):
    ok, lp, ck = A.label("flok"), A.label("fllp"), A.label("flck")
    if n is not None:
        A(f"s_waitcnt vmcnt({n})\ns_branch {ck}")
    A(f"{lp}:")
    spin_guard(ok)
    A(f"{flow_load}\ns_waitcnt vmcnt(0)")
    A(f"{ck}:\nv_cmp_gt_u32 vcc, {k << 4}, v{vFD}\ns_nop 0\ns_cmp_lg_u64 vcc, 0\ns_cbranch_scc0 {ok}\ns_sleep 4\ns_branch {lp}")
    A(f"{ok}:")


while li < len(loads):
    if li in MARKS and li not in done_pos:
        k = MARKS.index(li) + 1
        nf = A.label("nomark")
        A(f"s_or_b32 s{sT3}, s{sWAVE}, s{sSP}\ns_cmp_eq_u32 s{sT3}, 0\ns_cbranch_scc0 {nf}")
        A(f"s_or_b32 s{sT3}, s{sID}, {k << 4}\nv_mov_b32 v{vT}, s{sT3}\ns_lshl_b64 exec, 1, s{sG}")
        A(f"buffer_store_byte v{vT}, v{vFA}, {srd(SRD_DBG)}, 0 offen offset:4 sc1\ns_mov_b64 exec, -1")
        A(f"{nf}:")
    if LEAD and (li - LEAD + 8) in MARKS[:-1] and li + 8 < NA_LOADS and li not in done_pos:
        A(flow_load)
        last_of[("FL",)] = nissued
        nissued += 1
    if LEAD and (li - LEAD) in MARKS[:-1] and li < NA_LOADS and li not in done_pos:
        k = MARKS.index(li - LEAD) + 1
        flow_wait(k, nissued - last_of[("FL",)] - 1)
    if ADAPT and (li - ADAPT) in MARKS and li + 8 < NA_LOADS and li not in done_pos:
        A(flow_load)
        last_of[("FL",)] = nissued
        nissued += 1
    if ADAPT and (li - ADAPT - 8) in MARKS and li < NA_LOADS and li not in done_pos:
        k = MARKS.index(li - ADAPT - 8) + 1
        A(f"s_waitcnt vmcnt({nissued - last_of[('FL',)] - 1})")
        A(f"v_cmp_gt_u32 vcc, {k << 4}, v{vFD}\ns_nop 0\ns_cmp_lg_u64 vcc, 0\ns_cselect_b32 s{sTHR}, 1, 0")
    if li in (30, 60, 90, 120) and li not in done_pos:
        if li == 120 and PROFILE: A("s_waitcnt lgkmcnt(0)")
        stamp(15 + (30, 60, 90, 120).index(li))
    if li == NA_LOADS and li not in done_pos:
        A(f"v_add_u32 v{vKd}, 768, v{vK}")
    done_pos.add(li)
    if li == QPOS and NOCA:
        A(f"s_mov_b32 s{sMODE}, 1")
        A(q_loads())
        nissued += 2
        last_of[("Q",)] = nissued - 1
    if li == QPOS and not NOCA:
        n = nissued - last_of[("CA",)] - 1
        ok, lp, ck = A.label("caok"), A.label("calp"), A.label("cack")
        A(f"s_waitcnt vmcnt({n})\ns_branch {ck}")
        A(f"{lp}:")
        spin_guard(ok)
        A(f"{ca_load[0]}\ns_waitcnt vmcnt(0)")
        A(f"{ck}:\nv_readlane_b32 s{sT3}, v{vCM}, s{sG}")
        A(f"s_cmp_eq_u32 s{sT3}, s{sID}\ns_cselect_b32 s{sMODE}, 1, 0")
        A(f"s_add_u32 s{sT3}, s{sT3}, 0x7f7f7f7f\ns_and_b32 s{sT3}, s{sT3}, 0x80808080\ns_cmp_eq_u32 s{sT3}, 0x80808080\ns_cbranch_scc0 {lp}")
        A(f"{ok}:")
        clear_next(DT, vT)
        A(q_loads())
        nissued += 2
        last_of[("Q",)] = nissued - 1
    if li == QPOS + 12:
        n = nissued - last_of[("Q",)] - 1
        slow, ok = A.label("qslow"), A.label("qok")
        A(f"s_waitcnt vmcnt({n})")
        sentinel_check(range(QA, QA + 8), vT, slow)
        A(f"s_branch {ok}\n{slow}:")
        poll_q_blocking()
        A(f"{ok}:")
        stamp(1)
        if RATE:
            A(f"s_mov_b32 s{sTHR}, 0")
        qready = True
    t, tag, req = loads[li]
    if req is not None and req not in released:
        emit_comp(comp[ci])
        ci += 1
        continue
    A(t.replace(" nt", "") if li < VPOL else t)
    if THR and not qready:
        A(f"s_waitcnt vmcnt({THR + (THRX if li & 1 else 0)})")
    if THR2 and qready:
        A(f"s_waitcnt vmcnt({THR2})")
    if li > (12 if RATE else 40) and not (RATE and qready):
        athr()
    if not qready:
        rate_ctl(li)
    last_of[tag] = nissued
    nissued += 1
    li += 1
    if qready:
        cnt = 0
        while ci < len(comp) and cnt < 6:
            need = comp[ci][1]
            if need is not None and (need not in last_of or nissued - last_of[need] - 1 < LAG or
                                     (li < len(loads) and loads[li][1] == need)):
                break
            emit_comp(comp[ci])
            ci += 1
            cnt += 1
stamp(2)
A(f"v_lshlrev_b32 v{vX}, 4, v0\nv_add_u32 v{vX}, {XBASE}, v{vX}")
while ci < len(comp):
    emit_comp(comp[ci])
    ci += 1

A("L_reduce:")
R0 = SC
A(f"v_add_f32_dpp v{vLS}, v{vLS}, v{vLS} row_half_mirror {DPPF}")
xrow_reduce("v_add_f32", vLS, vT)
A(f"v_bfe_u32 v{R0}, v0, 3, 1\nv_lshlrev_b32 v{R0}, 5, v{R0}\ns_lshl_b32 s{sT0}, s{sWAVE}, 3\ns_add_u32 s{sT0}, s{sT0}, {MLBASE}\nv_add_u32 v{R0}, s{sT0}, v{R0}")
A(f"ds_write_b64 v{R0}, v[{vCM}:{vLS}]")
A(f"v_lshrrev_b32 v{R0+1}, 5, v0\nv_lshlrev_b32 v{R0+1}, 5, v{R0+1}\nv_add_u32 v{R0+1}, {MLBASE}, v{R0+1}")
A(f"s_cmp_lt_u32 s{sWAVE}, 2\ns_cbranch_scc1 L_red_01")
A(f"s_lshl_b32 s{sT0}, s{sWAVE}, 10\ns_sub_u32 s{sT0}, s{sT0}, 1024\nv_add_u32 v{R0+2}, s{sT0}, v{vX}")
A(f"ds_write_b128 v{R0+2}, {vr(QA)}\nds_write_b128 v{R0+2}, {vr(QA+4)} offset:3072")
A("s_waitcnt lgkmcnt(0)\ns_barrier\ns_branch L_red_done")
A("L_red_01:")
A(f"s_cmp_eq_u32 s{sWAVE}, 0\ns_cbranch_scc1 L_red_0")
A(f"ds_write_b128 v{vX}, {vr(QA)}")
A(f"v_add_u32 v{R0+2}, 3072, v{vX}")
A("s_waitcnt lgkmcnt(0)")
for r in range(4):
    A(f"v_mov_b32 v{QA+r}, v{QA+4+r}")
A("s_branch L_red_c")
A("L_red_0:")
A(f"ds_write_b128 v{vX}, {vr(QA+4)} offset:3072")
A(f"v_mov_b32 v{R0+2}, v{vX}")
A("s_waitcnt lgkmcnt(0)")
A("L_red_c:")
A("s_barrier")
ML = 56
XR = 20
A(f"ds_read_b128 {vr(ML)}, v{R0+1}\nds_read_b128 {vr(ML+4)}, v{R0+1} offset:16")
for s in range(3):
    A(f"ds_read_b128 {vr(XR+4*s)}, v{R0+2} offset:{1024*s}")
Mx, F0 = 64, 66
A("s_waitcnt lgkmcnt(3)")
A(f"v_max3_f32 v{Mx}, v{ML}, v{ML+2}, v{ML+4}\nv_max_f32 v{Mx}, v{Mx}, v{ML+6}")
for w in range(4):
    A(f"v_sub_f32 v{F0+w}, v{ML+2*w}, v{Mx}")
for w in range(4):
    A(f"v_exp_f32 v{F0+w}, v{F0+w}")
A(f"s_cmp_eq_u32 s{sWAVE}, 0")
A(f"v_mul_f32 v{Mx+1}, v{F0}, v{ML+1}")
for w in range(1, 4):
    A(f"v_fmac_f32 v{Mx+1}, v{F0+w}, v{ML+2*w+1}")
A("s_cbranch_scc1 L_red_sw")
A(f"v_mov_b32 v{vT}, v{F0}\nv_mov_b32 v{F0}, v{F0+1}\nv_mov_b32 v{F0+1}, v{vT}")
A("L_red_sw:")
for r in range(4):
    A(f"v_mul_f32 v{QA+r}, v{F0}, v{QA+r}")
A("s_waitcnt lgkmcnt(0)")
for s in range(3):
    for r in range(4):
        A(f"v_fmac_f32 v{QA+r}, v{F0+1+s}, v{XR+4*s+r}")
for r in range(4):
    A(f"v_min_u32 v{QA+r}, -2, v{QA+r}")
A(f"s_lshl_b32 s{sT0}, s{sWAVE}, 9\ns_add_u32 s{sT0}, s{sT0}, s{sPOOFF}")
A(f"s_cmp_eq_u32 s{sMODE}, 1\ns_cbranch_scc0 L_pub_far")
for fl, lab in (("", None), (" sc1", "L_pub_far")):
    if lab:
        A(f"{lab}:")
    A(f"buffer_store_dwordx4 {vr(QA)}, v{vPO}, {srd(SRD_WS)}, s{sT0} offen{fl}")
    A(f"s_cmp_eq_u32 s{sWAVE}, 0\ns_cbranch_scc0 L_red_done")
    A(f"v_min_u32 v{Mx}, -2, v{Mx}\nv_min_u32 v{Mx+1}, -2, v{Mx+1}")
    A(f"v_lshrrev_b32 v{vT}, 5, v0\nv_lshlrev_b32 v{vT}, 12, v{vT}")
    A("s_mov_b32 exec_lo, 1\ns_mov_b32 exec_hi, 1")
    A(f"buffer_store_dwordx2 v[{Mx}:{Mx+1}], v{vT}, {srd(SRD_WS)}, s{sMLOFF} offen{fl}")
    A("s_mov_b64 exec, -1")
    if not lab:
        A("s_branch L_red_done")
A("L_red_done:")
A("s_barrier")
A(f"s_add_u32 s{sQOFF}, s{sQOFF}, 8192\ns_add_u32 s{sPOOFF}, s{sPOOFF}, {PO_L}\ns_add_u32 s{sMLOFF}, s{sMLOFF}, {ML_L}")
A(f"s_add_u32 s{sLAYER}, s{sLAYER}, 1")
A(f"s_cmp_eq_u32 s{sLAYER}, 2\ns_cbranch_scc1 L_after2")
A(f"s_cmp_eq_u32 s{sLAYER}, 3\ns_cbranch_scc1 L_after3")
A(f"s_cmp_eq_u32 s{sLAYER}, 4\ns_cbranch_scc1 L_att_end")
stamp(3)
if GATE:
    vFA = vT
    flow_load = f"buffer_load_ubyte v{vFD}, v{vFA}, {srd(SRD_DBG)}, 0 offen offset:4 sc1"
    A(f"v_and_b32 v{vFA}, 7, v0\nv_lshlrev_b32 v{vFA}, 5, v{vFA}")
    flow_wait(7, None)
    stamp(13)
A(f"v_add_u32 v{vKd}, 768, v{vK}")


def stream_then_q(items, E, st_a, st_b, thr=0, pre=()):
    n = len(items)
    for i, (t, tag, req) in enumerate(items):
        if i == n - E:
            A(q_loads())
        A(t)
        if thr and i < n - E:
            A(f"s_waitcnt vmcnt({thr})")
        if st_a == 4 and i < n - E and os.environ.get("ATHB"):
            athr()
            rate_ctl(NA_LOADS + NB_EARLY + i + 6)
    if E == 0:
        A(q_loads())
    slow, ok = A.label("qslow"), A.label("qok")
    A(f"s_waitcnt vmcnt({E})")
    stamp(st_a)
    emit_groups(pre)
    sentinel_check(range(QA, QA + 8), vT, slow)
    A(f"s_branch {ok}\n{slow}:")
    poll_q_blocking()
    A(f"{ok}:")
    stamp(st_b)
    younger = {}
    for i, (t, tag, req) in enumerate(items):
        if i >= n - E:
            younger[tag] = n - 1 - i
    return younger


def emit_counted(gs, younger, extra=None, every=1):
    extra = list(extra or [])
    cnt = 0
    for g in gs:
        need = g[1]
        if need in younger:
            A(f"s_waitcnt vmcnt({younger[need]})")
            lim = younger[need]
            for k in [k for k, v in younger.items() if v >= lim]:
                del younger[k]
        A(g[0])
        if "v_mfma" in g[0]:
            cnt += 1
            if extra and cnt % every == 0:
                t, tag, req = extra.pop(0)
                A(t)
                for k in younger:
                    younger[k] += 1
                younger[tag] = 0
    assert not extra


ksrcB = lambda u: ("lds", u, ("BK", u))
vsrcB = lambda u: ("lds", 10 + u, ("BV", u)) if u < 9 else ("reg", BV9, ("BV", u))
g0, pre, body = qk_groups(10, ksrcB, sBIASB, STG_B)
clear_next(DT, vT)
emit_groups(g0)
yg = stream_then_q(BL[NB_EARLY:], int(os.environ.get("E2", "8")), 4, 5, THRB, pre)
emit_counted(body + [max_group()] + pv_groups(list(range(10)), vsrcB, STG_B), yg)
A("s_branch L_reduce")

A("L_after2:")
stamp(6)
VLL = loads[:2 * NSLOT]
byslot = lambda lo, hi: [x for x in VLL if lo <= vslot(x[1][1]) < hi]
HB0, HB1 = [int(x) for x in os.environ.get("HB", "0,0").split(",")]
g0, pre, body = qk_groups(NKA, ksrcA, sBIASA, STG_A)
clear_next(DT, vT)
emit_groups(g0)
yg = stream_then_q(byslot(HB1, NSLOT) + byslot(0, HB0), 0, 14, 7)
emit_counted(body, yg, byslot(HB0, HB1), 3)
emit_groups([max_group()])
stamp(8)
b4 = []
for srdr, voff, base, nm in ((SRD_KB, vK, 0, "BK"), (SRD_VB, vV, 10, "BV")):
    b4 += [(t, (nm, u), None) for t, u in ld_items_reg(srdr, voff, sOFFB, list(range(8)), lambda u: half(base + u))]
    b4 += [(t, (nm, 8), None) for t, u in ld_items_reg(srdr, voff, sOFFB8, [0], lambda u: half(base + 8))]
    b4 += [(t, (nm, 9), None) for t, u in ld_items_reg(srdr, voff, sOFFB9, [0], lambda u: half(base + 9))]
NB4 = int(os.environ.get("NB4", "8"))
order3 = list(range(NVREG)) + [NVREG + x for x in list(range(HB1, NSLOT)) + list(range(0, HB1))]
emit_counted(pv_groups(order3, vsrcA, STG_A), yg, b4[:NB4], int(os.environ.get("NB4E", "4")))
A("s_branch L_reduce")

A("L_after3:")
stamp(9)
ksrc4 = lambda u: ("reg", half(u), ("BK", u))
vsrc4 = lambda u: ("reg", half(10 + u), ("BV", u))
g0, pre, body = qk_groups(10, ksrc4, sBIASB, STG_B)
emit_groups(g0)
yg = stream_then_q(b4[NB4:], int(os.environ.get("E4", "8")), 10, 11, int(os.environ.get("THR4", "0")))
emit_counted(body + [max_group()] + pv_groups(list(range(10)), vsrc4, STG_B), yg)
A("s_branch L_reduce")

A("L_att_end:")
stamp(12)
A("s_branch L_fin")

A("L_chain:")
cWq, cWo, cPOg, cMLg, cL16, cYg, cT = 1, 2, 3, 4, 5, 6, 7
cX = 12
cVAL, cYst, cSCR, cXw, cXa, cXs = 14, 15, 16, 17, 18, 19
cTT = [20, 24]
cACC = 28
cG = 36
cN = 68
cXA = 36
cCS = {0: 92, 1: 93}
cQst, cV56 = 94, 95
cWo1 = 91
WQ = {0: ("a", 0), 1: ("a", 112)}
WO0 = {0: ("v", 96), 1: ("v", 160)}
sYG = 52


def wo1(t):
    return ("v", 224 + 4 * t) if t < 8 else ("a", 224 + 4 * (t - 8))


CSCR = 131072
YX = CSCR
XB = CSCR + 4096
sCH = sSP
WQB = 448 * 4096 * 2

if "n" in os.environ.get("EXP", ""):
    A("s_branch L_end")
if "l" in os.environ.get("EXP", ""):
    mk_srd(SRD_KB, pBK, 67108864)
    stamp(0)
    A(f"s_lshl_b32 s{sT0}, s{sG}, 23\ns_mul_i32 s{sT1}, s{sSP}, 491520\ns_add_u32 s{sT0}, s{sT0}, s{sT1}\ns_lshl_b32 s{sT1}, s{sWAVE}, 12\ns_add_u32 s{sT0}, s{sT0}, s{sT1}\nv_lshlrev_b32 v1, 4, v0")
    for i in range(30):
        for n in range(4):
            A(f"buffer_load_dwordx4 a[{(i*16+n*4)%256}:{(i*16+n*4)%256+3}], v1, {srd(SRD_KB)}, s{sT0} offen offset:{n*1024} nt")
        A(f"s_add_u32 s{sT0}, s{sT0}, 16384")
    A("s_waitcnt vmcnt(0)")
    stamp(3)
    A("s_branch L_fin")
mk_srd(SRD_WQA, pAWQ, WQB)
mk_srd(SRD_WOA, pAWO, WQB)
mk_srd(SRD_WQB, pBWQ, WQB)
mk_srd(SRD_WOB, pBWO, WQB)
mk_srd(SRD_X, pAX, 896)
A(f"s_mov_b64 s[{sOUTP}:{sOUTP+1}], s[{pOUT}:{pOUT+1}]")
A(f"s_lshl_b32 s{sT0}, s{sG}, 2\ns_add_u32 s{sCH}, s{sT0}, s{sSP}")
A("v_lshrrev_b32 v20, 4, v0       ; s / row")
A("v_and_b32 v21, 15, v0          ; j / c16")
A("v_lshlrev_b32 v22, 4, v21      ; j*16")
A(f"s_lshr_b32 s{sT0}, s{sWAVE}, 1\ns_lshl_b32 s{sT0}, s{sT0}, 2\nv_or_b32 v23, s{sT0}, v20\nv_lshlrev_b32 v23, 5, v23\nv_xor_b32 v23, v23, v22")
A(f"v_lshl_add_u32 v{cWq}, v20, 13, v23")
A(f"v_mul_u32_u24 v{cWo}, 896, v20\nv_add_u32 v{cWo}, v{cWo}, v22")
A("v_and_b32 v23, 31, v0\nv_min_u32 v23, 27, v23\nv_lshrrev_b32 v24, 5, v0")
A(f"s_mul_i32 s{sT0}, s{sWAVE}, 224\nv_lshlrev_b32 v25, 3, v23\nv_lshl_add_u32 v25, v24, 2, v25\nv_add_u32 v25, s{sT0}, v25")
A(f"buffer_load_dword v{cX}, v25, {srd(SRD_X)}, 0 offen")
A(f"v_add_u32 v{cXw}, {XB}, v25")
A(f"v_lshlrev_b32 v{cYg}, 4, v23\nv_lshl_add_u32 v{cYg}, v24, 11, v{cYg}")


def wq_dma(which):
    s_ = SRD_WQA if which == 0 else SRD_WQB
    A(f"s_lshl_b32 s{sT0}, s{sWAVE}, 15\ns_lshl_b32 s{sT1}, s{sCH}, 8\ns_add_u32 s{sT0}, s{sT0}, s{sT1}\ns_lshl_b32 s{sT2}, s{sWAVE}, 10")
    for ii in range(28):
        A(f"s_add_u32 s{sT1}, s{sT0}, {ii*131072}\ns_add_u32 s{sT3}, s{sT2}, {ii*4096}\ns_mov_b32 m0, s{sT3}\ns_nop 0")
        A(f"buffer_load_dwordx4 v{cWq}, {srd(s_)}, s{sT1} offen nt lds")


def wq_tr(which):
    A("v_lshrrev_b32 v20, 4, v0\nv_bfe_u32 v21, v0, 2, 2\nv_and_b32 v22, 1, v20\nv_lshl_add_u32 v22, v22, 2, v21")
    A(f"s_lshl_b32 s{sT0}, s{sWAVE}, 1\nv_xor_b32 v22, s{sT0}, v22\nv_lshlrev_b32 v22, 5, v22")
    A("v_lshl_add_u32 v20, v20, 3, v21\nv_lshl_add_u32 v20, v20, 8, v22\nv_and_b32 v21, 3, v0\nv_lshl_add_u32 v20, v21, 3, v20")
    A(f"v_xor_b32 v21, 32, v20\nv_add_u32 v22, {7*8192}, v20\nv_add_u32 v23, {7*8192}, v21")
    for kb in range(14):
        for cb in range(2):
            for hf in range(2):
                d = radd(WQ[which], (kb * 2 + cb) * 4 + hf * 2)
                A(f"ds_read_b64_tr_b16 {vr(d, 2)}, v{20 + cb + (0 if kb < 7 else 2)} offset:{(kb%7)*8192+hf*1024}")
        if kb % 3 == 2:
            A("s_waitcnt lgkmcnt(3)")
    A("s_waitcnt lgkmcnt(0)")


def sel_cb(dst):
    A(f"v_mov_b32 v{dst}, v{cACC}\ns_mov_b32 exec_lo, 0xffff0000\ns_mov_b32 exec_hi, 0xffff0000\nv_mov_b32 v{dst}, v{cACC+4}\ns_mov_b64 exec, -1")


def colsum(which):
    for r in range(4):
        A(f"v_mov_b32 v{20+r}, 0x3f803f80")
    A("s_nop 1")
    for kb in range(14):
        for cb in range(2):
            acc = cACC + 4 * cb
            A(f"v_mfma_f32_16x16x32_bf16 {vr(acc)}, v[20:23], {vr(radd(WQ[which], (kb*2+cb)*4))}, {'0' if kb == 0 else vr(acc)}")
    A("s_nop 7")
    sel_cb(cCS[which])


def wo_base():
    A(f"s_lshr_b32 s{sT0}, s{sCH}, 1\ns_lshl_b32 s{sT0}, s{sT0}, 2\ns_add_u32 s{sT0}, s{sT0}, s{sWAVE}\ns_mul_i32 s{sT0}, s{sT0}, {64*896}")
    A(f"s_and_b32 s{sT1}, s{sCH}, 1\ns_lshl_b32 s{sT1}, s{sT1}, 9\ns_add_u32 s{sT0}, s{sT0}, s{sT1}")


def wo0_loads(which, ts):
    s_ = SRD_WOA if which == 0 else SRD_WOB
    wo_base()
    for t in ts:
        A(f"s_add_u32 s{sT1}, s{sT0}, {4*t*896}")
        A(f"buffer_load_dwordx4 {vr(radd(WO0[which], 4*t))}, v{cWo}, {srd(s_)}, s{sT1} offen nt")


def wo1_addr():
    A(f"s_and_b32 s{sT1}, s{sCH}, 1\ns_lshl_b32 s{sT1}, s{sT1}, 7\ns_not_b32 s{sT1}, s{sT1}")
    A(f"v_lshlrev_b32 v{cWo1}, 4, v0\nv_and_b32 v{cWo1}, 0xf0, v{cWo1}\nv_sub_u32 v{cT}, v{cWo}, v{cWo1}\nv_and_b32 v{cWo1}, s{sT1}, v{cWo1}\nv_add_u32 v{cWo1}, v{cWo1}, v{cT}")


def wo1_regs(ts):
    wo1_addr()
    wo_base()
    for t in ts:
        A(f"s_add_u32 s{sT1}, s{sT0}, {4*t*896+256}")
        A(f"buffer_load_dwordx4 {vr(wo1(t))}, v{cWo1}, {srd(SRD_WOA)}, s{sT1} offen nt")


def wo1_dma(which):
    s_ = SRD_WOA if which == 0 else SRD_WOB
    wo_base()
    A(f"s_lshl_b32 s{sT2}, s{sWAVE}, 14\ns_add_u32 s{sT2}, s{sT2}, {which*65536}")
    for t in range(16):
        A(f"s_add_u32 s{sT1}, s{sT0}, {4*t*896+256}\ns_add_u32 s{sT3}, s{sT2}, {t*1024}\ns_mov_b32 m0, s{sT3}\ns_nop 0")
        A(f"buffer_load_dwordx4 v{cWo1}, {srd(s_)}, s{sT1} offen nt lds")


def lstamp(base):
    if PROFILE:
        for l in range(4):
            lb = A.label("ps")
            A(f"s_cmp_eq_u32 s{sLAYER}, {l}\ns_cbranch_scc0 {lb}")
            stamp(base + 4 * l)
            A(f"{lb}:")


stamp(0)
if int(os.environ.get("PRET", "0")):
    A(f"v_lshlrev_b32 v26, 16, v0\ns_cmp_eq_u32 s{sWAVE}, 1\ns_cbranch_scc0 L_pt2")
    A(f"buffer_load_dword v27, v26, {srd(SRD_WQB)}, 0 offen nt")
    wo_base()
    A(f"s_mov_b64 exec, 0xf\nbuffer_load_dword v32, v26, {srd(SRD_WOA)}, s{sT0} offen nt\nbuffer_load_dword v33, v26, {srd(SRD_WOB)}, s{sT0} offen nt\ns_mov_b64 exec, -1")
    A("L_pt2:")
A(f"v_lshlrev_b32 v{cL16}, 4, v0")
A(f"s_lshl_b32 s{sYST}, s{sCH}, 10\ns_add_u32 s{sYST}, s{sYST}, {WS_Y}")
A(f"s_lshl_b32 s{sQST}, s{sCH}, 8")
A("v_mov_b32 v28, -1\nv_mov_b32 v29, -1\nv_mov_b32 v30, -1\nv_mov_b32 v31, -1")
A(f"s_lshl_b32 s{sT1}, s{sWAVE}, 13\ns_add_u32 s{sT1}, s{sT1}, s{sQST}")
A(f"s_cmp_eq_u32 s{sWAVE}, 0\ns_cbranch_scc0 L_ch_cl1")
A(f"buffer_store_dwordx4 v[28:31], v{cL16}, {srd(SRD_WS)}, s{sYST} offen sc1")
A("L_ch_cl1:\ns_mov_b64 exec, 0xffff")
A(f"buffer_store_dwordx4 v[28:31], v{cL16}, {srd(SRD_WS)}, s{sT1} offen sc1")
A("s_mov_b64 exec, -1")
wq_dma(0)
A(f"v_mul_u32_u24 v{cPOg}, 7168, v20\nv_add_u32 v{cPOg}, v{cPOg}, v22\ns_lshl_b32 s{sT0}, s{sWAVE}, 8\nv_add_u32 v{cPOg}, s{sT0}, v{cPOg}")
A(f"v_min_u32 v23, 6, v21\nv_mul_u32_u24 v24, 7, v20\nv_add_u32 v23, v23, v24\nv_lshlrev_b32 v{cMLg}, 7, v23")
A(f"v_cmp_gt_u32 vcc, 7, v21\ns_nop 1\nv_cndmask_b32 v{cVAL}, 0, 1.0, vcc")
A(f"v_cmp_gt_u32 vcc, 56, v0\ns_nop 1\nv_cndmask_b32 v{cV56}, 0, 1.0, vcc")
A(f"v_lshrrev_b32 v23, 5, v0\nv_lshlrev_b32 v23, 9, v23\nv_lshl_add_u32 v23, v21, 5, v23\nv_and_b32 v24, 1, v20\nv_lshl_add_u32 v{cYst}, v24, 4, v23")
A(f"s_lshl_b32 s{sT0}, s{sWAVE}, 6\nv_lshl_add_u32 v{cQst}, v0, 1, s{sT0}")
A(f"v_add_u32 v{cSCR}, {CSCR}, v{cL16}")
A(f"v_lshlrev_b32 v{cXa}, 4, v20\nv_add_u32 v{cXa}, {XB}, v{cXa}")
A(f"v_min_u32 v{cXs}, 55, v0\nv_lshlrev_b32 v{cXs}, 4, v{cXs}\nv_add_u32 v{cXs}, {XB}, v{cXs}")
A(f"s_lshr_b32 s{sT0}, s{sCH}, 1\ns_mul_i32 s{sPOOFF}, s{sT0}, 28672\ns_add_u32 s{sPOOFF}, s{sPOOFF}, {WS_PO}")
A(f"s_lshl_b32 s{sMLOFF}, s{sT0}, 12\ns_add_u32 s{sMLOFF}, s{sMLOFF}, {WS_ML}")
A(f"s_mul_i32 s{sYOFF}, s{sWAVE}, 448\ns_add_u32 s{sYOFF}, s{sYOFF}, {WS_Y}")
emit_masks(0, MASK, 20, 21)
wo0_loads(0, range(8))
A("s_waitcnt vmcnt(8)")
mk_srd(SRD_OUT, sOUTP, 896)
A(f"ds_write_b32 v{cXw}, v{cX}")
A(f"v_and_b32 v{cX+1}, 0xffff0000, v{cX}\nv_lshlrev_b32 v{cX}, 16, v{cX}")
A("s_waitcnt lgkmcnt(0)\ns_barrier")
A(f"s_cmp_eq_u32 s{sWAVE}, 3\ns_cbranch_scc0 L_ch_noflag")
A(f"s_lshl_b32 s{sT0}, s{sG}, 5\ns_and_b32 s{sT1}, s{sCH}, 3\ns_add_u32 s{sT0}, s{sT0}, s{sT1}")
A(f"v_mov_b32 v28, s{sT0}\nv_mov_b32 v29, s{sID}\ns_mov_b64 exec, 1")
A(f"buffer_store_byte v29, v28, {srd(SRD_DBG)}, 0 offen sc1\ns_mov_b64 exec, -1")
A("L_ch_noflag:")
stamp(1)
wq_tr(0)
colsum(0)
A(f"v_and_b32 v{cT}, 7, v0\nv_lshlrev_b32 v{cT}, 2, v{cT}\ns_lshl_b32 s{sT2}, s{sG}, 5")
A("L_ch_id:")
spin_guard("L_ch_id_ok")
A(f"buffer_load_dword v{cG}, v{cT}, {srd(SRD_DBG)}, s{sT2} offen sc1\ns_waitcnt vmcnt(0)")
A(f"v_and_b32 v{cG+1}, 0x0f0f0f0f, v{cG}\nv_cmp_ne_u32 s[{sT0}:{sT1}], s{sID}, v{cG+1}")
A(f"v_add_u32 v{cG+1}, 0x7f7f7f7f, v{cG}\nv_and_b32 v{cG+1}, 0x80808080, v{cG+1}\nv_cmp_ne_u32 vcc, 0x80808080, v{cG+1}")
A(f"s_cmp_eq_u64 s[{sT0}:{sT1}], 0\ns_cselect_b32 s{sMODE}, 1, 0")
A("s_cmp_lg_u64 vcc, 0\ns_cbranch_scc1 L_ch_id")
A("L_ch_id_ok:")
A("v_mov_b32 v28, -1\nv_mov_b32 v29, -1\nv_mov_b32 v30, -1\nv_mov_b32 v31, -1")
A(f"s_mul_i32 s{sT1}, s{sWAVE}, 7168\ns_add_u32 s{sT1}, s{sT1}, s{sPOOFF}\ns_add_u32 s{sT2}, s{sT1}, 4096")
A(f"s_mul_i32 s{sT0}, s{sWAVE}, {7*128}\ns_add_u32 s{sT0}, s{sT0}, s{sMLOFF}\nv_lshlrev_b32 v{cT}, 7, v0")
A(f"s_cmp_eq_u32 s{sMODE}, 1\ns_cbranch_scc0 L_ch_clf")
for fl in ("", " sc1"):
    if fl:
        A("L_ch_clf:")
    for i in range(7):
        A(f"buffer_store_dwordx4 v[28:31], v{cL16}, {srd(SRD_WS)}, s{sT1 if i < 4 else sT2} offen offset:{1024*(i%4)}{fl}")
    A(f"s_mov_b64 exec, 0x7f\nbuffer_store_dwordx2 v[28:29], v{cT}, {srd(SRD_WS)}, s{sT0} offen{fl}\ns_mov_b64 exec, -1")
    if not fl:
        A("s_branch L_ch_cld")
A("L_ch_cld:")
A("s_waitcnt vmcnt(0)\ns_barrier")
wo0_loads(0, range(8, 16))
A("s_branch L_ch_qp")


def bf16r(dst, src):
    A(f"v_cvt_pk_bf16_f32 v{dst}, 0, v{src}")


A("L_ch_stageA:")
A(f"s_and_b32 s{sT0}, s{sLAYER}, 1\ns_lshl_b32 s{sT0}, s{sT0}, 16\ns_lshl_b32 s{sT1}, s{sWAVE}, 14\ns_add_u32 s{sT0}, s{sT0}, s{sT1}")
A(f"v_add_u32 v{cT}, s{sT0}, v{cL16}")
for t in range(16):
    A(f"ds_read_b128 {vr(wo1(t))}, v{cT} offset:{t*1024}")
    if t == 7:
        A("s_waitcnt lgkmcnt(0)")
for i in range(8):
    A(f"s_add_u32 s{sYG+i}, s{sYOFF}, {4096*i}")
A("s_waitcnt lgkmcnt(0)")
A(f"s_cmp_eq_u32 s{sWAVE}, 0\ns_cbranch_scc0 L_sa_nc\ns_cmp_eq_u32 s{sLAYER}, 3\ns_cbranch_scc1 L_sa_nc")
A(f"v_mov_b32 v28, -1\nv_mov_b32 v29, -1\nv_mov_b32 v30, -1\nv_mov_b32 v31, -1\ns_add_u32 s{sT0}, s{sYST}, 32768")
A(f"buffer_store_dwordx4 v[28:31], v{cL16}, {srd(SRD_WS)}, s{sT0} offen sc1")
A("L_sa_nc:")
A(f"s_add_u32 s{sT0}, s{sPOOFF}, 4096")
cML = cG + 28
A("L_sa_poll:")
spin_guard("L_sa_go")
A(f"buffer_load_dwordx2 v[{cML}:{cML+1}], v{cMLg}, {srd(SRD_WS)}, s{sMLOFF} offen sc1")
for u in range(7):
    so = sPOOFF if u < 4 else sT0
    A(f"buffer_load_dwordx4 {vr(cG+4*u)}, v{cPOg}, {srd(SRD_WS)}, s{so} offen offset:{(u%4)*1024} sc1")
A("s_waitcnt vmcnt(0)")
sentinel_check(range(cG, cG + 30), cT, "L_sa_poll")
A("L_sa_go:")
lstamp(3)
mM, mW, mL = cN, cN + 1, cN + 2
A(f"v_max_f32_dpp v{mM}, v{cML}, v{cML} quad_perm:[1,0,3,2] {DPPF}")
for ctl in ("quad_perm:[2,3,0,1]", "row_half_mirror"):
    A(f"s_nop 1\nv_max_f32_dpp v{mM}, v{mM}, v{mM} {ctl} {DPPF}")
xrow_reduce("v_max_f32", mM, cT)
A(f"v_sub_f32 v{mW}, v{cML}, v{mM}\nv_exp_f32 v{mW}, v{mW}\nv_mul_f32 v{mL}, v{cML+1}, v{cVAL}\nv_mul_f32 v{mL}, v{mL}, v{mW}")
oa = cN + 4
red_steps = [f"v_add_f32_dpp v{mL}, v{mL}, v{mL} {c} {DPPF}" for c in
             ("quad_perm:[1,0,3,2]", "quad_perm:[2,3,0,1]", "row_half_mirror", "row_mirror")]
red_steps[3] += f"\nv_mov_b32 v{cT}, v{mL}"
red_steps.append(f"v_permlane32_swap_b32 v{mL}, v{cT}\nv_add_f32 v{mL}, v{mL}, v{cT}\nv_mov_b32 v{cT}, v{mL}")
red_steps.append(f"v_permlane16_swap_b32 v{mL}, v{cT}\nv_add_f32 v{mL}, v{mL}, v{cT}\nv_rcp_f32 v{mL}, v{mL}")
A("s_nop 0")
for u in range(7):
    for r in range(4):
        op = "v_mul_f32_dpp" if u == 0 else "v_fmac_f32_dpp"
        A(f"{op} v{oa+r}, v{mW}, v{cG+4*u+r} row_newbcast:{u} {DPPF}")
    if u < 6:
        A(red_steps[u])
A("s_nop 0")
A(f"v_permlane32_swap_b32 v{oa}, v{oa+2}\nv_permlane32_swap_b32 v{oa+1}, v{oa+3}")
A(f"v_add_f32 v{oa}, v{oa}, v{oa+2}\nv_add_f32 v{oa+1}, v{oa+1}, v{oa+3}\ns_nop 1")
A(f"v_permlane16_swap_b32 v{oa}, v{oa+1}\nv_add_f32 v{oa}, v{oa}, v{oa+1}")
A(f"v_mul_f32 v{oa}, v{oa}, v{mL}\nv_cvt_pk_bf16_f32 v{oa}, v{oa}, v{oa}")
A(f"s_and_b32 s{sT0}, s{sLAYER}, 1\ns_cmp_eq_u32 s{sT0}, 1\ns_cbranch_scc1 L_sa_B")
for which in range(2):
    if which == 1:
        A("L_sa_B:")

    def gmh(t, hf):
        for r in (0, 1) if hf == 0 else (2, 3):
            A(f"v_and_b32_dpp v{cTT[t&1]+r}, v{oa}, v{MASK+r} row_newbcast:{t} {DPPF}")
    gmh(0, 0)
    gmh(0, 1)
    for t in range(16):
        if t + 1 < 16:
            gmh(t + 1, 0)
        else:
            A("s_nop 0")
        A(f"v_mfma_f32_16x16x32_bf16 {vr(cACC)}, {vr(cTT[t&1])}, {vr(radd(WO0[which],4*t))}, {'0' if t == 0 else vr(cACC)}")
        if t + 1 < 16:
            gmh(t + 1, 1)
        A(f"v_mfma_f32_16x16x32_bf16 {vr(cACC+4)}, {vr(cTT[t&1])}, {vr(wo1(t))}, {'0' if t == 0 else vr(cACC+4)}")
    if which == 0:
        A("s_branch L_sa_red")
A("L_sa_red:")
A(f"s_lshl_b32 s{sT0}, s{sWAVE}, 10\nv_add_u32 v{cT}, s{sT0}, v{cSCR}")
A("s_mov_b32 exec_lo, 0\ns_nop 5")
for r in range(4):
    A(f"v_mov_b32 v{cACC+r}, v{cACC+4+r}")
A("s_mov_b32 exec_lo, -1")
A(f"s_cmp_eq_u32 s{sWAVE}, 0\ns_cbranch_scc1 L_sa_w0")
A(f"ds_write_b128 v{cT}, {vr(cACC)}\ns_waitcnt lgkmcnt(0)\ns_barrier")
H2S = int(os.environ.get("H2S", "8"))
A(f"s_sleep {H2S+2}\ns_branch L_sb")
A("L_sa_w0:\ns_barrier")
for s_ in range(1, 4):
    A(f"ds_read_b128 {vr(cG+4*s_)}, v{cSCR} offset:{1024*s_}")
for s_ in range(1, 4):
    A(f"s_waitcnt lgkmcnt({3-s_})")
    for r in range(0, 4, 2):
        A(f"v_pk_add_f32 v[{cACC+r}:{cACC+r+1}], v[{cACC+r}:{cACC+r+1}], v[{cG+4*s_+r}:{cG+4*s_+r+1}]")
for r in range(4):
    A(f"v_min_u32 v{cACC+r}, -2, v{cACC+r}")
A(f"buffer_store_dwordx4 {vr(cACC)}, v{cYst}, {srd(SRD_WS)}, s{sYST} offen sc1")
lstamp(4)
if H2S:
    A(f"s_sleep {H2S}")
A("L_sb:")
A(f"s_cmp_eq_u32 s{sLAYER}, 3\ns_cbranch_scc0 L_sb_go0\ns_cmp_eq_u32 s{sCH}, 0\ns_cbranch_scc0 L_fin\nL_sb_go0:")


def yload(i):
    return f"buffer_load_dwordx4 {vr(cG+4*i)}, v{cYg}, {srd(SRD_WS)}, s{sYG+i} offen sc1"


for i in range(8):
    A(yload(i))
A("L_sb_poll:")
for i in range(4):
    A(f"s_waitcnt vmcnt({6-2*i})")
    for r in range(0, 4, 2):
        A(f"v_pk_add_f32 v[{cN+4*i+r}:{cN+4*i+r+1}], v[{cG+8*i+r}:{cG+8*i+r+1}], v[{cG+8*i+4+r}:{cG+8*i+4+r+1}]")
    if i & 1:
        for r in range(0, 4, 2):
            A(f"v_pk_add_f32 v[{cN+4*(i-1)+r}:{cN+4*(i-1)+r+1}], v[{cN+4*(i-1)+r}:{cN+4*(i-1)+r+1}], v[{cN+4*i+r}:{cN+4*i+r+1}]")
for r in range(0, 4, 2):
    A(f"v_pk_add_f32 v[{cN+r}:{cN+r+1}], v[{cN+r}:{cN+r+1}], v[{cN+8+r}:{cN+8+r+1}]")
A("s_nop 1")
A(f"v_permlane32_swap_b32 v{cN}, v{cN+2}\nv_permlane32_swap_b32 v{cN+1}, v{cN+3}")
A(f"v_pk_add_f32 v[{cN}:{cN+1}], v[{cN}:{cN+1}], v[{cN+2}:{cN+3}]")
A(f"v_cmp_u_f32 vcc, v{cN}, v{cN+1}")
bf16r(cN, cN)
bf16r(cN + 1, cN + 1)
A("s_cmp_lg_u64 vcc, 0\ns_cbranch_scc0 L_sb_go")
spin_guard("L_sb_go")
A(f"s_mov_b32 s{sT0}, 0")
for i in range(8):
    sk = A.label("ysk")
    g_ = cG + 4 * i
    A(f"v_max3_u32 v{cT}, v{g_}, v{g_+1}, v{g_+2}\nv_max_u32 v{cT}, v{cT}, v{g_+3}\nv_cmp_eq_u32 vcc, -1, v{cT}\ns_nop 0\ns_cmp_lg_u64 vcc, 0\ns_cbranch_scc0 {sk}")
    A(yload(i))
    A(f"s_mov_b32 s{sT0}, 1\n{sk}:")
A(f"s_waitcnt vmcnt(0)\ns_cmp_eq_u32 s{sT0}, 1\ns_cbranch_scc1 L_sb_poll")
A("L_sb_go:")
lstamp(5)
A(f"v_pk_add_f32 v[{cX}:{cX+1}], v[{cX}:{cX+1}], v[{cN}:{cN+1}]")
A(f"v_cvt_pk_bf16_f32 v{cN}, v{cX}, v{cX+1}")
A(f"s_cmp_eq_u32 s{sLAYER}, 3\ns_cbranch_scc1 L_ch_out")
A(f"ds_write_b32 v{cXw}, v{cN}")
A(f"v_and_b32 v{cX+1}, 0xffff0000, v{cN}\nv_lshlrev_b32 v{cX}, 16, v{cN}")
A(f"s_add_u32 s{sLAYER}, s{sLAYER}, 1")
A(f"s_add_u32 s{sPOOFF}, s{sPOOFF}, {PO_L}\ns_add_u32 s{sMLOFF}, s{sMLOFF}, {ML_L}\ns_add_u32 s{sYOFF}, s{sYOFF}, 32768\ns_add_u32 s{sYST}, s{sYST}, 32768\ns_add_u32 s{sQST}, s{sQST}, 8192")
A("s_waitcnt lgkmcnt(0)\ns_barrier")
A("L_ch_qp:")
SV = 20
s1, s2, t0, t1 = 24, 25, 26, 27
A(f"ds_read_b128 {vr(cXA)}, v{cXa}\nds_read_b128 {vr(SV)}, v{cXs}")
for kb in range(1, 14):
    A(f"ds_read_b128 {vr(cXA+4*kb)}, v{cXa} offset:{64*kb}")
st = []
st += [f"v_readfirstlane_b32 s{sT0}, v{cXA}", f"s_lshl_b32 s{sT0}, s{sT0}, 16"]
for r in range(4):
    st += [f"v_lshlrev_b32 v{t0}, 16, v{SV+r}", f"v_and_b32 v{t1}, 0xffff0000, v{SV+r}",
           f"v_subrev_f32 v{t0}, s{sT0}, v{t0}", f"v_subrev_f32 v{t1}, s{sT0}, v{t1}"]
    if r == 0:
        st += [f"v_add_f32 v{s1}, v{t0}, v{t1}", f"v_mul_f32 v{s2}, v{t0}, v{t0}", f"v_fmac_f32 v{s2}, v{t1}, v{t1}"]
    else:
        st += [f"v_add_f32 v{s1}, v{s1}, v{t0}", f"v_fmac_f32 v{s2}, v{t0}, v{t0}", f"v_add_f32 v{s1}, v{s1}, v{t1}", f"v_fmac_f32 v{s2}, v{t1}, v{t1}"]
st += [f"v_mul_f32 v{s1}, v{s1}, v{cV56}", f"v_mul_f32 v{s2}, v{s2}, v{cV56}"]
for ctl in ("quad_perm:[1,0,3,2]", "quad_perm:[2,3,0,1]", "row_half_mirror", "row_mirror"):
    st += ["s_nop 0", f"v_add_f32_dpp v{s1}, v{s1}, v{s1} {ctl} {DPPF}", f"v_add_f32_dpp v{s2}, v{s2}, v{s2} {ctl} {DPPF}"]
for sw in ("v_permlane32_swap_b32", "v_permlane16_swap_b32"):
    st += [f"v_mov_b32 v{t0}, v{s1}", f"v_mov_b32 v{t1}, v{s2}", "s_nop 1", f"{sw} v{s1}, v{t0}", f"{sw} v{s2}, v{t1}",
           f"v_add_f32 v{s1}, v{s1}, v{t0}", f"v_add_f32 v{s2}, v{s2}, v{t1}"]
st += [f"v_mul_f32 v{s1}, {f2u(1.0/448.0)}, v{s1}", f"v_mul_f32 v{s2}, {f2u(1.0/448.0)}, v{s2}",
       f"v_fma_f32 v{s2}, -v{s1}, v{s1}, v{s2}", f"v_max_f32 v{s2}, 0, v{s2}", f"v_add_f32 v{s1}, s{sT0}, v{s1}",
       f"v_cvt_pk_bf16_f32 v{s2}, 0, v{s2}", f"v_cvt_pk_bf16_f32 v{s1}, 0, v{s1}",
       f"v_add_f32 v{s2}, {f2u(1e-5)}, v{s2}", f"v_cvt_pk_bf16_f32 v{s2}, 0, v{s2}", f"v_sqrt_f32 v{s2}, v{s2}", "s_nop 0",
       f"v_cvt_pk_bf16_f32 v{s2}, 0, v{s2}", f"v_rcp_f32 v{s2}, v{s2}"]
A(f"s_and_b32 s{sT1}, s{sLAYER}, 1\ns_cmp_eq_u32 s{sT1}, 1\ns_cbranch_scc1 L_qp_B")
for which in range(2):
    if which == 1:
        A("L_qp_B:")
    sp_ = 0
    nm = 0
    for kb in range(14):
        A(f"s_waitcnt lgkmcnt({13 if kb == 0 else 13-kb})")
        for cb in range(2):
            acc = cACC + 4 * cb
            A(f"v_mfma_f32_16x16x32_bf16 {vr(acc)}, {vr(cXA+4*kb)}, {vr(radd(WQ[which], (kb*2+cb)*4))}, {'0' if kb == 0 else vr(acc)}")
            nm += 1
            upto = min(len(st), (nm * len(st) + 26) // 27)
            while sp_ < upto:
                A(st[sp_])
                sp_ += 1
    A(f"v_mul_f32 v{s1}, v{s1}, v{cCS[which]}")
    if which == 0:
        A("s_branch L_qp_red")
A("L_qp_red:")
A("s_nop 5")
sel_cb(t0)
A(f"v_sub_f32 v{t0}, v{t0}, v{s1}\nv_mul_f32 v{t0}, v{t0}, v{s2}\ns_nop 1")
A(f"v_mov_b32_dpp v{t1}, v{t0} quad_perm:[1,1,3,3] {DPPF}")
A(f"v_cvt_pk_bf16_f32 v{t0}, v{t0}, v{t1}\nv_min_u32 v{t0}, -2, v{t0}")
A("s_mov_b32 exec_lo, 0x55555555\ns_mov_b32 exec_hi, 0")
A(f"s_cmp_eq_u32 s{sMODE}, 1\ns_cbranch_scc0 L_qp_far")
A(f"buffer_store_dword v{t0}, v{cQst}, {srd(SRD_WS)}, s{sQST} offen\ns_branch L_qp_st")
A("L_qp_far:")
A(f"buffer_store_dword v{t0}, v{cQst}, {srd(SRD_WS)}, s{sQST} offen sc1")
A("L_qp_st:")
A("s_mov_b64 exec, -1")
lstamp(2)
A(f"s_cmp_eq_u32 s{sLAYER}, 0\ns_cbranch_scc0 L_ch_stageA")
A("s_barrier")
wq_dma(1)
wo1_regs(range(16))
A("s_waitcnt vmcnt(16)\ns_barrier")
wq_tr(1)
A("s_barrier")
wo0_loads(1, range(16))
wo1_dma(1)
colsum(1)
A(f"s_waitcnt vmcnt(32)\ns_lshl_b32 s{sT1}, s{sWAVE}, 14\nv_add_u32 v{cT}, s{sT1}, v{cL16}")
for t in range(16):
    A(f"ds_write_b128 v{cT}, {vr(wo1(t))} offset:{t*1024}")
A("s_waitcnt lgkmcnt(0)")
if os.environ.get("EXP", ""):
    A("s_waitcnt vmcnt(0)")
    stamp(3)
    A("s_branch L_fin")
A("L_ch_cnt:")
spin_guard("L_ch_cnt_ok")
A(f"v_lshlrev_b32 v{cT}, 2, v0")
A(f"buffer_load_dword v{cG}, v{cT}, {srd(SRD_DBG)}, 0 offen sc1\ns_waitcnt vmcnt(0)")
A(f"v_add_u32 v{cG+1}, 0x7f7f7f7f, v{cG}\nv_and_b32 v{cG+1}, 0x80808080, v{cG+1}\nv_cmp_ne_u32 vcc, 0x80808080, v{cG+1}\ns_nop 0")
A("s_cmp_lg_u64 vcc, 0\ns_cbranch_scc1 L_ch_cnt")
A("L_ch_cnt_ok:")
stamp(18)
A("L_ch_pre:")
spin_guard("L_ch_stageA")
A("s_sleep 16\ns_mov_b64 exec, 1")
A(f"buffer_load_dword v{cML}, v{cMLg}, {srd(SRD_WS)}, s{sMLOFF} offen sc1\ns_waitcnt vmcnt(0)")
A(f"v_readfirstlane_b32 s{sT0}, v{cML}\ns_mov_b64 exec, -1\ns_cmp_eq_u32 s{sT0}, -1\ns_cbranch_scc1 L_ch_pre")
A("s_branch L_ch_stageA")
A("L_ch_out:")
A(f"v_subrev_u32 v{cT}, {XB}, v{cXw}")
A(f"buffer_store_dword v{cN}, v{cT}, {srd(SRD_OUT)}, 0 offen")
stamp(19)
if os.environ.get("DIAG"):
    da, db = [int(x) for x in os.environ["DIAG"].split(",")]
    ra = 100 if da == 99 else sSTAMP + 2 * da
    A(f"s_sub_u32 s{sT0}, s{sSTAMP+2*db}, s{ra}\ns_lshl_b32 s{sT0}, s{sT0}, 2\ns_min_u32 s{sT0}, s{sT0}, 100000\ns_add_u32 s{sT0}, s{sT0}, s{sSTAMP+38}")
    A(f"L_diag:\ns_memrealtime s[{sT2}:{sT3}]\ns_waitcnt lgkmcnt(0)\ns_sub_u32 s{sT1}, s{sT2}, s{sT0}\ns_cmp_lt_i32 s{sT1}, 0\ns_cbranch_scc1 L_diag")

A("L_fin:")
if PROFILE:
    A(f"s_mul_i32 s{sT0}, s2, 640\ns_mul_i32 s{sT1}, s{sWAVE}, 160\ns_add_u32 s{sT0}, s{sT0}, s{sT1}\ns_add_u32 s{sT0}, s{sT0}, {WS_STAMP}")
    A("s_mov_b64 exec, 1\nv_mov_b32 v1, 0")
    for i in range(10):
        for r in range(4):
            A(f"v_mov_b32 v{4+r}, s{sSTAMP+4*i+r}")
        A(f"buffer_store_dwordx4 v[4:7], v1, {srd(SRD_WS)}, s{sT0} offen offset:{16*i}\ns_nop 1")
if PROFILE:
    pass
A("L_end:")
A("s_endpgm")

for l in A.L:
    OUT.append(l if l.endswith(":") else "    " + l)
OUT.append('.section .rodata,"a"')
OUT.append(".p2align 6")
OUT.append(f".amdhsa_kernel {NAME}_kernel")
OUT.append("""  .amdhsa_next_free_vgpr 512
  .amdhsa_next_free_sgpr 102
  .amdhsa_accum_offset 256
  .amdhsa_group_segment_fixed_size 0
  .amdhsa_kernarg_size 104
  .amdhsa_user_sgpr_count 2
  .amdhsa_user_sgpr_kernarg_segment_ptr 1
  .amdhsa_system_sgpr_workgroup_id_x 1
  .amdhsa_float_denorm_mode_32 3
.end_amdhsa_kernel""")
out = sys.argv[1] if len(sys.argv) > 1 else f"cdna_kernels/{NAME}.s"
open(out, "w").write("\n".join(OUT) + "\n")
print("wrote", out, len(A.L), "lines")
```

```python
import sys, os, struct

PROFILE = int(os.environ.get("PROFILE", "0"))
NAME = "interleave_layers__gqa_block_cached__sliding_block_cached__decode"

WS_Q = 0
WS_Y = 49152
WS_PO = 196608
WS_ML = 196608 + 4 * 458752
ML_L = 65536
PO_L = 16 * 28 * 1024
WS_STAMP = 4 << 20
WS_SIZE = 283117312
SPIN_MAX = 1 << 18

CSCALE = struct.unpack("<I", struct.pack("<f", 1.4426950408889634 / 16.0))[0]
NEG_INF = 0xFF800000


def f2u(x):
    return struct.unpack("<I", struct.pack("<f", x))[0]


class Asm:
    def __init__(self):
        self.L = []
        self.nlabel = 0

    def __call__(self, s):
        for line in s.split("\n"):
            line = line.strip()
            if line:
                self.L.append(line)

    def label(self, base):
        self.nlabel += 1
        return f"L_{base}_{self.nlabel}"


A = Asm()


def vr(r, n=4):
    if isinstance(r, int):
        r = ("v", r)
    k, i = r
    return f"{k}[{i}:{i+n-1}]" if n > 1 else f"{k}{i}"


def radd(r, d):
    if isinstance(r, int):
        return r + d
    return (r[0], r[1] + d)


DPPF = "row_mask:0xf bank_mask:0xf"

sWAVE = 3
SRD_KA, SRD_VA, SRD_KB, SRD_VB, SRD_WS, SRD_DBG = 4, 8, 12, 16, 20, 24
SRD_WQA, SRD_WOA, SRD_WQB, SRD_WOB = 4, 8, 12, 16
SRD_X, SRD_OUT = 28, 80
sOFFA, sOFFA36, sOFFB, sOFFB9 = 28, 29, 30, 31
sBIASA, sBIASB = 32, 33
sC = 36
sLDSW = 37
sT0, sT1, sT2, sT3 = 38, 39, 40, 41
sLAYER = 42
sSPIN = 43
sQOFF, sPOOFF, sMLOFF, sYOFF = 44, 45, 46, 47
sG, sSP = 48, 49
sYST, sQST = 50, 51
sOFFB8 = 50
sCL = 47
sID, sMODE = 34, 35
KARG = 52
sSTAMP = 60
SRD_OUT = 28
sOUTP = 32

nstamp = [0]


def srd(r):
    return f"s[{r}:{r+3}]"


def stamp(idx):
    if PROFILE:
        assert idx < 20
        if idx == 0:
            for i in range(1, 20):
                A(f"s_mov_b64 s[{sSTAMP+2*i}:{sSTAMP+2*i+1}], 0")
        A(f"s_memrealtime s[{sSTAMP+2*idx}:{sSTAMP+2*idx+1}]\ns_waitcnt lgkmcnt(0)")


def mk_srd(dst, ptr, size):
    A(f"s_mov_b32 s{dst}, s{ptr}\ns_and_b32 s{dst+1}, s{ptr+1}, 0xffff\ns_mov_b32 s{dst+2}, {size}\ns_mov_b32 s{dst+3}, 0x20000")


def emit_masks(vlane, m0, t0, t1):
    A(f"v_and_b32 v{t0}, 1, v{vlane}")
    A(f"v_lshlrev_b32 v{t0}, 4, v{t0}")
    A(f"v_mov_b32 v{t1}, 0xffff")
    A(f"v_lshlrev_b32 v{t0}, v{t0}, v{t1}")
    A(f"v_bfe_u32 v{t1}, v{vlane}, 1, 2")
    for r in range(4):
        A(f"v_cmp_eq_u32 vcc, {r}, v{t1}")
        A("s_nop 1")
        A(f"v_cndmask_b32 v{m0+r}, 0, v{t0}, vcc")


def xrow_reduce(op, v, t):
    A(f"v_mov_b32 v{t}, v{v}\ns_nop 1\nv_permlane32_swap_b32 v{v}, v{t}\n{op} v{v}, v{v}, v{t}")
    A(f"v_mov_b32 v{t}, v{v}\ns_nop 1\nv_permlane16_swap_b32 v{v}, v{t}\n{op} v{v}, v{v}, v{t}")


def sentinel_check(regs, t, retry_label):
    regs = list(regs)
    A(f"v_max3_u32 v{t}, v{regs[0]}, v{regs[1]}, v{regs[2]}")
    i = 3
    while i + 1 < len(regs):
        A(f"v_max3_u32 v{t}, v{t}, v{regs[i]}, v{regs[i+1]}")
        i += 2
    if i < len(regs):
        A(f"v_max_u32 v{t}, v{t}, v{regs[i]}")
    A(f"v_cmp_eq_u32 vcc, -1, v{t}")
    A("s_nop 0")
    A(f"s_cmp_lg_u64 vcc, 0\ns_cbranch_scc1 {retry_label}")


def spin_guard(giveup_label):
    A(f"s_sub_u32 s{sSPIN}, s{sSPIN}, 1\ns_cmp_eq_u32 s{sSPIN}, 0\ns_cbranch_scc1 {giveup_label}")
    if os.environ.get("PSLEEP"):
        A(f"s_sleep {os.environ['PSLEEP']}")


hdr = open(f"cdna_kernels/{NAME}.s.ref").read().split("\n")
head = [l for l in hdr if l.startswith(";") and "@launch" not in l]
OUT = list(head)
OUT.append("; @launch grid=(256,1,1) block=(256,1,1) lds=163840")
OUT.append('.amdgcn_target "amdgcn-amd-amdhsa--gfx950"')
OUT.append(".text")
OUT.append(f".globl {NAME}_kernel")
OUT.append(".p2align 8")
OUT.append(f".type {NAME}_kernel,@function")
OUT.append(f"{NAME}_kernel:")

if PROFILE:
    A("s_memrealtime s[100:101]")
A("s_cmp_ge_u32 s2, 256\ns_cbranch_scc1 L_end")
A(f"s_load_dwordx16 s[{KARG}:{KARG+15}], s[0:1], 0")
A(f"s_load_dwordx8 s[{KARG+16}:{KARG+23}], s[0:1], 64")
A(f"s_load_dwordx2 s[{KARG+24}:{KARG+25}], s[0:1], 96")
pAX, pAK, pAV, pAWQ, pAWO, pBX, pBK, pBV, pBWQ, pBWO, pOUT, pDBG, pWS = [KARG + 2 * i for i in range(13)]
A("v_lshrrev_b32 v1, 6, v0\nv_and_b32 v0, 63, v0")
A(f"v_readfirstlane_b32 s{sWAVE}, v1")
A(f"s_and_b32 s{sG}, s2, 7\ns_lshr_b32 s{sSP}, s2, 3")
if os.environ.get("GROT"):
    A(f"s_add_u32 s{sG}, s{sG}, {os.environ['GROT']}\ns_and_b32 s{sG}, s{sG}, 7")
A(f"s_mov_b32 s{sC}, {CSCALE}\ns_mov_b32 s{sSPIN}, {SPIN_MAX}\ns_mov_b32 s{sLAYER}, 0")
A(f"s_getreg_b32 s{sID}, hwreg(HW_REG_XCC_ID, 0, 4)\ns_min_u32 s{sID}, s{sID}, 14\ns_add_u32 s{sID}, s{sID}, 1\ns_mul_i32 s{sID}, s{sID}, 0x01010101\ns_mov_b32 s{sMODE}, 0")
A("s_waitcnt lgkmcnt(0)")
mk_srd(SRD_WS, pWS, WS_SIZE)
mk_srd(SRD_DBG, pDBG, 256)
A(f"s_cmp_lt_u32 s{sSP}, 4\ns_cbranch_scc1 L_chain")

vK, vV, vKd, vVd, vL, vQ, vT = 1, 2, 3, 4, 5, 6, 7
MASK = 8
QA = 12
DT = 20
vCM, vLS, vMX, vPO, vX = 32, 33, 34, 35, 36
vFA, vFD = 36, 3
SC = 37
STG_A = [56, 60, 64, 68]
NSLOT = 19
XBASE = 4 * NSLOT * 2048
MLBASE = XBASE + 6144


def half(h):
    return ("v", 72 + 8 * h) if h < 23 else ("a", 8 * (h - 23))


NKA = 37
NVREG = 18
KVBYTES = 67108864

mk_srd(SRD_KA, pAK, KVBYTES)
mk_srd(SRD_VA, pAV, KVBYTES)
mk_srd(SRD_KB, pBK, KVBYTES)
mk_srd(SRD_VB, pBV, KVBYTES)
A(f"s_sub_u32 s{sSP}, s{sSP}, 4")
JMAP = int(os.environ.get("JMAP", "0"))
PSTRIDE = 16384 * (28 if JMAP else 1)
if JMAP:
    A(f"s_lshl_b32 s{sT3}, s{sG}, 23")
    A(f"s_lshl_b32 s{sT1}, s{sSP}, 14\ns_lshl_b32 s{sT0}, s{sWAVE}, 12\ns_add_u32 s{sT1}, s{sT1}, s{sT0}\ns_add_u32 s{sOFFA}, s{sT1}, s{sT3}")
    A(f"s_add_u32 s{sOFFB}, s{sOFFA}, {12288*512}")
    A(f"s_lshl_b32 s{sT1}, s{sSP}, 13\ns_lshl_b32 s{sT0}, s{sWAVE}, 11\ns_add_u32 s{sT1}, s{sT1}, s{sT0}\ns_add_u32 s{sT1}, s{sT1}, s{sT3}")
    A(f"s_add_u32 s{sOFFB8}, s{sT1}, {12288*512 + 4*28*16384}")
    A(f"s_add_u32 s{sT2}, s{sT1}, {18*28*16384}\ns_add_u32 s{sT0}, s{sOFFA}, {17*28*16384}")
    A(f"s_cmp_lt_u32 s{sSP}, 16\ns_cselect_b32 s{sOFFA36}, s{sT2}, s{sT0}\ns_cselect_b32 s{sBIASA}, 0, {NEG_INF}")
    A(f"s_add_u32 s{sT2}, s{sOFFB8}, {28*8192 - 24*8192}")
    A(f"s_cmp_ge_u32 s{sSP}, 24\ns_cselect_b32 s{sOFFB9}, s{sT2}, s{sOFFB8}\ns_cselect_b32 s{sBIASB}, 0, {NEG_INF}")
else:
    A(f"s_lshl_b32 s{sT3}, s{sG}, 23")
    A(f"s_mul_i32 s{sT1}, s{sSP}, 36\ns_min_u32 s{sT2}, s{sSP}, 16\ns_add_u32 s{sT1}, s{sT1}, s{sT2}")
    A(f"s_lshl_b32 s{sT1}, s{sT1}, 13\ns_add_u32 s{sT1}, s{sT1}, s{sT3}")
    A(f"s_lshl_b32 s{sT0}, s{sWAVE}, 12\ns_add_u32 s{sOFFA}, s{sT1}, s{sT0}")
    A(f"s_cmp_lt_u32 s{sSP}, 16")
    A(f"s_cselect_b32 s{sT2}, 36, 35")
    A(f"s_cselect_b32 s{sBIASA}, 0, {NEG_INF}")
    A(f"s_lshl_b32 s{sT2}, s{sT2}, 13\ns_lshl_b32 s{sT0}, s{sWAVE}, 11\ns_add_u32 s{sT2}, s{sT2}, s{sT0}")
    A(f"s_add_u32 s{sOFFA36}, s{sT1}, s{sT2}")
    A(f"s_mul_i32 s{sT1}, s{sSP}, 9\ns_max_u32 s{sT2}, s{sSP}, 24\ns_sub_u32 s{sT2}, s{sT2}, 24\ns_add_u32 s{sT1}, s{sT1}, s{sT2}")
    A(f"s_lshl_b32 s{sT1}, s{sT1}, 13\ns_add_u32 s{sT1}, s{sT1}, s{sT3}\ns_add_u32 s{sT1}, s{sT1}, {12288*512}")
    A(f"s_lshl_b32 s{sT2}, s{sWAVE}, 12\ns_add_u32 s{sOFFB}, s{sT1}, s{sT2}")
    A(f"s_add_u32 s{sOFFB8}, s{sT1}, s{sT0}\ns_add_u32 s{sOFFB8}, s{sOFFB8}, {32*2048}")
    A(f"s_cmp_ge_u32 s{sSP}, 24")
    A(f"s_cselect_b32 s{sT1}, 1, 0")
    A(f"s_cselect_b32 s{sBIASB}, 0, {NEG_INF}")
    A(f"s_lshl_b32 s{sT1}, s{sT1}, 13")
    A(f"s_add_u32 s{sOFFB9}, s{sOFFB8}, s{sT1}")
A(f"s_mul_i32 s{sLDSW}, s{sWAVE}, {NSLOT*2048}")
A(f"v_lshrrev_b32 v20, 4, v0       ; s / row")
A(f"v_and_b32 v21, 15, v0          ; j")
A(f"v_and_b32 v22, 3, v0           ; c")
A(f"v_bfe_u32 v23, v0, 2, 2        ; a")
A(f"v_lshl_add_u32 v24, v20, 2, v22   ; 4s+c")
A(f"v_lshlrev_b32 v24, 4, v24")
A(f"v_lshl_add_u32 v{vK}, v23, 9, v24")
A(f"v_lshlrev_b32 v25, 4, v21")
A(f"v_lshl_add_u32 v{vV}, v20, 9, v25")
A(f"v_add_u32 v{vKd}, 768, v{vK}\nv_add_u32 v{vVd}, 768, v{vV}")
A(f"v_lshlrev_b32 v26, 4, v0\nv_add_u32 v{vL}, s{sLDSW}, v26\nv_add_u32 v{vX}, {XBASE}, v26")
A(f"v_lshrrev_b32 v27, 3, v21      ; head(j)")
A(f"v_lshl_add_u32 v{vQ}, v27, 9, v24")
A(f"v_lshrrev_b32 v27, 5, v0\nv_mul_u32_u24 v27, 28672, v27\nv_lshl_add_u32 v27, v21, 5, v27")
A(f"v_and_b32 v28, 1, v20\nv_lshl_add_u32 v{vPO}, v28, 4, v27")
A(f"s_lshl_b32 s{sQOFF}, s{sG}, 10")
A(f"s_mul_i32 s{sPOOFF}, s{sG}, 56\ns_add_u32 s{sPOOFF}, s{sPOOFF}, s{sSP}\ns_lshl_b32 s{sPOOFF}, s{sPOOFF}, 10\ns_add_u32 s{sPOOFF}, s{sPOOFF}, {WS_PO}")
A(f"s_lshl_b32 s{sMLOFF}, s{sG}, 13\ns_lshl_b32 s{sT0}, s{sSP}, 7\ns_add_u32 s{sMLOFF}, s{sMLOFF}, s{sT0}\ns_add_u32 s{sMLOFF}, s{sMLOFF}, {WS_ML}")
stamp(0)

PRET = int(os.environ.get("PRET", "0"))
if PRET:
    nl = min(64, (320 * 1024) >> PRET)
    nlb = min(64, max(2, (96 * 1024) >> PRET))
    A(f"v_lshlrev_b32 v16, {PRET}, v0")
    A(f"s_cmp_eq_u32 s{sWAVE}, 0\ns_cbranch_scc0 L_pt1")
    A(f"s_mov_b64 exec, {(1 << nl) - 1 if nl < 64 else -1}" if nl <= 32 or nl == 64 else f"s_mov_b32 exec_hi, {(1 << (nl - 32)) - 1}")
    A(f"buffer_load_dword v17, v16, {srd(SRD_KA)}, s{sOFFA} offen nt\nbuffer_load_dword v18, v16, {srd(SRD_VA)}, s{sOFFA} offen nt")
    A(f"s_mov_b64 exec, {(1 << nlb) - 1}")
    A(f"buffer_load_dword v19, v16, {srd(SRD_KB)}, s{sOFFB} offen nt\nbuffer_load_dword v29, v16, {srd(SRD_VB)}, s{sOFFB} offen nt")
    A("s_mov_b64 exec, -1\nL_pt1:")
A(f"v_and_b32 v{vFA}, 7, v0\nv_lshlrev_b32 v{vFA}, 5, v{vFA}")
A(f"s_cmp_eq_u32 s{sWAVE}, 0\ns_cbranch_scc0 L_nc")
A(f"v_mov_b32 v{vT}, s{sID}\ns_lshl_b64 exec, 1, s{sG}")
A(f"buffer_store_byte v{vT}, v{vFA}, {srd(SRD_DBG)}, s{sSP} offen offset:4 sc1\ns_mov_b64 exec, -1")
A("L_nc:")
emit_masks(0, MASK, 20, 21)


def ld_items_reg(srdr, voff, soff_base, ulist, regs_of):
    items = []
    i = 0
    while i < len(ulist):
        u = ulist[i]
        pair = ulist[i:i + 2]
        assert u % 2 == 0
        pre = f"s_add_u32 s{sT0}, s{soff_base}, {(u//2)*PSTRIDE}"
        first = True
        for k, uu in enumerate(pair):
            for m in range(2):
                txt = f"buffer_load_dwordx4 {vr(radd(regs_of(uu), 4*m))}, v{voff}, {srd(srdr)}, s{sT0} offen offset:{k*2048+m*256} nt"
                if first:
                    txt = pre + "\n" + txt
                    first = False
                items.append((txt, uu))
        i += 2
    return items


def ld_items_lds(srdr, voff, voffd, soff_base, ulist, slot_of):
    items = []
    i = 0
    while i < len(ulist):
        u = ulist[i]
        pair = ulist[i:i + 2]
        assert u % 2 == 0
        d = (u // 2) * PSTRIDE - 768
        pre = (f"s_add_u32 s{sT1}, s{soff_base}, {d}" if d >= 0 else f"s_sub_u32 s{sT1}, s{soff_base}, {-d}")
        pre += f"\ns_add_u32 s{sT2}, s{sLDSW}, {slot_of(u)*2048}\ns_mov_b32 m0, s{sT2}\ns_nop 0"
        first = True
        for k, uu in enumerate(pair):
            assert slot_of(uu) == slot_of(u) + k
            for m in range(2):
                v = voffd if m == 0 else voff
                txt = f"buffer_load_dwordx4 v{v}, {srd(srdr)}, s{sT1} offen offset:{k*2048+m*1024} nt lds"
                if first:
                    txt = pre + "\n" + txt
                    first = False
                items.append((txt, uu))
        i += 2
    return items


class GRing:
    def __init__(self, keys, text_of, quads):
        self.keys, self.text_of, self.quads = keys, text_of, quads
        self.pos = {k: i for i, k in enumerate(keys)}
        self.issued = 0
        self.landed = 0

    def issue(self, upto):
        out = []
        while self.issued < min(upto, len(self.keys)):
            out.append(self.text_of(self.keys[self.issued], self.quads[self.issued % len(self.quads)]))
            self.issued += 1
        return "\n".join(out)

    def consume(self, key):
        i = self.pos[key]
        w = "" if i < self.landed else f"s_waitcnt vmcnt({self.issued - i - 1})\n"
        return w, self.quads[i % len(self.quads)], i + 1 + len(self.quads)


def qk_groups(n, ksrc, bias_sgpr, stg):
    G = []
    nC = (n + 1) // 2
    G.append((f"v_mov_b32 v{vMX}, {NEG_INF}" + (f"\nv_mov_b32 v{SC+nC-1}, {NEG_INF}" if n & 1 else ""), None))
    reads = [(u, m) for u in range(n) if ksrc(u)[0] == "lds" for m in range(2)]
    rpos = {rm: i for i, rm in enumerate(reads)}
    issued = [0]

    def issue_reads(upto, out):
        while issued[0] < min(upto, len(reads)):
            u, m = reads[issued[0]]
            q = stg[issued[0] % len(stg)]
            out.append((f"ds_read_b128 {vr(q)}, v{vL} offset:{ksrc(u)[1]*2048+m*1024}", ksrc(u)[2]))
            issued[0] += 1

    pre = []
    issue_reads(len(stg), pre)

    def bops(u):
        d = DT + 4 * (u % 3)
        c = SC + u // 2
        bm = 0x5 if (u & 1) == 0 else 0xA
        t = f"v_mov_b32_dpp v{d}, v{d} quad_perm:[0,0,0,0] {DPPF}\n"
        t += f"v_add_f32_dpp v{d}, v{d+1}, v{d} quad_perm:[1,1,1,1] {DPPF}\n"
        t += f"v_add_f32_dpp v{d}, v{d+2}, v{d} quad_perm:[2,2,2,2] {DPPF}\n"
        if u == n - 1:
            t += f"v_add_f32 v{d}, s{bias_sgpr}, v{d}\n"
        t += f"v_add_f32_dpp v{c}, v{d+3}, v{d} quad_perm:[3,3,3,3] row_mask:0xf bank_mask:{bm:#x}\n"
        if (u & 1) or u == n - 1:
            t += f"v_max_f32 v{vMX}, v{vMX}, v{c}\n"
        return t

    body = []
    for u in range(n):
        d = DT + 4 * (u % 3)
        src = ksrc(u)
        b = bops(u - 2).strip().split("\n") if u >= 2 else []
        if u == 2:
            b = ["s_nop 4"] + b
        parts = [b[:len(b) // 2], b[len(b) // 2:]]
        for m in range(2):
            cin = "0" if m == 0 else vr(d)
            if src[0] == "reg":
                t = f"v_mfma_f32_16x16x32_bf16 {vr(d)}, {vr(radd(src[1],4*m))}, {vr(QA+4*m)}, {cin}"
                body.append((t, src[2]))
            elif src[0] == "gl":
                w, q, upto = src[1].consume(("K", u, m))
                body.append((w + f"v_mfma_f32_16x16x32_bf16 {vr(d)}, {vr(q)}, {vr(QA+4*m)}, {cin}", None))
                if parts[m]:
                    body.append(("\n".join(parts[m]), None))
                    parts[m] = []
                body.append((src[1].issue(upto), None))
            else:
                i = rpos[(u, m)]
                q = stg[i % len(stg)]
                t = f"s_waitcnt lgkmcnt({issued[0]-i-1})\n"
                t += f"v_mfma_f32_16x16x32_bf16 {vr(d)}, {vr(q)}, {vr(QA+4*m)}, {cin}"
                body.append((t, None))
                issue_reads(i + 1 + len(stg), body)
            if parts[m]:
                body.append(("\n".join(parts[m]), None))
    body.append((bops(n - 2), None))
    body.append(("s_nop 1\n" + bops(n - 1), None))
    return G, pre, body


def max_group():
    t = "s_nop 1\n"
    t += f"v_max_f32_dpp v{vMX}, v{vMX}, v{vMX} row_half_mirror {DPPF}\n"
    t += f"v_mov_b32 v{vT}, v{vMX}\ns_nop 1\nv_permlane32_swap_b32 v{vMX}, v{vT}\nv_max_f32 v{vMX}, v{vMX}, v{vT}\n"
    t += f"v_mov_b32 v{vT}, v{vMX}\ns_nop 1\nv_permlane16_swap_b32 v{vMX}, v{vT}\nv_max_f32 v{vMX}, v{vMX}, v{vT}\n"
    t += f"v_mul_f32 v{vCM}, s{sC}, v{vMX}\nv_mov_b32 v{vLS}, 0"
    return (t, None)


def pv_groups(order, vsrc, stg):
    T = [DT, DT + 4]
    PP = [DT + 8, DT + 9]
    n = len(order)
    reads = [(u, m) for u in order if vsrc(u)[0] == "lds" for m in range(2)]
    rpos = {rm: i for i, rm in enumerate(reads)}
    issued = [0]
    body = []

    def issue_reads(upto):
        while issued[0] < min(upto, len(reads)):
            u, m = reads[issued[0]]
            q = stg[issued[0] % len(stg)]
            body.append((f"ds_read_b128 {vr(q)}, v{vL} offset:{vsrc(u)[1]*2048+m*1024}", vsrc(u)[2], None))
            issued[0] += 1

    pairs = []
    for u in order:
        if u // 2 not in pairs:
            pairs.append(u // 2)
    pidx = {k: i for i, k in enumerate(pairs)}

    def E(k):
        c = SC + k
        return f"v_fma_f32 v{c}, v{c}, s{sC}, -v{vCM}\nv_exp_f32 v{c}, v{c}\n"

    def F(k):
        c = SC + k
        return f"v_add_f32 v{vLS}, v{vLS}, v{c}\nv_cvt_pk_bf16_f32 v{PP[pidx[k]&1]}, v{c}, v{c}\n"

    def Gm(i):
        u = order[i]
        pp = PP[pidx[u // 2] & 1]
        rho = u & 1
        t = ""
        for r in range(4):
            if (r >> 1) == rho:
                t += f"v_and_b32 v{T[i&1]+r}, v{pp}, v{MASK+r}\n"
        for r in range(4):
            if (r >> 1) != rho:
                sh = "row_shr:4" if rho == 0 else "row_shl:4"
                t += f"v_and_b32_dpp v{T[i&1]+r}, v{pp}, v{MASK+r} {sh} {DPPF} bound_ctrl:0\n"
        return t

    t = E(pairs[0])
    if len(pairs) > 1:
        t += E(pairs[1])
    else:
        t += "s_nop 0\n"
    t += F(pairs[0]) + Gm(0)
    body.append((t, None, None))
    edone = min(2, len(pairs))
    fdone = 1
    first_lds_started = False
    for i in range(n):
        u = order[i]
        nxt = [order[j] for j in range(i, min(n, i + 3))]
        if not first_lds_started and any(vsrc(x)[0] == "lds" for x in nxt):
            issue_reads(len(stg))
            first_lds_started = True
        t = ""
        if i + 1 < n:
            k1 = pidx[order[i + 1] // 2]
            if k1 >= fdone:
                t += F(pairs[k1])
                fdone = k1 + 1
                if edone < len(pairs):
                    t += E(pairs[edone])
                    edone += 1
            t += Gm(i + 1)
        tl = [x for x in t.strip().split("\n") if x]
        parts = [tl[:len(tl) // 2], tl[len(tl) // 2:]]
        if not tl:
            parts[0] = ["s_nop 0"]
        src = vsrc(u)
        for m in range(2):
            acc = QA + 4 * m
            cin = "0" if i == 0 else vr(acc)
            if parts[m]:
                body.append(("\n".join(parts[m]), None, None))
            if src[0] == "reg":
                body.append((f"v_mfma_f32_16x16x32_bf16 {vr(acc)}, {vr(T[i&1])}, {vr(radd(src[1],4*m))}, {cin}", src[2], None))
            elif src[0] == "gl":
                w, q, upto = src[1].consume(("V", u, m))
                body.append((w + f"v_mfma_f32_16x16x32_bf16 {vr(acc)}, {vr(T[i&1])}, {vr(q)}, {cin}", None, None))
                body.append((src[1].issue(upto), None, None))
            else:
                j = rpos[(u, m)]
                q = stg[j % len(stg)]
                body.append((f"s_waitcnt lgkmcnt({issued[0]-j-1})\nv_mfma_f32_16x16x32_bf16 {vr(acc)}, {vr(T[i&1])}, {vr(q)}, {cin}", None, u if m == 1 else None))
                issue_reads(j + 1 + len(stg))
    return body


def emit_groups(gs):
    for g in gs:
        A(g[0])


def clear_next(t4, ta):
    sk, far = A.label("clsk"), A.label("clfar")
    A(f"s_cmp_lt_u32 s{sWAVE}, 2\ns_cbranch_scc1 {sk}")
    for r in range(4):
        A(f"v_mov_b32 v{t4+r}, -1")
    A(f"v_lshlrev_b32 v{ta}, 4, v0")
    A(f"s_sub_u32 s{sT3}, s{sWAVE}, 2\ns_lshl_b32 s{sCL}, s{sT3}, 12\ns_add_u32 s{sCL}, s{sCL}, s{sMLOFF}\ns_add_u32 s{sCL}, s{sCL}, {ML_L}")
    A(f"s_mul_i32 s{sT3}, s{sT3}, 28672\ns_add_u32 s{sT3}, s{sT3}, s{sPOOFF}\ns_add_u32 s{sT3}, s{sT3}, {PO_L}")
    A(f"s_cmp_eq_u32 s{sMODE}, 1\ns_cbranch_scc0 {far}")
    for fl in ("", " sc1"):
        if fl:
            A(f"{far}:")
        A(f"buffer_store_dwordx4 {vr(t4)}, v{ta}, {srd(SRD_WS)}, s{sT3} offen{fl}")
        A(f"s_mov_b64 exec, 1\nbuffer_store_dwordx2 {vr(t4, 2)}, v{ta}, {srd(SRD_WS)}, s{sCL} offen{fl}\ns_mov_b64 exec, -1")
        if not fl:
            A(f"s_branch {sk}")
    A(f"{sk}:\ns_nop 1")


def q_loads():
    return (f"buffer_load_dwordx4 {vr(QA)}, v{vQ}, {srd(SRD_WS)}, s{sQOFF} offen sc1\n"
            f"buffer_load_dwordx4 {vr(QA+4)}, v{vQ}, {srd(SRD_WS)}, s{sQOFF} offen offset:256 sc1")


def poll_q_blocking():
    lp, done = A.label("qpoll"), A.label("qdone")
    A(f"{lp}:")
    spin_guard(done)
    A(q_loads())
    A("s_waitcnt vmcnt(0)")
    sentinel_check(range(QA, QA + 8), vT, lp)
    A(f"{done}:")
    A("s_nop 1")


VL_UNITS = list(range(NVREG, NKA))
vslot = lambda u: u - NVREG
loads = []
it = ld_items_lds(SRD_VA, vV, vVd, sOFFA, VL_UNITS[:-1], vslot)
loads += [(t, ("V", u), None) for t, u in it]
it = ld_items_lds(SRD_VA, vV, vVd, sOFFA36, [0], lambda u: vslot(36))
loads += [(t, ("V", 36), None) for t, u in it]
it = ld_items_reg(SRD_KA, vK, sOFFA, list(range(36)), half)
kl = [(t, ("K", u), None) for t, u in it]
it = ld_items_reg(SRD_KA, vK, sOFFA36, [0], lambda u: half(36))
kl += [(t, ("K", 36), None) for t, u in it]
ca_load = (f"buffer_load_dword v{vCM}, v{vFA}, {srd(SRD_DBG)}, 0 offen sc1", ("CA",), None)
FPOS = 32
NOCA = int(os.environ.get("NOCA", "0"))
loads += kl[:40] + ([] if NOCA else [ca_load]) + kl[40:60]
QPOS = len(loads)
loads += kl[60:]
it = ld_items_reg(SRD_VA, vV, sOFFA, list(range(NVREG)), lambda u: half(NKA + u))
loads += [(t, ("V", u), None) for t, u in it]
NA_LOADS = len(loads)
sBO = 52
vPF, vJ = 3, 4
STG_B = [44, 48, 52, 56, 60, 64, 68]
NPRE = len(STG_B)
PFS = int(os.environ.get("PFS", "6"))
bpf = []
first = True
for srdr, nm in ((SRD_KB, "K"), (SRD_VB, "V")):
    for p in range(6):
        nbytes = 4096 if p < 4 else 2048
        per = 64 << PFS
        for o in range(0, nbytes, per):
            if nm == "K" and p == 0 and os.environ.get("PFSKIP", "1") == "1":
                continue
            t = ""
            if first:
                t += f"v_lshlrev_b32 v{vPF}, {PFS}, v0\n"
                first = False
            lanes = min(64, nbytes >> PFS)
            if lanes < 64:
                t += f"s_mov_b64 exec, {(1 << lanes) - 1}\n" if lanes < 32 else "s_mov_b32 exec_hi, 0\n"
            t += f"buffer_load_dword v{vJ}, v{vPF}, {srd(srdr)}, s{sBO+p} offen offset:{o}"
            if lanes < 64:
                t += "\ns_mov_b64 exec, -1"
            bpf.append((t, ("PF", len(bpf)), None))
for p in range(4):
    A(f"s_add_u32 s{sBO+p}, s{sOFFB}, {p*PSTRIDE}")
A(f"s_mov_b32 s{sBO+4}, s{sOFFB8}\ns_mov_b32 s{sBO+5}, s{sOFFB9}")
GATE = 0
NB_EARLY = int(os.environ.get('NBE', '2'))
BL = bpf
loads += BL[:NB_EARLY]

ksrcA = lambda u: ("reg", half(u), ("K", u))
vsrcA = lambda u: ("reg", half(NKA + u), ("V", u)) if u < NVREG else ("lds", vslot(u), ("V", u))

g0, pre, body = qk_groups(NKA, ksrcA, sBIASA, STG_A)
comp = [(t, n, None) for t, n in g0 + pre + body] + [max_group() + (None,)]
comp += pv_groups(VL_UNITS + list(range(NVREG)), vsrcA, STG_A)

EXP = os.environ.get("EXP", "")
if EXP:
    order = loads[:NA_LOADS] + BL
    if "r" in EXP:
        order = [(t, ("K", u), None) for t, u in ld_items_reg(SRD_KA, vV if "v" in EXP else vK, sOFFA, list(range(36)), half)]
        order += [(t, ("V", u), None) for t, u in ld_items_reg(SRD_VA, vV, sOFFA, list(range(36)), lambda u: half(u + 18))]
        order += [(t, ("BK", u), None) for t, u in ld_items_reg(SRD_KB, vV if "v" in EXP else vK, sOFFB, list(range(8)), half)]
        order += [(t, ("BV", u), None) for t, u in ld_items_reg(SRD_VB, vV, sOFFB, list(range(8)), lambda u: half(u + 18))]
    for i, (t, tag, req) in enumerate(order):
        if tag == ("CA",): continue
        if tag == ("BK", 0) and "s_add" in t:
            stamp(3)
        if i in (30, 60, 90, 120): stamp(15 + (30, 60, 90, 120).index(i))
        A(t)
        if os.environ.get("THR"): A(f"s_waitcnt vmcnt({os.environ['THR']})")
    A("s_waitcnt vmcnt(0)")
    stamp(4)
    A("s_branch L_fin")
THR = int(os.environ.get("THR", "4"))
THRX = int(os.environ.get("THRX", "0"))
VPOL = int(os.environ.get("VPOL", "0"))
THR2 = int(os.environ.get("THR2", "0"))
THRB = int(os.environ.get("THRB", "0"))
LAG = int(os.environ.get("LAG", "10"))
last_of = {}
nissued = 0
released = set()
ci = 0


def emit_comp(g):
    t, need, rel = g
    if need is not None:
        n = nissued - last_of[need] - 1
        A(f"s_waitcnt vmcnt({min(n, 63)})")
    A(t)
    if rel is not None:
        released.add(vslot(rel))


qready = False
li = 0
done_pos = set()
LEAD = int(os.environ.get("LEAD", "0"))
ADAPT = int(os.environ.get("ADAPT", "0"))
ATHR = int(os.environ.get("ATHR", "3"))
sTHR = 51
MARKS = ([40, 56, 72, 88, 104, 120] if LEAD else [-1] * 6) + [NA_LOADS - GATE] if GATE else []
if ADAPT:
    MARKS = [34, 50, 66, 82, 98, 114, 130]
    A(f"s_mov_b32 s{sTHR}, 0")


RATE = int(os.environ.get("RATE", "0"))
sRT0, sRT = 52, 54
if RATE:
    A(f"s_mov_b32 s{sTHR}, 0\ns_memrealtime s[{sRT0}:{sRT0+1}]")


def rate_ctl(li):
    if RATE and li % 6 == 0 and 12 <= li:
        A(f"s_memrealtime s[{sRT}:{sRT+1}]")
    if RATE and li % 6 == 1 and 12 <= li:
        A(f"s_waitcnt lgkmcnt(0)\ns_sub_u32 s{sRT}, s{sRT}, s{sRT0}\ns_cmp_lt_u32 s{sRT}, {max(0, (li - int(os.environ.get('ROFF', '4'))) * RATE // 10)}\ns_cselect_b32 s{sTHR}, 1, 0")


def athr():
    if ADAPT or RATE:
        sk = A.label("nt")
        A(f"s_cmp_eq_u32 s{sTHR}, 0\ns_cbranch_scc1 {sk}\ns_waitcnt vmcnt({ATHR})\n{sk}:")


flow_load = f"buffer_load_ubyte v{vFD}, v{vFA}, {srd(SRD_DBG)}, 0 offen offset:4 sc1"


def flow_wait(k, n):
    ok, lp, ck = A.label("flok"), A.label("fllp"), A.label("flck")
    if n is not None:
        A(f"s_waitcnt vmcnt({n})\ns_branch {ck}")
    A(f"{lp}:")
    spin_guard(ok)
    A(f"{flow_load}\ns_waitcnt vmcnt(0)")
    A(f"{ck}:\nv_cmp_gt_u32 vcc, {k << 4}, v{vFD}\ns_nop 0\ns_cmp_lg_u64 vcc, 0\ns_cbranch_scc0 {ok}\ns_sleep 4\ns_branch {lp}")
    A(f"{ok}:")


while li < len(loads):
    if li in MARKS and li not in done_pos:
        k = MARKS.index(li) + 1
        nf = A.label("nomark")
        A(f"s_or_b32 s{sT3}, s{sWAVE}, s{sSP}\ns_cmp_eq_u32 s{sT3}, 0\ns_cbranch_scc0 {nf}")
        A(f"s_or_b32 s{sT3}, s{sID}, {k << 4}\nv_mov_b32 v{vT}, s{sT3}\ns_lshl_b64 exec, 1, s{sG}")
        A(f"buffer_store_byte v{vT}, v{vFA}, {srd(SRD_DBG)}, 0 offen offset:4 sc1\ns_mov_b64 exec, -1")
        A(f"{nf}:")
    if LEAD and (li - LEAD + 8) in MARKS[:-1] and li + 8 < NA_LOADS and li not in done_pos:
        A(flow_load)
        last_of[("FL",)] = nissued
        nissued += 1
    if LEAD and (li - LEAD) in MARKS[:-1] and li < NA_LOADS and li not in done_pos:
        k = MARKS.index(li - LEAD) + 1
        flow_wait(k, nissued - last_of[("FL",)] - 1)
    if ADAPT and (li - ADAPT) in MARKS and li + 8 < NA_LOADS and li not in done_pos:
        A(flow_load)
        last_of[("FL",)] = nissued
        nissued += 1
    if ADAPT and (li - ADAPT - 8) in MARKS and li < NA_LOADS and li not in done_pos:
        k = MARKS.index(li - ADAPT - 8) + 1
        A(f"s_waitcnt vmcnt({nissued - last_of[('FL',)] - 1})")
        A(f"v_cmp_gt_u32 vcc, {k << 4}, v{vFD}\ns_nop 0\ns_cmp_lg_u64 vcc, 0\ns_cselect_b32 s{sTHR}, 1, 0")
    if li in (30, 60, 90, 120) and li not in done_pos:
        if li == 120 and PROFILE: A("s_waitcnt lgkmcnt(0)")
        stamp(15 + (30, 60, 90, 120).index(li))
    done_pos.add(li)
    if li == QPOS and NOCA:
        A(f"s_mov_b32 s{sMODE}, 1")
        A(q_loads())
        nissued += 2
        last_of[("Q",)] = nissued - 1
    if li == QPOS and not NOCA:
        n = nissued - last_of[("CA",)] - 1
        ok, lp, ck = A.label("caok"), A.label("calp"), A.label("cack")
        A(f"s_waitcnt vmcnt({n})\ns_branch {ck}")
        A(f"{lp}:")
        spin_guard(ok)
        A(f"{ca_load[0]}\ns_waitcnt vmcnt(0)")
        A(f"{ck}:\nv_readlane_b32 s{sT3}, v{vCM}, s{sG}")
        A(f"s_cmp_eq_u32 s{sT3}, s{sID}\ns_cselect_b32 s{sMODE}, 1, 0")
        A(f"s_add_u32 s{sT3}, s{sT3}, 0x7f7f7f7f\ns_and_b32 s{sT3}, s{sT3}, 0x80808080\ns_cmp_eq_u32 s{sT3}, 0x80808080\ns_cbranch_scc0 {lp}")
        A(f"{ok}:")
        clear_next(DT, vT)
        A(q_loads())
        nissued += 2
        last_of[("Q",)] = nissued - 1
    if li == QPOS + 12:
        n = nissued - last_of[("Q",)] - 1
        slow, ok = A.label("qslow"), A.label("qok")
        A(f"s_waitcnt vmcnt({n})")
        sentinel_check(range(QA, QA + 8), vT, slow)
        A(f"s_branch {ok}\n{slow}:")
        poll_q_blocking()
        A(f"{ok}:")
        stamp(1)
        if RATE:
            A(f"s_mov_b32 s{sTHR}, 0")
        qready = True
    t, tag, req = loads[li]
    if req is not None and req not in released:
        emit_comp(comp[ci])
        ci += 1
        continue
    A(t.replace(" nt", "") if li < VPOL else t)
    if THR and not qready:
        A(f"s_waitcnt vmcnt({THR + (THRX if li & 1 else 0)})")
    if THR2 and qready:
        A(f"s_waitcnt vmcnt({THR2})")
    if li > (12 if RATE else 40) and not (RATE and qready):
        athr()
    if not qready:
        rate_ctl(li)
    last_of[tag] = nissued
    nissued += 1
    li += 1
    if qready:
        cnt = 0
        while ci < len(comp) and cnt < 6:
            need = comp[ci][1]
            if need is not None and (need not in last_of or nissued - last_of[need] - 1 < LAG or
                                     (li < len(loads) and loads[li][1] == need)):
                break
            emit_comp(comp[ci])
            ci += 1
            cnt += 1
stamp(2)
A(f"v_lshlrev_b32 v{vX}, 4, v0\nv_add_u32 v{vX}, {XBASE}, v{vX}")
while ci < len(comp):
    emit_comp(comp[ci])
    ci += 1

A("L_reduce:")
R0 = SC
A(f"v_add_f32_dpp v{vLS}, v{vLS}, v{vLS} row_half_mirror {DPPF}")
xrow_reduce("v_add_f32", vLS, vT)
A(f"v_bfe_u32 v{R0}, v0, 3, 1\nv_lshlrev_b32 v{R0}, 5, v{R0}\ns_lshl_b32 s{sT0}, s{sWAVE}, 3\ns_add_u32 s{sT0}, s{sT0}, {MLBASE}\nv_add_u32 v{R0}, s{sT0}, v{R0}")
A(f"ds_write_b64 v{R0}, v[{vCM}:{vLS}]")
A(f"v_lshrrev_b32 v{R0+1}, 5, v0\nv_lshlrev_b32 v{R0+1}, 5, v{R0+1}\nv_add_u32 v{R0+1}, {MLBASE}, v{R0+1}")
A(f"s_cmp_lt_u32 s{sWAVE}, 2\ns_cbranch_scc1 L_red_01")
A(f"s_lshl_b32 s{sT0}, s{sWAVE}, 10\ns_sub_u32 s{sT0}, s{sT0}, 1024\nv_add_u32 v{R0+2}, s{sT0}, v{vX}")
A(f"ds_write_b128 v{R0+2}, {vr(QA)}\nds_write_b128 v{R0+2}, {vr(QA+4)} offset:3072")
A("s_waitcnt lgkmcnt(0)\ns_barrier\ns_branch L_red_done")
A("L_red_01:")
A(f"s_cmp_eq_u32 s{sWAVE}, 0\ns_cbranch_scc1 L_red_0")
A(f"ds_write_b128 v{vX}, {vr(QA)}")
A(f"v_add_u32 v{R0+2}, 3072, v{vX}")
A("s_waitcnt lgkmcnt(0)")
for r in range(4):
    A(f"v_mov_b32 v{QA+r}, v{QA+4+r}")
A("s_branch L_red_c")
A("L_red_0:")
A(f"ds_write_b128 v{vX}, {vr(QA+4)} offset:3072")
A(f"v_mov_b32 v{R0+2}, v{vX}")
A("s_waitcnt lgkmcnt(0)")
A("L_red_c:")
A("s_barrier")
ML = 56
XR = 20
A(f"ds_read_b128 {vr(ML)}, v{R0+1}\nds_read_b128 {vr(ML+4)}, v{R0+1} offset:16")
for s in range(3):
    A(f"ds_read_b128 {vr(XR+4*s)}, v{R0+2} offset:{1024*s}")
Mx, F0 = 64, 66
A("s_waitcnt lgkmcnt(3)")
A(f"v_max3_f32 v{Mx}, v{ML}, v{ML+2}, v{ML+4}\nv_max_f32 v{Mx}, v{Mx}, v{ML+6}")
for w in range(4):
    A(f"v_sub_f32 v{F0+w}, v{ML+2*w}, v{Mx}")
for w in range(4):
    A(f"v_exp_f32 v{F0+w}, v{F0+w}")
A(f"s_cmp_eq_u32 s{sWAVE}, 0")
A(f"v_mul_f32 v{Mx+1}, v{F0}, v{ML+1}")
for w in range(1, 4):
    A(f"v_fmac_f32 v{Mx+1}, v{F0+w}, v{ML+2*w+1}")
A("s_cbranch_scc1 L_red_sw")
A(f"v_mov_b32 v{vT}, v{F0}\nv_mov_b32 v{F0}, v{F0+1}\nv_mov_b32 v{F0+1}, v{vT}")
A("L_red_sw:")
for r in range(4):
    A(f"v_mul_f32 v{QA+r}, v{F0}, v{QA+r}")
A("s_waitcnt lgkmcnt(0)")
for s in range(3):
    for r in range(4):
        A(f"v_fmac_f32 v{QA+r}, v{F0+1+s}, v{XR+4*s+r}")
for r in range(4):
    A(f"v_min_u32 v{QA+r}, -2, v{QA+r}")
A(f"s_lshl_b32 s{sT0}, s{sWAVE}, 9\ns_add_u32 s{sT0}, s{sT0}, s{sPOOFF}")
A(f"s_cmp_eq_u32 s{sMODE}, 1\ns_cbranch_scc0 L_pub_far")
for fl, lab in (("", None), (" sc1", "L_pub_far")):
    if lab:
        A(f"{lab}:")
    A(f"buffer_store_dwordx4 {vr(QA)}, v{vPO}, {srd(SRD_WS)}, s{sT0} offen{fl}")
    A(f"s_cmp_eq_u32 s{sWAVE}, 0\ns_cbranch_scc0 L_red_done")
    A(f"v_min_u32 v{Mx}, -2, v{Mx}\nv_min_u32 v{Mx+1}, -2, v{Mx+1}")
    A(f"v_lshrrev_b32 v{vT}, 5, v0\nv_lshlrev_b32 v{vT}, 12, v{vT}")
    A("s_mov_b32 exec_lo, 1\ns_mov_b32 exec_hi, 1")
    A(f"buffer_store_dwordx2 v[{Mx}:{Mx+1}], v{vT}, {srd(SRD_WS)}, s{sMLOFF} offen{fl}")
    A("s_mov_b64 exec, -1")
    if not lab:
        A("s_branch L_red_done")
A("L_red_done:")
A("s_barrier")
A(f"s_add_u32 s{sQOFF}, s{sQOFF}, 8192\ns_add_u32 s{sPOOFF}, s{sPOOFF}, {PO_L}\ns_add_u32 s{sMLOFF}, s{sMLOFF}, {ML_L}")
A(f"s_add_u32 s{sLAYER}, s{sLAYER}, 1")
A(f"s_cmp_eq_u32 s{sLAYER}, 2\ns_cbranch_scc1 L_after2")
A(f"s_cmp_eq_u32 s{sLAYER}, 3\ns_cbranch_scc1 L_after3")
A(f"s_cmp_eq_u32 s{sLAYER}, 4\ns_cbranch_scc1 L_att_end")
stamp(3)
if GATE:
    vFA = vT
    flow_load = f"buffer_load_ubyte v{vFD}, v{vFA}, {srd(SRD_DBG)}, 0 offen offset:4 sc1"
    A(f"v_and_b32 v{vFA}, 7, v0\nv_lshlrev_b32 v{vFA}, 5, v{vFA}")
    flow_wait(7, None)
    stamp(13)


def stream_then_q(items, E, st_a, st_b, thr=0, pre=()):
    n = len(items)
    for i, (t, tag, req) in enumerate(items):
        if i == n - E:
            A(q_loads())
        A(t)
        if thr and i < n - E:
            A(f"s_waitcnt vmcnt({thr})")
        if st_a == 4 and i < n - E and os.environ.get("ATHB"):
            athr()
            rate_ctl(NA_LOADS + NB_EARLY + i + 6)
    if E == 0:
        A(q_loads())
    slow, ok = A.label("qslow"), A.label("qok")
    A(f"s_waitcnt vmcnt({E})")
    stamp(st_a)
    emit_groups(pre)
    sentinel_check(range(QA, QA + 8), vT, slow)
    A(f"s_branch {ok}\n{slow}:")
    poll_q_blocking()
    A(f"{ok}:")
    stamp(st_b)
    younger = {}
    for i, (t, tag, req) in enumerate(items):
        if i >= n - E:
            younger[tag] = n - 1 - i
    return younger


def emit_counted(gs, younger, extra=None, every=1):
    extra = list(extra or [])
    cnt = 0
    for g in gs:
        need = g[1]
        if need in younger:
            A(f"s_waitcnt vmcnt({younger[need]})")
            lim = younger[need]
            for k in [k for k, v in younger.items() if v >= lim]:
                del younger[k]
        A(g[0])
        if "v_mfma" in g[0]:
            cnt += 1
            if extra and cnt % every == 0:
                t, tag, req = extra.pop(0)
                A(t)
                for k in younger:
                    younger[k] += 1
                younger[tag] = 0
    assert not extra


def btext(key, q):
    nm, u, m = key
    p, o = (u // 2, (u & 1) * 2048) if u < 8 else (u - 4, 0)
    return f"buffer_load_dwordx4 {vr(q)}, v{vK if nm == 'K' else vV}, {srd(SRD_KB if nm == 'K' else SRD_VB)}, s{sBO+p} offen offset:{o+256*m}"


ring = GRing([(nm, u, m) for nm in "KV" for u in range(10) for m in range(2)], btext, STG_B)
clear_next(DT, vT)
A(ring.issue(NPRE))
for t, tag, req in BL[NB_EARLY:]:
    A(t)
ring.landed = NPRE
ksrcB = lambda u: ("gl", ring, None)
g0, pre, body = qk_groups(10, ksrcB, sBIASB, STG_B)
emit_groups(g0)
yg = stream_then_q([], 0, 4, 5)
emit_groups(body + [max_group()] + pv_groups(list(range(10)), ksrcB, STG_B))
A("s_branch L_reduce")

A("L_after2:")
stamp(6)
g0, pre, body = qk_groups(NKA, ksrcA, sBIASA, STG_A)
clear_next(DT, vT)
emit_groups(g0)
yg = stream_then_q([], 0, 14, 7)
emit_counted(body, yg)
emit_groups([max_group()])
stamp(8)
HB1 = 0
b4 = []
for srdr, voff, base, nm in ((SRD_KB, vK, 0, "BK"), (SRD_VB, vV, 10, "BV")):
    b4 += [(t, (nm, u), None) for t, u in ld_items_reg(srdr, voff, sOFFB, list(range(8)), lambda u: half(base + u))]
    b4 += [(t, (nm, 8), None) for t, u in ld_items_reg(srdr, voff, sOFFB8, [0], lambda u: half(base + 8))]
    b4 += [(t, (nm, 9), None) for t, u in ld_items_reg(srdr, voff, sOFFB9, [0], lambda u: half(base + 9))]
NB4 = int(os.environ.get("NB4", "0"))
order3 = list(range(NVREG)) + [NVREG + x for x in list(range(HB1, NSLOT)) + list(range(0, HB1))]
emit_counted(pv_groups(order3, vsrcA, STG_A), yg, b4[:NB4], int(os.environ.get("NB4E", "4")))
A("s_branch L_reduce")

A("L_after3:")
stamp(9)
ksrc4 = lambda u: ("reg", half(u), ("BK", u))
vsrc4 = lambda u: ("reg", half(10 + u), ("BV", u))
g0, pre, body = qk_groups(10, ksrc4, sBIASB, STG_B)
emit_groups(g0)
yg = stream_then_q(b4[NB4:], int(os.environ.get("E4", "0")), 10, 11, int(os.environ.get("THR4", "0")))
emit_counted(body + [max_group()] + pv_groups(list(range(10)), vsrc4, STG_B), yg)
A("s_branch L_reduce")

A("L_att_end:")
stamp(12)
A("s_branch L_fin")

A("L_chain:")
cWq, cWo, cPOg, cMLg, cL16, cYg, cT = 1, 2, 3, 4, 5, 6, 7
cX = 12
cVAL, cYst, cSCR, cXw, cXa, cXs = 14, 15, 16, 17, 18, 19
cTT = [20, 24]
cACC = 28
cG = 36
cN = 68
cXA = 36
cCS = {0: 92, 1: 93}
cQst, cV56 = 94, 95
cWo1 = 91
WQ = {0: ("a", 0), 1: ("a", 112)}
WO0 = {0: ("v", 96), 1: ("v", 160)}
sYG = 52


def wo1(t):
    return ("v", 224 + 4 * t) if t < 8 else ("a", 224 + 4 * (t - 8))


CSCR = 131072
YX = CSCR
XB = CSCR + 4096
sCH = sSP
WQB = 448 * 4096 * 2

if "n" in os.environ.get("EXP", ""):
    A("s_branch L_end")
if "l" in os.environ.get("EXP", ""):
    mk_srd(SRD_KB, pBK, 67108864)
    stamp(0)
    A(f"s_lshl_b32 s{sT0}, s{sG}, 23\ns_mul_i32 s{sT1}, s{sSP}, 491520\ns_add_u32 s{sT0}, s{sT0}, s{sT1}\ns_lshl_b32 s{sT1}, s{sWAVE}, 12\ns_add_u32 s{sT0}, s{sT0}, s{sT1}\nv_lshlrev_b32 v1, 4, v0")
    for i in range(30):
        for n in range(4):
            A(f"buffer_load_dwordx4 a[{(i*16+n*4)%256}:{(i*16+n*4)%256+3}], v1, {srd(SRD_KB)}, s{sT0} offen offset:{n*1024} nt")
        A(f"s_add_u32 s{sT0}, s{sT0}, 16384")
    A("s_waitcnt vmcnt(0)")
    stamp(3)
    A("s_branch L_fin")
mk_srd(SRD_WQA, pAWQ, WQB)
mk_srd(SRD_WOA, pAWO, WQB)
mk_srd(SRD_WQB, pBWQ, WQB)
mk_srd(SRD_WOB, pBWO, WQB)
mk_srd(SRD_X, pAX, 896)
A(f"s_mov_b64 s[{sOUTP}:{sOUTP+1}], s[{pOUT}:{pOUT+1}]")
A(f"s_lshl_b32 s{sT0}, s{sG}, 2\ns_add_u32 s{sCH}, s{sT0}, s{sSP}")
A("v_lshrrev_b32 v20, 4, v0       ; s / row")
A("v_and_b32 v21, 15, v0          ; j / c16")
A("v_lshlrev_b32 v22, 4, v21      ; j*16")
A(f"s_lshr_b32 s{sT0}, s{sWAVE}, 1\ns_lshl_b32 s{sT0}, s{sT0}, 2\nv_or_b32 v23, s{sT0}, v20\nv_lshlrev_b32 v23, 5, v23\nv_xor_b32 v23, v23, v22")
A(f"v_lshl_add_u32 v{cWq}, v20, 13, v23")
A(f"v_mul_u32_u24 v{cWo}, 896, v20\nv_add_u32 v{cWo}, v{cWo}, v22")
A("v_and_b32 v23, 31, v0\nv_min_u32 v23, 27, v23\nv_lshrrev_b32 v24, 5, v0")
A(f"s_mul_i32 s{sT0}, s{sWAVE}, 224\nv_lshlrev_b32 v25, 3, v23\nv_lshl_add_u32 v25, v24, 2, v25\nv_add_u32 v25, s{sT0}, v25")
A(f"buffer_load_dword v{cX}, v25, {srd(SRD_X)}, 0 offen")
A(f"v_add_u32 v{cXw}, {XB}, v25")
A(f"v_lshlrev_b32 v{cYg}, 4, v23\nv_lshl_add_u32 v{cYg}, v24, 11, v{cYg}")


def wq_dma(which):
    s_ = SRD_WQA if which == 0 else SRD_WQB
    A(f"s_lshl_b32 s{sT0}, s{sWAVE}, 15\ns_lshl_b32 s{sT1}, s{sCH}, 8\ns_add_u32 s{sT0}, s{sT0}, s{sT1}\ns_lshl_b32 s{sT2}, s{sWAVE}, 10")
    for ii in range(28):
        A(f"s_add_u32 s{sT1}, s{sT0}, {ii*131072}\ns_add_u32 s{sT3}, s{sT2}, {ii*4096}\ns_mov_b32 m0, s{sT3}\ns_nop 0")
        A(f"buffer_load_dwordx4 v{cWq}, {srd(s_)}, s{sT1} offen nt lds")


def wq_tr(which):
    A("v_lshrrev_b32 v20, 4, v0\nv_bfe_u32 v21, v0, 2, 2\nv_and_b32 v22, 1, v20\nv_lshl_add_u32 v22, v22, 2, v21")
    A(f"s_lshl_b32 s{sT0}, s{sWAVE}, 1\nv_xor_b32 v22, s{sT0}, v22\nv_lshlrev_b32 v22, 5, v22")
    A("v_lshl_add_u32 v20, v20, 3, v21\nv_lshl_add_u32 v20, v20, 8, v22\nv_and_b32 v21, 3, v0\nv_lshl_add_u32 v20, v21, 3, v20")
    A(f"v_xor_b32 v21, 32, v20\nv_add_u32 v22, {7*8192}, v20\nv_add_u32 v23, {7*8192}, v21")
    for kb in range(14):
        for cb in range(2):
            for hf in range(2):
                d = radd(WQ[which], (kb * 2 + cb) * 4 + hf * 2)
                A(f"ds_read_b64_tr_b16 {vr(d, 2)}, v{20 + cb + (0 if kb < 7 else 2)} offset:{(kb%7)*8192+hf*1024}")
        if kb % 3 == 2:
            A("s_waitcnt lgkmcnt(3)")
    A("s_waitcnt lgkmcnt(0)")


def sel_cb(dst):
    A(f"v_mov_b32 v{dst}, v{cACC}\ns_mov_b32 exec_lo, 0xffff0000\ns_mov_b32 exec_hi, 0xffff0000\nv_mov_b32 v{dst}, v{cACC+4}\ns_mov_b64 exec, -1")


def colsum(which):
    for r in range(4):
        A(f"v_mov_b32 v{20+r}, 0x3f803f80")
    A("s_nop 1")
    for kb in range(14):
        for cb in range(2):
            acc = cACC + 4 * cb
            A(f"v_mfma_f32_16x16x32_bf16 {vr(acc)}, v[20:23], {vr(radd(WQ[which], (kb*2+cb)*4))}, {'0' if kb == 0 else vr(acc)}")
    A("s_nop 7")
    sel_cb(cCS[which])


def wo_base():
    A(f"s_lshr_b32 s{sT0}, s{sCH}, 1\ns_lshl_b32 s{sT0}, s{sT0}, 2\ns_add_u32 s{sT0}, s{sT0}, s{sWAVE}\ns_mul_i32 s{sT0}, s{sT0}, {64*896}")
    A(f"s_and_b32 s{sT1}, s{sCH}, 1\ns_lshl_b32 s{sT1}, s{sT1}, 9\ns_add_u32 s{sT0}, s{sT0}, s{sT1}")


def wo0_loads(which, ts):
    s_ = SRD_WOA if which == 0 else SRD_WOB
    wo_base()
    for t in ts:
        A(f"s_add_u32 s{sT1}, s{sT0}, {4*t*896}")
        A(f"buffer_load_dwordx4 {vr(radd(WO0[which], 4*t))}, v{cWo}, {srd(s_)}, s{sT1} offen nt")


def wo1_addr():
    A(f"s_and_b32 s{sT1}, s{sCH}, 1\ns_lshl_b32 s{sT1}, s{sT1}, 7\ns_not_b32 s{sT1}, s{sT1}")
    A(f"v_lshlrev_b32 v{cWo1}, 4, v0\nv_and_b32 v{cWo1}, 0xf0, v{cWo1}\nv_sub_u32 v{cT}, v{cWo}, v{cWo1}\nv_and_b32 v{cWo1}, s{sT1}, v{cWo1}\nv_add_u32 v{cWo1}, v{cWo1}, v{cT}")


def wo1_regs(ts):
    wo1_addr()
    wo_base()
    for t in ts:
        A(f"s_add_u32 s{sT1}, s{sT0}, {4*t*896+256}")
        A(f"buffer_load_dwordx4 {vr(wo1(t))}, v{cWo1}, {srd(SRD_WOA)}, s{sT1} offen nt")


def wo1_dma(which):
    s_ = SRD_WOA if which == 0 else SRD_WOB
    wo_base()
    A(f"s_lshl_b32 s{sT2}, s{sWAVE}, 14\ns_add_u32 s{sT2}, s{sT2}, {which*65536}")
    for t in range(16):
        A(f"s_add_u32 s{sT1}, s{sT0}, {4*t*896+256}\ns_add_u32 s{sT3}, s{sT2}, {t*1024}\ns_mov_b32 m0, s{sT3}\ns_nop 0")
        A(f"buffer_load_dwordx4 v{cWo1}, {srd(s_)}, s{sT1} offen nt lds")


def lstamp(base):
    if PROFILE:
        for l in range(4):
            lb = A.label("ps")
            A(f"s_cmp_eq_u32 s{sLAYER}, {l}\ns_cbranch_scc0 {lb}")
            stamp(base + 4 * l)
            A(f"{lb}:")


stamp(0)
if int(os.environ.get("PRET", "0")):
    A(f"v_lshlrev_b32 v26, 16, v0\ns_cmp_eq_u32 s{sWAVE}, 1\ns_cbranch_scc0 L_pt2")
    A(f"buffer_load_dword v27, v26, {srd(SRD_WQB)}, 0 offen nt")
    wo_base()
    A(f"s_mov_b64 exec, 0xf\nbuffer_load_dword v32, v26, {srd(SRD_WOA)}, s{sT0} offen nt\nbuffer_load_dword v33, v26, {srd(SRD_WOB)}, s{sT0} offen nt\ns_mov_b64 exec, -1")
    A("L_pt2:")
A(f"v_lshlrev_b32 v{cL16}, 4, v0")
A(f"s_lshl_b32 s{sYST}, s{sCH}, 10\ns_add_u32 s{sYST}, s{sYST}, {WS_Y}")
A(f"s_lshl_b32 s{sQST}, s{sCH}, 8")
A("v_mov_b32 v28, -1\nv_mov_b32 v29, -1\nv_mov_b32 v30, -1\nv_mov_b32 v31, -1")
A(f"s_lshl_b32 s{sT1}, s{sWAVE}, 13\ns_add_u32 s{sT1}, s{sT1}, s{sQST}")
A(f"s_cmp_eq_u32 s{sWAVE}, 0\ns_cbranch_scc0 L_ch_cl1")
A(f"buffer_store_dwordx4 v[28:31], v{cL16}, {srd(SRD_WS)}, s{sYST} offen sc1")
A("L_ch_cl1:\ns_mov_b64 exec, 0xffff")
A(f"buffer_store_dwordx4 v[28:31], v{cL16}, {srd(SRD_WS)}, s{sT1} offen sc1")
A("s_mov_b64 exec, -1")
wq_dma(0)
A(f"v_mul_u32_u24 v{cPOg}, 7168, v20\nv_add_u32 v{cPOg}, v{cPOg}, v22\ns_lshl_b32 s{sT0}, s{sWAVE}, 8\nv_add_u32 v{cPOg}, s{sT0}, v{cPOg}")
A(f"v_min_u32 v23, 6, v21\nv_mul_u32_u24 v24, 7, v20\nv_add_u32 v23, v23, v24\nv_lshlrev_b32 v{cMLg}, 7, v23")
A(f"v_cmp_gt_u32 vcc, 7, v21\ns_nop 1\nv_cndmask_b32 v{cVAL}, 0, 1.0, vcc")
A(f"v_cmp_gt_u32 vcc, 56, v0\ns_nop 1\nv_cndmask_b32 v{cV56}, 0, 1.0, vcc")
A(f"v_lshrrev_b32 v23, 5, v0\nv_lshlrev_b32 v23, 9, v23\nv_lshl_add_u32 v23, v21, 5, v23\nv_and_b32 v24, 1, v20\nv_lshl_add_u32 v{cYst}, v24, 4, v23")
A(f"s_lshl_b32 s{sT0}, s{sWAVE}, 6\nv_lshl_add_u32 v{cQst}, v0, 1, s{sT0}")
A(f"v_add_u32 v{cSCR}, {CSCR}, v{cL16}")
A(f"v_lshlrev_b32 v{cXa}, 4, v20\nv_add_u32 v{cXa}, {XB}, v{cXa}")
A(f"v_min_u32 v{cXs}, 55, v0\nv_lshlrev_b32 v{cXs}, 4, v{cXs}\nv_add_u32 v{cXs}, {XB}, v{cXs}")
A(f"s_lshr_b32 s{sT0}, s{sCH}, 1\ns_mul_i32 s{sPOOFF}, s{sT0}, 28672\ns_add_u32 s{sPOOFF}, s{sPOOFF}, {WS_PO}")
A(f"s_lshl_b32 s{sMLOFF}, s{sT0}, 12\ns_add_u32 s{sMLOFF}, s{sMLOFF}, {WS_ML}")
A(f"s_mul_i32 s{sYOFF}, s{sWAVE}, 448\ns_add_u32 s{sYOFF}, s{sYOFF}, {WS_Y}")
emit_masks(0, MASK, 20, 21)
wo0_loads(0, range(8))
A("s_waitcnt vmcnt(8)")
mk_srd(SRD_OUT, sOUTP, 896)
A(f"ds_write_b32 v{cXw}, v{cX}")
A(f"v_and_b32 v{cX+1}, 0xffff0000, v{cX}\nv_lshlrev_b32 v{cX}, 16, v{cX}")
A("s_waitcnt lgkmcnt(0)\ns_barrier")
A(f"s_cmp_eq_u32 s{sWAVE}, 3\ns_cbranch_scc0 L_ch_noflag")
A(f"s_lshl_b32 s{sT0}, s{sG}, 5\ns_and_b32 s{sT1}, s{sCH}, 3\ns_add_u32 s{sT0}, s{sT0}, s{sT1}")
A(f"v_mov_b32 v28, s{sT0}\nv_mov_b32 v29, s{sID}\ns_mov_b64 exec, 1")
A(f"buffer_store_byte v29, v28, {srd(SRD_DBG)}, 0 offen sc1\ns_mov_b64 exec, -1")
A("L_ch_noflag:")
stamp(1)
wq_tr(0)
colsum(0)
A(f"v_and_b32 v{cT}, 7, v0\nv_lshlrev_b32 v{cT}, 2, v{cT}\ns_lshl_b32 s{sT2}, s{sG}, 5")
A("L_ch_id:")
spin_guard("L_ch_id_ok")
A(f"buffer_load_dword v{cG}, v{cT}, {srd(SRD_DBG)}, s{sT2} offen sc1\ns_waitcnt vmcnt(0)")
A(f"v_and_b32 v{cG+1}, 0x0f0f0f0f, v{cG}\nv_cmp_ne_u32 s[{sT0}:{sT1}], s{sID}, v{cG+1}")
A(f"v_add_u32 v{cG+1}, 0x7f7f7f7f, v{cG}\nv_and_b32 v{cG+1}, 0x80808080, v{cG+1}\nv_cmp_ne_u32 vcc, 0x80808080, v{cG+1}")
A(f"s_cmp_eq_u64 s[{sT0}:{sT1}], 0\ns_cselect_b32 s{sMODE}, 1, 0")
A("s_cmp_lg_u64 vcc, 0\ns_cbranch_scc1 L_ch_id")
A("L_ch_id_ok:")
A("v_mov_b32 v28, -1\nv_mov_b32 v29, -1\nv_mov_b32 v30, -1\nv_mov_b32 v31, -1")
A(f"s_mul_i32 s{sT1}, s{sWAVE}, 7168\ns_add_u32 s{sT1}, s{sT1}, s{sPOOFF}\ns_add_u32 s{sT2}, s{sT1}, 4096")
A(f"s_mul_i32 s{sT0}, s{sWAVE}, {7*128}\ns_add_u32 s{sT0}, s{sT0}, s{sMLOFF}\nv_lshlrev_b32 v{cT}, 7, v0")
A(f"s_cmp_eq_u32 s{sMODE}, 1\ns_cbranch_scc0 L_ch_clf")
for fl in ("", " sc1"):
    if fl:
        A("L_ch_clf:")
    for i in range(7):
        A(f"buffer_store_dwordx4 v[28:31], v{cL16}, {srd(SRD_WS)}, s{sT1 if i < 4 else sT2} offen offset:{1024*(i%4)}{fl}")
    A(f"s_mov_b64 exec, 0x7f\nbuffer_store_dwordx2 v[28:29], v{cT}, {srd(SRD_WS)}, s{sT0} offen{fl}\ns_mov_b64 exec, -1")
    if not fl:
        A("s_branch L_ch_cld")
A("L_ch_cld:")
A("s_waitcnt vmcnt(0)\ns_barrier")
wo0_loads(0, range(8, 16))
A("s_branch L_ch_qp")


def bf16r(dst, src):
    A(f"v_cvt_pk_bf16_f32 v{dst}, 0, v{src}")


A("L_ch_stageA:")
A(f"s_and_b32 s{sT0}, s{sLAYER}, 1\ns_lshl_b32 s{sT0}, s{sT0}, 16\ns_lshl_b32 s{sT1}, s{sWAVE}, 14\ns_add_u32 s{sT0}, s{sT0}, s{sT1}")
A(f"v_add_u32 v{cT}, s{sT0}, v{cL16}")
for t in range(16):
    A(f"ds_read_b128 {vr(wo1(t))}, v{cT} offset:{t*1024}")
    if t == 7:
        A("s_waitcnt lgkmcnt(0)")
for i in range(8):
    A(f"s_add_u32 s{sYG+i}, s{sYOFF}, {4096*i}")
A("s_waitcnt lgkmcnt(0)")
A(f"s_cmp_eq_u32 s{sWAVE}, 0\ns_cbranch_scc0 L_sa_nc\ns_cmp_eq_u32 s{sLAYER}, 3\ns_cbranch_scc1 L_sa_nc")
A(f"v_mov_b32 v28, -1\nv_mov_b32 v29, -1\nv_mov_b32 v30, -1\nv_mov_b32 v31, -1\ns_add_u32 s{sT0}, s{sYST}, 32768")
A(f"buffer_store_dwordx4 v[28:31], v{cL16}, {srd(SRD_WS)}, s{sT0} offen sc1")
A("L_sa_nc:")
A(f"s_add_u32 s{sT0}, s{sPOOFF}, 4096")
cML = cG + 28
A("L_sa_poll:")
spin_guard("L_sa_go")
A(f"buffer_load_dwordx2 v[{cML}:{cML+1}], v{cMLg}, {srd(SRD_WS)}, s{sMLOFF} offen sc1")
for u in range(7):
    so = sPOOFF if u < 4 else sT0
    A(f"buffer_load_dwordx4 {vr(cG+4*u)}, v{cPOg}, {srd(SRD_WS)}, s{so} offen offset:{(u%4)*1024} sc1")
A("s_waitcnt vmcnt(0)")
sentinel_check(range(cG, cG + 30), cT, "L_sa_poll")
A("L_sa_go:")
lstamp(3)
mM, mW, mL = cN, cN + 1, cN + 2
A(f"v_max_f32_dpp v{mM}, v{cML}, v{cML} quad_perm:[1,0,3,2] {DPPF}")
for ctl in ("quad_perm:[2,3,0,1]", "row_half_mirror"):
    A(f"s_nop 1\nv_max_f32_dpp v{mM}, v{mM}, v{mM} {ctl} {DPPF}")
xrow_reduce("v_max_f32", mM, cT)
A(f"v_sub_f32 v{mW}, v{cML}, v{mM}\nv_exp_f32 v{mW}, v{mW}\nv_mul_f32 v{mL}, v{cML+1}, v{cVAL}\nv_mul_f32 v{mL}, v{mL}, v{mW}")
oa = cN + 4
red_steps = [f"v_add_f32_dpp v{mL}, v{mL}, v{mL} {c} {DPPF}" for c in
             ("quad_perm:[1,0,3,2]", "quad_perm:[2,3,0,1]", "row_half_mirror", "row_mirror")]
red_steps[3] += f"\nv_mov_b32 v{cT}, v{mL}"
red_steps.append(f"v_permlane32_swap_b32 v{mL}, v{cT}\nv_add_f32 v{mL}, v{mL}, v{cT}\nv_mov_b32 v{cT}, v{mL}")
red_steps.append(f"v_permlane16_swap_b32 v{mL}, v{cT}\nv_add_f32 v{mL}, v{mL}, v{cT}\nv_rcp_f32 v{mL}, v{mL}")
A("s_nop 0")
for u in range(7):
    for r in range(4):
        op = "v_mul_f32_dpp" if u == 0 else "v_fmac_f32_dpp"
        A(f"{op} v{oa+r}, v{mW}, v{cG+4*u+r} row_newbcast:{u} {DPPF}")
    if u < 6:
        A(red_steps[u])
A("s_nop 0")
A(f"v_permlane32_swap_b32 v{oa}, v{oa+2}\nv_permlane32_swap_b32 v{oa+1}, v{oa+3}")
A(f"v_add_f32 v{oa}, v{oa}, v{oa+2}\nv_add_f32 v{oa+1}, v{oa+1}, v{oa+3}\ns_nop 1")
A(f"v_permlane16_swap_b32 v{oa}, v{oa+1}\nv_add_f32 v{oa}, v{oa}, v{oa+1}")
A(f"v_mul_f32 v{oa}, v{oa}, v{mL}\nv_cvt_pk_bf16_f32 v{oa}, v{oa}, v{oa}")
A(f"s_and_b32 s{sT0}, s{sLAYER}, 1\ns_cmp_eq_u32 s{sT0}, 1\ns_cbranch_scc1 L_sa_B")
for which in range(2):
    if which == 1:
        A("L_sa_B:")

    def gmh(t, hf):
        for r in (0, 1) if hf == 0 else (2, 3):
            A(f"v_and_b32_dpp v{cTT[t&1]+r}, v{oa}, v{MASK+r} row_newbcast:{t} {DPPF}")
    gmh(0, 0)
    gmh(0, 1)
    for t in range(16):
        if t + 1 < 16:
            gmh(t + 1, 0)
        else:
            A("s_nop 0")
        A(f"v_mfma_f32_16x16x32_bf16 {vr(cACC)}, {vr(cTT[t&1])}, {vr(radd(WO0[which],4*t))}, {'0' if t == 0 else vr(cACC)}")
        if t + 1 < 16:
            gmh(t + 1, 1)
        A(f"v_mfma_f32_16x16x32_bf16 {vr(cACC+4)}, {vr(cTT[t&1])}, {vr(wo1(t))}, {'0' if t == 0 else vr(cACC+4)}")
    if which == 0:
        A("s_branch L_sa_red")
A("L_sa_red:")
A(f"s_lshl_b32 s{sT0}, s{sWAVE}, 10\nv_add_u32 v{cT}, s{sT0}, v{cSCR}")
A("s_mov_b32 exec_lo, 0\ns_nop 5")
for r in range(4):
    A(f"v_mov_b32 v{cACC+r}, v{cACC+4+r}")
A("s_mov_b32 exec_lo, -1")
A(f"s_cmp_eq_u32 s{sWAVE}, 0\ns_cbranch_scc1 L_sa_w0")
A(f"ds_write_b128 v{cT}, {vr(cACC)}\ns_waitcnt lgkmcnt(0)\ns_barrier")
H2S = int(os.environ.get("H2S", "8"))
A(f"s_sleep {H2S+2}\ns_branch L_sb")
A("L_sa_w0:\ns_barrier")
for s_ in range(1, 4):
    A(f"ds_read_b128 {vr(cG+4*s_)}, v{cSCR} offset:{1024*s_}")
for s_ in range(1, 4):
    A(f"s_waitcnt lgkmcnt({3-s_})")
    for r in range(0, 4, 2):
        A(f"v_pk_add_f32 v[{cACC+r}:{cACC+r+1}], v[{cACC+r}:{cACC+r+1}], v[{cG+4*s_+r}:{cG+4*s_+r+1}]")
for r in range(4):
    A(f"v_min_u32 v{cACC+r}, -2, v{cACC+r}")
A(f"buffer_store_dwordx4 {vr(cACC)}, v{cYst}, {srd(SRD_WS)}, s{sYST} offen sc1")
lstamp(4)
if H2S:
    A(f"s_sleep {H2S}")
A("L_sb:")
A(f"s_cmp_eq_u32 s{sLAYER}, 3\ns_cbranch_scc0 L_sb_go0\ns_cmp_eq_u32 s{sCH}, 0\ns_cbranch_scc0 L_fin\nL_sb_go0:")


def yload(i):
    return f"buffer_load_dwordx4 {vr(cG+4*i)}, v{cYg}, {srd(SRD_WS)}, s{sYG+i} offen sc1"


for i in range(8):
    A(yload(i))
A("L_sb_poll:")
for i in range(4):
    A(f"s_waitcnt vmcnt({6-2*i})")
    for r in range(0, 4, 2):
        A(f"v_pk_add_f32 v[{cN+4*i+r}:{cN+4*i+r+1}], v[{cG+8*i+r}:{cG+8*i+r+1}], v[{cG+8*i+4+r}:{cG+8*i+4+r+1}]")
    if i & 1:
        for r in range(0, 4, 2):
            A(f"v_pk_add_f32 v[{cN+4*(i-1)+r}:{cN+4*(i-1)+r+1}], v[{cN+4*(i-1)+r}:{cN+4*(i-1)+r+1}], v[{cN+4*i+r}:{cN+4*i+r+1}]")
for r in range(0, 4, 2):
    A(f"v_pk_add_f32 v[{cN+r}:{cN+r+1}], v[{cN+r}:{cN+r+1}], v[{cN+8+r}:{cN+8+r+1}]")
A("s_nop 1")
A(f"v_permlane32_swap_b32 v{cN}, v{cN+2}\nv_permlane32_swap_b32 v{cN+1}, v{cN+3}")
A(f"v_pk_add_f32 v[{cN}:{cN+1}], v[{cN}:{cN+1}], v[{cN+2}:{cN+3}]")
A(f"v_cmp_u_f32 vcc, v{cN}, v{cN+1}")
bf16r(cN, cN)
bf16r(cN + 1, cN + 1)
A("s_cmp_lg_u64 vcc, 0\ns_cbranch_scc0 L_sb_go")
spin_guard("L_sb_go")
A(f"s_mov_b32 s{sT0}, 0")
for i in range(8):
    sk = A.label("ysk")
    g_ = cG + 4 * i
    A(f"v_max3_u32 v{cT}, v{g_}, v{g_+1}, v{g_+2}\nv_max_u32 v{cT}, v{cT}, v{g_+3}\nv_cmp_eq_u32 vcc, -1, v{cT}\ns_nop 0\ns_cmp_lg_u64 vcc, 0\ns_cbranch_scc0 {sk}")
    A(yload(i))
    A(f"s_mov_b32 s{sT0}, 1\n{sk}:")
A(f"s_waitcnt vmcnt(0)\ns_cmp_eq_u32 s{sT0}, 1\ns_cbranch_scc1 L_sb_poll")
A("L_sb_go:")
lstamp(5)
A(f"v_pk_add_f32 v[{cX}:{cX+1}], v[{cX}:{cX+1}], v[{cN}:{cN+1}]")
A(f"v_cvt_pk_bf16_f32 v{cN}, v{cX}, v{cX+1}")
A(f"s_cmp_eq_u32 s{sLAYER}, 3\ns_cbranch_scc1 L_ch_out")
A(f"ds_write_b32 v{cXw}, v{cN}")
A(f"v_and_b32 v{cX+1}, 0xffff0000, v{cN}\nv_lshlrev_b32 v{cX}, 16, v{cN}")
A(f"s_add_u32 s{sLAYER}, s{sLAYER}, 1")
A(f"s_add_u32 s{sPOOFF}, s{sPOOFF}, {PO_L}\ns_add_u32 s{sMLOFF}, s{sMLOFF}, {ML_L}\ns_add_u32 s{sYOFF}, s{sYOFF}, 32768\ns_add_u32 s{sYST}, s{sYST}, 32768\ns_add_u32 s{sQST}, s{sQST}, 8192")
A("s_waitcnt lgkmcnt(0)\ns_barrier")
A("L_ch_qp:")
SV = 20
s1, s2, t0, t1 = 24, 25, 26, 27
A(f"ds_read_b128 {vr(cXA)}, v{cXa}\nds_read_b128 {vr(SV)}, v{cXs}")
for kb in range(1, 14):
    A(f"ds_read_b128 {vr(cXA+4*kb)}, v{cXa} offset:{64*kb}")
st = []
st += [f"v_readfirstlane_b32 s{sT0}, v{cXA}", f"s_lshl_b32 s{sT0}, s{sT0}, 16"]
for r in range(4):
    st += [f"v_lshlrev_b32 v{t0}, 16, v{SV+r}", f"v_and_b32 v{t1}, 0xffff0000, v{SV+r}",
           f"v_subrev_f32 v{t0}, s{sT0}, v{t0}", f"v_subrev_f32 v{t1}, s{sT0}, v{t1}"]
    if r == 0:
        st += [f"v_add_f32 v{s1}, v{t0}, v{t1}", f"v_mul_f32 v{s2}, v{t0}, v{t0}", f"v_fmac_f32 v{s2}, v{t1}, v{t1}"]
    else:
        st += [f"v_add_f32 v{s1}, v{s1}, v{t0}", f"v_fmac_f32 v{s2}, v{t0}, v{t0}", f"v_add_f32 v{s1}, v{s1}, v{t1}", f"v_fmac_f32 v{s2}, v{t1}, v{t1}"]
st += [f"v_mul_f32 v{s1}, v{s1}, v{cV56}", f"v_mul_f32 v{s2}, v{s2}, v{cV56}"]
for ctl in ("quad_perm:[1,0,3,2]", "quad_perm:[2,3,0,1]", "row_half_mirror", "row_mirror"):
    st += ["s_nop 0", f"v_add_f32_dpp v{s1}, v{s1}, v{s1} {ctl} {DPPF}", f"v_add_f32_dpp v{s2}, v{s2}, v{s2} {ctl} {DPPF}"]
for sw in ("v_permlane32_swap_b32", "v_permlane16_swap_b32"):
    st += [f"v_mov_b32 v{t0}, v{s1}", f"v_mov_b32 v{t1}, v{s2}", "s_nop 1", f"{sw} v{s1}, v{t0}", f"{sw} v{s2}, v{t1}",
           f"v_add_f32 v{s1}, v{s1}, v{t0}", f"v_add_f32 v{s2}, v{s2}, v{t1}"]
st += [f"v_mul_f32 v{s1}, {f2u(1.0/448.0)}, v{s1}", f"v_mul_f32 v{s2}, {f2u(1.0/448.0)}, v{s2}",
       f"v_fma_f32 v{s2}, -v{s1}, v{s1}, v{s2}", f"v_max_f32 v{s2}, 0, v{s2}", f"v_add_f32 v{s1}, s{sT0}, v{s1}",
       f"v_cvt_pk_bf16_f32 v{s2}, 0, v{s2}", f"v_cvt_pk_bf16_f32 v{s1}, 0, v{s1}",
       f"v_add_f32 v{s2}, {f2u(1e-5)}, v{s2}", f"v_cvt_pk_bf16_f32 v{s2}, 0, v{s2}", f"v_sqrt_f32 v{s2}, v{s2}", "s_nop 0",
       f"v_cvt_pk_bf16_f32 v{s2}, 0, v{s2}", f"v_rcp_f32 v{s2}, v{s2}"]
A(f"s_and_b32 s{sT1}, s{sLAYER}, 1\ns_cmp_eq_u32 s{sT1}, 1\ns_cbranch_scc1 L_qp_B")
for which in range(2):
    if which == 1:
        A("L_qp_B:")
    sp_ = 0
    nm = 0
    for kb in range(14):
        A(f"s_waitcnt lgkmcnt({13 if kb == 0 else 13-kb})")
        for cb in range(2):
            acc = cACC + 4 * cb
            A(f"v_mfma_f32_16x16x32_bf16 {vr(acc)}, {vr(cXA+4*kb)}, {vr(radd(WQ[which], (kb*2+cb)*4))}, {'0' if kb == 0 else vr(acc)}")
            nm += 1
            upto = min(len(st), (nm * len(st) + 26) // 27)
            while sp_ < upto:
                A(st[sp_])
                sp_ += 1
    A(f"v_mul_f32 v{s1}, v{s1}, v{cCS[which]}")
    if which == 0:
        A("s_branch L_qp_red")
A("L_qp_red:")
A("s_nop 5")
sel_cb(t0)
A(f"v_sub_f32 v{t0}, v{t0}, v{s1}\nv_mul_f32 v{t0}, v{t0}, v{s2}\ns_nop 1")
A(f"v_mov_b32_dpp v{t1}, v{t0} quad_perm:[1,1,3,3] {DPPF}")
A(f"v_cvt_pk_bf16_f32 v{t0}, v{t0}, v{t1}\nv_min_u32 v{t0}, -2, v{t0}")
A("s_mov_b32 exec_lo, 0x55555555\ns_mov_b32 exec_hi, 0")
A(f"s_cmp_eq_u32 s{sMODE}, 1\ns_cbranch_scc0 L_qp_far")
A(f"buffer_store_dword v{t0}, v{cQst}, {srd(SRD_WS)}, s{sQST} offen\ns_branch L_qp_st")
A("L_qp_far:")
A(f"buffer_store_dword v{t0}, v{cQst}, {srd(SRD_WS)}, s{sQST} offen sc1")
A("L_qp_st:")
A("s_mov_b64 exec, -1")
lstamp(2)
A(f"s_cmp_eq_u32 s{sLAYER}, 0\ns_cbranch_scc0 L_ch_stageA")
A("s_barrier")
wq_dma(1)
wo1_regs(range(16))
A("s_waitcnt vmcnt(16)\ns_barrier")
wq_tr(1)
A("s_barrier")
wo0_loads(1, range(16))
wo1_dma(1)
colsum(1)
A(f"s_waitcnt vmcnt(32)\ns_lshl_b32 s{sT1}, s{sWAVE}, 14\nv_add_u32 v{cT}, s{sT1}, v{cL16}")
for t in range(16):
    A(f"ds_write_b128 v{cT}, {vr(wo1(t))} offset:{t*1024}")
A("s_waitcnt lgkmcnt(0)")
if os.environ.get("EXP", ""):
    A("s_waitcnt vmcnt(0)")
    stamp(3)
    A("s_branch L_fin")
A("L_ch_cnt:")
spin_guard("L_ch_cnt_ok")
A(f"v_lshlrev_b32 v{cT}, 2, v0")
A(f"buffer_load_dword v{cG}, v{cT}, {srd(SRD_DBG)}, 0 offen sc1\ns_waitcnt vmcnt(0)")
A(f"v_add_u32 v{cG+1}, 0x7f7f7f7f, v{cG}\nv_and_b32 v{cG+1}, 0x80808080, v{cG+1}\nv_cmp_ne_u32 vcc, 0x80808080, v{cG+1}\ns_nop 0")
A("s_cmp_lg_u64 vcc, 0\ns_cbranch_scc1 L_ch_cnt")
A("L_ch_cnt_ok:")
stamp(18)
A("L_ch_pre:")
spin_guard("L_ch_stageA")
A("s_sleep 16\ns_mov_b64 exec, 1")
A(f"buffer_load_dword v{cML}, v{cMLg}, {srd(SRD_WS)}, s{sMLOFF} offen sc1\ns_waitcnt vmcnt(0)")
A(f"v_readfirstlane_b32 s{sT0}, v{cML}\ns_mov_b64 exec, -1\ns_cmp_eq_u32 s{sT0}, -1\ns_cbranch_scc1 L_ch_pre")
A("s_branch L_ch_stageA")
A("L_ch_out:")
A(f"v_subrev_u32 v{cT}, {XB}, v{cXw}")
A(f"buffer_store_dword v{cN}, v{cT}, {srd(SRD_OUT)}, 0 offen")
stamp(19)
if os.environ.get("DIAG"):
    da, db = [int(x) for x in os.environ["DIAG"].split(",")]
    ra = 100 if da == 99 else sSTAMP + 2 * da
    A(f"s_sub_u32 s{sT0}, s{sSTAMP+2*db}, s{ra}\ns_lshl_b32 s{sT0}, s{sT0}, 2\ns_min_u32 s{sT0}, s{sT0}, 100000\ns_add_u32 s{sT0}, s{sT0}, s{sSTAMP+38}")
    A(f"L_diag:\ns_memrealtime s[{sT2}:{sT3}]\ns_waitcnt lgkmcnt(0)\ns_sub_u32 s{sT1}, s{sT2}, s{sT0}\ns_cmp_lt_i32 s{sT1}, 0\ns_cbranch_scc1 L_diag")

A("L_fin:")
if PROFILE:
    A(f"s_mul_i32 s{sT0}, s2, 640\ns_mul_i32 s{sT1}, s{sWAVE}, 160\ns_add_u32 s{sT0}, s{sT0}, s{sT1}\ns_add_u32 s{sT0}, s{sT0}, {WS_STAMP}")
    A("s_mov_b64 exec, 1\nv_mov_b32 v1, 0")
    for i in range(10):
        for r in range(4):
            A(f"v_mov_b32 v{4+r}, s{sSTAMP+4*i+r}")
        A(f"buffer_store_dwordx4 v[4:7], v1, {srd(SRD_WS)}, s{sT0} offen offset:{16*i}\ns_nop 1")
if PROFILE:
    pass
A("L_end:")
A("s_endpgm")

for l in A.L:
    OUT.append(l if l.endswith(":") else "    " + l)
OUT.append('.section .rodata,"a"')
OUT.append(".p2align 6")
OUT.append(f".amdhsa_kernel {NAME}_kernel")
OUT.append("""  .amdhsa_next_free_vgpr 512
  .amdhsa_next_free_sgpr 102
  .amdhsa_accum_offset 256
  .amdhsa_group_segment_fixed_size 0
  .amdhsa_kernarg_size 104
  .amdhsa_user_sgpr_count 2
  .amdhsa_user_sgpr_kernarg_segment_ptr 1
  .amdhsa_system_sgpr_workgroup_id_x 1
  .amdhsa_float_denorm_mode_32 3
.end_amdhsa_kernel""")
out = sys.argv[1] if len(sys.argv) > 1 else f"cdna_kernels/{NAME}.s"
open(out, "w").write("\n".join(OUT) + "\n")
print("wrote", out, len(A.L), "lines")
```

```python
import sys, os, struct

PROFILE = int(os.environ.get("PROFILE", "0"))
NAME = "interleave_layers__gqa_block_cached__sliding_block_cached__decode"

WS_Q = 0
WS_Y = 49152
WS_PO = 196608
WS_ML = 196608 + 4 * 458752
ML_L = 65536
PO_L = 16 * 28 * 1024
WS_STAMP = 4 << 20
WS_SIZE = 283117312
SPIN_MAX = 1 << 18

CSCALE = struct.unpack("<I", struct.pack("<f", 1.4426950408889634 / 16.0))[0]
NEG_INF = 0xFF800000


def f2u(x):
    return struct.unpack("<I", struct.pack("<f", x))[0]


class Asm:
    def __init__(self):
        self.L = []
        self.nlabel = 0

    def __call__(self, s):
        for line in s.split("\n"):
            line = line.strip()
            if line:
                self.L.append(line)

    def label(self, base):
        self.nlabel += 1
        return f"L_{base}_{self.nlabel}"


A = Asm()


def vr(r, n=4):
    if isinstance(r, int):
        r = ("v", r)
    k, i = r
    return f"{k}[{i}:{i+n-1}]" if n > 1 else f"{k}{i}"


def radd(r, d):
    if isinstance(r, int):
        return r + d
    return (r[0], r[1] + d)


DPPF = "row_mask:0xf bank_mask:0xf"

sWAVE = 3
SRD_KA, SRD_VA, SRD_KB, SRD_VB, SRD_WS, SRD_DBG = 4, 8, 12, 16, 20, 24
SRD_WQA, SRD_WOA, SRD_WQB, SRD_WOB = 4, 8, 12, 16
SRD_X, SRD_OUT = 28, 80
sOFFA, sOFFA36, sOFFB, sOFFB9 = 28, 29, 30, 31
sBIASA, sBIASB = 32, 33
sC = 36
sLDSW = 37
sT0, sT1, sT2, sT3 = 38, 39, 40, 41
sLAYER = 42
sSPIN = 43
sQOFF, sPOOFF, sMLOFF, sYOFF = 44, 45, 46, 47
sG, sSP = 48, 49
sYST, sQST = 50, 51
sOFFB8 = 50
sCL = 47
sW4 = 58
sID, sMODE = 34, 35
KARG = 52
sSTAMP = 60
SRD_OUT = 28
sOUTP = 32

nstamp = [0]


def srd(r):
    return f"s[{r}:{r+3}]"


def stamp(idx):
    if PROFILE == 2 and idx not in (0, 5, 19):
        return
    if PROFILE:
        assert idx < 20
        if idx == 0:
            for i in range(1, 20):
                A(f"s_mov_b64 s[{sSTAMP+2*i}:{sSTAMP+2*i+1}], 0")
            A(f"s_mov_b64 s[{sSTAMP}:{sSTAMP+1}], s[100:101]")
            return
        A(f"s_memrealtime s[{sSTAMP+2*idx}:{sSTAMP+2*idx+1}]\ns_waitcnt lgkmcnt(0)")


def mk_srd(dst, ptr, size):
    A(f"s_mov_b32 s{dst}, s{ptr}\ns_and_b32 s{dst+1}, s{ptr+1}, 0xffff\ns_mov_b32 s{dst+2}, {size}\ns_mov_b32 s{dst+3}, 0x20000")


def emit_masks(vlane, m0, t0, t1):
    A(f"v_and_b32 v{t0}, 1, v{vlane}")
    A(f"v_lshlrev_b32 v{t0}, 4, v{t0}")
    A(f"v_mov_b32 v{t1}, 0xffff")
    A(f"v_lshlrev_b32 v{t0}, v{t0}, v{t1}")
    A(f"v_bfe_u32 v{t1}, v{vlane}, 1, 2")
    for r in range(4):
        A(f"v_cmp_eq_u32 vcc, {r}, v{t1}")
        A("s_nop 1")
        A(f"v_cndmask_b32 v{m0+r}, 0, v{t0}, vcc")


def xrow_reduce(op, v, t):
    A(f"v_mov_b32 v{t}, v{v}\ns_nop 1\nv_permlane32_swap_b32 v{v}, v{t}\n{op} v{v}, v{v}, v{t}")
    A(f"v_mov_b32 v{t}, v{v}\ns_nop 1\nv_permlane16_swap_b32 v{v}, v{t}\n{op} v{v}, v{v}, v{t}")


def sentinel_check(regs, t, retry_label):
    regs = list(regs)
    A(f"v_max3_u32 v{t}, v{regs[0]}, v{regs[1]}, v{regs[2]}")
    i = 3
    while i + 1 < len(regs):
        A(f"v_max3_u32 v{t}, v{t}, v{regs[i]}, v{regs[i+1]}")
        i += 2
    if i < len(regs):
        A(f"v_max_u32 v{t}, v{t}, v{regs[i]}")
    A(f"v_cmp_eq_u32 vcc, -1, v{t}")
    A("s_nop 0")
    A(f"s_cmp_lg_u64 vcc, 0\ns_cbranch_scc1 {retry_label}")


def spin_guard(giveup_label):
    A(f"s_sub_u32 s{sSPIN}, s{sSPIN}, 1\ns_cmp_eq_u32 s{sSPIN}, 0\ns_cbranch_scc1 {giveup_label}")
    if os.environ.get("PSLEEP"):
        A(f"s_sleep {os.environ['PSLEEP']}")


hdr = open(f"cdna_kernels/{NAME}.s.ref").read().split("\n")
head = [l for l in hdr if l.startswith(";") and "@launch" not in l]
OUT = list(head)
OUT.append("; @launch grid=(256,1,1) block=(256,1,1) lds=163840")
OUT.append('.amdgcn_target "amdgcn-amd-amdhsa--gfx950"')
OUT.append(".text")
OUT.append(f".globl {NAME}_kernel")
OUT.append(".p2align 8")
OUT.append(f".type {NAME}_kernel,@function")
OUT.append(f"{NAME}_kernel:")

if PROFILE:
    A("s_memrealtime s[100:101]")
A("s_cmp_ge_u32 s2, 256\ns_cbranch_scc1 L_end")
A(f"s_load_dwordx16 s[{KARG}:{KARG+15}], s[0:1], 0")
A(f"s_load_dwordx8 s[{KARG+16}:{KARG+23}], s[0:1], 64")
A(f"s_load_dwordx2 s[{KARG+24}:{KARG+25}], s[0:1], 96")
pAX, pAK, pAV, pAWQ, pAWO, pBX, pBK, pBV, pBWQ, pBWO, pOUT, pDBG, pWS = [KARG + 2 * i for i in range(13)]
A("v_lshrrev_b32 v1, 6, v0\nv_and_b32 v0, 63, v0")
A(f"s_and_b32 s{sG}, s2, 7\ns_lshr_b32 s{sSP}, s2, 3")
A(f"v_readfirstlane_b32 s{sWAVE}, v1")
A(f"s_cmp_lt_u32 s{sSP}, 4\ns_cbranch_scc1 L_chain")


def common_setup():
    A(f"s_mov_b32 s{sC}, {CSCALE}\ns_mov_b32 s{sSPIN}, {SPIN_MAX}\ns_mov_b32 s{sLAYER}, 0")
    A(f"s_getreg_b32 s{sID}, hwreg(HW_REG_XCC_ID, 0, 4)\ns_min_u32 s{sID}, s{sID}, 14\ns_add_u32 s{sID}, s{sID}, 1\ns_mul_i32 s{sID}, s{sID}, 0x01010101\ns_mov_b32 s{sMODE}, 0")
    mk_srd(SRD_WS, pWS, WS_SIZE)
    mk_srd(SRD_DBG, pDBG, 256)


vK, vV, vKd, vVd, vL, vQ, vT = 1, 2, 3, 4, 5, 6, 7
MASK = 8
QA = 12
DT = 20
vCM, vLS, vMX, vPO, vX = 32, 33, 34, 35, 36
vCMr, vCMw, vF = 3, 4, 30
vFA, vFD = 36, 3
SC = 37
STG_A = [56, 60, 64, 68]
NSLOT = 19
XBASE = 4 * NSLOT * 2048
MLBASE = XBASE + 6144


def half(h):
    return ("v", 72 + 8 * h) if h < 23 else ("a", 8 * (h - 23))


NKA = 37
NVREG = 18
KVBYTES = 67108864

PSTRIDE = 16384
sHB = 59
A(f"s_sub_u32 s{sSP}, s{sSP}, 4")
A(f"s_mul_i32 s{sT1}, s{sSP}, 36\ns_min_u32 s{sT2}, s{sSP}, 16\ns_add_u32 s{sT1}, s{sT1}, s{sT2}\ns_lshl_b32 s{sT1}, s{sT1}, 13")
A(f"s_lshl_b32 s{sT3}, s{sG}, 23\ns_add_u32 s{sOFFA36}, s{sT1}, s{sT3}")
A(f"s_lshl_b32 s{sT0}, s{sWAVE}, 12\ns_add_u32 s{sOFFA}, s{sOFFA36}, s{sT0}")
A(f"s_mul_i32 s{sLDSW}, s{sWAVE}, {NSLOT*2048}")
A(f"v_lshrrev_b32 v20, 4, v0       ; s / row")
A(f"v_and_b32 v21, 15, v0          ; j")
A(f"v_lshlrev_b32 v25, 4, v21")
A(f"v_lshl_add_u32 v{vV}, v20, 9, v25")
A(f"v_add_u32 v{vVd}, 768, v{vV}")
A("s_waitcnt lgkmcnt(0)")
mk_srd(SRD_VA, pAV, KVBYTES)


def late_setup():
    common_setup()
    mk_srd(SRD_KA, pAK, KVBYTES)
    mk_srd(SRD_KB, pBK, KVBYTES)
    mk_srd(SRD_VB, pBV, KVBYTES)
    stamp(0)
    A(f"v_and_b32 v{vFA}, 7, v0\nv_lshlrev_b32 v{vFA}, 5, v{vFA}")
    A(f"s_cmp_eq_u32 s{sWAVE}, 0\ns_cbranch_scc0 L_nc")
    A(f"v_mov_b32 v{vT}, s{sID}\ns_lshl_b64 exec, 1, s{sG}")
    A(f"buffer_store_byte v{vT}, v{vFA}, {srd(SRD_DBG)}, s{sSP} offen offset:4 sc1\ns_mov_b64 exec, -1")
    A("L_nc:")
    A(f"s_cmp_lt_u32 s{sSP}, 16")
    A(f"s_cselect_b32 s{sT2}, 36, 35")
    A(f"s_cselect_b32 s{sBIASA}, 0, {NEG_INF}")
    A(f"s_lshl_b32 s{sT2}, s{sT2}, 13\ns_lshl_b32 s{sT0}, s{sWAVE}, 11\ns_add_u32 s{sT2}, s{sT2}, s{sT0}")
    A(f"s_add_u32 s{sOFFA36}, s{sOFFA36}, s{sT2}")
    A(f"s_mul_i32 s{sT1}, s{sSP}, 9\ns_max_u32 s{sT2}, s{sSP}, 24\ns_sub_u32 s{sT2}, s{sT2}, 24\ns_add_u32 s{sT1}, s{sT1}, s{sT2}")
    A(f"s_lshl_b32 s{sT1}, s{sT1}, 13\ns_add_u32 s{sT1}, s{sT1}, s{sT3}\ns_add_u32 s{sT1}, s{sT1}, {12288*512}")
    A(f"s_lshl_b32 s{sT2}, s{sWAVE}, 12\ns_add_u32 s{sOFFB}, s{sT1}, s{sT2}")
    A(f"s_add_u32 s{sOFFB8}, s{sT1}, s{sT0}\ns_add_u32 s{sOFFB8}, s{sOFFB8}, {32*2048}")
    A(f"s_cmp_ge_u32 s{sSP}, 24")
    A(f"s_cselect_b32 s{sT1}, 1, 0")
    A(f"s_cselect_b32 s{sBIASB}, 0, {NEG_INF}")
    A(f"s_lshl_b32 s{sT1}, s{sT1}, 13")
    A(f"s_add_u32 s{sOFFB9}, s{sOFFB8}, s{sT1}")
    for p in range(4):
        A(f"s_add_u32 s{sBO+p}, s{sOFFB}, {p*PSTRIDE}")
    A(f"s_mov_b32 s{sBO+4}, s{sOFFB8}\ns_mov_b32 s{sBO+5}, s{sOFFB9}")
    A(f"v_and_b32 v22, 3, v0           ; c")
    A(f"v_bfe_u32 v23, v0, 2, 2        ; a")
    A(f"v_lshl_add_u32 v24, v20, 2, v22   ; 4s+c")
    A(f"v_lshlrev_b32 v24, 4, v24")
    A(f"v_lshl_add_u32 v{vK}, v23, 9, v24")
    A(f"v_lshl_add_u32 v{vL}, v0, 4, s{sLDSW}")
    A(f"v_lshrrev_b32 v27, 3, v21      ; head(j)")
    A(f"v_lshl_add_u32 v{vQ}, v27, 9, v24")
    A(f"v_lshrrev_b32 v27, 5, v0\nv_mul_u32_u24 v27, 28672, v27\nv_lshl_add_u32 v27, v21, 5, v27")
    A(f"v_and_b32 v28, 1, v20\nv_lshl_add_u32 v{vPO}, v28, 4, v27")
    A(f"s_lshl_b32 s{sQOFF}, s{sG}, 10")
    A(f"s_mul_i32 s{sPOOFF}, s{sG}, 56\ns_add_u32 s{sPOOFF}, s{sPOOFF}, s{sSP}\ns_lshl_b32 s{sPOOFF}, s{sPOOFF}, 10\ns_add_u32 s{sPOOFF}, s{sPOOFF}, {WS_PO}")
    A(f"s_lshl_b32 s{sMLOFF}, s{sG}, 13\ns_lshl_b32 s{sT0}, s{sSP}, 7\ns_add_u32 s{sMLOFF}, s{sMLOFF}, s{sT0}\ns_add_u32 s{sMLOFF}, s{sMLOFF}, {WS_ML}")
    emit_masks(0, MASK, 20, 21)


def ld_items_reg(srdr, voff, soff_base, ulist, regs_of):
    items = []
    i = 0
    while i < len(ulist):
        u = ulist[i]
        pair = ulist[i:i + 2]
        assert u % 2 == 0
        pre = f"s_add_u32 s{sT0}, s{soff_base}, {(u//2)*PSTRIDE}"
        first = True
        for k, uu in enumerate(pair):
            for m in range(2):
                txt = f"buffer_load_dwordx4 {vr(radd(regs_of(uu), 4*m))}, v{voff}, {srd(srdr)}, s{sT0} offen offset:{k*2048+m*256} nt"
                if first:
                    txt = pre + "\n" + txt
                    first = False
                items.append((txt, uu))
        i += 2
    return items


def ld_items_lds(srdr, voff, voffd, soff_base, ulist, slot_of):
    items = []
    i = 0
    while i < len(ulist):
        u = ulist[i]
        pair = ulist[i:i + 2]
        assert u % 2 == 0
        d = (u // 2) * PSTRIDE - 768
        pre = (f"s_add_u32 s{sT1}, s{soff_base}, {d}" if d >= 0 else f"s_sub_u32 s{sT1}, s{soff_base}, {-d}")
        pre += f"\ns_add_u32 s{sT2}, s{sLDSW}, {slot_of(u)*2048}\ns_mov_b32 m0, s{sT2}\ns_nop 0"
        first = True
        for k, uu in enumerate(pair):
            assert slot_of(uu) == slot_of(u) + k
            for m in range(2):
                v = voffd if m == 0 else voff
                txt = f"buffer_load_dwordx4 v{v}, {srd(srdr)}, s{sT1} offen offset:{k*2048+m*1024} nt lds"
                if first:
                    txt = pre + "\n" + txt
                    first = False
                items.append((txt, uu))
        i += 2
    return items


class GRing:
    def __init__(self, keys, text_of, quads):
        self.keys, self.text_of, self.quads = keys, text_of, quads
        self.pos = {k: i for i, k in enumerate(keys)}
        self.issued = 0
        self.landed = 0

    def issue(self, upto):
        out = []
        while self.issued < min(upto, len(self.keys)):
            out.append(self.text_of(self.keys[self.issued], self.quads[self.issued % len(self.quads)]))
            self.issued += 1
        return "\n".join(out)

    def consume(self, key):
        i = self.pos[key]
        w = "" if i < self.landed else f"s_waitcnt vmcnt({self.issued - i - 1})\n"
        return w, self.quads[i % len(self.quads)], i + 1 + len(self.quads)


def qk_groups(n, ksrc, bias_sgpr, stg, hook=None):
    G = []
    nC = (n + 1) // 2
    G.append((f"v_mov_b32 v{vMX}, {NEG_INF}" + (f"\nv_mov_b32 v{SC+nC-1}, {NEG_INF}" if n & 1 else ""), None))
    reads = [(u, m) for u in range(n) if ksrc(u)[0] == "lds" for m in range(2)]
    rpos = {rm: i for i, rm in enumerate(reads)}
    issued = [0]

    def issue_reads(upto, out):
        while issued[0] < min(upto, len(reads)):
            u, m = reads[issued[0]]
            q = stg[issued[0] % len(stg)]
            out.append((f"ds_read_b128 {vr(q)}, v{vL} offset:{ksrc(u)[1]*2048+m*1024}", ksrc(u)[2]))
            issued[0] += 1

    pre = []
    issue_reads(len(stg), pre)

    def bops(u):
        d = DT + 4 * (u % 3)
        c = SC + u // 2
        bm = 0x5 if (u & 1) == 0 else 0xA
        t = f"v_mov_b32_dpp v{d}, v{d} quad_perm:[0,0,0,0] {DPPF}\n"
        t += f"v_add_f32_dpp v{d}, v{d+1}, v{d} quad_perm:[1,1,1,1] {DPPF}\n"
        t += f"v_add_f32_dpp v{d}, v{d+2}, v{d} quad_perm:[2,2,2,2] {DPPF}\n"
        if u == n - 1:
            t += f"v_add_f32 v{d}, s{bias_sgpr}, v{d}\n"
        t += f"v_add_f32_dpp v{c}, v{d+3}, v{d} quad_perm:[3,3,3,3] row_mask:0xf bank_mask:{bm:#x}\n"
        if (u & 1) or u == n - 1:
            t += f"v_max_f32 v{vMX}, v{vMX}, v{c}\n"
        return t

    body = []
    for u in range(n):
        d = DT + 4 * (u % 3)
        src = ksrc(u)
        b = bops(u - 2).strip().split("\n") if u >= 2 else []
        if u == 2:
            b = ["s_nop 4"] + b
        parts = [b[:len(b) // 2], b[len(b) // 2:]]
        for m in range(2):
            cin = "0" if m == 0 else vr(d)
            if src[0] == "reg":
                t = f"v_mfma_f32_16x16x32_bf16 {vr(d)}, {vr(radd(src[1],4*m))}, {vr(QA+4*m)}, {cin}"
                if hook and hook(u, m):
                    t += "\n" + hook(u, m)
                body.append((t, src[2]))
            elif src[0] == "gl":
                w, q, upto = src[1].consume(("K", u, m))
                body.append((w + f"v_mfma_f32_16x16x32_bf16 {vr(d)}, {vr(q)}, {vr(QA+4*m)}, {cin}", None))
                if parts[m]:
                    body.append(("\n".join(parts[m]), None))
                    parts[m] = []
                body.append((src[1].issue(upto), None))
            else:
                i = rpos[(u, m)]
                q = stg[i % len(stg)]
                t = f"s_waitcnt lgkmcnt({issued[0]-i-1})\n"
                t += f"v_mfma_f32_16x16x32_bf16 {vr(d)}, {vr(q)}, {vr(QA+4*m)}, {cin}"
                body.append((t, None))
                issue_reads(i + 1 + len(stg), body)
            if parts[m]:
                body.append(("\n".join(parts[m]), None))
    body.append((bops(n - 2), None))
    body.append(("s_nop 1\n" + bops(n - 1), None))
    return G, pre, body


def max_group():
    t = "s_nop 1\n"
    t += f"v_max_f32_dpp v{vMX}, v{vMX}, v{vMX} row_half_mirror {DPPF}\n"
    t += f"v_mov_b32 v{vT}, v{vMX}\ns_nop 1\nv_permlane32_swap_b32 v{vMX}, v{vT}\nv_max_f32 v{vMX}, v{vMX}, v{vT}\n"
    t += f"v_mov_b32 v{vT}, v{vMX}\ns_nop 1\nv_permlane16_swap_b32 v{vMX}, v{vT}\nv_max_f32 v{vMX}, v{vMX}, v{vT}\n"
    t += f"v_mul_f32 v{vCM}, s{sC}, v{vMX}\nv_mov_b32 v{vLS}, 0\nds_write_b32 v{vCMw}, v{vCM}"
    return (t, None)


def pv_groups(order, vsrc, stg, bar_at, tp):
    T = [DT, DT + 4]
    PP = [DT + 8, DT + 9]
    n = len(order)
    reads = [(u, m) for u in order if vsrc(u)[0] == "lds" for m in range(2)]
    rpos = {rm: i for i, rm in enumerate(reads)}
    issued = [0]
    body = []

    def issue_reads(upto):
        while issued[0] < min(upto, len(reads)):
            u, m = reads[issued[0]]
            q = stg[issued[0] % len(stg)]
            body.append((f"ds_read_b128 {vr(q)}, v{vL} offset:{vsrc(u)[1]*2048+m*1024}", vsrc(u)[2], None))
            issued[0] += 1

    pairs = []
    for u in order:
        if u // 2 not in pairs:
            pairs.append(u // 2)
    pidx = {k: i for i, k in enumerate(pairs)}

    def E(k):
        c = SC + k
        return f"v_fma_f32 v{c}, v{c}, s{sC}, -v{vCM}\nv_exp_f32 v{c}, v{c}\n"

    def F(k):
        c = SC + k
        return f"v_add_f32 v{vLS}, v{vLS}, v{c}\nv_cvt_pk_bf16_f32 v{PP[pidx[k]&1]}, v{c}, v{c}\n"

    def Gm(i):
        u = order[i]
        pp = PP[pidx[u // 2] & 1]
        rho = u & 1
        t = ""
        for r in range(4):
            if (r >> 1) == rho:
                t += f"v_and_b32 v{T[i&1]+r}, v{pp}, v{MASK+r}\n"
        for r in range(4):
            if (r >> 1) != rho:
                sh = "row_shr:4" if rho == 0 else "row_shl:4"
                t += f"v_and_b32_dpp v{T[i&1]+r}, v{pp}, v{MASK+r} {sh} {DPPF} bound_ctrl:0\n"
        return t

    t = E(pairs[0])
    if len(pairs) > 1:
        t += E(pairs[1])
    else:
        t += "s_nop 0\n"
    t += F(pairs[0]) + Gm(0)
    body.append((t, None, None))
    edone = min(2, len(pairs))
    fdone = 1
    first_lds_started = False
    for i in range(n):
        u = order[i]
        nxt = [order[j] for j in range(i, min(n, i + 3))]
        if not first_lds_started and any(vsrc(x)[0] == "lds" for x in nxt):
            issue_reads(len(stg))
            first_lds_started = True
        t = ""
        if i + 1 < n:
            k1 = pidx[order[i + 1] // 2]
            if k1 >= fdone:
                t += F(pairs[k1])
                fdone = k1 + 1
                if edone < len(pairs):
                    t += E(pairs[edone])
                    edone += 1
            t += Gm(i + 1)
        if i == bar_at:
            body.append((f"v_add_u32 v{vT}, s{sW4}, v{vCMr}\ns_waitcnt lgkmcnt(0)\ns_barrier\n"
                         f"ds_read_b64 v[{vF}:{vF+1}], v{vCMr}\nds_read_b64 v[{tp}:{tp+1}], v{vCMr} offset:8\nds_read_b32 v{vT}, v{vT}", None, None))
        if i == min(bar_at + 2, n - 1):
            t += (f"s_waitcnt lgkmcnt(0)\nv_max3_f32 v{vMX}, v{vF}, v{vF+1}, v{tp}\nv_max_f32 v{vMX}, v{vMX}, v{tp+1}\n"
                  f"v_sub_f32 v{vF}, v{vT}, v{vMX}\nv_exp_f32 v{vF}, v{vF}\n")
        tl = [x for x in t.strip().split("\n") if x]
        parts = [tl[:len(tl) // 2], tl[len(tl) // 2:]]
        if not tl:
            parts[0] = ["s_nop 0"]
        src = vsrc(u)
        for m in range(2):
            acc = QA + 4 * m
            cin = "0" if i == 0 else vr(acc)
            if parts[m]:
                body.append(("\n".join(parts[m]), None, None))
            if src[0] == "reg":
                body.append((f"v_mfma_f32_16x16x32_bf16 {vr(acc)}, {vr(T[i&1])}, {vr(radd(src[1],4*m))}, {cin}", src[2], None))
            elif src[0] == "gl":
                w, q, upto = src[1].consume(("V", u, m))
                body.append((w + f"v_mfma_f32_16x16x32_bf16 {vr(acc)}, {vr(T[i&1])}, {vr(q)}, {cin}", None, None))
                body.append((src[1].issue(upto), None, None))
            else:
                j = rpos[(u, m)]
                q = stg[j % len(stg)]
                body.append((f"s_waitcnt lgkmcnt({issued[0]-j-1})\nv_mfma_f32_16x16x32_bf16 {vr(acc)}, {vr(T[i&1])}, {vr(q)}, {cin}", None, u if m == 1 else None))
                issue_reads(j + 1 + len(stg))
    return body


def emit_groups(gs):
    for g in gs:
        A(g[0])


def clear_next(t4, ta):
    sk, far = A.label("clsk"), A.label("clfar")
    A(f"s_cmp_lt_u32 s{sWAVE}, 2\ns_cbranch_scc1 {sk}")
    for r in range(4):
        A(f"v_mov_b32 v{t4+r}, -1")
    A(f"v_lshlrev_b32 v{ta}, 4, v0")
    A(f"s_sub_u32 s{sT3}, s{sWAVE}, 2\ns_lshl_b32 s{sCL}, s{sT3}, 12\ns_add_u32 s{sCL}, s{sCL}, s{sMLOFF}\ns_add_u32 s{sCL}, s{sCL}, {ML_L}")
    A(f"s_mul_i32 s{sT3}, s{sT3}, 28672\ns_add_u32 s{sT3}, s{sT3}, s{sPOOFF}\ns_add_u32 s{sT3}, s{sT3}, {PO_L}")
    A(f"s_cmp_eq_u32 s{sMODE}, 1\ns_cbranch_scc0 {far}")
    for fl in ("", " sc1"):
        if fl:
            A(f"{far}:")
        A(f"buffer_store_dwordx4 {vr(t4)}, v{ta}, {srd(SRD_WS)}, s{sT3} offen{fl}")
        A(f"s_mov_b64 exec, 1\nbuffer_store_dwordx2 {vr(t4, 2)}, v{ta}, {srd(SRD_WS)}, s{sCL} offen{fl}\ns_mov_b64 exec, -1")
        if not fl:
            A(f"s_branch {sk}")
    A(f"{sk}:\ns_nop 1")


def code_prefetch(lab_from, nbytes, vaddr, vjunk, sp):
    here = A.label("pc")
    A(f"s_getpc_b64 s[{sp}:{sp+1}]\n{here}:")
    A(f"s_add_u32 s{sp}, s{sp}, {lab_from}-{here}\ns_addc_u32 s{sp+1}, s{sp+1}, {'-1' if lab_from in BACKWARD else '0'}")
    A(f"v_lshlrev_b32 v{vaddr}, 6, v0")
    for o in range(0, nbytes, 4096):
        A(f"global_load_dword v{vjunk}, v{vaddr}, s[{sp}:{sp+1}]")
        if o + 4096 < nbytes:
            A(f"v_add_u32 v{vaddr}, 4096, v{vaddr}")


BACKWARD = set()


def cm_addr():
    A(f"v_lshrrev_b32 v{vCMr}, 5, v0\nv_lshlrev_b32 v{vCMr}, 4, v{vCMr}\nv_add_u32 v{vCMr}, {MLBASE}, v{vCMr}")
    A(f"v_bfe_u32 v{vCMw}, v0, 3, 1\nv_lshlrev_b32 v{vCMw}, 4, v{vCMw}\nv_add_u32 v{vCMw}, s{sW4}, v{vCMw}\nv_add_u32 v{vCMw}, {MLBASE}, v{vCMw}")


def q_loads():
    return (f"buffer_load_dwordx4 {vr(QA)}, v{vQ}, {srd(SRD_WS)}, s{sQOFF} offen sc1\n"
            f"buffer_load_dwordx4 {vr(QA+4)}, v{vQ}, {srd(SRD_WS)}, s{sQOFF} offen offset:256 sc1")


def poll_q_blocking():
    lp, done = A.label("qpoll"), A.label("qdone")
    A(f"{lp}:")
    spin_guard(done)
    A(q_loads())
    A("s_waitcnt vmcnt(0)")
    sentinel_check(range(QA, QA + 8), vT, lp)
    A(f"{done}:")
    A("s_nop 1")


VL_UNITS = list(range(NVREG, NKA))
vslot = lambda u: u - NVREG
loads = []
it = ld_items_lds(SRD_VA, vV, vVd, sOFFA, VL_UNITS[:-1], vslot)
loads += [(t, ("V", u), None) for t, u in it]
it = ld_items_lds(SRD_VA, vV, vVd, sOFFA36, [0], lambda u: vslot(36))
loads += [(t, ("V", 36), None) for t, u in it]
it = ld_items_reg(SRD_KA, vK, sOFFA, list(range(36)), half)
kl = [(t, ("K", u), None) for t, u in it]
it = ld_items_reg(SRD_KA, vK, sOFFA36, [0], lambda u: half(36))
kl += [(t, ("K", 36), None) for t, u in it]
ca_load = (f"buffer_load_dword v{vCM}, v{vFA}, {srd(SRD_DBG)}, 0 offen sc1", ("CA",), None)
FPOS = 32
NOCA = int(os.environ.get("NOCA", "0"))
loads += kl[:40] + ([] if NOCA else [ca_load]) + kl[40:60]
QPOS = len(loads)
loads += kl[60:]
it = ld_items_reg(SRD_VA, vV, sOFFA, list(range(NVREG)), lambda u: half(NKA + u))
loads += [(t, ("V", u), None) for t, u in it]
NA_LOADS = len(loads)
sBO = 52
vPF, vJ = 3, 4
XD = int(os.environ.get("XD", "4"))
STG_B = [44, 48, 52, 56, 60, 64, 68]
RING_B = STG_B + [radd(half(NKA + u), 4 * m) for u in range(NVREG - XD, NVREG) for m in range(2)]
NPRE = len(RING_B)
PFS = int(os.environ.get("PFS", "6"))
bpf = []
first = True
for srdr, nm in ((SRD_KB, "K"), (SRD_VB, "V")):
    for p in range(6):
        nbytes = 4096 if p < 4 else 2048
        per = 64 << PFS
        for o in range(0, nbytes, per):
            nbefore = (0 if nm == "K" else 20) + (4 * p if p < 4 else 16 + 2 * (p - 4))
            if nbefore + nbytes // 1024 <= NPRE:
                continue
            t = ""
            if first:
                t += f"v_lshlrev_b32 v{vPF}, {PFS}, v0\n"
                first = False
            lanes = min(64, nbytes >> PFS)
            if lanes < 64:
                t += f"s_mov_b64 exec, {(1 << lanes) - 1}\n" if lanes < 32 else "s_mov_b32 exec_hi, 0\n"
            t += f"buffer_load_dword v{vJ}, v{vPF}, {srd(srdr)}, s{sBO+p} offen offset:{o}"
            if lanes < 64:
                t += "\ns_mov_b64 exec, -1"
            bpf.append((t, ("PF", len(bpf)), None))
GATE = 0
NB_EARLY = int(os.environ.get('NBE', '0'))
BL = bpf
early = [(t.replace(f"v{vPF},", "v62,").replace(f"v{vJ},", "v63,"), tag, NSLOT - 1) for t, tag, req in BL[:NB_EARLY]]
loads += early
if NB_EARLY:
    t0_, tag0_, r0_ = BL[NB_EARLY]
    BL[NB_EARLY] = (f"v_lshlrev_b32 v{vPF}, {PFS}, v0\n" + t0_, tag0_, r0_)

ksrcA = lambda u: ("reg", half(u), ("K", u))
vsrcA = lambda u: ("reg", half(NKA + u), ("V", u)) if u < NVREG else ("lds", vslot(u), ("V", u))

g0, pre, body = qk_groups(NKA, ksrcA, sBIASA, STG_A)
comp = [(t, n, None) for t, n in g0 + pre + body] + [max_group() + (None,)]
comp += pv_groups(VL_UNITS + list(range(NVREG)), vsrcA, STG_A, 33, STG_A[0])

EXP = os.environ.get("EXP", "")
if EXP:
    order = loads[:NA_LOADS] + BL
    if "r" in EXP:
        order = [(t, ("K", u), None) for t, u in ld_items_reg(SRD_KA, vV if "v" in EXP else vK, sOFFA, list(range(36)), half)]
        order += [(t, ("V", u), None) for t, u in ld_items_reg(SRD_VA, vV, sOFFA, list(range(36)), lambda u: half(u + 18))]
        order += [(t, ("BK", u), None) for t, u in ld_items_reg(SRD_KB, vV if "v" in EXP else vK, sOFFB, list(range(8)), half)]
        order += [(t, ("BV", u), None) for t, u in ld_items_reg(SRD_VB, vV, sOFFB, list(range(8)), lambda u: half(u + 18))]
    for i, (t, tag, req) in enumerate(order):
        if tag == ("CA",): continue
        if tag == ("BK", 0) and "s_add" in t:
            stamp(3)
        if i in (30, 60, 90, 120): stamp(15 + (30, 60, 90, 120).index(i))
        A(t)
        if os.environ.get("THR"): A(f"s_waitcnt vmcnt({os.environ['THR']})")
    A("s_waitcnt vmcnt(0)")
    stamp(4)
    A("s_branch L_fin")
THR = int(os.environ.get("THR", "4"))
THRX = int(os.environ.get("THRX", "0"))
TSCH = eval(os.environ.get("TSCH", "[]"))
VPOL = int(os.environ.get("VPOL", "0"))
THR2 = int(os.environ.get("THR2", "0"))
THRB = int(os.environ.get("THRB", "0"))
LAG = int(os.environ.get("LAG", "10"))
last_of = {}
nissued = 0
released = set()
ci = 0


def emit_comp(g):
    t, need, rel = g
    if need is not None:
        n = nissued - last_of[need] - 1
        A(f"s_waitcnt vmcnt({min(n, 63)})")
    A(t)
    if rel is not None:
        released.add(vslot(rel))


qready = False
li = 0
done_pos = set()
LEAD = int(os.environ.get("LEAD", "0"))
ADAPT = int(os.environ.get("ADAPT", "0"))
ATHR = int(os.environ.get("ATHR", "3"))
sTHR = 51
MARKS = ([40, 56, 72, 88, 104, 120] if LEAD else [-1] * 6) + [NA_LOADS - GATE] if GATE else []
if ADAPT:
    MARKS = [34, 50, 66, 82, 98, 114, 130]
    A(f"s_mov_b32 s{sTHR}, 0")


RATE = int(os.environ.get("RATE", "0"))
sRT0, sRT = 52, 54
if RATE:
    A(f"s_mov_b32 s{sTHR}, 0\ns_memrealtime s[{sRT0}:{sRT0+1}]")


def rate_ctl(li):
    if RATE and li % 6 == 0 and 12 <= li:
        A(f"s_memrealtime s[{sRT}:{sRT+1}]")
    if RATE and li % 6 == 1 and 12 <= li:
        A(f"s_waitcnt lgkmcnt(0)\ns_sub_u32 s{sRT}, s{sRT}, s{sRT0}\ns_cmp_lt_u32 s{sRT}, {max(0, (li - int(os.environ.get('ROFF', '4'))) * RATE // 10)}\ns_cselect_b32 s{sTHR}, 1, 0")


def athr():
    if ADAPT or RATE:
        sk = A.label("nt")
        A(f"s_cmp_eq_u32 s{sTHR}, 0\ns_cbranch_scc1 {sk}\ns_waitcnt vmcnt({ATHR})\n{sk}:")


flow_load = f"buffer_load_ubyte v{vFD}, v{vFA}, {srd(SRD_DBG)}, 0 offen offset:4 sc1"


def flow_wait(k, n):
    ok, lp, ck = A.label("flok"), A.label("fllp"), A.label("flck")
    if n is not None:
        A(f"s_waitcnt vmcnt({n})\ns_branch {ck}")
    A(f"{lp}:")
    spin_guard(ok)
    A(f"{flow_load}\ns_waitcnt vmcnt(0)")
    A(f"{ck}:\nv_cmp_gt_u32 vcc, {k << 4}, v{vFD}\ns_nop 0\ns_cmp_lg_u64 vcc, 0\ns_cbranch_scc0 {ok}\ns_sleep 4\ns_branch {lp}")
    A(f"{ok}:")


while li < len(loads):
    if li in MARKS and li not in done_pos:
        k = MARKS.index(li) + 1
        nf = A.label("nomark")
        A(f"s_or_b32 s{sT3}, s{sWAVE}, s{sSP}\ns_cmp_eq_u32 s{sT3}, 0\ns_cbranch_scc0 {nf}")
        A(f"s_or_b32 s{sT3}, s{sID}, {k << 4}\nv_mov_b32 v{vT}, s{sT3}\ns_lshl_b64 exec, 1, s{sG}")
        A(f"buffer_store_byte v{vT}, v{vFA}, {srd(SRD_DBG)}, 0 offen offset:4 sc1\ns_mov_b64 exec, -1")
        A(f"{nf}:")
    if LEAD and (li - LEAD + 8) in MARKS[:-1] and li + 8 < NA_LOADS and li not in done_pos:
        A(flow_load)
        last_of[("FL",)] = nissued
        nissued += 1
    if LEAD and (li - LEAD) in MARKS[:-1] and li < NA_LOADS and li not in done_pos:
        k = MARKS.index(li - LEAD) + 1
        flow_wait(k, nissued - last_of[("FL",)] - 1)
    if ADAPT and (li - ADAPT) in MARKS and li + 8 < NA_LOADS and li not in done_pos:
        A(flow_load)
        last_of[("FL",)] = nissued
        nissued += 1
    if ADAPT and (li - ADAPT - 8) in MARKS and li < NA_LOADS and li not in done_pos:
        k = MARKS.index(li - ADAPT - 8) + 1
        A(f"s_waitcnt vmcnt({nissued - last_of[('FL',)] - 1})")
        A(f"v_cmp_gt_u32 vcc, {k << 4}, v{vFD}\ns_nop 0\ns_cmp_lg_u64 vcc, 0\ns_cselect_b32 s{sTHR}, 1, 0")
    if os.environ.get("PROG") and li in (30, 60, 90, 120) and li not in done_pos:
        if li == 120 and PROFILE: A("s_waitcnt lgkmcnt(0)")
        stamp(15 + (30, 60, 90, 120).index(li))
    if li == 4 and li not in done_pos:
        late_setup()
    done_pos.add(li)
    if li == QPOS and NOCA:
        A(f"s_mov_b32 s{sMODE}, 1")
        A(q_loads())
        nissued += 2
        last_of[("Q",)] = nissued - 1
    if li == QPOS and not NOCA:
        n = nissued - last_of[("CA",)] - 1
        ok, lp, ck = A.label("caok"), A.label("calp"), A.label("cack")
        A(f"s_waitcnt vmcnt({n})\ns_branch {ck}")
        A(f"{lp}:")
        spin_guard(ok)
        A(f"{ca_load[0]}\ns_waitcnt vmcnt(0)")
        A(f"{ck}:\nv_readlane_b32 s{sT3}, v{vCM}, s{sG}")
        A(f"s_cmp_eq_u32 s{sT3}, s{sID}\ns_cselect_b32 s{sMODE}, 1, 0")
        A(f"s_add_u32 s{sT3}, s{sT3}, 0x7f7f7f7f\ns_and_b32 s{sT3}, s{sT3}, 0x80808080\ns_cmp_eq_u32 s{sT3}, 0x80808080\ns_cbranch_scc0 {lp}")
        A(f"{ok}:")
        clear_next(DT, vT)
        A(q_loads())
        nissued += 2
        last_of[("Q",)] = nissued - 1
    if li == QPOS + 12:
        n = nissued - last_of[("Q",)] - 1
        slow, ok = A.label("qslow"), A.label("qok")
        A(f"s_waitcnt vmcnt({n})")
        sentinel_check(range(QA, QA + 8), vT, slow)
        A(f"s_branch {ok}\n{slow}:")
        poll_q_blocking()
        A(f"{ok}:")
        stamp(1)
        A(f"s_lshl_b32 s{sW4}, s{sWAVE}, 2")
        cm_addr()
        if RATE:
            A(f"s_mov_b32 s{sTHR}, 0")
        qready = True
    t, tag, req = loads[li]
    if req is not None and req not in released:
        emit_comp(comp[ci])
        ci += 1
        continue
    A(t.replace(" nt", "") if li < VPOL else t)
    if TSCH:
        tv = [v for (p, v) in TSCH if li >= p][-1]
        if tv:
            A(f"s_waitcnt vmcnt({tv})")
    elif THR and not qready:
        A(f"s_waitcnt vmcnt({THR + (THRX if li & 1 else 0)})")
    if THR2 and qready:
        A(f"s_waitcnt vmcnt({THR2})")
    if li > (12 if RATE else 40) and not (RATE and qready):
        athr()
    if not qready:
        rate_ctl(li)
    last_of[tag] = nissued
    nissued += 1
    li += 1
    if qready:
        cnt = 0
        while ci < len(comp) and cnt < 6:
            need = comp[ci][1]
            if need is not None and (need not in last_of or nissued - last_of[need] - 1 < LAG or
                                     (li < len(loads) and loads[li][1] == need)):
                break
            emit_comp(comp[ci])
            ci += 1
            cnt += 1
stamp(2)
A(f"s_max_u32 s{sT3}, s{sWAVE}, 1\ns_lshl_b32 s{sT3}, s{sT3}, 10\ns_add_u32 s{sT3}, s{sT3}, {XBASE - 1024}\nv_lshl_add_u32 v{vX}, v0, 4, s{sT3}")
while ci < len(comp):
    emit_comp(comp[ci])
    ci += 1

A("L_reduce:")
A(f"v_add_f32_dpp v{vLS}, v{vLS}, v{vLS} row_half_mirror {DPPF}")
xrow_reduce("v_add_f32", vLS, vT)
A(f"v_mul_f32 v{vLS}, v{vLS}, v{vF}\ns_mov_b32 exec_lo, 1\ns_mov_b32 exec_hi, 0x100")
A(f"ds_write_b32 v{vCMw}, v{vLS} offset:32\ns_mov_b64 exec, -1")
for r in range(0, 8, 2):
    A(f"v_pk_mul_f32 v[{QA+r}:{QA+r+1}], v[{QA+r}:{QA+r+1}], v[{vF}:{vF+1}] op_sel_hi:[1,0]")
XR = 20
xr = [20, 24, 56]
A(f"s_cmp_eq_u32 s{sWAVE}, 0\ns_cbranch_scc0 L_red_n0")
for wv in range(2):
    own, give = QA + 4 * wv, QA + 4 * (1 - wv)
    if wv == 1:
        A("L_red_1:")
    A(f"ds_write_b128 v{vX}, {vr(give)} offset:{3072*(1-wv)}")
    A(f"s_add_u32 s{sT0}, s{sPOOFF}, {512*wv}\ns_cmp_eq_u32 s{sMODE}, 1")
    A("s_waitcnt lgkmcnt(0)\ns_barrier")
    for s_ in range(3):
        A(f"ds_read_b128 {vr(xr[s_])}, v{vX} offset:{3072*wv+1024*s_}")
    for s_ in range(3):
        A(f"s_waitcnt lgkmcnt({2-s_})")
        for r in (0, 2):
            A(f"v_pk_add_f32 v[{own+r}:{own+r+1}], v[{own+r}:{own+r+1}], v[{xr[s_]+r}:{xr[s_]+r+1}]")
    for r in range(4):
        A(f"v_min_u32 v{own+r}, -2, v{own+r}")
    far = A.label("far")
    A(f"s_cbranch_scc0 {far}")
    A(f"buffer_store_dwordx4 {vr(own)}, v{vPO}, {srd(SRD_WS)}, s{sT0} offen\ns_branch L_red_done")
    A(f"{far}:\nbuffer_store_dwordx4 {vr(own)}, v{vPO}, {srd(SRD_WS)}, s{sT0} offen sc1\ns_branch L_red_done")
A("L_red_n0:")
A(f"s_cmp_eq_u32 s{sWAVE}, 1\ns_cbranch_scc1 L_red_1")
A(f"ds_write_b128 v{vX}, {vr(QA)}\nds_write_b128 v{vX}, {vr(QA+4)} offset:3072")
A(f"v_lshrrev_b32 v{vT}, 5, v0\nv_lshlrev_b32 v{vT}, 12, v{vT}\nv_min_u32 v24, -2, v{vMX}")
A(f"s_cmp_eq_u32 s{sWAVE}, 2")
A("s_waitcnt lgkmcnt(0)\ns_barrier\ns_cbranch_scc0 L_red_done")
A(f"ds_read_b128 v[20:23], v{vCMr} offset:32\ns_cmp_eq_u32 s{sMODE}, 1\ns_waitcnt lgkmcnt(0)")
A("v_add_f32 v20, v20, v21\nv_add_f32 v22, v22, v23\nv_add_f32 v25, v20, v22\nv_min_u32 v25, -2, v25")
A("s_mov_b32 exec_lo, 1\ns_mov_b32 exec_hi, 1\ns_cbranch_scc0 L_ml_far")
A(f"buffer_store_dwordx2 v[24:25], v{vT}, {srd(SRD_WS)}, s{sMLOFF} offen\ns_branch L_ml_done")
A(f"L_ml_far:\nbuffer_store_dwordx2 v[24:25], v{vT}, {srd(SRD_WS)}, s{sMLOFF} offen sc1")
A("L_ml_done:\ns_mov_b64 exec, -1")
A("L_red_done:")
A("s_barrier")
A(f"s_add_u32 s{sQOFF}, s{sQOFF}, 8192\ns_add_u32 s{sPOOFF}, s{sPOOFF}, {PO_L}\ns_add_u32 s{sMLOFF}, s{sMLOFF}, {ML_L}")
A(f"s_add_u32 s{sLAYER}, s{sLAYER}, 1")
A(f"s_cmp_eq_u32 s{sLAYER}, 2\ns_cbranch_scc1 L_after2")
A(f"s_cmp_eq_u32 s{sLAYER}, 3\ns_cbranch_scc1 L_after3")
A(f"s_cmp_eq_u32 s{sLAYER}, 4\ns_cbranch_scc1 L_att_end")
stamp(3)
if GATE:
    vFA = vT
    flow_load = f"buffer_load_ubyte v{vFD}, v{vFA}, {srd(SRD_DBG)}, 0 offen offset:4 sc1"
    A(f"v_and_b32 v{vFA}, 7, v0\nv_lshlrev_b32 v{vFA}, 5, v{vFA}")
    flow_wait(7, None)
    stamp(13)


def stream_then_q(items, E, st_a, st_b, thr=0, pre=()):
    n = len(items)
    for i, (t, tag, req) in enumerate(items):
        if i == n - E:
            A(q_loads())
        A(t)
        if thr and i < n - E:
            A(f"s_waitcnt vmcnt({thr})")
        if st_a == 4 and i < n - E and os.environ.get("ATHB"):
            athr()
            rate_ctl(NA_LOADS + NB_EARLY + i + 6)
    if E == 0:
        A(q_loads())
    slow, ok = A.label("qslow"), A.label("qok")
    A(f"s_waitcnt vmcnt({E})")
    stamp(st_a)
    emit_groups(pre)
    sentinel_check(range(QA, QA + 8), vT, slow)
    A(f"s_branch {ok}\n{slow}:")
    poll_q_blocking()
    A(f"{ok}:")
    stamp(st_b)
    younger = {}
    for i, (t, tag, req) in enumerate(items):
        if i >= n - E:
            younger[tag] = n - 1 - i
    return younger


def emit_counted(gs, younger, extra=None, every=1):
    extra = list(extra or [])
    cnt = 0
    for g in gs:
        need = g[1]
        if need in younger:
            A(f"s_waitcnt vmcnt({younger[need]})")
            lim = younger[need]
            for k in [k for k, v in younger.items() if v >= lim]:
                del younger[k]
        A(g[0])
        if "v_mfma" in g[0]:
            cnt += 1
            if extra and cnt % every == 0:
                t, tag, req = extra.pop(0)
                A(t)
                for k in younger:
                    younger[k] += 1
                younger[tag] = 0
    assert not extra


def btext(key, q):
    nm, u, m = key
    p, o = (u // 2, (u & 1) * 2048) if u < 8 else (u - 4, 0)
    return f"buffer_load_dwordx4 {vr(q)}, v{vK if nm == 'K' else vV}, {srd(SRD_KB if nm == 'K' else SRD_VB)}, s{sBO+p} offen offset:{o+256*m}"


ring = GRing([(nm, u, m) for nm in "KV" for u in range(10) for m in range(2)], btext, RING_B)
clear_next(DT, vT)
A(ring.issue(NPRE))
PTH = os.environ.get("PTH", "")
for t, tag, req in BL[NB_EARLY:]:
    if PTH:
        A(f"s_waitcnt vmcnt({PTH})")
    A(t)
ring.landed = NPRE
CPF = int(os.environ.get("CPF", "2"))
if CPF:
    code_prefetch("L_l2body", CPF * 4096, vPF, vJ, sT0)
ksrcB = lambda u: ("gl", ring, None)
A("s_waitcnt vmcnt(0)")
cm_addr()
g0, pre, body = qk_groups(10, ksrcB, sBIASB, STG_B)
emit_groups(g0)
yg = stream_then_q([], 0, 4, 5)
A("L_l2body:")
emit_groups(body + [max_group()] + pv_groups(list(range(10)), ksrcB, STG_B, 5, 42))
A("s_branch L_reduce")

A("L_after2:")
stamp(6)
def hook3(u, m):
    j = 2 * (u - 1) + m
    if u >= 1 and j < 2 * NSLOT:
        w = "s_waitcnt lgkmcnt(6)\n" if j % 8 == 7 else ""
        return w + f"ds_read_b128 {vr(radd(half(j // 2), 4 * (j & 1)))}, v{vL} offset:{j*1024}"
    return None


g0, pre, body = qk_groups(NKA, ksrcA, sBIASA, STG_A, hook3)
vsrc3 = lambda u: ("reg", half(NKA + u) if u < NVREG else half(u - NVREG), None)
clear_next(DT, vT)
emit_groups(g0)
rl = ld_items_reg(SRD_VA, vV, sOFFA, list(range(NVREG - XD, NVREG)), lambda u: half(NKA + u)) if XD else []
yg = stream_then_q([(t, ("V", u), None) for t, u in rl], 0, 14, 7)
emit_counted(body, yg)
emit_groups([max_group()])
stamp(8)
HB1 = 0
b4 = []
for srdr, voff, base, nm in ((SRD_KB, vK, 0, "BK"), (SRD_VB, vV, 10, "BV")):
    b4 += [(t, (nm, u), None) for t, u in ld_items_reg(srdr, voff, sOFFB, list(range(8)), lambda u: half(base + u))]
    b4 += [(t, (nm, 8), None) for t, u in ld_items_reg(srdr, voff, sOFFB8, [0], lambda u: half(base + 8))]
    b4 += [(t, (nm, 9), None) for t, u in ld_items_reg(srdr, voff, sOFFB9, [0], lambda u: half(base + 9))]
NB4 = int(os.environ.get("NB4", "0"))
order3 = list(range(NVREG)) + [NVREG + x for x in list(range(HB1, NSLOT)) + list(range(0, HB1))]
emit_groups(pv_groups(order3, vsrc3, STG_A, 12, STG_A[0]))
stamp(15)
A("s_branch L_reduce")

A("L_after3:")
stamp(9)
ksrc4 = lambda u: ("reg", half(u), ("BK", u))
vsrc4 = lambda u: ("reg", half(10 + u), ("BV", u))
g0, pre, body = qk_groups(10, ksrc4, sBIASB, STG_B)
emit_groups(g0)
yg = stream_then_q(b4[NB4:], int(os.environ.get("E4", "0")), 10, 11, int(os.environ.get("THR4", "0")))
emit_counted(body + [max_group()] + pv_groups(list(range(10)), vsrc4, STG_B, 5, 42), yg)
A("s_branch L_reduce")

A("L_att_end:")
stamp(12)
A("s_branch L_fin")

A("L_chain:")
cWq, cWo, cPOg, cMLg, cL16, cYg, cT = 1, 2, 3, 4, 5, 6, 7
cX = 12
cVAL, cYst, cSCR, cXw, cXa, cXs = 14, 15, 16, 17, 18, 19
cTT = [20, 24]
cACC = 28
cG = 36
cN = 68
cXA = 36
cCS = {0: 92, 1: 93}
cQst, cV56 = 94, 95
cWo1 = 91
WQ = {0: ("a", 0), 1: ("a", 112)}
WO0 = {0: ("v", 96), 1: ("v", 160)}
sYG = 52


def wo1(t):
    return ("v", 224 + 4 * t) if t < 8 else ("a", 224 + 4 * (t - 8))


CSCR = 131072
YX = CSCR
XB = CSCR + 4096
sCH = sSP
WQB = 448 * 4096 * 2

if "n" in os.environ.get("EXP", ""):
    A("s_branch L_end")
if "l" in os.environ.get("EXP", ""):
    mk_srd(SRD_KB, pBK, 67108864)
    stamp(0)
    A(f"s_lshl_b32 s{sT0}, s{sG}, 23\ns_mul_i32 s{sT1}, s{sSP}, 491520\ns_add_u32 s{sT0}, s{sT0}, s{sT1}\ns_lshl_b32 s{sT1}, s{sWAVE}, 12\ns_add_u32 s{sT0}, s{sT0}, s{sT1}\nv_lshlrev_b32 v1, 4, v0")
    for i in range(30):
        for n in range(4):
            A(f"buffer_load_dwordx4 a[{(i*16+n*4)%256}:{(i*16+n*4)%256+3}], v1, {srd(SRD_KB)}, s{sT0} offen offset:{n*1024} nt")
        A(f"s_add_u32 s{sT0}, s{sT0}, 16384")
    A("s_waitcnt vmcnt(0)")
    stamp(3)
    A("s_branch L_fin")
A("s_waitcnt lgkmcnt(0)")
common_setup()
mk_srd(SRD_WQA, pAWQ, WQB)
mk_srd(SRD_WOA, pAWO, WQB)
mk_srd(SRD_WQB, pBWQ, WQB)
mk_srd(SRD_WOB, pBWO, WQB)
mk_srd(SRD_X, pAX, 896)
A(f"s_mov_b64 s[{sOUTP}:{sOUTP+1}], s[{pOUT}:{pOUT+1}]")
A(f"s_lshl_b32 s{sT0}, s{sG}, 2\ns_add_u32 s{sCH}, s{sT0}, s{sSP}")
A("v_lshrrev_b32 v20, 4, v0       ; s / row")
A("v_and_b32 v21, 15, v0          ; j / c16")
A("v_lshlrev_b32 v22, 4, v21      ; j*16")
A(f"s_lshr_b32 s{sT0}, s{sWAVE}, 1\ns_lshl_b32 s{sT0}, s{sT0}, 2\nv_or_b32 v23, s{sT0}, v20\nv_lshlrev_b32 v23, 5, v23\nv_xor_b32 v23, v23, v22")
A(f"v_lshl_add_u32 v{cWq}, v20, 13, v23")
A(f"v_mul_u32_u24 v{cWo}, 896, v20\nv_add_u32 v{cWo}, v{cWo}, v22")
A("v_and_b32 v23, 31, v0\nv_min_u32 v23, 27, v23\nv_lshrrev_b32 v24, 5, v0")
A(f"s_mul_i32 s{sT0}, s{sWAVE}, 224\nv_lshlrev_b32 v25, 3, v23\nv_lshl_add_u32 v25, v24, 2, v25\nv_add_u32 v25, s{sT0}, v25")
A(f"buffer_load_dword v{cX}, v25, {srd(SRD_X)}, 0 offen")
A(f"v_add_u32 v{cXw}, {XB}, v25")
A(f"v_lshlrev_b32 v{cYg}, 4, v23\nv_lshl_add_u32 v{cYg}, v24, 11, v{cYg}")


def wq_dma(which):
    s_ = SRD_WQA if which == 0 else SRD_WQB
    A(f"s_lshl_b32 s{sT0}, s{sWAVE}, 15\ns_lshl_b32 s{sT1}, s{sCH}, 8\ns_add_u32 s{sT0}, s{sT0}, s{sT1}\ns_lshl_b32 s{sT2}, s{sWAVE}, 10")
    for ii in range(28):
        A(f"s_add_u32 s{sT1}, s{sT0}, {ii*131072}\ns_add_u32 s{sT3}, s{sT2}, {ii*4096}\ns_mov_b32 m0, s{sT3}\ns_nop 0")
        A(f"buffer_load_dwordx4 v{cWq}, {srd(s_)}, s{sT1} offen nt lds")


def wq_tr(which):
    A("v_lshrrev_b32 v20, 4, v0\nv_bfe_u32 v21, v0, 2, 2\nv_and_b32 v22, 1, v20\nv_lshl_add_u32 v22, v22, 2, v21")
    A(f"s_lshl_b32 s{sT0}, s{sWAVE}, 1\nv_xor_b32 v22, s{sT0}, v22\nv_lshlrev_b32 v22, 5, v22")
    A("v_lshl_add_u32 v20, v20, 3, v21\nv_lshl_add_u32 v20, v20, 8, v22\nv_and_b32 v21, 3, v0\nv_lshl_add_u32 v20, v21, 3, v20")
    A(f"v_xor_b32 v21, 32, v20\nv_add_u32 v22, {7*8192}, v20\nv_add_u32 v23, {7*8192}, v21")
    for kb in range(14):
        for cb in range(2):
            for hf in range(2):
                d = radd(WQ[which], (kb * 2 + cb) * 4 + hf * 2)
                A(f"ds_read_b64_tr_b16 {vr(d, 2)}, v{20 + cb + (0 if kb < 7 else 2)} offset:{(kb%7)*8192+hf*1024}")
        if kb % 3 == 2:
            A("s_waitcnt lgkmcnt(3)")
    A("s_waitcnt lgkmcnt(0)")


def sel_cb(dst):
    A(f"v_mov_b32 v{dst}, v{cACC}\ns_mov_b32 exec_lo, 0xffff0000\ns_mov_b32 exec_hi, 0xffff0000\nv_mov_b32 v{dst}, v{cACC+4}\ns_mov_b64 exec, -1")


def colsum(which):
    for r in range(4):
        A(f"v_mov_b32 v{20+r}, 0x3f803f80")
    A("s_nop 1")
    for kb in range(14):
        for cb in range(2):
            acc = cACC + 4 * cb
            A(f"v_mfma_f32_16x16x32_bf16 {vr(acc)}, v[20:23], {vr(radd(WQ[which], (kb*2+cb)*4))}, {'0' if kb == 0 else vr(acc)}")
    A("s_nop 7")
    sel_cb(cCS[which])


def wo_base():
    A(f"s_lshr_b32 s{sT0}, s{sCH}, 1\ns_lshl_b32 s{sT0}, s{sT0}, 2\ns_add_u32 s{sT0}, s{sT0}, s{sWAVE}\ns_mul_i32 s{sT0}, s{sT0}, {64*896}")
    A(f"s_and_b32 s{sT1}, s{sCH}, 1\ns_lshl_b32 s{sT1}, s{sT1}, 9\ns_add_u32 s{sT0}, s{sT0}, s{sT1}")


def wo0_loads(which, ts):
    s_ = SRD_WOA if which == 0 else SRD_WOB
    wo_base()
    for t in ts:
        A(f"s_add_u32 s{sT1}, s{sT0}, {4*t*896}")
        A(f"buffer_load_dwordx4 {vr(radd(WO0[which], 4*t))}, v{cWo}, {srd(s_)}, s{sT1} offen nt")


def wo1_addr():
    A(f"s_and_b32 s{sT1}, s{sCH}, 1\ns_lshl_b32 s{sT1}, s{sT1}, 7\ns_not_b32 s{sT1}, s{sT1}")
    A(f"v_lshlrev_b32 v{cWo1}, 4, v0\nv_and_b32 v{cWo1}, 0xf0, v{cWo1}\nv_sub_u32 v{cT}, v{cWo}, v{cWo1}\nv_and_b32 v{cWo1}, s{sT1}, v{cWo1}\nv_add_u32 v{cWo1}, v{cWo1}, v{cT}")


def wo1_regs(ts):
    wo1_addr()
    wo_base()
    for t in ts:
        A(f"s_add_u32 s{sT1}, s{sT0}, {4*t*896+256}")
        A(f"buffer_load_dwordx4 {vr(wo1(t))}, v{cWo1}, {srd(SRD_WOA)}, s{sT1} offen nt")


def wo1_dma(which):
    s_ = SRD_WOA if which == 0 else SRD_WOB
    wo_base()
    A(f"s_lshl_b32 s{sT2}, s{sWAVE}, 14\ns_add_u32 s{sT2}, s{sT2}, {which*65536}")
    for t in range(16):
        A(f"s_add_u32 s{sT1}, s{sT0}, {4*t*896+256}\ns_add_u32 s{sT3}, s{sT2}, {t*1024}\ns_mov_b32 m0, s{sT3}\ns_nop 0")
        A(f"buffer_load_dwordx4 v{cWo1}, {srd(s_)}, s{sT1} offen nt lds")


def lstamp(base):
    if PROFILE == 1:
        for l in range(4):
            lb = A.label("ps")
            A(f"s_cmp_eq_u32 s{sLAYER}, {l}\ns_cbranch_scc0 {lb}")
            stamp(base + 4 * l)
            A(f"{lb}:")


stamp(0)
if int(os.environ.get("PRET", "0")):
    A(f"v_lshlrev_b32 v26, 16, v0\ns_cmp_eq_u32 s{sWAVE}, 1\ns_cbranch_scc0 L_pt2")
    A(f"buffer_load_dword v27, v26, {srd(SRD_WQB)}, 0 offen nt")
    wo_base()
    A(f"s_mov_b64 exec, 0xf\nbuffer_load_dword v32, v26, {srd(SRD_WOA)}, s{sT0} offen nt\nbuffer_load_dword v33, v26, {srd(SRD_WOB)}, s{sT0} offen nt\ns_mov_b64 exec, -1")
    A("L_pt2:")
A(f"v_lshlrev_b32 v{cL16}, 4, v0")
A(f"s_lshl_b32 s{sYST}, s{sCH}, 10\ns_add_u32 s{sYST}, s{sYST}, {WS_Y}")
A(f"s_lshl_b32 s{sQST}, s{sCH}, 8")
A("v_mov_b32 v28, -1\nv_mov_b32 v29, -1\nv_mov_b32 v30, -1\nv_mov_b32 v31, -1")
A(f"s_lshl_b32 s{sT1}, s{sWAVE}, 13\ns_add_u32 s{sT1}, s{sT1}, s{sQST}")
A(f"s_cmp_eq_u32 s{sWAVE}, 0\ns_cbranch_scc0 L_ch_cl1")
A(f"buffer_store_dwordx4 v[28:31], v{cL16}, {srd(SRD_WS)}, s{sYST} offen sc1")
A("L_ch_cl1:\ns_mov_b64 exec, 0xffff")
A(f"buffer_store_dwordx4 v[28:31], v{cL16}, {srd(SRD_WS)}, s{sT1} offen sc1")
A("s_mov_b64 exec, -1")
wq_dma(0)
A(f"v_mul_u32_u24 v{cPOg}, 7168, v20\nv_add_u32 v{cPOg}, v{cPOg}, v22\ns_lshl_b32 s{sT0}, s{sWAVE}, 8\nv_add_u32 v{cPOg}, s{sT0}, v{cPOg}")
A(f"v_min_u32 v23, 6, v21\nv_mul_u32_u24 v24, 7, v20\nv_add_u32 v23, v23, v24\nv_lshlrev_b32 v{cMLg}, 7, v23")
A(f"v_cmp_gt_u32 vcc, 7, v21\ns_nop 1\nv_cndmask_b32 v{cVAL}, 0, 1.0, vcc")
A(f"v_cmp_gt_u32 vcc, 56, v0\ns_nop 1\nv_cndmask_b32 v{cV56}, 0, 1.0, vcc")
A(f"v_lshrrev_b32 v23, 5, v0\nv_lshlrev_b32 v23, 9, v23\nv_lshl_add_u32 v23, v21, 5, v23\nv_and_b32 v24, 1, v20\nv_lshl_add_u32 v{cYst}, v24, 4, v23")
A(f"s_lshl_b32 s{sT0}, s{sWAVE}, 6\nv_lshl_add_u32 v{cQst}, v0, 1, s{sT0}")
A(f"v_add_u32 v{cSCR}, {CSCR}, v{cL16}")
A(f"v_lshlrev_b32 v{cXa}, 4, v20\nv_add_u32 v{cXa}, {XB}, v{cXa}")
A(f"v_min_u32 v{cXs}, 55, v0\nv_lshlrev_b32 v{cXs}, 4, v{cXs}\nv_add_u32 v{cXs}, {XB}, v{cXs}")
A(f"s_lshr_b32 s{sT0}, s{sCH}, 1\ns_mul_i32 s{sPOOFF}, s{sT0}, 28672\ns_add_u32 s{sPOOFF}, s{sPOOFF}, {WS_PO}")
A(f"s_lshl_b32 s{sMLOFF}, s{sT0}, 12\ns_add_u32 s{sMLOFF}, s{sMLOFF}, {WS_ML}")
A(f"s_mul_i32 s{sYOFF}, s{sWAVE}, 448\ns_add_u32 s{sYOFF}, s{sYOFF}, {WS_Y}")
emit_masks(0, MASK, 20, 21)
wo0_loads(0, range(8))
A("s_waitcnt vmcnt(8)")
mk_srd(SRD_OUT, sOUTP, 896)
A(f"ds_write_b32 v{cXw}, v{cX}")
A(f"v_and_b32 v{cX+1}, 0xffff0000, v{cX}\nv_lshlrev_b32 v{cX}, 16, v{cX}")
A("s_waitcnt lgkmcnt(0)\ns_barrier")
A(f"s_cmp_eq_u32 s{sWAVE}, 3\ns_cbranch_scc0 L_ch_noflag")
A(f"s_lshl_b32 s{sT0}, s{sG}, 5\ns_and_b32 s{sT1}, s{sCH}, 3\ns_add_u32 s{sT0}, s{sT0}, s{sT1}")
A(f"v_mov_b32 v28, s{sT0}\nv_mov_b32 v29, s{sID}\ns_mov_b64 exec, 1")
A(f"buffer_store_byte v29, v28, {srd(SRD_DBG)}, 0 offen sc1\ns_mov_b64 exec, -1")
A("L_ch_noflag:")
stamp(1)
wq_tr(0)
colsum(0)
A(f"v_and_b32 v{cT}, 7, v0\nv_lshlrev_b32 v{cT}, 2, v{cT}\ns_lshl_b32 s{sT2}, s{sG}, 5")
A("L_ch_id:")
spin_guard("L_ch_id_ok")
A(f"buffer_load_dword v{cG}, v{cT}, {srd(SRD_DBG)}, s{sT2} offen sc1\ns_waitcnt vmcnt(0)")
A(f"v_and_b32 v{cG+1}, 0x0f0f0f0f, v{cG}\nv_cmp_ne_u32 s[{sT0}:{sT1}], s{sID}, v{cG+1}")
A(f"v_add_u32 v{cG+1}, 0x7f7f7f7f, v{cG}\nv_and_b32 v{cG+1}, 0x80808080, v{cG+1}\nv_cmp_ne_u32 vcc, 0x80808080, v{cG+1}")
A(f"s_cmp_eq_u64 s[{sT0}:{sT1}], 0\ns_cselect_b32 s{sMODE}, 1, 0")
A("s_cmp_lg_u64 vcc, 0\ns_cbranch_scc1 L_ch_id")
A("L_ch_id_ok:")
A("v_mov_b32 v28, -1\nv_mov_b32 v29, -1\nv_mov_b32 v30, -1\nv_mov_b32 v31, -1")
A(f"s_mul_i32 s{sT1}, s{sWAVE}, 7168\ns_add_u32 s{sT1}, s{sT1}, s{sPOOFF}\ns_add_u32 s{sT2}, s{sT1}, 4096")
A(f"s_mul_i32 s{sT0}, s{sWAVE}, {7*128}\ns_add_u32 s{sT0}, s{sT0}, s{sMLOFF}\nv_lshlrev_b32 v{cT}, 7, v0")
A(f"s_cmp_eq_u32 s{sMODE}, 1\ns_cbranch_scc0 L_ch_clf")
for fl in ("", " sc1"):
    if fl:
        A("L_ch_clf:")
    for i in range(7):
        A(f"buffer_store_dwordx4 v[28:31], v{cL16}, {srd(SRD_WS)}, s{sT1 if i < 4 else sT2} offen offset:{1024*(i%4)}{fl}")
    A(f"s_mov_b64 exec, 0x7f\nbuffer_store_dwordx2 v[28:29], v{cT}, {srd(SRD_WS)}, s{sT0} offen{fl}\ns_mov_b64 exec, -1")
    if not fl:
        A("s_branch L_ch_cld")
A("L_ch_cld:")
A("s_waitcnt vmcnt(0)\ns_barrier")
wo0_loads(0, range(8, 16))
A("s_branch L_ch_qp")


def bf16r(dst, src):
    A(f"v_cvt_pk_bf16_f32 v{dst}, 0, v{src}")


A("L_ch_stageA:")
A(f"s_and_b32 s{sT0}, s{sLAYER}, 1\ns_lshl_b32 s{sT0}, s{sT0}, 16\ns_lshl_b32 s{sT1}, s{sWAVE}, 14\ns_add_u32 s{sT0}, s{sT0}, s{sT1}")
A(f"v_add_u32 v{cT}, s{sT0}, v{cL16}")
for t in range(16):
    A(f"ds_read_b128 {vr(wo1(t))}, v{cT} offset:{t*1024}")
    if t == 7:
        A("s_waitcnt lgkmcnt(0)")
for i in range(8):
    A(f"s_add_u32 s{sYG+i}, s{sYOFF}, {4096*i}")
A("s_waitcnt lgkmcnt(0)")
A(f"s_cmp_eq_u32 s{sWAVE}, 0\ns_cbranch_scc0 L_sa_nc\ns_cmp_eq_u32 s{sLAYER}, 3\ns_cbranch_scc1 L_sa_nc")
A(f"v_mov_b32 v28, -1\nv_mov_b32 v29, -1\nv_mov_b32 v30, -1\nv_mov_b32 v31, -1\ns_add_u32 s{sT0}, s{sYST}, 32768")
A(f"buffer_store_dwordx4 v[28:31], v{cL16}, {srd(SRD_WS)}, s{sT0} offen sc1")
A("L_sa_nc:")
A(f"s_add_u32 s{sT0}, s{sPOOFF}, 4096")
cML = cG + 28
A("L_sa_poll:")
spin_guard("L_sa_go")
A(f"buffer_load_dwordx2 v[{cML}:{cML+1}], v{cMLg}, {srd(SRD_WS)}, s{sMLOFF} offen sc1")
for u in range(7):
    so = sPOOFF if u < 4 else sT0
    A(f"buffer_load_dwordx4 {vr(cG+4*u)}, v{cPOg}, {srd(SRD_WS)}, s{so} offen offset:{(u%4)*1024} sc1")
A("s_waitcnt vmcnt(0)")
sentinel_check(range(cG, cG + 30), cT, "L_sa_poll")
A("L_sa_go:")
lstamp(3)
mM, mW, mL = cN, cN + 1, cN + 2
A(f"v_max_f32_dpp v{mM}, v{cML}, v{cML} quad_perm:[1,0,3,2] {DPPF}")
for ctl in ("quad_perm:[2,3,0,1]", "row_half_mirror"):
    A(f"s_nop 1\nv_max_f32_dpp v{mM}, v{mM}, v{mM} {ctl} {DPPF}")
xrow_reduce("v_max_f32", mM, cT)
A(f"v_sub_f32 v{mW}, v{cML}, v{mM}\nv_exp_f32 v{mW}, v{mW}\nv_mul_f32 v{mL}, v{cML+1}, v{cVAL}\nv_mul_f32 v{mL}, v{mL}, v{mW}")
oa = cN + 4
red_steps = [f"v_add_f32_dpp v{mL}, v{mL}, v{mL} {c} {DPPF}" for c in
             ("quad_perm:[1,0,3,2]", "quad_perm:[2,3,0,1]", "row_half_mirror", "row_mirror")]
red_steps[3] += f"\nv_mov_b32 v{cT}, v{mL}"
red_steps.append(f"v_permlane32_swap_b32 v{mL}, v{cT}\nv_add_f32 v{mL}, v{mL}, v{cT}\nv_mov_b32 v{cT}, v{mL}")
red_steps.append(f"v_permlane16_swap_b32 v{mL}, v{cT}\nv_add_f32 v{mL}, v{mL}, v{cT}\nv_rcp_f32 v{mL}, v{mL}")
A("s_nop 0")
for u in range(7):
    for r in range(4):
        op = "v_mul_f32_dpp" if u == 0 else "v_fmac_f32_dpp"
        A(f"{op} v{oa+r}, v{mW}, v{cG+4*u+r} row_newbcast:{u} {DPPF}")
    if u < 6:
        A(red_steps[u])
A("s_nop 0")
A(f"v_permlane32_swap_b32 v{oa}, v{oa+2}\nv_permlane32_swap_b32 v{oa+1}, v{oa+3}")
A(f"v_add_f32 v{oa}, v{oa}, v{oa+2}\nv_add_f32 v{oa+1}, v{oa+1}, v{oa+3}\ns_nop 1")
A(f"v_permlane16_swap_b32 v{oa}, v{oa+1}\nv_add_f32 v{oa}, v{oa}, v{oa+1}")
A(f"v_mul_f32 v{oa}, v{oa}, v{mL}\nv_cvt_pk_bf16_f32 v{oa}, v{oa}, v{oa}")
A(f"s_and_b32 s{sT0}, s{sLAYER}, 1\ns_cmp_eq_u32 s{sT0}, 1\ns_cbranch_scc1 L_sa_B")
for which in range(2):
    if which == 1:
        A("L_sa_B:")

    def gmh(t, hf):
        for r in (0, 1) if hf == 0 else (2, 3):
            A(f"v_and_b32_dpp v{cTT[t&1]+r}, v{oa}, v{MASK+r} row_newbcast:{t} {DPPF}")
    gmh(0, 0)
    gmh(0, 1)
    for t in range(16):
        if t + 1 < 16:
            gmh(t + 1, 0)
        else:
            A("s_nop 0")
        A(f"v_mfma_f32_16x16x32_bf16 {vr(cACC)}, {vr(cTT[t&1])}, {vr(radd(WO0[which],4*t))}, {'0' if t == 0 else vr(cACC)}")
        if t + 1 < 16:
            gmh(t + 1, 1)
        A(f"v_mfma_f32_16x16x32_bf16 {vr(cACC+4)}, {vr(cTT[t&1])}, {vr(wo1(t))}, {'0' if t == 0 else vr(cACC+4)}")
    if which == 0:
        A("s_branch L_sa_red")
A("L_sa_red:")
A(f"s_lshl_b32 s{sT0}, s{sWAVE}, 10\nv_add_u32 v{cT}, s{sT0}, v{cSCR}")
A("s_mov_b32 exec_lo, 0\ns_nop 5")
for r in range(4):
    A(f"v_mov_b32 v{cACC+r}, v{cACC+4+r}")
A("s_mov_b32 exec_lo, -1")
A(f"s_cmp_eq_u32 s{sWAVE}, 0\ns_cbranch_scc1 L_sa_w0")
A(f"ds_write_b128 v{cT}, {vr(cACC)}\ns_waitcnt lgkmcnt(0)\ns_barrier")
H2S = int(os.environ.get("H2S", "8"))
A(f"s_sleep {H2S+2}\ns_branch L_sb")
A("L_sa_w0:\ns_barrier")
for s_ in range(1, 4):
    A(f"ds_read_b128 {vr(cG+4*s_)}, v{cSCR} offset:{1024*s_}")
for s_ in range(1, 4):
    A(f"s_waitcnt lgkmcnt({3-s_})")
    for r in range(0, 4, 2):
        A(f"v_pk_add_f32 v[{cACC+r}:{cACC+r+1}], v[{cACC+r}:{cACC+r+1}], v[{cG+4*s_+r}:{cG+4*s_+r+1}]")
for r in range(4):
    A(f"v_min_u32 v{cACC+r}, -2, v{cACC+r}")
A(f"buffer_store_dwordx4 {vr(cACC)}, v{cYst}, {srd(SRD_WS)}, s{sYST} offen sc1")
lstamp(4)
if H2S:
    A(f"s_sleep {H2S}")
A("L_sb:")
A(f"s_cmp_eq_u32 s{sLAYER}, 3\ns_cbranch_scc0 L_sb_go0\ns_cmp_eq_u32 s{sCH}, 0\ns_cbranch_scc0 L_fin\nL_sb_go0:")


def yload(i):
    return f"buffer_load_dwordx4 {vr(cG+4*i)}, v{cYg}, {srd(SRD_WS)}, s{sYG+i} offen sc1"


for i in range(8):
    A(yload(i))
A("L_sb_poll:")
for i in range(4):
    A(f"s_waitcnt vmcnt({6-2*i})")
    for r in range(0, 4, 2):
        A(f"v_pk_add_f32 v[{cN+4*i+r}:{cN+4*i+r+1}], v[{cG+8*i+r}:{cG+8*i+r+1}], v[{cG+8*i+4+r}:{cG+8*i+4+r+1}]")
    if i & 1:
        for r in range(0, 4, 2):
            A(f"v_pk_add_f32 v[{cN+4*(i-1)+r}:{cN+4*(i-1)+r+1}], v[{cN+4*(i-1)+r}:{cN+4*(i-1)+r+1}], v[{cN+4*i+r}:{cN+4*i+r+1}]")
for r in range(0, 4, 2):
    A(f"v_pk_add_f32 v[{cN+r}:{cN+r+1}], v[{cN+r}:{cN+r+1}], v[{cN+8+r}:{cN+8+r+1}]")
A("s_nop 1")
A(f"v_permlane32_swap_b32 v{cN}, v{cN+2}\nv_permlane32_swap_b32 v{cN+1}, v{cN+3}")
A(f"v_pk_add_f32 v[{cN}:{cN+1}], v[{cN}:{cN+1}], v[{cN+2}:{cN+3}]")
A(f"v_cmp_u_f32 vcc, v{cN}, v{cN+1}")
bf16r(cN, cN)
bf16r(cN + 1, cN + 1)
A("s_cmp_lg_u64 vcc, 0\ns_cbranch_scc0 L_sb_go")
spin_guard("L_sb_go")
A(f"s_mov_b32 s{sT0}, 0")
for i in range(8):
    sk = A.label("ysk")
    g_ = cG + 4 * i
    A(f"v_max3_u32 v{cT}, v{g_}, v{g_+1}, v{g_+2}\nv_max_u32 v{cT}, v{cT}, v{g_+3}\nv_cmp_eq_u32 vcc, -1, v{cT}\ns_nop 0\ns_cmp_lg_u64 vcc, 0\ns_cbranch_scc0 {sk}")
    A(yload(i))
    A(f"s_mov_b32 s{sT0}, 1\n{sk}:")
A(f"s_waitcnt vmcnt(0)\ns_cmp_eq_u32 s{sT0}, 1\ns_cbranch_scc1 L_sb_poll")
A("L_sb_go:")
lstamp(5)
A(f"v_pk_add_f32 v[{cX}:{cX+1}], v[{cX}:{cX+1}], v[{cN}:{cN+1}]")
A(f"v_cvt_pk_bf16_f32 v{cN}, v{cX}, v{cX+1}")
A(f"s_cmp_eq_u32 s{sLAYER}, 3\ns_cbranch_scc1 L_ch_out")
A(f"ds_write_b32 v{cXw}, v{cN}")
A(f"v_and_b32 v{cX+1}, 0xffff0000, v{cN}\nv_lshlrev_b32 v{cX}, 16, v{cN}")
A(f"s_add_u32 s{sLAYER}, s{sLAYER}, 1")
A(f"s_add_u32 s{sPOOFF}, s{sPOOFF}, {PO_L}\ns_add_u32 s{sMLOFF}, s{sMLOFF}, {ML_L}\ns_add_u32 s{sYOFF}, s{sYOFF}, 32768\ns_add_u32 s{sYST}, s{sYST}, 32768\ns_add_u32 s{sQST}, s{sQST}, 8192")
A("s_waitcnt lgkmcnt(0)\ns_barrier")
A("L_ch_qp:")
SV = 20
s1, s2, t0, t1 = 24, 25, 26, 27
A(f"ds_read_b128 {vr(cXA)}, v{cXa}\nds_read_b128 {vr(SV)}, v{cXs}")
for kb in range(1, 14):
    A(f"ds_read_b128 {vr(cXA+4*kb)}, v{cXa} offset:{64*kb}")
st = []
st += [f"v_readfirstlane_b32 s{sT0}, v{cXA}", f"s_lshl_b32 s{sT0}, s{sT0}, 16"]
for r in range(4):
    st += [f"v_lshlrev_b32 v{t0}, 16, v{SV+r}", f"v_and_b32 v{t1}, 0xffff0000, v{SV+r}",
           f"v_subrev_f32 v{t0}, s{sT0}, v{t0}", f"v_subrev_f32 v{t1}, s{sT0}, v{t1}"]
    if r == 0:
        st += [f"v_add_f32 v{s1}, v{t0}, v{t1}", f"v_mul_f32 v{s2}, v{t0}, v{t0}", f"v_fmac_f32 v{s2}, v{t1}, v{t1}"]
    else:
        st += [f"v_add_f32 v{s1}, v{s1}, v{t0}", f"v_fmac_f32 v{s2}, v{t0}, v{t0}", f"v_add_f32 v{s1}, v{s1}, v{t1}", f"v_fmac_f32 v{s2}, v{t1}, v{t1}"]
st += [f"v_mul_f32 v{s1}, v{s1}, v{cV56}", f"v_mul_f32 v{s2}, v{s2}, v{cV56}"]
for ctl in ("quad_perm:[1,0,3,2]", "quad_perm:[2,3,0,1]", "row_half_mirror", "row_mirror"):
    st += ["s_nop 0", f"v_add_f32_dpp v{s1}, v{s1}, v{s1} {ctl} {DPPF}", f"v_add_f32_dpp v{s2}, v{s2}, v{s2} {ctl} {DPPF}"]
for sw in ("v_permlane32_swap_b32", "v_permlane16_swap_b32"):
    st += [f"v_mov_b32 v{t0}, v{s1}", f"v_mov_b32 v{t1}, v{s2}", "s_nop 1", f"{sw} v{s1}, v{t0}", f"{sw} v{s2}, v{t1}",
           f"v_add_f32 v{s1}, v{s1}, v{t0}", f"v_add_f32 v{s2}, v{s2}, v{t1}"]
st += [f"v_mul_f32 v{s1}, {f2u(1.0/448.0)}, v{s1}", f"v_mul_f32 v{s2}, {f2u(1.0/448.0)}, v{s2}",
       f"v_fma_f32 v{s2}, -v{s1}, v{s1}, v{s2}", f"v_max_f32 v{s2}, 0, v{s2}", f"v_add_f32 v{s1}, s{sT0}, v{s1}",
       f"v_cvt_pk_bf16_f32 v{s2}, 0, v{s2}", f"v_cvt_pk_bf16_f32 v{s1}, 0, v{s1}",
       f"v_add_f32 v{s2}, {f2u(1e-5)}, v{s2}", f"v_cvt_pk_bf16_f32 v{s2}, 0, v{s2}", f"v_sqrt_f32 v{s2}, v{s2}", "s_nop 0",
       f"v_cvt_pk_bf16_f32 v{s2}, 0, v{s2}", f"v_rcp_f32 v{s2}, v{s2}"]
A(f"s_and_b32 s{sT1}, s{sLAYER}, 1\ns_cmp_eq_u32 s{sT1}, 1\ns_cbranch_scc1 L_qp_B")
for which in range(2):
    if which == 1:
        A("L_qp_B:")
    sp_ = 0
    nm = 0
    for kb in range(14):
        A(f"s_waitcnt lgkmcnt({13 if kb == 0 else 13-kb})")
        for cb in range(2):
            acc = cACC + 4 * cb
            A(f"v_mfma_f32_16x16x32_bf16 {vr(acc)}, {vr(cXA+4*kb)}, {vr(radd(WQ[which], (kb*2+cb)*4))}, {'0' if kb == 0 else vr(acc)}")
            nm += 1
            upto = min(len(st), (nm * len(st) + 26) // 27)
            while sp_ < upto:
                A(st[sp_])
                sp_ += 1
    A(f"v_mul_f32 v{s1}, v{s1}, v{cCS[which]}")
    if which == 0:
        A("s_branch L_qp_red")
A("L_qp_red:")
A("s_nop 5")
sel_cb(t0)
A(f"v_sub_f32 v{t0}, v{t0}, v{s1}\nv_mul_f32 v{t0}, v{t0}, v{s2}\ns_nop 1")
A(f"v_mov_b32_dpp v{t1}, v{t0} quad_perm:[1,1,3,3] {DPPF}")
A(f"v_cvt_pk_bf16_f32 v{t0}, v{t0}, v{t1}\nv_min_u32 v{t0}, -2, v{t0}")
A("s_mov_b32 exec_lo, 0x55555555\ns_mov_b32 exec_hi, 0")
A(f"s_cmp_eq_u32 s{sMODE}, 1\ns_cbranch_scc0 L_qp_far")
A(f"buffer_store_dword v{t0}, v{cQst}, {srd(SRD_WS)}, s{sQST} offen\ns_branch L_qp_st")
A("L_qp_far:")
A(f"buffer_store_dword v{t0}, v{cQst}, {srd(SRD_WS)}, s{sQST} offen sc1")
A("L_qp_st:")
A("s_mov_b64 exec, -1")
lstamp(2)
A(f"s_cmp_eq_u32 s{sLAYER}, 0\ns_cbranch_scc0 L_ch_stageA")
A("s_barrier")
wq_dma(1)
wo1_regs(range(16))
A("s_waitcnt vmcnt(16)\ns_barrier")
wq_tr(1)
A("s_barrier")
wo0_loads(1, range(16))
wo1_dma(1)
colsum(1)
A(f"s_waitcnt vmcnt(32)\ns_lshl_b32 s{sT1}, s{sWAVE}, 14\nv_add_u32 v{cT}, s{sT1}, v{cL16}")
for t in range(16):
    A(f"ds_write_b128 v{cT}, {vr(wo1(t))} offset:{t*1024}")
A("s_waitcnt lgkmcnt(0)")
if os.environ.get("EXP", ""):
    A("s_waitcnt vmcnt(0)")
    stamp(3)
    A("s_branch L_fin")
A("L_ch_cnt:")
spin_guard("L_ch_cnt_ok")
A(f"v_lshlrev_b32 v{cT}, 2, v0")
A(f"buffer_load_dword v{cG}, v{cT}, {srd(SRD_DBG)}, 0 offen sc1\ns_waitcnt vmcnt(0)")
A(f"v_add_u32 v{cG+1}, 0x7f7f7f7f, v{cG}\nv_and_b32 v{cG+1}, 0x80808080, v{cG+1}\nv_cmp_ne_u32 vcc, 0x80808080, v{cG+1}\ns_nop 0")
A("s_cmp_lg_u64 vcc, 0\ns_cbranch_scc1 L_ch_cnt")
A("L_ch_cnt_ok:")
stamp(18)
A("L_ch_pre:")
spin_guard("L_ch_stageA")
if int(os.environ.get("CPC", "1")):
    BACKWARD.add("L_ch_stageA")
    code_prefetch("L_ch_stageA", 8192, cT, cG, sT0)
A("s_sleep 16\ns_mov_b64 exec, 1")
A(f"buffer_load_dword v{cML}, v{cMLg}, {srd(SRD_WS)}, s{sMLOFF} offen sc1\ns_waitcnt vmcnt(0)")
A(f"v_readfirstlane_b32 s{sT0}, v{cML}\ns_mov_b64 exec, -1\ns_cmp_eq_u32 s{sT0}, -1\ns_cbranch_scc1 L_ch_pre")
A("s_branch L_ch_stageA")
A("L_ch_out:")
A(f"v_subrev_u32 v{cT}, {XB}, v{cXw}")
A(f"buffer_store_dword v{cN}, v{cT}, {srd(SRD_OUT)}, 0 offen")
stamp(19)
if os.environ.get("DIAG"):
    da, db = [int(x) for x in os.environ["DIAG"].split(",")]
    ra = 100 if da == 99 else sSTAMP + 2 * da
    A(f"s_sub_u32 s{sT0}, s{sSTAMP+2*db}, s{ra}\ns_lshl_b32 s{sT0}, s{sT0}, 2\ns_min_u32 s{sT0}, s{sT0}, 100000\ns_add_u32 s{sT0}, s{sT0}, s{sSTAMP+38}")
    A(f"L_diag:\ns_memrealtime s[{sT2}:{sT3}]\ns_waitcnt lgkmcnt(0)\ns_sub_u32 s{sT1}, s{sT2}, s{sT0}\ns_cmp_lt_i32 s{sT1}, 0\ns_cbranch_scc1 L_diag")

A("L_fin:")
if PROFILE:
    A(f"s_mul_i32 s{sT0}, s2, 640\ns_mul_i32 s{sT1}, s{sWAVE}, 160\ns_add_u32 s{sT0}, s{sT0}, s{sT1}\ns_add_u32 s{sT0}, s{sT0}, {WS_STAMP}")
    A("s_mov_b64 exec, 1\nv_mov_b32 v1, 0")
    for i in range(10):
        for r in range(4):
            A(f"v_mov_b32 v{4+r}, s{sSTAMP+4*i+r}")
        A(f"buffer_store_dwordx4 v[4:7], v1, {srd(SRD_WS)}, s{sT0} offen offset:{16*i}\ns_nop 1")
if PROFILE:
    pass
A("L_end:")
A("s_endpgm")

for l in A.L:
    OUT.append(l if l.endswith(":") else "    " + l)
OUT.append('.section .rodata,"a"')
OUT.append(".p2align 6")
OUT.append(f".amdhsa_kernel {NAME}_kernel")
OUT.append("""  .amdhsa_next_free_vgpr 512
  .amdhsa_next_free_sgpr 102
  .amdhsa_accum_offset 256
  .amdhsa_group_segment_fixed_size 0
  .amdhsa_kernarg_size 104
  .amdhsa_user_sgpr_count 2
  .amdhsa_user_sgpr_kernarg_segment_ptr 1
  .amdhsa_system_sgpr_workgroup_id_x 1
  .amdhsa_float_denorm_mode_32 3
.end_amdhsa_kernel""")
out = sys.argv[1] if len(sys.argv) > 1 else f"cdna_kernels/{NAME}.s"
open(out, "w").write("\n".join(OUT) + "\n")
print("wrote", out, len(A.L), "lines")
```

```python
import sys, os, struct

PROFILE = int(os.environ.get("PROFILE", "0"))
NAME = "interleave_layers__gqa_block_cached__sliding_block_cached__decode"

WS_Q = 0
WS_Y = 49152
WS_PO = 196608
WS_ML = 196608 + 4 * 458752
ML_L = 65536
PO_L = 16 * 28 * 1024
WS_STAMP = 4 << 20
WS_SIZE = 283117312
SPIN_MAX = 1 << 18

CSCALE = struct.unpack("<I", struct.pack("<f", 1.4426950408889634 / 16.0))[0]
NEG_INF = 0xFF800000


def f2u(x):
    return struct.unpack("<I", struct.pack("<f", x))[0]


class Asm:
    def __init__(self):
        self.L = []
        self.nlabel = 0

    def __call__(self, s):
        for line in s.split("\n"):
            line = line.strip()
            if line:
                self.L.append(line)

    def label(self, base):
        self.nlabel += 1
        return f"L_{base}_{self.nlabel}"


A = Asm()


def vr(r, n=4):
    if isinstance(r, int):
        r = ("v", r)
    k, i = r
    return f"{k}[{i}:{i+n-1}]" if n > 1 else f"{k}{i}"


def radd(r, d):
    if isinstance(r, int):
        return r + d
    return (r[0], r[1] + d)


DPPF = "row_mask:0xf bank_mask:0xf"

sWAVE = 3
SRD_KA, SRD_VA, SRD_KB, SRD_VB, SRD_WS, SRD_DBG = 4, 8, 12, 16, 20, 24
SRD_WQA, SRD_WOA, SRD_WQB, SRD_WOB = 4, 8, 12, 16
SRD_X, SRD_OUT = 28, 80
sOFFA, sOFFA36, sOFFB, sOFFB9 = 28, 29, 30, 31
sBIASA, sBIASB = 32, 33
sC = 36
sLDSW = 37
sT0, sT1, sT2, sT3 = 38, 39, 40, 41
sLAYER = 42
sSPIN = 43
sQOFF, sPOOFF, sMLOFF, sYOFF = 44, 45, 46, 47
sG, sSP = 48, 49
sYST, sQST = 50, 51
sOFFB8 = 50
sCL = 47
sW4 = 58
sID, sMODE = 34, 35
KARG = 52
sSTAMP = 60
SRD_OUT = 28
sOUTP = 32

nstamp = [0]


def srd(r):
    return f"s[{r}:{r+3}]"


def stamp(idx):
    if PROFILE == 2 and idx not in (0, 5, 19):
        return
    if PROFILE:
        assert idx < 20
        if idx == 0:
            for i in range(1, 20):
                A(f"s_mov_b64 s[{sSTAMP+2*i}:{sSTAMP+2*i+1}], 0")
            A(f"s_mov_b64 s[{sSTAMP}:{sSTAMP+1}], s[100:101]")
            return
        A(f"s_memrealtime s[{sSTAMP+2*idx}:{sSTAMP+2*idx+1}]\ns_waitcnt lgkmcnt(0)")


def mk_srd(dst, ptr, size):
    A(f"s_mov_b32 s{dst}, s{ptr}\ns_and_b32 s{dst+1}, s{ptr+1}, 0xffff\ns_mov_b32 s{dst+2}, {size}\ns_mov_b32 s{dst+3}, 0x20000")


def emit_masks(vlane, m0, t0, t1):
    A(f"v_and_b32 v{t0}, 1, v{vlane}")
    A(f"v_lshlrev_b32 v{t0}, 4, v{t0}")
    A(f"v_mov_b32 v{t1}, 0xffff")
    A(f"v_lshlrev_b32 v{t0}, v{t0}, v{t1}")
    A(f"v_bfe_u32 v{t1}, v{vlane}, 1, 2")
    for r in range(4):
        A(f"v_cmp_eq_u32 vcc, {r}, v{t1}")
        A("s_nop 1")
        A(f"v_cndmask_b32 v{m0+r}, 0, v{t0}, vcc")


def xrow_reduce(op, v, t):
    A(f"v_mov_b32 v{t}, v{v}\ns_nop 1\nv_permlane32_swap_b32 v{v}, v{t}\n{op} v{v}, v{v}, v{t}")
    A(f"v_mov_b32 v{t}, v{v}\ns_nop 1\nv_permlane16_swap_b32 v{v}, v{t}\n{op} v{v}, v{v}, v{t}")


def sentinel_check(regs, t, retry_label):
    regs = list(regs)
    A(f"v_max3_u32 v{t}, v{regs[0]}, v{regs[1]}, v{regs[2]}")
    i = 3
    while i + 1 < len(regs):
        A(f"v_max3_u32 v{t}, v{t}, v{regs[i]}, v{regs[i+1]}")
        i += 2
    if i < len(regs):
        A(f"v_max_u32 v{t}, v{t}, v{regs[i]}")
    A(f"v_cmp_eq_u32 vcc, -1, v{t}")
    A("s_nop 0")
    A(f"s_cmp_lg_u64 vcc, 0\ns_cbranch_scc1 {retry_label}")


def spin_guard(giveup_label):
    A(f"s_cmp_eq_u32 s{sSPIN}, 0\ns_cbranch_scc1 {giveup_label}\ns_sub_u32 s{sSPIN}, s{sSPIN}, 1")
    if os.environ.get("PSLEEP"):
        A(f"s_sleep {os.environ['PSLEEP']}")


hdr = open(f"cdna_kernels/{NAME}.s.ref").read().split("\n")
head = [l for l in hdr if l.startswith(";") and "@launch" not in l]
OUT = list(head)
OUT.append("; @launch grid=(256,1,1) block=(256,1,1) lds=163840")
OUT.append('.amdgcn_target "amdgcn-amd-amdhsa--gfx950"')
OUT.append(".text")
OUT.append(f".globl {NAME}_kernel")
OUT.append(".p2align 8")
OUT.append(f".type {NAME}_kernel,@function")
OUT.append(f"{NAME}_kernel:")

if PROFILE:
    A("s_memrealtime s[100:101]")
A("s_cmp_ge_u32 s2, 256\ns_cbranch_scc1 L_end")
A(f"s_load_dwordx16 s[{KARG}:{KARG+15}], s[0:1], 0")
A(f"s_load_dwordx8 s[{KARG+16}:{KARG+23}], s[0:1], 64")
A(f"s_load_dwordx2 s[{KARG+24}:{KARG+25}], s[0:1], 96")
pAX, pAK, pAV, pAWQ, pAWO, pBX, pBK, pBV, pBWQ, pBWO, pOUT, pDBG, pWS = [KARG + 2 * i for i in range(13)]
A("v_lshrrev_b32 v1, 6, v0\nv_and_b32 v0, 63, v0")
if os.environ.get("PERM"):
    A(f"s_mul_i32 s2, s2, {os.environ['PERM']}\ns_lshr_b32 s4, s2, 3\ns_and_b32 s4, s4, {os.environ.get('PERMX', '1')}\ns_xor_b32 s2, s2, s4\ns_and_b32 s2, s2, 255")
A(f"s_and_b32 s{sG}, s2, 7\ns_lshr_b32 s{sSP}, s2, 3")
A(f"v_readfirstlane_b32 s{sWAVE}, v1")
A(f"s_cmp_lt_u32 s{sSP}, 4\ns_cbranch_scc1 L_chain")


def common_setup():
    A(f"s_mov_b32 s{sC}, {CSCALE}\ns_mov_b32 s{sSPIN}, {SPIN_MAX}\ns_mov_b32 s{sLAYER}, 0")
    A(f"s_getreg_b32 s{sID}, hwreg(HW_REG_XCC_ID, 0, 4)\ns_min_u32 s{sID}, s{sID}, 14\ns_add_u32 s{sID}, s{sID}, 1\ns_mul_i32 s{sID}, s{sID}, 0x01010101\ns_mov_b32 s{sMODE}, 0")
    mk_srd(SRD_WS, pWS, WS_SIZE)
    mk_srd(SRD_DBG, pDBG, 256)


vK, vV, vKd, vVd, vL, vQ, vT = 1, 2, 3, 4, 5, 6, 7
MASK = 8
QA = 12
DT = 20
vCM, vLS, vMX, vPO, vX = 32, 33, 34, 35, 36
vCMr, vCMw, vF = 3, 4, 30
vFA, vFD = 36, 3
SC = 37
STG_A = [56, 60, 64, 68]
NSLOT = 19
XBASE = 4 * NSLOT * 2048
MLBASE = XBASE + 6144


def half(h):
    return ("v", 72 + 8 * h) if h < 23 else ("a", 8 * (h - 23))


NKA = 37
NVREG = 18
KVBYTES = 67108864

PSTRIDE = 16384
sHB = 59
A(f"s_sub_u32 s{sSP}, s{sSP}, 4")
A(f"s_mul_i32 s{sT1}, s{sSP}, 36\ns_min_u32 s{sT2}, s{sSP}, 16\ns_add_u32 s{sT1}, s{sT1}, s{sT2}\ns_lshl_b32 s{sT1}, s{sT1}, 13")
A(f"s_lshl_b32 s{sT3}, s{sG}, 23\ns_add_u32 s{sOFFA36}, s{sT1}, s{sT3}")
A(f"s_lshl_b32 s{sT0}, s{sWAVE}, 12\ns_add_u32 s{sOFFA}, s{sOFFA36}, s{sT0}")
A(f"s_mul_i32 s{sLDSW}, s{sWAVE}, {NSLOT*2048}")
A(f"v_lshrrev_b32 v20, 4, v0       ; s / row")
A(f"v_and_b32 v21, 15, v0          ; j")
A(f"v_lshlrev_b32 v25, 4, v21")
A(f"v_lshl_add_u32 v{vV}, v20, 9, v25")
A(f"v_add_u32 v{vVd}, 768, v{vV}")
A("s_waitcnt lgkmcnt(0)")
mk_srd(SRD_VA, pAV, KVBYTES)


def late_setup():
    common_setup()
    mk_srd(SRD_KA, pAK, KVBYTES)
    mk_srd(SRD_KB, pBK, KVBYTES)
    mk_srd(SRD_VB, pBV, KVBYTES)
    stamp(0)
    A(f"v_and_b32 v{vFA}, 7, v0\nv_lshlrev_b32 v{vFA}, 5, v{vFA}")
    A(f"s_cmp_eq_u32 s{sWAVE}, 0\ns_cbranch_scc0 L_nc")
    A(f"v_mov_b32 v{vT}, s{sID}\ns_lshl_b64 exec, 1, s{sG}")
    A(f"buffer_store_byte v{vT}, v{vFA}, {srd(SRD_DBG)}, s{sSP} offen offset:4 sc1\ns_mov_b64 exec, -1")
    A("L_nc:")
    A(f"s_cmp_lt_u32 s{sSP}, 16")
    A(f"s_cselect_b32 s{sT2}, 36, 35")
    A(f"s_cselect_b32 s{sBIASA}, 0, {NEG_INF}")
    A(f"s_lshl_b32 s{sT2}, s{sT2}, 13\ns_lshl_b32 s{sT0}, s{sWAVE}, 11\ns_add_u32 s{sT2}, s{sT2}, s{sT0}")
    A(f"s_add_u32 s{sOFFA36}, s{sOFFA36}, s{sT2}")
    A(f"s_mul_i32 s{sT1}, s{sSP}, 9\ns_max_u32 s{sT2}, s{sSP}, 24\ns_sub_u32 s{sT2}, s{sT2}, 24\ns_add_u32 s{sT1}, s{sT1}, s{sT2}")
    A(f"s_lshl_b32 s{sT1}, s{sT1}, 13\ns_add_u32 s{sT1}, s{sT1}, s{sT3}\ns_add_u32 s{sT1}, s{sT1}, {12288*512}")
    A(f"s_lshl_b32 s{sT2}, s{sWAVE}, 12\ns_add_u32 s{sOFFB}, s{sT1}, s{sT2}")
    A(f"s_add_u32 s{sOFFB8}, s{sT1}, s{sT0}\ns_add_u32 s{sOFFB8}, s{sOFFB8}, {32*2048}")
    A(f"s_cmp_ge_u32 s{sSP}, 24")
    A(f"s_cselect_b32 s{sT1}, 1, 0")
    A(f"s_cselect_b32 s{sBIASB}, 0, {NEG_INF}")
    A(f"s_lshl_b32 s{sT1}, s{sT1}, 13")
    A(f"s_add_u32 s{sOFFB9}, s{sOFFB8}, s{sT1}")
    for p in range(4):
        A(f"s_add_u32 s{sBO+p}, s{sOFFB}, {p*PSTRIDE}")
    A(f"s_mov_b32 s{sBO+4}, s{sOFFB8}\ns_mov_b32 s{sBO+5}, s{sOFFB9}")
    A(f"v_and_b32 v22, 3, v0           ; c")
    A(f"v_bfe_u32 v23, v0, 2, 2        ; a")
    A(f"v_lshl_add_u32 v24, v20, 2, v22   ; 4s+c")
    A(f"v_lshlrev_b32 v24, 4, v24")
    A(f"v_lshl_add_u32 v{vK}, v23, 9, v24")
    A(f"v_lshl_add_u32 v{vL}, v0, 4, s{sLDSW}")
    A(f"v_lshrrev_b32 v27, 3, v21      ; head(j)")
    A(f"v_lshl_add_u32 v{vQ}, v27, 9, v24")
    A(f"v_lshrrev_b32 v27, 5, v0\nv_mul_u32_u24 v27, 28672, v27\nv_lshl_add_u32 v27, v21, 5, v27")
    A(f"v_and_b32 v28, 1, v20\nv_lshl_add_u32 v{vPO}, v28, 4, v27")
    A(f"s_lshl_b32 s{sQOFF}, s{sG}, 10")
    A(f"s_mul_i32 s{sPOOFF}, s{sG}, 56\ns_add_u32 s{sPOOFF}, s{sPOOFF}, s{sSP}\ns_lshl_b32 s{sPOOFF}, s{sPOOFF}, 10\ns_add_u32 s{sPOOFF}, s{sPOOFF}, {WS_PO}")
    A(f"s_lshl_b32 s{sMLOFF}, s{sG}, 13\ns_lshl_b32 s{sT0}, s{sSP}, 7\ns_add_u32 s{sMLOFF}, s{sMLOFF}, s{sT0}\ns_add_u32 s{sMLOFF}, s{sMLOFF}, {WS_ML}")
    emit_masks(0, MASK, 20, 21)


def ld_items_reg(srdr, voff, soff_base, ulist, regs_of):
    items = []
    i = 0
    while i < len(ulist):
        u = ulist[i]
        pair = ulist[i:i + 2]
        assert u % 2 == 0
        pre = f"s_add_u32 s{sT0}, s{soff_base}, {(u//2)*PSTRIDE}"
        first = True
        for k, uu in enumerate(pair):
            for m in range(2):
                txt = f"buffer_load_dwordx4 {vr(radd(regs_of(uu), 4*m))}, v{voff}, {srd(srdr)}, s{sT0} offen offset:{k*2048+m*256} nt"
                if first:
                    txt = pre + "\n" + txt
                    first = False
                items.append((txt, uu))
        i += 2
    return items


def ld_items_lds(srdr, voff, voffd, soff_base, ulist, slot_of):
    items = []
    i = 0
    while i < len(ulist):
        u = ulist[i]
        pair = ulist[i:i + 2]
        assert u % 2 == 0
        d = (u // 2) * PSTRIDE - 768
        pre = (f"s_add_u32 s{sT1}, s{soff_base}, {d}" if d >= 0 else f"s_sub_u32 s{sT1}, s{soff_base}, {-d}")
        pre += f"\ns_add_u32 s{sT2}, s{sLDSW}, {slot_of(u)*2048}\ns_mov_b32 m0, s{sT2}\ns_nop 0"
        first = True
        for k, uu in enumerate(pair):
            assert slot_of(uu) == slot_of(u) + k
            for m in range(2):
                v = voffd if m == 0 else voff
                txt = f"buffer_load_dwordx4 v{v}, {srd(srdr)}, s{sT1} offen offset:{k*2048+m*1024} nt lds"
                if first:
                    txt = pre + "\n" + txt
                    first = False
                items.append((txt, uu))
        i += 2
    return items


class GRing:
    def __init__(self, keys, text_of, quads):
        self.keys, self.text_of, self.quads = keys, text_of, quads
        self.pos = {k: i for i, k in enumerate(keys)}
        self.issued = 0
        self.landed = 0

    def issue(self, upto):
        out = []
        while self.issued < min(upto, len(self.keys)):
            out.append(self.text_of(self.keys[self.issued], self.quads[self.issued % len(self.quads)]))
            self.issued += 1
        return "\n".join(out)

    def consume(self, key):
        i = self.pos[key]
        w = "" if i < self.landed else f"s_waitcnt vmcnt({self.issued - i - 1})\n"
        return w, self.quads[i % len(self.quads)], i + 1 + len(self.quads)


def qk_groups(n, ksrc, bias_sgpr, stg, hook=None):
    G = []
    nC = (n + 1) // 2
    G.append((f"v_mov_b32 v{vMX}, {NEG_INF}" + (f"\nv_mov_b32 v{SC+nC-1}, {NEG_INF}" if n & 1 else ""), None))
    reads = [(u, m) for u in range(n) if ksrc(u)[0] == "lds" for m in range(2)]
    rpos = {rm: i for i, rm in enumerate(reads)}
    issued = [0]

    def issue_reads(upto, out):
        while issued[0] < min(upto, len(reads)):
            u, m = reads[issued[0]]
            q = stg[issued[0] % len(stg)]
            out.append((f"ds_read_b128 {vr(q)}, v{vL} offset:{ksrc(u)[1]*2048+m*1024}", ksrc(u)[2]))
            issued[0] += 1

    pre = []
    issue_reads(len(stg), pre)

    def bops(u):
        d = DT + 4 * (u % 3)
        c = SC + u // 2
        bm = 0x5 if (u & 1) == 0 else 0xA
        t = f"v_mov_b32_dpp v{d}, v{d} quad_perm:[0,0,0,0] {DPPF}\n"
        t += f"v_add_f32_dpp v{d}, v{d+1}, v{d} quad_perm:[1,1,1,1] {DPPF}\n"
        t += f"v_add_f32_dpp v{d}, v{d+2}, v{d} quad_perm:[2,2,2,2] {DPPF}\n"
        if u == n - 1:
            t += f"v_add_f32 v{d}, s{bias_sgpr}, v{d}\n"
        t += f"v_add_f32_dpp v{c}, v{d+3}, v{d} quad_perm:[3,3,3,3] row_mask:0xf bank_mask:{bm:#x}\n"
        if (u & 1) or u == n - 1:
            t += f"v_max_f32 v{vMX}, v{vMX}, v{c}\n"
        return t

    body = []
    for u in range(n):
        d = DT + 4 * (u % 3)
        src = ksrc(u)
        b = bops(u - 2).strip().split("\n") if u >= 2 else []
        if u == 2:
            b = ["s_nop 4"] + b
        parts = [b[:len(b) // 2], b[len(b) // 2:]]
        for m in range(2):
            cin = "0" if m == 0 else vr(d)
            if src[0] == "reg":
                t = f"v_mfma_f32_16x16x32_bf16 {vr(d)}, {vr(radd(src[1],4*m))}, {vr(QA+4*m)}, {cin}"
                if hook and hook(u, m):
                    t += "\n" + hook(u, m)
                body.append((t, src[2]))
            elif src[0] == "gl":
                w, q, upto = src[1].consume(("K", u, m))
                body.append((w + f"v_mfma_f32_16x16x32_bf16 {vr(d)}, {vr(q)}, {vr(QA+4*m)}, {cin}", None))
                if parts[m]:
                    body.append(("\n".join(parts[m]), None))
                    parts[m] = []
                body.append((src[1].issue(upto), None))
            else:
                i = rpos[(u, m)]
                q = stg[i % len(stg)]
                t = f"s_waitcnt lgkmcnt({issued[0]-i-1})\n"
                t += f"v_mfma_f32_16x16x32_bf16 {vr(d)}, {vr(q)}, {vr(QA+4*m)}, {cin}"
                body.append((t, None))
                issue_reads(i + 1 + len(stg), body)
            if parts[m]:
                body.append(("\n".join(parts[m]), None))
    body.append((bops(n - 2), None))
    body.append(("s_nop 1\n" + bops(n - 1), None))
    return G, pre, body


def max_group():
    t = "s_nop 1\n"
    t += f"v_max_f32_dpp v{vMX}, v{vMX}, v{vMX} row_half_mirror {DPPF}\n"
    t += f"v_mov_b32 v{vT}, v{vMX}\ns_nop 1\nv_permlane32_swap_b32 v{vMX}, v{vT}\nv_max_f32 v{vMX}, v{vMX}, v{vT}\n"
    t += f"v_mov_b32 v{vT}, v{vMX}\ns_nop 1\nv_permlane16_swap_b32 v{vMX}, v{vT}\nv_max_f32 v{vMX}, v{vMX}, v{vT}\n"
    t += f"v_mul_f32 v{vCM}, s{sC}, v{vMX}\nv_mov_b32 v{vLS}, 0\nds_write_b32 v{vCMw}, v{vCM}"
    return (t, None)


def pv_groups(order, vsrc, stg, bar_at, tp):
    T = [DT, DT + 4]
    PP = [DT + 8, DT + 9]
    n = len(order)
    reads = [(u, m) for u in order if vsrc(u)[0] == "lds" for m in range(2)]
    rpos = {rm: i for i, rm in enumerate(reads)}
    issued = [0]
    body = []

    def issue_reads(upto):
        while issued[0] < min(upto, len(reads)):
            u, m = reads[issued[0]]
            q = stg[issued[0] % len(stg)]
            body.append((f"ds_read_b128 {vr(q)}, v{vL} offset:{vsrc(u)[1]*2048+m*1024}", vsrc(u)[2], None))
            issued[0] += 1

    pairs = []
    for u in order:
        if u // 2 not in pairs:
            pairs.append(u // 2)
    pidx = {k: i for i, k in enumerate(pairs)}

    def E(k):
        c = SC + k
        return f"v_fma_f32 v{c}, v{c}, s{sC}, -v{vCM}\nv_exp_f32 v{c}, v{c}\n"

    def F(k):
        c = SC + k
        return f"v_add_f32 v{vLS}, v{vLS}, v{c}\nv_cvt_pk_bf16_f32 v{PP[pidx[k]&1]}, v{c}, v{c}\n"

    def Gm(i):
        u = order[i]
        pp = PP[pidx[u // 2] & 1]
        rho = u & 1
        t = ""
        for r in range(4):
            if (r >> 1) == rho:
                t += f"v_and_b32 v{T[i&1]+r}, v{pp}, v{MASK+r}\n"
        for r in range(4):
            if (r >> 1) != rho:
                sh = "row_shr:4" if rho == 0 else "row_shl:4"
                t += f"v_and_b32_dpp v{T[i&1]+r}, v{pp}, v{MASK+r} {sh} {DPPF} bound_ctrl:0\n"
        return t

    t = E(pairs[0])
    if len(pairs) > 1:
        t += E(pairs[1])
    else:
        t += "s_nop 0\n"
    t += F(pairs[0]) + Gm(0)
    body.append((t, None, None))
    edone = min(2, len(pairs))
    fdone = 1
    first_lds_started = False
    for i in range(n):
        u = order[i]
        nxt = [order[j] for j in range(i, min(n, i + 3))]
        if not first_lds_started and any(vsrc(x)[0] == "lds" for x in nxt):
            issue_reads(len(stg))
            first_lds_started = True
        t = ""
        if i + 1 < n:
            k1 = pidx[order[i + 1] // 2]
            if k1 >= fdone:
                t += F(pairs[k1])
                fdone = k1 + 1
                if edone < len(pairs):
                    t += E(pairs[edone])
                    edone += 1
            t += Gm(i + 1)
        if i == bar_at:
            body.append((f"v_add_u32 v{vT}, s{sW4}, v{vCMr}\ns_waitcnt lgkmcnt(0)\ns_barrier\n"
                         f"ds_read_b64 v[{vF}:{vF+1}], v{vCMr}\nds_read_b64 v[{tp}:{tp+1}], v{vCMr} offset:8\nds_read_b32 v{vT}, v{vT}", None, None))
        if i == min(bar_at + 2, n - 1):
            t += (f"s_waitcnt lgkmcnt(0)\nv_max3_f32 v{vMX}, v{vF}, v{vF+1}, v{tp}\nv_max_f32 v{vMX}, v{vMX}, v{tp+1}\n"
                  f"v_sub_f32 v{vF}, v{vT}, v{vMX}\nv_exp_f32 v{vF}, v{vF}\n")
        tl = [x for x in t.strip().split("\n") if x]
        parts = [tl[:len(tl) // 2], tl[len(tl) // 2:]]
        if not tl:
            parts[0] = ["s_nop 0"]
        src = vsrc(u)
        for m in range(2):
            acc = QA + 4 * m
            cin = "0" if i == 0 else vr(acc)
            if parts[m]:
                body.append(("\n".join(parts[m]), None, None))
            if src[0] == "reg":
                body.append((f"v_mfma_f32_16x16x32_bf16 {vr(acc)}, {vr(T[i&1])}, {vr(radd(src[1],4*m))}, {cin}", src[2], None))
            elif src[0] == "gl":
                w, q, upto = src[1].consume(("V", u, m))
                body.append((w + f"v_mfma_f32_16x16x32_bf16 {vr(acc)}, {vr(T[i&1])}, {vr(q)}, {cin}", None, None))
                body.append((src[1].issue(upto), None, None))
            else:
                j = rpos[(u, m)]
                q = stg[j % len(stg)]
                body.append((f"s_waitcnt lgkmcnt({issued[0]-j-1})\nv_mfma_f32_16x16x32_bf16 {vr(acc)}, {vr(T[i&1])}, {vr(q)}, {cin}", None, u if m == 1 else None))
                issue_reads(j + 1 + len(stg))
    return body


def emit_groups(gs):
    for g in gs:
        A(g[0])


def clear_next(t4, ta):
    sk, far = A.label("clsk"), A.label("clfar")
    A(f"s_cmp_lt_u32 s{sWAVE}, 2\ns_cbranch_scc1 {sk}")
    for r in range(4):
        A(f"v_mov_b32 v{t4+r}, -1")
    A(f"v_lshlrev_b32 v{ta}, 4, v0")
    A(f"s_sub_u32 s{sT3}, s{sWAVE}, 2\ns_lshl_b32 s{sCL}, s{sT3}, 12\ns_add_u32 s{sCL}, s{sCL}, s{sMLOFF}\ns_add_u32 s{sCL}, s{sCL}, {ML_L}")
    A(f"s_mul_i32 s{sT3}, s{sT3}, 28672\ns_add_u32 s{sT3}, s{sT3}, s{sPOOFF}\ns_add_u32 s{sT3}, s{sT3}, {PO_L}")
    A(f"s_cmp_eq_u32 s{sMODE}, 1\ns_cbranch_scc0 {far}")
    for fl in ("", " sc1"):
        if fl:
            A(f"{far}:")
        A(f"buffer_store_dwordx4 {vr(t4)}, v{ta}, {srd(SRD_WS)}, s{sT3} offen{fl}")
        A(f"s_mov_b64 exec, 1\nbuffer_store_dwordx2 {vr(t4, 2)}, v{ta}, {srd(SRD_WS)}, s{sCL} offen{fl}\ns_mov_b64 exec, -1")
        if not fl:
            A(f"s_branch {sk}")
    A(f"{sk}:\ns_nop 1")


def code_prefetch(lab_from, nbytes, vaddr, vjunk, sp):
    here = A.label("pc")
    A(f"s_getpc_b64 s[{sp}:{sp+1}]\n{here}:")
    A(f"s_add_u32 s{sp}, s{sp}, {lab_from}-{here}\ns_addc_u32 s{sp+1}, s{sp+1}, {'-1' if lab_from in BACKWARD else '0'}")
    A(f"v_lshlrev_b32 v{vaddr}, 6, v0")
    for o in range(0, nbytes, 4096):
        A(f"global_load_dword v{vjunk}, v{vaddr}, s[{sp}:{sp+1}]")
        if o + 4096 < nbytes:
            A(f"v_add_u32 v{vaddr}, 4096, v{vaddr}")


BACKWARD = set()


def cm_addr():
    A(f"v_lshrrev_b32 v{vCMr}, 5, v0\nv_lshlrev_b32 v{vCMr}, 4, v{vCMr}\nv_add_u32 v{vCMr}, {MLBASE}, v{vCMr}")
    A(f"v_bfe_u32 v{vCMw}, v0, 3, 1\nv_lshlrev_b32 v{vCMw}, 4, v{vCMw}\nv_add_u32 v{vCMw}, s{sW4}, v{vCMw}\nv_add_u32 v{vCMw}, {MLBASE}, v{vCMw}")


def q_loads():
    return (f"buffer_load_dwordx4 {vr(QA)}, v{vQ}, {srd(SRD_WS)}, s{sQOFF} offen sc1\n"
            f"buffer_load_dwordx4 {vr(QA+4)}, v{vQ}, {srd(SRD_WS)}, s{sQOFF} offen offset:256 sc1")


def poll_q_blocking():
    lp, done = A.label("qpoll"), A.label("qdone")
    A(f"{lp}:")
    spin_guard(done)
    if os.environ.get("QPS"):
        A(f"s_sleep {os.environ['QPS']}")
    A(q_loads())
    A("s_waitcnt vmcnt(0)")
    sentinel_check(range(QA, QA + 8), vT, lp)
    A(f"{done}:")
    A("s_nop 1")


VL_UNITS = list(range(NVREG, NKA))
vslot = lambda u: u - NVREG
loads = []
it = ld_items_lds(SRD_VA, vV, vVd, sOFFA, VL_UNITS[:-1], vslot)
loads += [(t, ("V", u), None) for t, u in it]
it = ld_items_lds(SRD_VA, vV, vVd, sOFFA36, [0], lambda u: vslot(36))
loads += [(t, ("V", 36), None) for t, u in it]
it = ld_items_reg(SRD_KA, vK, sOFFA, list(range(36)), half)
kl = [(t, ("K", u), None) for t, u in it]
it = ld_items_reg(SRD_KA, vK, sOFFA36, [0], lambda u: half(36))
kl += [(t, ("K", 36), None) for t, u in it]
ca_load = (f"buffer_load_dword v{vCM}, v{vFA}, {srd(SRD_DBG)}, 0 offen sc1", ("CA",), None)
FPOS = 32
NOCA = int(os.environ.get("NOCA", "0"))
loads += kl[:40] + ([] if NOCA else [ca_load]) + kl[40:60]
QPOS = len(loads)
loads += kl[60:]
it = ld_items_reg(SRD_VA, vV, sOFFA, list(range(NVREG)), lambda u: half(NKA + u))
loads += [(t, ("V", u), None) for t, u in it]
NA_LOADS = len(loads)
sBO = 52
vPF, vJ = 42, 43
XD = int(os.environ.get("XD", "4"))
STG_B = [44, 48, 52, 56, 60, 64, 68]
RING_B = STG_B + [radd(half(NKA + u), 4 * m) for u in range(NVREG - XD, NVREG) for m in range(2)]
NPRE = len(RING_B)
PFS = int(os.environ.get("PFS", "6"))
bpf = []
first = True
for srdr, nm in ((SRD_KB, "K"), (SRD_VB, "V")):
    for p in range(6):
        nbytes = 4096 if p < 4 else 2048
        per = 64 << PFS
        for o in range(0, nbytes, per):
            nbefore = (0 if nm == "K" else 20) + (4 * p if p < 4 else 16 + 2 * (p - 4))
            if nbefore + nbytes // 1024 <= NPRE:
                continue
            t = ""
            if first:
                t += f"v_lshlrev_b32 v{vPF}, {PFS}, v0\n"
                first = False
            lanes = min(64, nbytes >> PFS)
            if lanes < 64:
                t += f"s_mov_b64 exec, {(1 << lanes) - 1}\n" if lanes < 32 else "s_mov_b32 exec_hi, 0\n"
            t += f"buffer_load_dword v{vJ}, v{vPF}, {srd(srdr)}, s{sBO+p} offen offset:{o}"
            if lanes < 64:
                t += "\ns_mov_b64 exec, -1"
            bpf.append((t, ("PF", len(bpf)), None))
GATE = 0
NB_EARLY = int(os.environ.get('NBE', '0'))
BL = bpf
early = [(t.replace(f"v{vPF},", "v62,").replace(f"v{vJ},", "v63,"), tag, NSLOT - 1) for t, tag, req in BL[:NB_EARLY]]
loads += early
if NB_EARLY:
    t0_, tag0_, r0_ = BL[NB_EARLY]
    BL[NB_EARLY] = (f"v_lshlrev_b32 v{vPF}, {PFS}, v0\n" + t0_, tag0_, r0_)

ksrcA = lambda u: ("reg", half(u), ("K", u))
vsrcA = lambda u: ("reg", half(NKA + u), ("V", u)) if u < NVREG else ("lds", vslot(u), ("V", u))

g0, pre, body = qk_groups(NKA, ksrcA, sBIASA, STG_A)
comp = [(t, n, None) for t, n in g0 + pre + body] + [max_group() + (None,)]
comp += pv_groups(VL_UNITS + list(range(NVREG)), vsrcA, STG_A, 33, STG_A[0])

EXP = os.environ.get("EXP", "")
if EXP:
    order = loads[:NA_LOADS] + BL
    if "r" in EXP:
        order = [(t, ("K", u), None) for t, u in ld_items_reg(SRD_KA, vV if "v" in EXP else vK, sOFFA, list(range(36)), half)]
        order += [(t, ("V", u), None) for t, u in ld_items_reg(SRD_VA, vV, sOFFA, list(range(36)), lambda u: half(u + 18))]
        order += [(t, ("BK", u), None) for t, u in ld_items_reg(SRD_KB, vV if "v" in EXP else vK, sOFFB, list(range(8)), half)]
        order += [(t, ("BV", u), None) for t, u in ld_items_reg(SRD_VB, vV, sOFFB, list(range(8)), lambda u: half(u + 18))]
    for i, (t, tag, req) in enumerate(order):
        if tag == ("CA",): continue
        if tag == ("BK", 0) and "s_add" in t:
            stamp(3)
        if i in (30, 60, 90, 120): stamp(15 + (30, 60, 90, 120).index(i))
        A(t)
        if os.environ.get("THR"): A(f"s_waitcnt vmcnt({os.environ['THR']})")
    A("s_waitcnt vmcnt(0)")
    stamp(4)
    A("s_branch L_fin")
THR = int(os.environ.get("THR", "4"))
THRX = int(os.environ.get("THRX", "0"))
TSCH = eval(os.environ.get("TSCH", "[]"))
VPOL = int(os.environ.get("VPOL", "0"))
THR2 = int(os.environ.get("THR2", "0"))
THRB = int(os.environ.get("THRB", "0"))
LAG = int(os.environ.get("LAG", "10"))
last_of = {}
nissued = 0
released = set()
ci = 0


def emit_comp(g):
    t, need, rel = g
    if need is not None:
        n = nissued - last_of[need] - 1
        A(f"s_waitcnt vmcnt({min(n, 63)})")
    A(t)
    if rel is not None:
        released.add(vslot(rel))


qready = False
li = 0
done_pos = set()
LEAD = int(os.environ.get("LEAD", "0"))
ADAPT = int(os.environ.get("ADAPT", "0"))
ATHR = int(os.environ.get("ATHR", "3"))
sTHR = 51
MARKS = ([40, 56, 72, 88, 104, 120] if LEAD else [-1] * 6) + [NA_LOADS - GATE] if GATE else []
if ADAPT:
    MARKS = [34, 50, 66, 82, 98, 114, 130]
    A(f"s_mov_b32 s{sTHR}, 0")


RATE = int(os.environ.get("RATE", "0"))
sRT0, sRT = 64, 66
if RATE:
    pass


def rate_ctl(li):
    if RATE and li % 6 == 0 and 12 <= li:
        A(f"s_memrealtime s[{sRT}:{sRT+1}]")
    if RATE and li % 6 == 1 and 12 <= li:
        A(f"s_waitcnt lgkmcnt(0)\ns_sub_u32 s{sRT}, s{sRT}, s{sRT0}\ns_cmp_lt_u32 s{sRT}, {max(0, (li - int(os.environ.get('ROFF', '4'))) * RATE // 10)}\ns_cselect_b32 s{sTHR}, 1, 0")


def athr():
    if ADAPT or RATE:
        sk = A.label("nt")
        A(f"s_cmp_eq_u32 s{sTHR}, 0\ns_cbranch_scc1 {sk}\ns_waitcnt vmcnt({ATHR})\n{sk}:")


flow_load = f"buffer_load_ubyte v{vFD}, v{vFA}, {srd(SRD_DBG)}, 0 offen offset:4 sc1"


def flow_wait(k, n):
    ok, lp, ck = A.label("flok"), A.label("fllp"), A.label("flck")
    if n is not None:
        A(f"s_waitcnt vmcnt({n})\ns_branch {ck}")
    A(f"{lp}:")
    spin_guard(ok)
    A(f"{flow_load}\ns_waitcnt vmcnt(0)")
    A(f"{ck}:\nv_cmp_gt_u32 vcc, {k << 4}, v{vFD}\ns_nop 0\ns_cmp_lg_u64 vcc, 0\ns_cbranch_scc0 {ok}\ns_sleep 4\ns_branch {lp}")
    A(f"{ok}:")


while li < len(loads):
    if li in MARKS and li not in done_pos:
        k = MARKS.index(li) + 1
        nf = A.label("nomark")
        A(f"s_or_b32 s{sT3}, s{sWAVE}, s{sSP}\ns_cmp_eq_u32 s{sT3}, 0\ns_cbranch_scc0 {nf}")
        A(f"s_or_b32 s{sT3}, s{sID}, {k << 4}\nv_mov_b32 v{vT}, s{sT3}\ns_lshl_b64 exec, 1, s{sG}")
        A(f"buffer_store_byte v{vT}, v{vFA}, {srd(SRD_DBG)}, 0 offen offset:4 sc1\ns_mov_b64 exec, -1")
        A(f"{nf}:")
    if LEAD and (li - LEAD + 8) in MARKS[:-1] and li + 8 < NA_LOADS and li not in done_pos:
        A(flow_load)
        last_of[("FL",)] = nissued
        nissued += 1
    if LEAD and (li - LEAD) in MARKS[:-1] and li < NA_LOADS and li not in done_pos:
        k = MARKS.index(li - LEAD) + 1
        flow_wait(k, nissued - last_of[("FL",)] - 1)
    if ADAPT and (li - ADAPT) in MARKS and li + 8 < NA_LOADS and li not in done_pos:
        A(flow_load)
        last_of[("FL",)] = nissued
        nissued += 1
    if ADAPT and (li - ADAPT - 8) in MARKS and li < NA_LOADS and li not in done_pos:
        k = MARKS.index(li - ADAPT - 8) + 1
        A(f"s_waitcnt vmcnt({nissued - last_of[('FL',)] - 1})")
        A(f"v_cmp_gt_u32 vcc, {k << 4}, v{vFD}\ns_nop 0\ns_cmp_lg_u64 vcc, 0\ns_cselect_b32 s{sTHR}, 1, 0")
    if os.environ.get("PROG") and li in (30, 60, 90, 120) and li not in done_pos:
        if li == 120 and PROFILE: A("s_waitcnt lgkmcnt(0)")
        stamp(15 + (30, 60, 90, 120).index(li))
    if li == 4 and li not in done_pos:
        late_setup()
        if RATE:
            A(f"s_mov_b32 s{sTHR}, 0\ns_memrealtime s[{sRT0}:{sRT0+1}]")
    done_pos.add(li)
    if li == QPOS and NOCA:
        A(f"s_mov_b32 s{sMODE}, 1")
        A(q_loads())
        nissued += 2
        last_of[("Q",)] = nissued - 1
    if li == QPOS and not NOCA:
        n = nissued - last_of[("CA",)] - 1
        ok, lp, ck = A.label("caok"), A.label("calp"), A.label("cack")
        A(f"s_waitcnt vmcnt({n})\ns_branch {ck}")
        A(f"{lp}:")
        spin_guard(ok)
        A(f"{ca_load[0]}\ns_waitcnt vmcnt(0)")
        A(f"{ck}:\nv_readlane_b32 s{sT3}, v{vCM}, s{sG}")
        A(f"s_cmp_eq_u32 s{sT3}, s{sID}\ns_cselect_b32 s{sMODE}, 1, 0")
        A(f"s_add_u32 s{sT3}, s{sT3}, 0x7f7f7f7f\ns_and_b32 s{sT3}, s{sT3}, 0x80808080\ns_cmp_eq_u32 s{sT3}, 0x80808080\ns_cbranch_scc0 {lp}")
        A(f"{ok}:")
        clear_next(DT, vT)
        A(q_loads())
        nissued += 2
        last_of[("Q",)] = nissued - 1
    if li == QPOS + 12:
        n = nissued - last_of[("Q",)] - 1
        slow, ok = A.label("qslow"), A.label("qok")
        A(f"s_waitcnt vmcnt({n})")
        sentinel_check(range(QA, QA + 8), vT, slow)
        A(f"s_branch {ok}\n{slow}:")
        poll_q_blocking()
        A(f"{ok}:")
        stamp(1)
        A(f"s_lshl_b32 s{sW4}, s{sWAVE}, 2")
        cm_addr()
        if RATE:
            A(f"s_mov_b32 s{sTHR}, 0")
        qready = True
    t, tag, req = loads[li]
    if req is not None and req not in released:
        emit_comp(comp[ci])
        ci += 1
        continue
    A(t.replace(" nt", "") if li < VPOL else t)
    if TSCH:
        tv = [v for (p, v) in TSCH if li >= p][-1]
        if tv:
            A(f"s_waitcnt vmcnt({tv})")
    elif THR and not qready:
        A(f"s_waitcnt vmcnt({THR + (THRX if li & 1 else 0)})")
    if THR2 and qready:
        A(f"s_waitcnt vmcnt({THR2})")
    if li > (12 if RATE else 40) and not (RATE and qready):
        athr()
    if not qready:
        rate_ctl(li)
    last_of[tag] = nissued
    nissued += 1
    li += 1
    if qready:
        cnt = 0
        while ci < len(comp) and cnt < 6:
            need = comp[ci][1]
            if need is not None and (need not in last_of or nissued - last_of[need] - 1 < LAG or
                                     (li < len(loads) and loads[li][1] == need)):
                break
            emit_comp(comp[ci])
            ci += 1
            cnt += 1
stamp(2)
A(f"s_max_u32 s{sT3}, s{sWAVE}, 1\ns_lshl_b32 s{sT3}, s{sT3}, 10\ns_add_u32 s{sT3}, s{sT3}, {XBASE - 1024}\nv_lshl_add_u32 v{vX}, v0, 4, s{sT3}")
while ci < len(comp):
    emit_comp(comp[ci])
    ci += 1

A("L_reduce:")
A(f"v_add_f32_dpp v{vLS}, v{vLS}, v{vLS} row_half_mirror {DPPF}")
xrow_reduce("v_add_f32", vLS, vT)
A(f"v_mul_f32 v{vLS}, v{vLS}, v{vF}\ns_mov_b32 exec_lo, 1\ns_mov_b32 exec_hi, 0x100")
A(f"ds_write_b32 v{vCMw}, v{vLS} offset:32\ns_mov_b64 exec, -1")
for r in range(0, 8, 2):
    A(f"v_pk_mul_f32 v[{QA+r}:{QA+r+1}], v[{QA+r}:{QA+r+1}], v[{vF}:{vF+1}] op_sel_hi:[1,0]")
XR = 20
xr = [20, 24, 56]
A(f"s_cmp_eq_u32 s{sWAVE}, 0\ns_cbranch_scc0 L_red_n0")
for wv in range(2):
    own, give = QA + 4 * wv, QA + 4 * (1 - wv)
    if wv == 1:
        A("L_red_1:")
    A(f"ds_write_b128 v{vX}, {vr(give)} offset:{3072*(1-wv)}")
    A(f"s_add_u32 s{sT0}, s{sPOOFF}, {512*wv}\ns_cmp_eq_u32 s{sMODE}, 1")
    A("s_waitcnt lgkmcnt(0)\ns_barrier")
    for s_ in range(3):
        A(f"ds_read_b128 {vr(xr[s_])}, v{vX} offset:{3072*wv+1024*s_}")
    for s_ in range(3):
        A(f"s_waitcnt lgkmcnt({2-s_})")
        for r in (0, 2):
            A(f"v_pk_add_f32 v[{own+r}:{own+r+1}], v[{own+r}:{own+r+1}], v[{xr[s_]+r}:{xr[s_]+r+1}]")
    for r in range(4):
        A(f"v_min_u32 v{own+r}, -2, v{own+r}")
    far = A.label("far")
    A(f"s_cbranch_scc0 {far}")
    A(f"buffer_store_dwordx4 {vr(own)}, v{vPO}, {srd(SRD_WS)}, s{sT0} offen\ns_branch L_red_done")
    A(f"{far}:\nbuffer_store_dwordx4 {vr(own)}, v{vPO}, {srd(SRD_WS)}, s{sT0} offen sc1\ns_branch L_red_done")
A("L_red_n0:")
A(f"s_cmp_eq_u32 s{sWAVE}, 1\ns_cbranch_scc1 L_red_1")
A(f"ds_write_b128 v{vX}, {vr(QA)}\nds_write_b128 v{vX}, {vr(QA+4)} offset:3072")
A(f"v_lshrrev_b32 v{vT}, 5, v0\nv_lshlrev_b32 v{vT}, 12, v{vT}\nv_min_u32 v24, -2, v{vMX}")
A(f"s_cmp_eq_u32 s{sWAVE}, 2")
A("s_waitcnt lgkmcnt(0)\ns_barrier\ns_cbranch_scc0 L_red_done")
A(f"ds_read_b128 v[20:23], v{vCMr} offset:32\ns_cmp_eq_u32 s{sMODE}, 1\ns_waitcnt lgkmcnt(0)")
A("v_add_f32 v20, v20, v21\nv_add_f32 v22, v22, v23\nv_add_f32 v25, v20, v22\nv_min_u32 v25, -2, v25")
A("s_mov_b32 exec_lo, 1\ns_mov_b32 exec_hi, 1\ns_cbranch_scc0 L_ml_far")
A(f"buffer_store_dwordx2 v[24:25], v{vT}, {srd(SRD_WS)}, s{sMLOFF} offen\ns_branch L_ml_done")
A(f"L_ml_far:\nbuffer_store_dwordx2 v[24:25], v{vT}, {srd(SRD_WS)}, s{sMLOFF} offen sc1")
A("L_ml_done:\ns_mov_b64 exec, -1")
A("L_red_done:")
A("s_barrier")
A(f"s_add_u32 s{sQOFF}, s{sQOFF}, 8192\ns_add_u32 s{sPOOFF}, s{sPOOFF}, {PO_L}\ns_add_u32 s{sMLOFF}, s{sMLOFF}, {ML_L}")
A(f"s_add_u32 s{sLAYER}, s{sLAYER}, 1")
A(f"s_cmp_eq_u32 s{sLAYER}, 2\ns_cbranch_scc1 L_after2")
A(f"s_cmp_eq_u32 s{sLAYER}, 3\ns_cbranch_scc1 L_after3")
A(f"s_cmp_eq_u32 s{sLAYER}, 4\ns_cbranch_scc1 L_att_end")
stamp(3)
if GATE:
    vFA = vT
    flow_load = f"buffer_load_ubyte v{vFD}, v{vFA}, {srd(SRD_DBG)}, 0 offen offset:4 sc1"
    A(f"v_and_b32 v{vFA}, 7, v0\nv_lshlrev_b32 v{vFA}, 5, v{vFA}")
    flow_wait(7, None)
    stamp(13)


def stream_then_q(items, E, st_a, st_b, thr=0, pre=()):
    n = len(items)
    for i, (t, tag, req) in enumerate(items):
        if i == n - E:
            A(q_loads())
        A(t)
        if thr and i < n - E:
            A(f"s_waitcnt vmcnt({thr})")
        if st_a == 4 and i < n - E and os.environ.get("ATHB"):
            athr()
            rate_ctl(NA_LOADS + NB_EARLY + i + 6)
    if E == 0:
        qs = int(os.environ.get(f"QS{st_a}", "0"))
        if qs:
            A(f"s_sleep {qs}")
        A(q_loads())
    slow, ok = A.label("qslow"), A.label("qok")
    A(f"s_waitcnt vmcnt({E})")
    stamp(st_a)
    emit_groups(pre)
    sentinel_check(range(QA, QA + 8), vT, slow)
    A(f"s_branch {ok}\n{slow}:")
    poll_q_blocking()
    A(f"{ok}:")
    stamp(st_b)
    younger = {}
    for i, (t, tag, req) in enumerate(items):
        if i >= n - E:
            younger[tag] = n - 1 - i
    return younger


def emit_counted(gs, younger, extra=None, every=1):
    extra = list(extra or [])
    cnt = 0
    for g in gs:
        need = g[1]
        if need in younger:
            A(f"s_waitcnt vmcnt({younger[need]})")
            lim = younger[need]
            for k in [k for k, v in younger.items() if v >= lim]:
                del younger[k]
        A(g[0])
        if "v_mfma" in g[0]:
            cnt += 1
            if extra and cnt % every == 0:
                t, tag, req = extra.pop(0)
                A(t)
                for k in younger:
                    younger[k] += 1
                younger[tag] = 0
    assert not extra


def btext(key, q):
    nm, u, m = key
    p, o = (u // 2, (u & 1) * 2048) if u < 8 else (u - 4, 0)
    return f"buffer_load_dwordx4 {vr(q)}, v{vK if nm == 'K' else vV}, {srd(SRD_KB if nm == 'K' else SRD_VB)}, s{sBO+p} offen offset:{o+256*m}"


ring = GRing([(nm, u, m) for nm in "KV" for u in range(10) for m in range(2)], btext, RING_B)
clear_next(DT, vT)
A(ring.issue(NPRE))
ring.landed = NPRE
CPF = int(os.environ.get("CPF", "2"))
if CPF:
    code_prefetch("L_l2body", CPF * 4096, vPF, vJ, sT0)
ksrcB = lambda u: ("gl", ring, None)
g0, pre, body = qk_groups(10, ksrcB, sBIASB, STG_B)
emit_groups(g0)
yg = stream_then_q(BL[NB_EARLY:], int(os.environ.get("E2", "2")), 4, 5)
A("L_l2body:")
emit_groups(body + [max_group()] + pv_groups(list(range(10)), ksrcB, STG_B, 5, 42))
A("s_branch L_reduce")

A("L_after2:")
stamp(6)
def hook3(u, m):
    j = 2 * (u - 1) + m
    if u >= 1 and j < 2 * NSLOT:
        w = "s_waitcnt lgkmcnt(6)\n" if j % 8 == 7 else ""
        return w + f"ds_read_b128 {vr(radd(half(j // 2), 4 * (j & 1)))}, v{vL} offset:{j*1024}"
    return None


g0, pre, body = qk_groups(NKA, ksrcA, sBIASA, STG_A, hook3)
vsrc3 = lambda u: ("reg", half(NKA + u) if u < NVREG else half(u - NVREG), None)
clear_next(DT, vT)
emit_groups(g0)
rl = ld_items_reg(SRD_VA, vV, sOFFA, list(range(NVREG - XD, NVREG)), lambda u: half(NKA + u)) if XD else []
yg = stream_then_q([(t, ("V", u), None) for t, u in rl], 0, 14, 7)
emit_counted(body, yg)
emit_groups([max_group()])
stamp(8)
HB1 = 0
b4 = []
for srdr, voff, base, nm in ((SRD_KB, vK, 0, "BK"), (SRD_VB, vV, 10, "BV")):
    b4 += [(t, (nm, u), None) for t, u in ld_items_reg(srdr, voff, sOFFB, list(range(8)), lambda u: half(base + u))]
    b4 += [(t, (nm, 8), None) for t, u in ld_items_reg(srdr, voff, sOFFB8, [0], lambda u: half(base + 8))]
    b4 += [(t, (nm, 9), None) for t, u in ld_items_reg(srdr, voff, sOFFB9, [0], lambda u: half(base + 9))]
NB4 = int(os.environ.get("NB4", "0"))
order3 = list(range(NVREG)) + [NVREG + x for x in list(range(HB1, NSLOT)) + list(range(0, HB1))]
emit_groups(pv_groups(order3, vsrc3, STG_A, 12, STG_A[0]))
stamp(15)
A("s_branch L_reduce")

A("L_after3:")
if os.environ.get("WBL") == "2":
    A(f"s_cmp_eq_u32 s{sSP}, 27\ns_cbranch_scc0 L_wb_skip2\ns_cmp_eq_u32 s{sWAVE}, 3\ns_cbranch_scc0 L_wb_skip2")
    A("buffer_wbl2 sc1")
    A("L_wb_skip2:")
stamp(9)
ksrc4 = lambda u: ("reg", half(u), ("BK", u))
vsrc4 = lambda u: ("reg", half(10 + u), ("BV", u))
g0, pre, body = qk_groups(10, ksrc4, sBIASB, STG_B)
emit_groups(g0)
yg = stream_then_q(b4[NB4:], int(os.environ.get("E4", "0")), 10, 11, int(os.environ.get("THR4", "0")))
emit_counted(body + [max_group()] + pv_groups(list(range(10)), vsrc4, STG_B, 5, 42), yg)
A("s_branch L_reduce")

A("L_att_end:")
if os.environ.get("WBL"):
    A(f"s_cmp_eq_u32 s{sSP}, 0\ns_cbranch_scc0 L_wb_skip\ns_cmp_eq_u32 s{sWAVE}, 3\ns_cbranch_scc0 L_wb_skip")
    A("buffer_wbl2 sc1\ns_waitcnt vmcnt(0)")
    A("L_wb_skip:")
stamp(12)
A("s_branch L_fin")

A("L_chain:")
cWq, cWo, cPOg, cMLg, cL16, cYg, cT = 1, 2, 3, 4, 5, 6, 7
cX = 12
cVAL, cYst, cSCR, cXw, cXa, cXs = 14, 15, 16, 17, 18, 19
cTT = [20, 24]
cACC = 28
cG = 36
cN = 68
cXA = 36
cCS = {0: 92, 1: 93}
cQst, cV56 = 94, 95
cWo1 = 91
WQ = {0: ("a", 0), 1: ("a", 112)}
WO0 = {0: ("v", 96), 1: ("v", 160)}
sYG = 52


def wo1(t):
    return ("v", 224 + 4 * t) if t < 8 else ("a", 224 + 4 * (t - 8))


CSCR = 131072
YX = CSCR
XB = CSCR + 4096
sCH = sSP
WQB = 448 * 4096 * 2

if "n" in os.environ.get("EXP", ""):
    A("s_branch L_end")
if "l" in os.environ.get("EXP", ""):
    mk_srd(SRD_KB, pBK, 67108864)
    stamp(0)
    A(f"s_lshl_b32 s{sT0}, s{sG}, 23\ns_mul_i32 s{sT1}, s{sSP}, 491520\ns_add_u32 s{sT0}, s{sT0}, s{sT1}\ns_lshl_b32 s{sT1}, s{sWAVE}, 12\ns_add_u32 s{sT0}, s{sT0}, s{sT1}\nv_lshlrev_b32 v1, 4, v0")
    for i in range(30):
        for n in range(4):
            A(f"buffer_load_dwordx4 a[{(i*16+n*4)%256}:{(i*16+n*4)%256+3}], v1, {srd(SRD_KB)}, s{sT0} offen offset:{n*1024} nt")
        A(f"s_add_u32 s{sT0}, s{sT0}, 16384")
    A("s_waitcnt vmcnt(0)")
    stamp(3)
    A("s_branch L_fin")
A("s_waitcnt lgkmcnt(0)")
common_setup()
mk_srd(SRD_WQA, pAWQ, WQB)
mk_srd(SRD_WOA, pAWO, WQB)
mk_srd(SRD_WQB, pBWQ, WQB)
mk_srd(SRD_WOB, pBWO, WQB)
mk_srd(SRD_X, pAX, 896)
A(f"s_mov_b64 s[{sOUTP}:{sOUTP+1}], s[{pOUT}:{pOUT+1}]")
A(f"s_lshl_b32 s{sT0}, s{sG}, 2\ns_add_u32 s{sCH}, s{sT0}, s{sSP}")
A("v_lshrrev_b32 v20, 4, v0       ; s / row")
A("v_and_b32 v21, 15, v0          ; j / c16")
A("v_lshlrev_b32 v22, 4, v21      ; j*16")
A(f"s_lshr_b32 s{sT0}, s{sWAVE}, 1\ns_lshl_b32 s{sT0}, s{sT0}, 2\nv_or_b32 v23, s{sT0}, v20\nv_lshlrev_b32 v23, 5, v23\nv_xor_b32 v23, v23, v22")
A(f"v_lshl_add_u32 v{cWq}, v20, 13, v23")
A(f"v_mul_u32_u24 v{cWo}, 896, v20\nv_add_u32 v{cWo}, v{cWo}, v22")
A("v_and_b32 v23, 31, v0\nv_min_u32 v23, 27, v23\nv_lshrrev_b32 v24, 5, v0")
A(f"s_mul_i32 s{sT0}, s{sWAVE}, 224\nv_lshlrev_b32 v25, 3, v23\nv_lshl_add_u32 v25, v24, 2, v25\nv_add_u32 v25, s{sT0}, v25")
A(f"buffer_load_dword v{cX}, v25, {srd(SRD_X)}, 0 offen")
A(f"v_add_u32 v{cXw}, {XB}, v25")
A(f"v_lshlrev_b32 v{cYg}, 4, v23\nv_lshl_add_u32 v{cYg}, v24, 11, v{cYg}")


def wq_dma(which):
    s_ = SRD_WQA if which == 0 else SRD_WQB
    A(f"s_lshl_b32 s{sT0}, s{sWAVE}, 15\ns_lshl_b32 s{sT1}, s{sCH}, 8\ns_add_u32 s{sT0}, s{sT0}, s{sT1}\ns_lshl_b32 s{sT2}, s{sWAVE}, 10")
    for ii in range(28):
        A(f"s_add_u32 s{sT1}, s{sT0}, {ii*131072}\ns_add_u32 s{sT3}, s{sT2}, {ii*4096}\ns_mov_b32 m0, s{sT3}\ns_nop 0")
        A(f"buffer_load_dwordx4 v{cWq}, {srd(s_)}, s{sT1} offen nt lds")


def wq_tr(which):
    A("v_lshrrev_b32 v20, 4, v0\nv_bfe_u32 v21, v0, 2, 2\nv_and_b32 v22, 1, v20\nv_lshl_add_u32 v22, v22, 2, v21")
    A(f"s_lshl_b32 s{sT0}, s{sWAVE}, 1\nv_xor_b32 v22, s{sT0}, v22\nv_lshlrev_b32 v22, 5, v22")
    A("v_lshl_add_u32 v20, v20, 3, v21\nv_lshl_add_u32 v20, v20, 8, v22\nv_and_b32 v21, 3, v0\nv_lshl_add_u32 v20, v21, 3, v20")
    A(f"v_xor_b32 v21, 32, v20\nv_add_u32 v22, {7*8192}, v20\nv_add_u32 v23, {7*8192}, v21")
    for kb in range(14):
        for cb in range(2):
            for hf in range(2):
                d = radd(WQ[which], (kb * 2 + cb) * 4 + hf * 2)
                A(f"ds_read_b64_tr_b16 {vr(d, 2)}, v{20 + cb + (0 if kb < 7 else 2)} offset:{(kb%7)*8192+hf*1024}")
        if kb % 3 == 2:
            A("s_waitcnt lgkmcnt(3)")
    A("s_waitcnt lgkmcnt(0)")


def sel_cb(dst):
    A(f"v_mov_b32 v{dst}, v{cACC}\ns_mov_b32 exec_lo, 0xffff0000\ns_mov_b32 exec_hi, 0xffff0000\nv_mov_b32 v{dst}, v{cACC+4}\ns_mov_b64 exec, -1")


def colsum(which):
    for r in range(4):
        A(f"v_mov_b32 v{20+r}, 0x3f803f80")
    A("s_nop 1")
    for kb in range(14):
        for cb in range(2):
            acc = cACC + 4 * cb
            A(f"v_mfma_f32_16x16x32_bf16 {vr(acc)}, v[20:23], {vr(radd(WQ[which], (kb*2+cb)*4))}, {'0' if kb == 0 else vr(acc)}")
    A("s_nop 7")
    sel_cb(cCS[which])


def wo_base():
    A(f"s_lshr_b32 s{sT0}, s{sCH}, 1\ns_lshl_b32 s{sT0}, s{sT0}, 2\ns_add_u32 s{sT0}, s{sT0}, s{sWAVE}\ns_mul_i32 s{sT0}, s{sT0}, {64*896}")
    A(f"s_and_b32 s{sT1}, s{sCH}, 1\ns_lshl_b32 s{sT1}, s{sT1}, 9\ns_add_u32 s{sT0}, s{sT0}, s{sT1}")


def wo0_loads(which, ts):
    s_ = SRD_WOA if which == 0 else SRD_WOB
    wo_base()
    for t in ts:
        A(f"s_add_u32 s{sT1}, s{sT0}, {4*t*896}")
        A(f"buffer_load_dwordx4 {vr(radd(WO0[which], 4*t))}, v{cWo}, {srd(s_)}, s{sT1} offen nt")


def wo1_addr():
    A(f"s_and_b32 s{sT1}, s{sCH}, 1\ns_lshl_b32 s{sT1}, s{sT1}, 7\ns_not_b32 s{sT1}, s{sT1}")
    A(f"v_lshlrev_b32 v{cWo1}, 4, v0\nv_and_b32 v{cWo1}, 0xf0, v{cWo1}\nv_sub_u32 v{cT}, v{cWo}, v{cWo1}\nv_and_b32 v{cWo1}, s{sT1}, v{cWo1}\nv_add_u32 v{cWo1}, v{cWo1}, v{cT}")


def wo1_regs(ts):
    wo1_addr()
    wo_base()
    for t in ts:
        A(f"s_add_u32 s{sT1}, s{sT0}, {4*t*896+256}")
        A(f"buffer_load_dwordx4 {vr(wo1(t))}, v{cWo1}, {srd(SRD_WOA)}, s{sT1} offen nt")


def wo1_dma(which):
    s_ = SRD_WOA if which == 0 else SRD_WOB
    wo_base()
    A(f"s_lshl_b32 s{sT2}, s{sWAVE}, 14\ns_add_u32 s{sT2}, s{sT2}, {which*65536}")
    for t in range(16):
        A(f"s_add_u32 s{sT1}, s{sT0}, {4*t*896+256}\ns_add_u32 s{sT3}, s{sT2}, {t*1024}\ns_mov_b32 m0, s{sT3}\ns_nop 0")
        A(f"buffer_load_dwordx4 v{cWo1}, {srd(s_)}, s{sT1} offen nt lds")


def lstamp(base):
    if PROFILE == 1:
        for l in range(4):
            lb = A.label("ps")
            A(f"s_cmp_eq_u32 s{sLAYER}, {l}\ns_cbranch_scc0 {lb}")
            stamp(base + 4 * l)
            A(f"{lb}:")


stamp(0)
if int(os.environ.get("PRET", "0")):
    A(f"v_lshlrev_b32 v26, 16, v0\ns_cmp_eq_u32 s{sWAVE}, 1\ns_cbranch_scc0 L_pt2")
    A(f"buffer_load_dword v27, v26, {srd(SRD_WQB)}, 0 offen nt")
    wo_base()
    A(f"s_mov_b64 exec, 0xf\nbuffer_load_dword v32, v26, {srd(SRD_WOA)}, s{sT0} offen nt\nbuffer_load_dword v33, v26, {srd(SRD_WOB)}, s{sT0} offen nt\ns_mov_b64 exec, -1")
    A("L_pt2:")
A(f"v_lshlrev_b32 v{cL16}, 4, v0")
A(f"s_lshl_b32 s{sYST}, s{sCH}, 10\ns_add_u32 s{sYST}, s{sYST}, {WS_Y}")
A(f"s_lshl_b32 s{sQST}, s{sCH}, 8")
A("v_mov_b32 v28, -1\nv_mov_b32 v29, -1\nv_mov_b32 v30, -1\nv_mov_b32 v31, -1")
A(f"s_lshl_b32 s{sT1}, s{sWAVE}, 13\ns_add_u32 s{sT1}, s{sT1}, s{sQST}")
A(f"s_cmp_eq_u32 s{sWAVE}, 0\ns_cbranch_scc0 L_ch_cl1")
A(f"buffer_store_dwordx4 v[28:31], v{cL16}, {srd(SRD_WS)}, s{sYST} offen sc1")
A("L_ch_cl1:\ns_mov_b64 exec, 0xffff")
A(f"buffer_store_dwordx4 v[28:31], v{cL16}, {srd(SRD_WS)}, s{sT1} offen sc1")
A("s_mov_b64 exec, -1")
wq_dma(0)
A(f"v_mul_u32_u24 v{cPOg}, 7168, v20\nv_add_u32 v{cPOg}, v{cPOg}, v22\ns_lshl_b32 s{sT0}, s{sWAVE}, 8\nv_add_u32 v{cPOg}, s{sT0}, v{cPOg}")
A(f"v_min_u32 v23, 6, v21\nv_mul_u32_u24 v24, 7, v20\nv_add_u32 v23, v23, v24\nv_lshlrev_b32 v{cMLg}, 7, v23")
A(f"v_cmp_gt_u32 vcc, 7, v21\ns_nop 1\nv_cndmask_b32 v{cVAL}, 0, 1.0, vcc")
A(f"v_cmp_gt_u32 vcc, 56, v0\ns_nop 1\nv_cndmask_b32 v{cV56}, 0, 1.0, vcc")
A(f"v_lshrrev_b32 v23, 5, v0\nv_lshlrev_b32 v23, 9, v23\nv_lshl_add_u32 v23, v21, 5, v23\nv_and_b32 v24, 1, v20\nv_lshl_add_u32 v{cYst}, v24, 4, v23")
A(f"s_lshl_b32 s{sT0}, s{sWAVE}, 6\nv_lshl_add_u32 v{cQst}, v0, 1, s{sT0}")
A(f"v_add_u32 v{cSCR}, {CSCR}, v{cL16}")
A(f"v_lshlrev_b32 v{cXa}, 4, v20\nv_add_u32 v{cXa}, {XB}, v{cXa}")
A(f"v_min_u32 v{cXs}, 55, v0\nv_lshlrev_b32 v{cXs}, 4, v{cXs}\nv_add_u32 v{cXs}, {XB}, v{cXs}")
A(f"s_lshr_b32 s{sT0}, s{sCH}, 1\ns_mul_i32 s{sPOOFF}, s{sT0}, 28672\ns_add_u32 s{sPOOFF}, s{sPOOFF}, {WS_PO}")
A(f"s_lshl_b32 s{sMLOFF}, s{sT0}, 12\ns_add_u32 s{sMLOFF}, s{sMLOFF}, {WS_ML}")
A(f"s_mul_i32 s{sYOFF}, s{sWAVE}, 448\ns_add_u32 s{sYOFF}, s{sYOFF}, {WS_Y}")
emit_masks(0, MASK, 20, 21)
A("s_waitcnt vmcnt(0)")
wo0_loads(0, range(8))
mk_srd(SRD_OUT, sOUTP, 896)
A(f"ds_write_b32 v{cXw}, v{cX}")
A(f"v_and_b32 v{cX+1}, 0xffff0000, v{cX}\nv_lshlrev_b32 v{cX}, 16, v{cX}")
A("s_waitcnt lgkmcnt(0)\ns_barrier")
A(f"s_cmp_eq_u32 s{sWAVE}, 3\ns_cbranch_scc0 L_ch_noflag")
A(f"s_lshl_b32 s{sT0}, s{sG}, 5\ns_and_b32 s{sT1}, s{sCH}, 3\ns_add_u32 s{sT0}, s{sT0}, s{sT1}")
A(f"v_mov_b32 v28, s{sT0}\nv_mov_b32 v29, s{sID}\ns_mov_b64 exec, 1")
A(f"buffer_store_byte v29, v28, {srd(SRD_DBG)}, 0 offen sc1\ns_mov_b64 exec, -1")
A("L_ch_noflag:")
stamp(1)
wq_tr(0)
colsum(0)
A(f"v_and_b32 v{cT}, 7, v0\nv_lshlrev_b32 v{cT}, 2, v{cT}\ns_lshl_b32 s{sT2}, s{sG}, 5")
A("L_ch_id:")
spin_guard("L_ch_id_ok")
A(f"buffer_load_dword v{cG}, v{cT}, {srd(SRD_DBG)}, s{sT2} offen sc1\ns_waitcnt vmcnt(0)")
A(f"v_and_b32 v{cG+1}, 0x0f0f0f0f, v{cG}\nv_cmp_ne_u32 s[{sT0}:{sT1}], s{sID}, v{cG+1}")
A(f"v_add_u32 v{cG+1}, 0x7f7f7f7f, v{cG}\nv_and_b32 v{cG+1}, 0x80808080, v{cG+1}\nv_cmp_ne_u32 vcc, 0x80808080, v{cG+1}")
A(f"s_cmp_eq_u64 s[{sT0}:{sT1}], 0\ns_cselect_b32 s{sMODE}, 1, 0")
A("s_cmp_lg_u64 vcc, 0\ns_cbranch_scc1 L_ch_id")
A("L_ch_id_ok:")
A("v_mov_b32 v28, -1\nv_mov_b32 v29, -1\nv_mov_b32 v30, -1\nv_mov_b32 v31, -1")
A(f"s_mul_i32 s{sT1}, s{sWAVE}, 7168\ns_add_u32 s{sT1}, s{sT1}, s{sPOOFF}\ns_add_u32 s{sT2}, s{sT1}, 4096")
A(f"s_mul_i32 s{sT0}, s{sWAVE}, {7*128}\ns_add_u32 s{sT0}, s{sT0}, s{sMLOFF}\nv_lshlrev_b32 v{cT}, 7, v0")
A(f"s_cmp_eq_u32 s{sMODE}, 1\ns_cbranch_scc0 L_ch_clf")
for fl in ("", " sc1"):
    if fl:
        A("L_ch_clf:")
    for i in range(7):
        A(f"buffer_store_dwordx4 v[28:31], v{cL16}, {srd(SRD_WS)}, s{sT1 if i < 4 else sT2} offen offset:{1024*(i%4)}{fl}")
    A(f"s_mov_b64 exec, 0x7f\nbuffer_store_dwordx2 v[28:29], v{cT}, {srd(SRD_WS)}, s{sT0} offen{fl}\ns_mov_b64 exec, -1")
    if not fl:
        A("s_branch L_ch_cld")
A("L_ch_cld:")
A("s_waitcnt vmcnt(0)\ns_barrier")
wo0_loads(0, range(8, 16))
A("s_branch L_ch_qp")


def bf16r(dst, src):
    A(f"v_cvt_pk_bf16_f32 v{dst}, 0, v{src}")


A("L_ch_stageA:")
if int(os.environ.get("DEFW", "1")):
    A(f"s_cmp_eq_u32 s{sLAYER}, 1\ns_cbranch_scc0 L_sa_nw")
    wo0_loads(1, range(16))
    A("L_sa_nw:")
A(f"s_and_b32 s{sT0}, s{sLAYER}, 1\ns_lshl_b32 s{sT0}, s{sT0}, 16\ns_lshl_b32 s{sT1}, s{sWAVE}, 14\ns_add_u32 s{sT0}, s{sT0}, s{sT1}")
A(f"v_add_u32 v{cT}, s{sT0}, v{cL16}")
for t in range(16):
    A(f"ds_read_b128 {vr(wo1(t))}, v{cT} offset:{t*1024}")
    if t == 7:
        A("s_waitcnt lgkmcnt(0)")
for i in range(8):
    A(f"s_add_u32 s{sYG+i}, s{sYOFF}, {4096*i}")
A("s_waitcnt lgkmcnt(0)")
A(f"s_cmp_eq_u32 s{sWAVE}, 0\ns_cbranch_scc0 L_sa_nc\ns_cmp_eq_u32 s{sLAYER}, 3\ns_cbranch_scc1 L_sa_nc")
A(f"v_mov_b32 v28, -1\nv_mov_b32 v29, -1\nv_mov_b32 v30, -1\nv_mov_b32 v31, -1\ns_add_u32 s{sT0}, s{sYST}, 32768")
A(f"buffer_store_dwordx4 v[28:31], v{cL16}, {srd(SRD_WS)}, s{sT0} offen sc1")
A("L_sa_nc:")
A(f"s_add_u32 s{sT0}, s{sPOOFF}, 4096")
cML = cG + 28
A("L_sa_poll:")
spin_guard("L_sa_go")
A(f"buffer_load_dwordx2 v[{cML}:{cML+1}], v{cMLg}, {srd(SRD_WS)}, s{sMLOFF} offen sc1")
for u in range(7):
    so = sPOOFF if u < 4 else sT0
    A(f"buffer_load_dwordx4 {vr(cG+4*u)}, v{cPOg}, {srd(SRD_WS)}, s{so} offen offset:{(u%4)*1024} sc1")
A("s_waitcnt vmcnt(0)")
sentinel_check(range(cG, cG + 30), cT, "L_sa_poll")
A("L_sa_go:")
lstamp(3)
mM, mW, mL = cN, cN + 1, cN + 2
A(f"v_max_f32_dpp v{mM}, v{cML}, v{cML} quad_perm:[1,0,3,2] {DPPF}")
for ctl in ("quad_perm:[2,3,0,1]", "row_half_mirror"):
    A(f"s_nop 1\nv_max_f32_dpp v{mM}, v{mM}, v{mM} {ctl} {DPPF}")
xrow_reduce("v_max_f32", mM, cT)
A(f"v_sub_f32 v{mW}, v{cML}, v{mM}\nv_exp_f32 v{mW}, v{mW}\nv_mul_f32 v{mL}, v{cML+1}, v{cVAL}\nv_mul_f32 v{mL}, v{mL}, v{mW}")
oa = cN + 4
red_steps = [f"v_add_f32_dpp v{mL}, v{mL}, v{mL} {c} {DPPF}" for c in
             ("quad_perm:[1,0,3,2]", "quad_perm:[2,3,0,1]", "row_half_mirror", "row_mirror")]
red_steps[3] += f"\nv_mov_b32 v{cT}, v{mL}"
red_steps.append(f"v_permlane32_swap_b32 v{mL}, v{cT}\nv_add_f32 v{mL}, v{mL}, v{cT}\nv_mov_b32 v{cT}, v{mL}")
red_steps.append(f"v_permlane16_swap_b32 v{mL}, v{cT}\nv_add_f32 v{mL}, v{mL}, v{cT}\nv_rcp_f32 v{mL}, v{mL}")
A("s_nop 0")
for u in range(7):
    for r in range(4):
        op = "v_mul_f32_dpp" if u == 0 else "v_fmac_f32_dpp"
        A(f"{op} v{oa+r}, v{mW}, v{cG+4*u+r} row_newbcast:{u} {DPPF}")
    if u < 6:
        A(red_steps[u])
A("s_nop 0")
A(f"v_permlane32_swap_b32 v{oa}, v{oa+2}\nv_permlane32_swap_b32 v{oa+1}, v{oa+3}")
A(f"v_add_f32 v{oa}, v{oa}, v{oa+2}\nv_add_f32 v{oa+1}, v{oa+1}, v{oa+3}\ns_nop 1")
A(f"v_permlane16_swap_b32 v{oa}, v{oa+1}\nv_add_f32 v{oa}, v{oa}, v{oa+1}")
A(f"v_mul_f32 v{oa}, v{oa}, v{mL}\nv_cvt_pk_bf16_f32 v{oa}, v{oa}, v{oa}")
A(f"s_and_b32 s{sT0}, s{sLAYER}, 1\ns_cmp_eq_u32 s{sT0}, 1\ns_cbranch_scc1 L_sa_B")
for which in range(2):
    if which == 1:
        A("L_sa_B:")

    def gmh(t, hf):
        for r in (0, 1) if hf == 0 else (2, 3):
            A(f"v_and_b32_dpp v{cTT[t&1]+r}, v{oa}, v{MASK+r} row_newbcast:{t} {DPPF}")
    gmh(0, 0)
    gmh(0, 1)
    for t in range(16):
        if t + 1 < 16:
            gmh(t + 1, 0)
        else:
            A("s_nop 0")
        A(f"v_mfma_f32_16x16x32_bf16 {vr(cACC)}, {vr(cTT[t&1])}, {vr(radd(WO0[which],4*t))}, {'0' if t == 0 else vr(cACC)}")
        if t + 1 < 16:
            gmh(t + 1, 1)
        A(f"v_mfma_f32_16x16x32_bf16 {vr(cACC+4)}, {vr(cTT[t&1])}, {vr(wo1(t))}, {'0' if t == 0 else vr(cACC+4)}")
    if which == 0:
        A("s_branch L_sa_red")
A("L_sa_red:")
A(f"s_lshl_b32 s{sT0}, s{sWAVE}, 10\nv_add_u32 v{cT}, s{sT0}, v{cSCR}")
A("s_mov_b32 exec_lo, 0\ns_nop 5")
for r in range(4):
    A(f"v_mov_b32 v{cACC+r}, v{cACC+4+r}")
A("s_mov_b32 exec_lo, -1")
A(f"s_cmp_eq_u32 s{sWAVE}, 0\ns_cbranch_scc1 L_sa_w0")
A(f"ds_write_b128 v{cT}, {vr(cACC)}\ns_waitcnt lgkmcnt(0)\ns_barrier")
H2S = int(os.environ.get("H2S", "8"))
A(f"s_sleep {H2S+2}\ns_branch L_sb")
A("L_sa_w0:\ns_barrier")
for s_ in range(1, 4):
    A(f"ds_read_b128 {vr(cG+4*s_)}, v{cSCR} offset:{1024*s_}")
for s_ in range(1, 4):
    A(f"s_waitcnt lgkmcnt({3-s_})")
    for r in range(0, 4, 2):
        A(f"v_pk_add_f32 v[{cACC+r}:{cACC+r+1}], v[{cACC+r}:{cACC+r+1}], v[{cG+4*s_+r}:{cG+4*s_+r+1}]")
for r in range(4):
    A(f"v_min_u32 v{cACC+r}, -2, v{cACC+r}")
A(f"buffer_store_dwordx4 {vr(cACC)}, v{cYst}, {srd(SRD_WS)}, s{sYST} offen sc1")
lstamp(4)
if H2S:
    A(f"s_sleep {H2S}")
A("L_sb:")
A(f"s_cmp_eq_u32 s{sLAYER}, 3\ns_cbranch_scc0 L_sb_go0\ns_cmp_eq_u32 s{sCH}, 0\ns_cbranch_scc0 L_fin\nL_sb_go0:")


def yload(i):
    return f"buffer_load_dwordx4 {vr(cG+4*i)}, v{cYg}, {srd(SRD_WS)}, s{sYG+i} offen sc1"


for i in range(8):
    A(yload(i))
A("L_sb_poll:")
for i in range(4):
    A(f"s_waitcnt vmcnt({6-2*i})")
    for r in range(0, 4, 2):
        A(f"v_pk_add_f32 v[{cN+4*i+r}:{cN+4*i+r+1}], v[{cG+8*i+r}:{cG+8*i+r+1}], v[{cG+8*i+4+r}:{cG+8*i+4+r+1}]")
    if i & 1:
        for r in range(0, 4, 2):
            A(f"v_pk_add_f32 v[{cN+4*(i-1)+r}:{cN+4*(i-1)+r+1}], v[{cN+4*(i-1)+r}:{cN+4*(i-1)+r+1}], v[{cN+4*i+r}:{cN+4*i+r+1}]")
for r in range(0, 4, 2):
    A(f"v_pk_add_f32 v[{cN+r}:{cN+r+1}], v[{cN+r}:{cN+r+1}], v[{cN+8+r}:{cN+8+r+1}]")
A("s_nop 1")
A(f"v_permlane32_swap_b32 v{cN}, v{cN+2}\nv_permlane32_swap_b32 v{cN+1}, v{cN+3}")
A(f"v_pk_add_f32 v[{cN}:{cN+1}], v[{cN}:{cN+1}], v[{cN+2}:{cN+3}]")
A(f"v_cmp_u_f32 vcc, v{cN}, v{cN+1}")
bf16r(cN, cN)
bf16r(cN + 1, cN + 1)
A("s_cmp_lg_u64 vcc, 0\ns_cbranch_scc0 L_sb_go")
spin_guard("L_sb_go")
A(f"s_mov_b32 s{sT0}, 0")
for i in range(8):
    sk = A.label("ysk")
    g_ = cG + 4 * i
    A(f"v_max3_u32 v{cT}, v{g_}, v{g_+1}, v{g_+2}\nv_max_u32 v{cT}, v{cT}, v{g_+3}\nv_cmp_eq_u32 vcc, -1, v{cT}\ns_nop 0\ns_cmp_lg_u64 vcc, 0\ns_cbranch_scc0 {sk}")
    A(yload(i))
    A(f"s_mov_b32 s{sT0}, 1\n{sk}:")
A(f"s_waitcnt vmcnt(0)\ns_cmp_eq_u32 s{sT0}, 1\ns_cbranch_scc1 L_sb_poll")
A("L_sb_go:")
lstamp(5)
A(f"v_pk_add_f32 v[{cX}:{cX+1}], v[{cX}:{cX+1}], v[{cN}:{cN+1}]")
A(f"v_cvt_pk_bf16_f32 v{cN}, v{cX}, v{cX+1}")
A(f"s_cmp_eq_u32 s{sLAYER}, 3\ns_cbranch_scc1 L_ch_out")
A(f"ds_write_b32 v{cXw}, v{cN}")
A(f"v_and_b32 v{cX+1}, 0xffff0000, v{cN}\nv_lshlrev_b32 v{cX}, 16, v{cN}")
A(f"s_add_u32 s{sLAYER}, s{sLAYER}, 1")
A(f"s_add_u32 s{sPOOFF}, s{sPOOFF}, {PO_L}\ns_add_u32 s{sMLOFF}, s{sMLOFF}, {ML_L}\ns_add_u32 s{sYOFF}, s{sYOFF}, 32768\ns_add_u32 s{sYST}, s{sYST}, 32768\ns_add_u32 s{sQST}, s{sQST}, 8192")
A("s_waitcnt lgkmcnt(0)\ns_barrier")
A("L_ch_qp:")
SV = 20
s1, s2, t0, t1 = 24, 25, 26, 27
A(f"ds_read_b128 {vr(cXA)}, v{cXa}\nds_read_b128 {vr(SV)}, v{cXs}")
for kb in range(1, 14):
    A(f"ds_read_b128 {vr(cXA+4*kb)}, v{cXa} offset:{64*kb}")
st = []
st += [f"v_readfirstlane_b32 s{sT0}, v{cXA}", f"s_lshl_b32 s{sT0}, s{sT0}, 16"]
for r in range(4):
    st += [f"v_lshlrev_b32 v{t0}, 16, v{SV+r}", f"v_and_b32 v{t1}, 0xffff0000, v{SV+r}",
           f"v_subrev_f32 v{t0}, s{sT0}, v{t0}", f"v_subrev_f32 v{t1}, s{sT0}, v{t1}"]
    if r == 0:
        st += [f"v_add_f32 v{s1}, v{t0}, v{t1}", f"v_mul_f32 v{s2}, v{t0}, v{t0}", f"v_fmac_f32 v{s2}, v{t1}, v{t1}"]
    else:
        st += [f"v_add_f32 v{s1}, v{s1}, v{t0}", f"v_fmac_f32 v{s2}, v{t0}, v{t0}", f"v_add_f32 v{s1}, v{s1}, v{t1}", f"v_fmac_f32 v{s2}, v{t1}, v{t1}"]
st += [f"v_mul_f32 v{s1}, v{s1}, v{cV56}", f"v_mul_f32 v{s2}, v{s2}, v{cV56}"]
for ctl in ("quad_perm:[1,0,3,2]", "quad_perm:[2,3,0,1]", "row_half_mirror", "row_mirror"):
    st += ["s_nop 0", f"v_add_f32_dpp v{s1}, v{s1}, v{s1} {ctl} {DPPF}", f"v_add_f32_dpp v{s2}, v{s2}, v{s2} {ctl} {DPPF}"]
for sw in ("v_permlane32_swap_b32", "v_permlane16_swap_b32"):
    st += [f"v_mov_b32 v{t0}, v{s1}", f"v_mov_b32 v{t1}, v{s2}", "s_nop 1", f"{sw} v{s1}, v{t0}", f"{sw} v{s2}, v{t1}",
           f"v_add_f32 v{s1}, v{s1}, v{t0}", f"v_add_f32 v{s2}, v{s2}, v{t1}"]
st += [f"v_mul_f32 v{s1}, {f2u(1.0/448.0)}, v{s1}", f"v_mul_f32 v{s2}, {f2u(1.0/448.0)}, v{s2}",
       f"v_fma_f32 v{s2}, -v{s1}, v{s1}, v{s2}", f"v_max_f32 v{s2}, 0, v{s2}", f"v_add_f32 v{s1}, s{sT0}, v{s1}",
       f"v_cvt_pk_bf16_f32 v{s2}, 0, v{s2}", f"v_cvt_pk_bf16_f32 v{s1}, 0, v{s1}",
       f"v_add_f32 v{s2}, {f2u(1e-5)}, v{s2}", f"v_cvt_pk_bf16_f32 v{s2}, 0, v{s2}", f"v_sqrt_f32 v{s2}, v{s2}", "s_nop 0",
       f"v_cvt_pk_bf16_f32 v{s2}, 0, v{s2}", f"v_rcp_f32 v{s2}, v{s2}"]
A(f"s_and_b32 s{sT1}, s{sLAYER}, 1\ns_cmp_eq_u32 s{sT1}, 1\ns_cbranch_scc1 L_qp_B")
for which in range(2):
    if which == 1:
        A("L_qp_B:")
    sp_ = 0
    nm = 0
    for kb in range(14):
        A(f"s_waitcnt lgkmcnt({13 if kb == 0 else 13-kb})")
        for cb in range(2):
            acc = cACC + 4 * cb
            A(f"v_mfma_f32_16x16x32_bf16 {vr(acc)}, {vr(cXA+4*kb)}, {vr(radd(WQ[which], (kb*2+cb)*4))}, {'0' if kb == 0 else vr(acc)}")
            nm += 1
            upto = min(len(st), (nm * len(st) + 26) // 27)
            while sp_ < upto:
                A(st[sp_])
                sp_ += 1
    A(f"v_mul_f32 v{s1}, v{s1}, v{cCS[which]}")
    if which == 0:
        A("s_branch L_qp_red")
A("L_qp_red:")
A("s_nop 5")
sel_cb(t0)
A(f"v_sub_f32 v{t0}, v{t0}, v{s1}\nv_mul_f32 v{t0}, v{t0}, v{s2}\ns_nop 1")
A(f"v_mov_b32_dpp v{t1}, v{t0} quad_perm:[1,1,3,3] {DPPF}")
A(f"v_cvt_pk_bf16_f32 v{t0}, v{t0}, v{t1}\nv_min_u32 v{t0}, -2, v{t0}")
A("s_mov_b32 exec_lo, 0x55555555\ns_mov_b32 exec_hi, 0")
A(f"s_cmp_eq_u32 s{sMODE}, 1\ns_cbranch_scc0 L_qp_far")
A(f"buffer_store_dword v{t0}, v{cQst}, {srd(SRD_WS)}, s{sQST} offen\ns_branch L_qp_st")
A("L_qp_far:")
A(f"buffer_store_dword v{t0}, v{cQst}, {srd(SRD_WS)}, s{sQST} offen sc1")
A("L_qp_st:")
A("s_mov_b64 exec, -1")
lstamp(2)
A(f"s_cmp_eq_u32 s{sLAYER}, 0\ns_cbranch_scc0 L_ch_stageA")
A("s_barrier")
wq_dma(1)
wo1_regs(range(16))
A("s_waitcnt vmcnt(16)\ns_barrier")
wq_tr(1)
A("s_barrier")
DEFW = int(os.environ.get("DEFW", "1"))
if not DEFW:
    wo0_loads(1, range(16))
wo1_dma(1)
colsum(1)
A(f"s_waitcnt vmcnt({16 if DEFW else 32})\ns_lshl_b32 s{sT1}, s{sWAVE}, 14\nv_add_u32 v{cT}, s{sT1}, v{cL16}")
for t in range(16):
    A(f"ds_write_b128 v{cT}, {vr(wo1(t))} offset:{t*1024}")
A("s_waitcnt lgkmcnt(0)")
if os.environ.get("EXP", ""):
    A("s_waitcnt vmcnt(0)")
    stamp(3)
    A("s_branch L_fin")
A("L_ch_cnt:")
spin_guard("L_ch_cnt_ok")
A(f"v_lshlrev_b32 v{cT}, 2, v0")
A(f"buffer_load_dword v{cG}, v{cT}, {srd(SRD_DBG)}, 0 offen sc1\ns_waitcnt vmcnt(0)")
A(f"v_add_u32 v{cG+1}, 0x7f7f7f7f, v{cG}\nv_and_b32 v{cG+1}, 0x80808080, v{cG+1}\nv_cmp_ne_u32 vcc, 0x80808080, v{cG+1}\ns_nop 0")
A("s_cmp_lg_u64 vcc, 0\ns_cbranch_scc1 L_ch_cnt")
A("L_ch_cnt_ok:")
stamp(18)
A("L_ch_pre:")
spin_guard("L_ch_stageA")
if int(os.environ.get("CPC", "1")):
    BACKWARD.add("L_ch_stageA")
    code_prefetch("L_ch_stageA", 8192, cT, cG, sT0)
A("s_sleep 16\ns_mov_b64 exec, 1")
A(f"buffer_load_dword v{cML}, v{cMLg}, {srd(SRD_WS)}, s{sMLOFF} offen sc1\ns_waitcnt vmcnt(0)")
A(f"v_readfirstlane_b32 s{sT0}, v{cML}\ns_mov_b64 exec, -1\ns_cmp_eq_u32 s{sT0}, -1\ns_cbranch_scc1 L_ch_pre")
A("s_branch L_ch_stageA")
A("L_ch_out:")
A(f"v_subrev_u32 v{cT}, {XB}, v{cXw}")
A(f"buffer_store_dword v{cN}, v{cT}, {srd(SRD_OUT)}, 0 offen")
stamp(19)
if os.environ.get("DIAG"):
    da, db = [int(x) for x in os.environ["DIAG"].split(",")]
    ra = 100 if da == 99 else sSTAMP + 2 * da
    A(f"s_sub_u32 s{sT0}, s{sSTAMP+2*db}, s{ra}\ns_lshl_b32 s{sT0}, s{sT0}, 2\ns_min_u32 s{sT0}, s{sT0}, 100000\ns_add_u32 s{sT0}, s{sT0}, s{sSTAMP+38}")
    A(f"L_diag:\ns_memrealtime s[{sT2}:{sT3}]\ns_waitcnt lgkmcnt(0)\ns_sub_u32 s{sT1}, s{sT2}, s{sT0}\ns_cmp_lt_i32 s{sT1}, 0\ns_cbranch_scc1 L_diag")

A("L_fin:")
if PROFILE:
    A(f"s_mul_i32 s{sT0}, s2, 640\ns_mul_i32 s{sT1}, s{sWAVE}, 160\ns_add_u32 s{sT0}, s{sT0}, s{sT1}\ns_add_u32 s{sT0}, s{sT0}, {WS_STAMP}")
    A("s_mov_b64 exec, 1\nv_mov_b32 v1, 0")
    for i in range(10):
        for r in range(4):
            A(f"v_mov_b32 v{4+r}, s{sSTAMP+4*i+r}")
        A(f"buffer_store_dwordx4 v[4:7], v1, {srd(SRD_WS)}, s{sT0} offen offset:{16*i}\ns_nop 1")
if PROFILE:
    pass
A("L_end:")
A("s_endpgm")

for l in A.L:
    OUT.append(l if l.endswith(":") else "    " + l)
OUT.append('.section .rodata,"a"')
OUT.append(".p2align 6")
OUT.append(f".amdhsa_kernel {NAME}_kernel")
OUT.append("""  .amdhsa_next_free_vgpr 512
  .amdhsa_next_free_sgpr 102
  .amdhsa_accum_offset 256
  .amdhsa_group_segment_fixed_size 0
  .amdhsa_kernarg_size 104
  .amdhsa_user_sgpr_count 2
  .amdhsa_user_sgpr_kernarg_segment_ptr 1
  .amdhsa_system_sgpr_workgroup_id_x 1
  .amdhsa_float_denorm_mode_32 3
.end_amdhsa_kernel""")
out = sys.argv[1] if len(sys.argv) > 1 else f"cdna_kernels/{NAME}.s"
open(out, "w").write("\n".join(OUT) + "\n")
print("wrote", out, len(A.L), "lines")
```

```python
import sys, os, struct

PROFILE = int(os.environ.get("PROFILE", "0"))
NAME = "interleave_layers__gqa_block_cached__sliding_block_cached__decode"

WS_Q = 0
WS_Y = 49152
WS_PO = 196608
WS_ML = 196608 + 4 * 458752
ML_L = 65536
PO_L = 16 * 28 * 1024
WS_STAMP = 4 << 20
WS_SIZE = 283117312
SPIN_MAX = 1 << 18

CSCALE = struct.unpack("<I", struct.pack("<f", 1.4426950408889634 / 16.0))[0]
NEG_INF = 0xFF800000


def f2u(x):
    return struct.unpack("<I", struct.pack("<f", x))[0]


class Asm:
    def __init__(self):
        self.L = []
        self.nlabel = 0

    def __call__(self, s):
        for line in s.split("\n"):
            line = line.strip()
            if line:
                self.L.append(line)

    def label(self, base):
        self.nlabel += 1
        return f"L_{base}_{self.nlabel}"


A = Asm()


def vr(r, n=4):
    if isinstance(r, int):
        r = ("v", r)
    k, i = r
    return f"{k}[{i}:{i+n-1}]" if n > 1 else f"{k}{i}"


def radd(r, d):
    if isinstance(r, int):
        return r + d
    return (r[0], r[1] + d)


DPPF = "row_mask:0xf bank_mask:0xf"

sWAVE = 3
SRD_KA, SRD_VA, SRD_KB, SRD_VB, SRD_WS, SRD_DBG = 4, 8, 12, 16, 20, 24
SRD_WQA, SRD_WOA, SRD_WQB, SRD_WOB = 4, 8, 12, 16
SRD_X, SRD_OUT = 28, 80
sOFFA, sOFFA36, sOFFB, sOFFB9 = 28, 29, 30, 31
sBIASA, sBIASB = 32, 33
sC = 36
sLDSW = 37
sT0, sT1, sT2, sT3 = 38, 39, 40, 41
sLAYER = 42
sSPIN = 43
sQOFF, sPOOFF, sMLOFF, sYOFF = 44, 45, 46, 47
sG, sSP = 48, 49
sYST, sQST = 50, 51
sOFFB8 = 50
sCL = 47
sW4 = 58
sID, sMODE = 34, 35
KARG = 52
sSTAMP = 60
SRD_OUT = 28
sOUTP = 32

nstamp = [0]


def srd(r):
    return f"s[{r}:{r+3}]"


def stamp(idx):
    if PROFILE == 2 and idx not in (0, 5, 19):
        return
    if PROFILE:
        assert idx < 20
        if idx == 0:
            for i in range(1, 20):
                A(f"s_mov_b64 s[{sSTAMP+2*i}:{sSTAMP+2*i+1}], 0")
            A(f"s_mov_b64 s[{sSTAMP}:{sSTAMP+1}], s[100:101]")
            return
        A(f"s_memrealtime s[{sSTAMP+2*idx}:{sSTAMP+2*idx+1}]\ns_waitcnt lgkmcnt(0)")


def mk_srd(dst, ptr, size):
    A(f"s_mov_b32 s{dst}, s{ptr}\ns_and_b32 s{dst+1}, s{ptr+1}, 0xffff\ns_mov_b32 s{dst+2}, {size}\ns_mov_b32 s{dst+3}, 0x20000")


def emit_masks(vlane, m0, t0, t1):
    A(f"v_and_b32 v{t0}, 1, v{vlane}")
    A(f"v_lshlrev_b32 v{t0}, 4, v{t0}")
    A(f"v_mov_b32 v{t1}, 0xffff")
    A(f"v_lshlrev_b32 v{t0}, v{t0}, v{t1}")
    A(f"v_bfe_u32 v{t1}, v{vlane}, 1, 2")
    for r in range(4):
        A(f"v_cmp_eq_u32 vcc, {r}, v{t1}")
        A("s_nop 1")
        A(f"v_cndmask_b32 v{m0+r}, 0, v{t0}, vcc")


def xrow_reduce(op, v, t):
    A(f"v_mov_b32 v{t}, v{v}\ns_nop 1\nv_permlane32_swap_b32 v{v}, v{t}\n{op} v{v}, v{v}, v{t}")
    A(f"v_mov_b32 v{t}, v{v}\ns_nop 1\nv_permlane16_swap_b32 v{v}, v{t}\n{op} v{v}, v{v}, v{t}")


def sentinel_check(regs, t, retry_label):
    regs = list(regs)
    A(f"v_max3_u32 v{t}, v{regs[0]}, v{regs[1]}, v{regs[2]}")
    i = 3
    while i + 1 < len(regs):
        A(f"v_max3_u32 v{t}, v{t}, v{regs[i]}, v{regs[i+1]}")
        i += 2
    if i < len(regs):
        A(f"v_max_u32 v{t}, v{t}, v{regs[i]}")
    A(f"v_cmp_eq_u32 vcc, -1, v{t}")
    A("s_nop 0")
    A(f"s_cmp_lg_u64 vcc, 0\ns_cbranch_scc1 {retry_label}")


def spin_guard(giveup_label):
    A(f"s_cmp_eq_u32 s{sSPIN}, 0\ns_cbranch_scc1 {giveup_label}\ns_sub_u32 s{sSPIN}, s{sSPIN}, 1")
    if os.environ.get("PSLEEP"):
        A(f"s_sleep {os.environ['PSLEEP']}")


hdr = open(f"cdna_kernels/{NAME}.s.ref").read().split("\n")
head = [l for l in hdr if l.startswith(";") and "@launch" not in l]
OUT = list(head)
OUT.append("; @launch grid=(256,1,1) block=(256,1,1) lds=163840")
OUT.append('.amdgcn_target "amdgcn-amd-amdhsa--gfx950"')
OUT.append(".text")
OUT.append(f".globl {NAME}_kernel")
OUT.append(".p2align 8")
OUT.append(f".type {NAME}_kernel,@function")
OUT.append(f"{NAME}_kernel:")

if PROFILE:
    A("s_memrealtime s[100:101]")
A("s_cmp_ge_u32 s2, 256\ns_cbranch_scc1 L_end")
A(f"s_load_dwordx16 s[{KARG}:{KARG+15}], s[0:1], 0")
A(f"s_load_dwordx8 s[{KARG+16}:{KARG+23}], s[0:1], 64")
A(f"s_load_dwordx2 s[{KARG+24}:{KARG+25}], s[0:1], 96")
pAX, pAK, pAV, pAWQ, pAWO, pBX, pBK, pBV, pBWQ, pBWO, pOUT, pDBG, pWS = [KARG + 2 * i for i in range(13)]
A("v_lshrrev_b32 v1, 6, v0\nv_and_b32 v0, 63, v0")
if os.environ.get("PERM"):
    A(f"s_mul_i32 s2, s2, {os.environ['PERM']}\ns_lshr_b32 s4, s2, 3\ns_and_b32 s4, s4, {os.environ.get('PERMX', '1')}\ns_xor_b32 s2, s2, s4\ns_and_b32 s2, s2, 255")
A(f"s_and_b32 s{sG}, s2, 7\ns_lshr_b32 s{sSP}, s2, 3")
A(f"v_readfirstlane_b32 s{sWAVE}, v1")
A(f"s_cmp_lt_u32 s{sSP}, 4\ns_cbranch_scc1 L_chain")


def common_setup():
    A(f"s_mov_b32 s{sC}, {CSCALE}\ns_mov_b32 s{sSPIN}, {SPIN_MAX}\ns_mov_b32 s{sLAYER}, 0")
    A(f"s_getreg_b32 s{sID}, hwreg(HW_REG_XCC_ID, 0, 4)\ns_min_u32 s{sID}, s{sID}, 14\ns_add_u32 s{sID}, s{sID}, 1\ns_mul_i32 s{sID}, s{sID}, 0x01010101\ns_mov_b32 s{sMODE}, 0")
    mk_srd(SRD_WS, pWS, WS_SIZE)
    mk_srd(SRD_DBG, pDBG, 256)


vK, vV, vKd, vVd, vL, vQ, vT = 1, 2, 3, 4, 5, 6, 7
MASK = 8
QA = 12
DT = 20
vCM, vLS, vMX, vPO, vX = 32, 33, 34, 35, 36
vCMr, vCMw, vF = 3, 4, 30
vFA, vFD = 36, 3
SC = 37
STG_A = [56, 60, 64, 68]
NSLOT = 19
XBASE = 4 * NSLOT * 2048
MLBASE = XBASE + 6144


def half(h):
    return ("v", 72 + 8 * h) if h < 23 else ("a", 8 * (h - 23))


NKA = 37
NVREG = 18
KVBYTES = 67108864

PSTRIDE = 16384
sHB = 59
A(f"s_sub_u32 s{sSP}, s{sSP}, 4")
A(f"s_mul_i32 s{sT1}, s{sSP}, 36\ns_min_u32 s{sT2}, s{sSP}, 16\ns_add_u32 s{sT1}, s{sT1}, s{sT2}\ns_lshl_b32 s{sT1}, s{sT1}, 13")
A(f"s_lshl_b32 s{sT3}, s{sG}, 23\ns_add_u32 s{sOFFA36}, s{sT1}, s{sT3}")
A(f"s_lshl_b32 s{sT0}, s{sWAVE}, 12\ns_add_u32 s{sOFFA}, s{sOFFA36}, s{sT0}")
A(f"s_mul_i32 s{sLDSW}, s{sWAVE}, {NSLOT*2048}")
A(f"v_lshrrev_b32 v20, 4, v0       ; s / row")
A(f"v_and_b32 v21, 15, v0          ; j")
A(f"v_lshlrev_b32 v25, 4, v21")
A(f"v_lshl_add_u32 v{vV}, v20, 9, v25")
A(f"v_add_u32 v{vVd}, 768, v{vV}")
A("s_waitcnt lgkmcnt(0)")
mk_srd(SRD_VA, pAV, KVBYTES)


def late_setup():
    common_setup()
    mk_srd(SRD_KA, pAK, KVBYTES)
    mk_srd(SRD_KB, pBK, KVBYTES)
    mk_srd(SRD_VB, pBV, KVBYTES)
    stamp(0)
    A(f"v_and_b32 v{vFA}, 7, v0\nv_lshlrev_b32 v{vFA}, 5, v{vFA}")
    A(f"s_cmp_eq_u32 s{sWAVE}, 0\ns_cbranch_scc0 L_nc")
    A(f"v_mov_b32 v{vT}, s{sID}\ns_lshl_b64 exec, 1, s{sG}")
    A(f"buffer_store_byte v{vT}, v{vFA}, {srd(SRD_DBG)}, s{sSP} offen offset:4 sc1\ns_mov_b64 exec, -1")
    A("L_nc:")
    A(f"s_cmp_lt_u32 s{sSP}, 16")
    A(f"s_cselect_b32 s{sT2}, 36, 35")
    A(f"s_cselect_b32 s{sBIASA}, 0, {NEG_INF}")
    A(f"s_lshl_b32 s{sT2}, s{sT2}, 13\ns_lshl_b32 s{sT0}, s{sWAVE}, 11\ns_add_u32 s{sT2}, s{sT2}, s{sT0}")
    A(f"s_add_u32 s{sOFFA36}, s{sOFFA36}, s{sT2}")
    A(f"s_mul_i32 s{sT1}, s{sSP}, 9\ns_max_u32 s{sT2}, s{sSP}, 24\ns_sub_u32 s{sT2}, s{sT2}, 24\ns_add_u32 s{sT1}, s{sT1}, s{sT2}")
    A(f"s_lshl_b32 s{sT1}, s{sT1}, 13\ns_add_u32 s{sT1}, s{sT1}, s{sT3}\ns_add_u32 s{sT1}, s{sT1}, {12288*512}")
    A(f"s_lshl_b32 s{sT2}, s{sWAVE}, 12\ns_add_u32 s{sOFFB}, s{sT1}, s{sT2}")
    A(f"s_add_u32 s{sOFFB8}, s{sT1}, s{sT0}\ns_add_u32 s{sOFFB8}, s{sOFFB8}, {32*2048}")
    A(f"s_cmp_ge_u32 s{sSP}, 24")
    A(f"s_cselect_b32 s{sT1}, 1, 0")
    A(f"s_cselect_b32 s{sBIASB}, 0, {NEG_INF}")
    A(f"s_lshl_b32 s{sT1}, s{sT1}, 13")
    A(f"s_add_u32 s{sOFFB9}, s{sOFFB8}, s{sT1}")
    for p in range(4):
        A(f"s_add_u32 s{sBO+p}, s{sOFFB}, {p*PSTRIDE}")
    A(f"s_mov_b32 s{sBO+4}, s{sOFFB8}\ns_mov_b32 s{sBO+5}, s{sOFFB9}")
    A(f"v_and_b32 v22, 3, v0           ; c")
    A(f"v_bfe_u32 v23, v0, 2, 2        ; a")
    A(f"v_lshl_add_u32 v24, v20, 2, v22   ; 4s+c")
    A(f"v_lshlrev_b32 v24, 4, v24")
    A(f"v_lshl_add_u32 v{vK}, v23, 9, v24")
    A(f"v_lshl_add_u32 v{vL}, v0, 4, s{sLDSW}")
    A(f"v_lshrrev_b32 v27, 3, v21      ; head(j)")
    A(f"v_lshl_add_u32 v{vQ}, v27, 9, v24")
    A(f"v_lshrrev_b32 v27, 5, v0\nv_mul_u32_u24 v27, 28672, v27\nv_lshl_add_u32 v27, v21, 5, v27")
    A(f"v_and_b32 v28, 1, v20\nv_lshl_add_u32 v{vPO}, v28, 4, v27")
    A(f"s_lshl_b32 s{sQOFF}, s{sG}, 10")
    A(f"s_mul_i32 s{sPOOFF}, s{sG}, 56\ns_add_u32 s{sPOOFF}, s{sPOOFF}, s{sSP}\ns_lshl_b32 s{sPOOFF}, s{sPOOFF}, 10\ns_add_u32 s{sPOOFF}, s{sPOOFF}, {WS_PO}")
    A(f"s_lshl_b32 s{sMLOFF}, s{sG}, 13\ns_lshl_b32 s{sT0}, s{sSP}, 7\ns_add_u32 s{sMLOFF}, s{sMLOFF}, s{sT0}\ns_add_u32 s{sMLOFF}, s{sMLOFF}, {WS_ML}")
    emit_masks(0, MASK, 20, 21)


def ld_items_reg(srdr, voff, soff_base, ulist, regs_of):
    items = []
    i = 0
    while i < len(ulist):
        u = ulist[i]
        pair = ulist[i:i + 2]
        assert u % 2 == 0
        pre = f"s_add_u32 s{sT0}, s{soff_base}, {(u//2)*PSTRIDE}"
        first = True
        for k, uu in enumerate(pair):
            for m in range(2):
                txt = f"buffer_load_dwordx4 {vr(radd(regs_of(uu), 4*m))}, v{voff}, {srd(srdr)}, s{sT0} offen offset:{k*2048+m*256} nt"
                if first:
                    txt = pre + "\n" + txt
                    first = False
                items.append((txt, uu))
        i += 2
    return items


def ld_items_lds(srdr, voff, voffd, soff_base, ulist, slot_of):
    items = []
    i = 0
    while i < len(ulist):
        u = ulist[i]
        pair = ulist[i:i + 2]
        assert u % 2 == 0
        d = (u // 2) * PSTRIDE - 768
        pre = (f"s_add_u32 s{sT1}, s{soff_base}, {d}" if d >= 0 else f"s_sub_u32 s{sT1}, s{soff_base}, {-d}")
        pre += f"\ns_add_u32 s{sT2}, s{sLDSW}, {slot_of(u)*2048}\ns_mov_b32 m0, s{sT2}\ns_nop 0"
        first = True
        for k, uu in enumerate(pair):
            assert slot_of(uu) == slot_of(u) + k
            for m in range(2):
                v = voffd if m == 0 else voff
                txt = f"buffer_load_dwordx4 v{v}, {srd(srdr)}, s{sT1} offen offset:{k*2048+m*1024} nt lds"
                if first:
                    txt = pre + "\n" + txt
                    first = False
                items.append((txt, uu))
        i += 2
    return items


class GRing:
    def __init__(self, keys, text_of, quads):
        self.keys, self.text_of, self.quads = keys, text_of, quads
        self.pos = {k: i for i, k in enumerate(keys)}
        self.issued = 0
        self.landed = 0

    def issue(self, upto):
        out = []
        while self.issued < min(upto, len(self.keys)):
            out.append(self.text_of(self.keys[self.issued], self.quads[self.issued % len(self.quads)]))
            self.issued += 1
        return "\n".join(out)

    def consume(self, key):
        i = self.pos[key]
        w = "" if i < self.landed else f"s_waitcnt vmcnt({self.issued - i - 1})\n"
        return w, self.quads[i % len(self.quads)], i + 1 + len(self.quads)


def qk_groups(n, ksrc, bias_sgpr, stg, hook=None):
    G = []
    nC = (n + 1) // 2
    G.append((f"v_mov_b32 v{vMX}, {NEG_INF}" + (f"\nv_mov_b32 v{SC+nC-1}, {NEG_INF}" if n & 1 else ""), None))
    reads = [(u, m) for u in range(n) if ksrc(u)[0] == "lds" for m in range(2)]
    rpos = {rm: i for i, rm in enumerate(reads)}
    issued = [0]

    def issue_reads(upto, out):
        while issued[0] < min(upto, len(reads)):
            u, m = reads[issued[0]]
            q = stg[issued[0] % len(stg)]
            out.append((f"ds_read_b128 {vr(q)}, v{vL} offset:{ksrc(u)[1]*2048+m*1024}", ksrc(u)[2]))
            issued[0] += 1

    pre = []
    issue_reads(len(stg), pre)

    def bops(u):
        d = DT + 4 * (u % 3)
        c = SC + u // 2
        bm = 0x5 if (u & 1) == 0 else 0xA
        t = f"v_mov_b32_dpp v{d}, v{d} quad_perm:[0,0,0,0] {DPPF}\n"
        t += f"v_add_f32_dpp v{d}, v{d+1}, v{d} quad_perm:[1,1,1,1] {DPPF}\n"
        t += f"v_add_f32_dpp v{d}, v{d+2}, v{d} quad_perm:[2,2,2,2] {DPPF}\n"
        if u == n - 1:
            t += f"v_add_f32 v{d}, s{bias_sgpr}, v{d}\n"
        t += f"v_add_f32_dpp v{c}, v{d+3}, v{d} quad_perm:[3,3,3,3] row_mask:0xf bank_mask:{bm:#x}\n"
        if (u & 1) or u == n - 1:
            t += f"v_max_f32 v{vMX}, v{vMX}, v{c}\n"
        return t

    body = []
    for u in range(n):
        d = DT + 4 * (u % 3)
        src = ksrc(u)
        b = bops(u - 2).strip().split("\n") if u >= 2 else []
        if u == 2:
            b = ["s_nop 4"] + b
        parts = [b[:len(b) // 2], b[len(b) // 2:]]
        for m in range(2):
            cin = "0" if m == 0 else vr(d)
            if src[0] == "reg":
                t = f"v_mfma_f32_16x16x32_bf16 {vr(d)}, {vr(radd(src[1],4*m))}, {vr(QA+4*m)}, {cin}"
                if hook and hook(u, m):
                    t += "\n" + hook(u, m)
                body.append((t, src[2]))
            elif src[0] == "gl":
                w, q, upto = src[1].consume(("K", u, m))
                body.append((w + f"v_mfma_f32_16x16x32_bf16 {vr(d)}, {vr(q)}, {vr(QA+4*m)}, {cin}", None))
                if parts[m]:
                    body.append(("\n".join(parts[m]), None))
                    parts[m] = []
                body.append((src[1].issue(upto), None))
            else:
                i = rpos[(u, m)]
                q = stg[i % len(stg)]
                t = f"s_waitcnt lgkmcnt({issued[0]-i-1})\n"
                t += f"v_mfma_f32_16x16x32_bf16 {vr(d)}, {vr(q)}, {vr(QA+4*m)}, {cin}"
                body.append((t, None))
                issue_reads(i + 1 + len(stg), body)
            if parts[m]:
                body.append(("\n".join(parts[m]), None))
    body.append((bops(n - 2), None))
    body.append(("s_nop 1\n" + bops(n - 1), None))
    return G, pre, body


def max_group():
    t = "s_nop 1\n"
    t += f"v_max_f32_dpp v{vMX}, v{vMX}, v{vMX} row_half_mirror {DPPF}\n"
    t += f"v_mov_b32 v{vT}, v{vMX}\ns_nop 1\nv_permlane32_swap_b32 v{vMX}, v{vT}\nv_max_f32 v{vMX}, v{vMX}, v{vT}\n"
    t += f"v_mov_b32 v{vT}, v{vMX}\ns_nop 1\nv_permlane16_swap_b32 v{vMX}, v{vT}\nv_max_f32 v{vMX}, v{vMX}, v{vT}\n"
    t += f"v_mul_f32 v{vCM}, s{sC}, v{vMX}\nv_mov_b32 v{vLS}, 0\nds_write_b32 v{vCMw}, v{vCM}"
    return (t, None)


def pv_groups(order, vsrc, stg, bar_at, tp):
    T = [DT, DT + 4]
    PP = [DT + 8, DT + 9]
    n = len(order)
    reads = [(u, m) for u in order if vsrc(u)[0] == "lds" for m in range(2)]
    rpos = {rm: i for i, rm in enumerate(reads)}
    issued = [0]
    body = []

    def issue_reads(upto):
        while issued[0] < min(upto, len(reads)):
            u, m = reads[issued[0]]
            q = stg[issued[0] % len(stg)]
            body.append((f"ds_read_b128 {vr(q)}, v{vL} offset:{vsrc(u)[1]*2048+m*1024}", vsrc(u)[2], None))
            issued[0] += 1

    pairs = []
    for u in order:
        if u // 2 not in pairs:
            pairs.append(u // 2)
    pidx = {k: i for i, k in enumerate(pairs)}

    def E(k):
        c = SC + k
        return f"v_fma_f32 v{c}, v{c}, s{sC}, -v{vCM}\nv_exp_f32 v{c}, v{c}\n"

    def F(k):
        c = SC + k
        return f"v_add_f32 v{vLS}, v{vLS}, v{c}\nv_cvt_pk_bf16_f32 v{PP[pidx[k]&1]}, v{c}, v{c}\n"

    def Gm(i):
        u = order[i]
        pp = PP[pidx[u // 2] & 1]
        rho = u & 1
        t = ""
        for r in range(4):
            if (r >> 1) == rho:
                t += f"v_and_b32 v{T[i&1]+r}, v{pp}, v{MASK+r}\n"
        for r in range(4):
            if (r >> 1) != rho:
                sh = "row_shr:4" if rho == 0 else "row_shl:4"
                t += f"v_and_b32_dpp v{T[i&1]+r}, v{pp}, v{MASK+r} {sh} {DPPF} bound_ctrl:0\n"
        return t

    t = E(pairs[0])
    if len(pairs) > 1:
        t += E(pairs[1])
    else:
        t += "s_nop 0\n"
    t += F(pairs[0]) + Gm(0)
    body.append((t, None, None))
    edone = min(2, len(pairs))
    fdone = 1
    first_lds_started = False
    for i in range(n):
        u = order[i]
        nxt = [order[j] for j in range(i, min(n, i + 3))]
        if not first_lds_started and any(vsrc(x)[0] == "lds" for x in nxt):
            issue_reads(len(stg))
            first_lds_started = True
        t = ""
        if i + 1 < n:
            k1 = pidx[order[i + 1] // 2]
            if k1 >= fdone:
                t += F(pairs[k1])
                fdone = k1 + 1
                if edone < len(pairs):
                    t += E(pairs[edone])
                    edone += 1
            t += Gm(i + 1)
        if i == bar_at:
            body.append((f"v_add_u32 v{vT}, s{sW4}, v{vCMr}\ns_waitcnt lgkmcnt(0)\ns_barrier\n"
                         f"ds_read_b64 v[{vF}:{vF+1}], v{vCMr}\nds_read_b64 v[{tp}:{tp+1}], v{vCMr} offset:8\nds_read_b32 v{vT}, v{vT}", None, None))
        if i == min(bar_at + 2, n - 1):
            t += (f"s_waitcnt lgkmcnt(0)\nv_max3_f32 v{vMX}, v{vF}, v{vF+1}, v{tp}\nv_max_f32 v{vMX}, v{vMX}, v{tp+1}\n"
                  f"v_sub_f32 v{vF}, v{vT}, v{vMX}\nv_exp_f32 v{vF}, v{vF}\n")
        tl = [x for x in t.strip().split("\n") if x]
        parts = [tl[:len(tl) // 2], tl[len(tl) // 2:]]
        if not tl:
            parts[0] = ["s_nop 0"]
        src = vsrc(u)
        for m in range(2):
            acc = QA + 4 * m
            cin = "0" if i == 0 else vr(acc)
            if parts[m]:
                body.append(("\n".join(parts[m]), None, None))
            if src[0] == "reg":
                body.append((f"v_mfma_f32_16x16x32_bf16 {vr(acc)}, {vr(T[i&1])}, {vr(radd(src[1],4*m))}, {cin}", src[2], None))
            elif src[0] == "gl":
                w, q, upto = src[1].consume(("V", u, m))
                body.append((w + f"v_mfma_f32_16x16x32_bf16 {vr(acc)}, {vr(T[i&1])}, {vr(q)}, {cin}", None, None))
                body.append((src[1].issue(upto), None, None))
            else:
                j = rpos[(u, m)]
                q = stg[j % len(stg)]
                body.append((f"s_waitcnt lgkmcnt({issued[0]-j-1})\nv_mfma_f32_16x16x32_bf16 {vr(acc)}, {vr(T[i&1])}, {vr(q)}, {cin}", None, u if m == 1 else None))
                issue_reads(j + 1 + len(stg))
    return body


def emit_groups(gs):
    for g in gs:
        A(g[0])


def clear_next(t4, ta):
    sk, far = A.label("clsk"), A.label("clfar")
    A(f"s_cmp_lt_u32 s{sWAVE}, 2\ns_cbranch_scc1 {sk}")
    for r in range(4):
        A(f"v_mov_b32 v{t4+r}, -1")
    A(f"v_lshlrev_b32 v{ta}, 4, v0")
    A(f"s_sub_u32 s{sT3}, s{sWAVE}, 2\ns_lshl_b32 s{sCL}, s{sT3}, 12\ns_add_u32 s{sCL}, s{sCL}, s{sMLOFF}\ns_add_u32 s{sCL}, s{sCL}, {ML_L}")
    A(f"s_mul_i32 s{sT3}, s{sT3}, 28672\ns_add_u32 s{sT3}, s{sT3}, s{sPOOFF}\ns_add_u32 s{sT3}, s{sT3}, {PO_L}")
    A(f"s_cmp_eq_u32 s{sMODE}, 1\ns_cbranch_scc0 {far}")
    for fl in ("", " sc1"):
        if fl:
            A(f"{far}:")
        A(f"buffer_store_dwordx4 {vr(t4)}, v{ta}, {srd(SRD_WS)}, s{sT3} offen{fl}")
        A(f"s_mov_b64 exec, 1\nbuffer_store_dwordx2 {vr(t4, 2)}, v{ta}, {srd(SRD_WS)}, s{sCL} offen{fl}\ns_mov_b64 exec, -1")
        if not fl:
            A(f"s_branch {sk}")
    A(f"{sk}:\ns_nop 1")


def code_prefetch(lab_from, nbytes, vaddr, vjunk, sp):
    here = A.label("pc")
    A(f"s_getpc_b64 s[{sp}:{sp+1}]\n{here}:")
    A(f"s_add_u32 s{sp}, s{sp}, {lab_from}-{here}\ns_addc_u32 s{sp+1}, s{sp+1}, {'-1' if lab_from in BACKWARD else '0'}")
    A(f"v_lshlrev_b32 v{vaddr}, 6, v0")
    for o in range(0, nbytes, 4096):
        A(f"global_load_dword v{vjunk}, v{vaddr}, s[{sp}:{sp+1}]")
        if o + 4096 < nbytes:
            A(f"v_add_u32 v{vaddr}, 4096, v{vaddr}")


BACKWARD = set()


def cm_addr():
    A(f"v_lshrrev_b32 v{vCMr}, 5, v0\nv_lshlrev_b32 v{vCMr}, 4, v{vCMr}\nv_add_u32 v{vCMr}, {MLBASE}, v{vCMr}")
    A(f"v_bfe_u32 v{vCMw}, v0, 3, 1\nv_lshlrev_b32 v{vCMw}, 4, v{vCMw}\nv_add_u32 v{vCMw}, s{sW4}, v{vCMw}\nv_add_u32 v{vCMw}, {MLBASE}, v{vCMw}")


def q_loads():
    return (f"buffer_load_dwordx4 {vr(QA)}, v{vQ}, {srd(SRD_WS)}, s{sQOFF} offen sc1\n"
            f"buffer_load_dwordx4 {vr(QA+4)}, v{vQ}, {srd(SRD_WS)}, s{sQOFF} offen offset:256 sc1")


def poll_q_blocking():
    lp, done = A.label("qpoll"), A.label("qdone")
    A(f"{lp}:")
    spin_guard(done)
    if os.environ.get("QPS"):
        A(f"s_sleep {os.environ['QPS']}")
    A(q_loads())
    A("s_waitcnt vmcnt(0)")
    sentinel_check(range(QA, QA + 8), vT, lp)
    A(f"{done}:")
    A("s_nop 1")


VL_UNITS = list(range(NVREG, NKA))
vslot = lambda u: u - NVREG
loads = []
it = ld_items_lds(SRD_VA, vV, vVd, sOFFA, VL_UNITS[:-1], vslot)
loads += [(t, ("V", u), None) for t, u in it]
it = ld_items_lds(SRD_VA, vV, vVd, sOFFA36, [0], lambda u: vslot(36))
loads += [(t, ("V", 36), None) for t, u in it]
it = ld_items_reg(SRD_KA, vK, sOFFA, list(range(36)), half)
kl = [(t, ("K", u), None) for t, u in it]
it = ld_items_reg(SRD_KA, vK, sOFFA36, [0], lambda u: half(36))
kl += [(t, ("K", 36), None) for t, u in it]
ca_load = (f"buffer_load_dword v{vCM}, v{vFA}, {srd(SRD_DBG)}, 0 offen sc1", ("CA",), None)
FPOS = 32
NOCA = int(os.environ.get("NOCA", "0"))
loads += kl[:40] + ([] if NOCA else [ca_load]) + kl[40:60]
QPOS = len(loads)
loads += kl[60:]
it = ld_items_reg(SRD_VA, vV, sOFFA, list(range(NVREG)), lambda u: half(NKA + u))
loads += [(t, ("V", u), None) for t, u in it]
NA_LOADS = len(loads)
sBO = 52
vPF, vJ = 42, 43
XD = int(os.environ.get("XD", "4"))
STG_B = [44, 48, 52, 56, 60, 64, 68]
RING_B = STG_B + [radd(half(NKA + u), 4 * m) for u in range(NVREG - XD, NVREG) for m in range(2)]
NPRE = len(RING_B)
PFS = int(os.environ.get("PFS", "6"))
bpf = []
first = True
for srdr, nm in ((SRD_KB, "K"), (SRD_VB, "V")):
    for p in range(6):
        nbytes = 4096 if p < 4 else 2048
        per = 64 << PFS
        for o in range(0, nbytes, per):
            nbefore = (0 if nm == "K" else 20) + (4 * p if p < 4 else 16 + 2 * (p - 4))
            if nbefore + nbytes // 1024 <= NPRE:
                continue
            t = ""
            if first:
                t += f"v_lshlrev_b32 v{vPF}, {PFS}, v0\n"
                first = False
            lanes = min(64, nbytes >> PFS)
            if lanes < 64:
                t += f"s_mov_b64 exec, {(1 << lanes) - 1}\n" if lanes < 32 else "s_mov_b32 exec_hi, 0\n"
            t += f"buffer_load_dword v{vJ}, v{vPF}, {srd(srdr)}, s{sBO+p} offen offset:{o}"
            if lanes < 64:
                t += "\ns_mov_b64 exec, -1"
            bpf.append((t, ("PF", len(bpf)), None))
GATE = 0
NB_EARLY = int(os.environ.get('NBE', '0'))
BL = bpf
early = [(t.replace(f"v{vPF},", "v62,").replace(f"v{vJ},", "v63,"), tag, NSLOT - 1) for t, tag, req in BL[:NB_EARLY]]
loads += early
if NB_EARLY:
    t0_, tag0_, r0_ = BL[NB_EARLY]
    BL[NB_EARLY] = (f"v_lshlrev_b32 v{vPF}, {PFS}, v0\n" + t0_, tag0_, r0_)

ksrcA = lambda u: ("reg", half(u), ("K", u))
vsrcA = lambda u: ("reg", half(NKA + u), ("V", u)) if u < NVREG else ("lds", vslot(u), ("V", u))

g0, pre, body = qk_groups(NKA, ksrcA, sBIASA, STG_A)
comp = [(t, n, None) for t, n in g0 + pre + body] + [max_group() + (None,)]
comp += pv_groups(VL_UNITS + list(range(NVREG)), vsrcA, STG_A, 33, STG_A[0])

EXP = os.environ.get("EXP", "")
if EXP:
    order = loads[:NA_LOADS] + BL
    if "r" in EXP:
        order = [(t, ("K", u), None) for t, u in ld_items_reg(SRD_KA, vV if "v" in EXP else vK, sOFFA, list(range(36)), half)]
        order += [(t, ("V", u), None) for t, u in ld_items_reg(SRD_VA, vV, sOFFA, list(range(36)), lambda u: half(u + 18))]
        order += [(t, ("BK", u), None) for t, u in ld_items_reg(SRD_KB, vV if "v" in EXP else vK, sOFFB, list(range(8)), half)]
        order += [(t, ("BV", u), None) for t, u in ld_items_reg(SRD_VB, vV, sOFFB, list(range(8)), lambda u: half(u + 18))]
    for i, (t, tag, req) in enumerate(order):
        if tag == ("CA",): continue
        if tag == ("BK", 0) and "s_add" in t:
            stamp(3)
        if i in (30, 60, 90, 120): stamp(15 + (30, 60, 90, 120).index(i))
        A(t)
        if os.environ.get("THR"): A(f"s_waitcnt vmcnt({os.environ['THR']})")
    A("s_waitcnt vmcnt(0)")
    stamp(4)
    A("s_branch L_fin")
THR = int(os.environ.get("THR", "4"))
THRX = int(os.environ.get("THRX", "0"))
TSCH = eval(os.environ.get("TSCH", "[]"))
VPOL = int(os.environ.get("VPOL", "0"))
THR2 = int(os.environ.get("THR2", "0"))
THRB = int(os.environ.get("THRB", "0"))
LAG = int(os.environ.get("LAG", "10"))
last_of = {}
nissued = 0
released = set()
ci = 0


def emit_comp(g):
    t, need, rel = g
    if need is not None:
        n = nissued - last_of[need] - 1
        A(f"s_waitcnt vmcnt({min(n, 63)})")
    A(t)
    if rel is not None:
        released.add(vslot(rel))


qready = False
li = 0
done_pos = set()
LEAD = int(os.environ.get("LEAD", "0"))
ADAPT = int(os.environ.get("ADAPT", "0"))
ATHR = int(os.environ.get("ATHR", "3"))
sTHR = 51
MARKS = ([40, 56, 72, 88, 104, 120] if LEAD else [-1] * 6) + [NA_LOADS - GATE] if GATE else []
if ADAPT:
    MARKS = [34, 50, 66, 82, 98, 114, 130]
    A(f"s_mov_b32 s{sTHR}, 0")


RATE = int(os.environ.get("RATE", "0"))
sRT0, sRT = 64, 66
if RATE:
    pass


def rate_ctl(li):
    if RATE and li % 6 == 0 and 12 <= li:
        A(f"s_memrealtime s[{sRT}:{sRT+1}]")
    if RATE and li % 6 == 1 and 12 <= li:
        A(f"s_waitcnt lgkmcnt(0)\ns_sub_u32 s{sRT}, s{sRT}, s{sRT0}\ns_cmp_lt_u32 s{sRT}, {max(0, (li - int(os.environ.get('ROFF', '4'))) * RATE // 10)}\ns_cselect_b32 s{sTHR}, 1, 0")


def athr():
    if ADAPT or RATE:
        sk = A.label("nt")
        A(f"s_cmp_eq_u32 s{sTHR}, 0\ns_cbranch_scc1 {sk}\ns_waitcnt vmcnt({ATHR})\n{sk}:")


flow_load = f"buffer_load_ubyte v{vFD}, v{vFA}, {srd(SRD_DBG)}, 0 offen offset:4 sc1"


def flow_wait(k, n):
    ok, lp, ck = A.label("flok"), A.label("fllp"), A.label("flck")
    if n is not None:
        A(f"s_waitcnt vmcnt({n})\ns_branch {ck}")
    A(f"{lp}:")
    spin_guard(ok)
    A(f"{flow_load}\ns_waitcnt vmcnt(0)")
    A(f"{ck}:\nv_cmp_gt_u32 vcc, {k << 4}, v{vFD}\ns_nop 0\ns_cmp_lg_u64 vcc, 0\ns_cbranch_scc0 {ok}\ns_sleep 4\ns_branch {lp}")
    A(f"{ok}:")


while li < len(loads):
    if li in MARKS and li not in done_pos:
        k = MARKS.index(li) + 1
        nf = A.label("nomark")
        A(f"s_or_b32 s{sT3}, s{sWAVE}, s{sSP}\ns_cmp_eq_u32 s{sT3}, 0\ns_cbranch_scc0 {nf}")
        A(f"s_or_b32 s{sT3}, s{sID}, {k << 4}\nv_mov_b32 v{vT}, s{sT3}\ns_lshl_b64 exec, 1, s{sG}")
        A(f"buffer_store_byte v{vT}, v{vFA}, {srd(SRD_DBG)}, 0 offen offset:4 sc1\ns_mov_b64 exec, -1")
        A(f"{nf}:")
    if LEAD and (li - LEAD + 8) in MARKS[:-1] and li + 8 < NA_LOADS and li not in done_pos:
        A(flow_load)
        last_of[("FL",)] = nissued
        nissued += 1
    if LEAD and (li - LEAD) in MARKS[:-1] and li < NA_LOADS and li not in done_pos:
        k = MARKS.index(li - LEAD) + 1
        flow_wait(k, nissued - last_of[("FL",)] - 1)
    if ADAPT and (li - ADAPT) in MARKS and li + 8 < NA_LOADS and li not in done_pos:
        A(flow_load)
        last_of[("FL",)] = nissued
        nissued += 1
    if ADAPT and (li - ADAPT - 8) in MARKS and li < NA_LOADS and li not in done_pos:
        k = MARKS.index(li - ADAPT - 8) + 1
        A(f"s_waitcnt vmcnt({nissued - last_of[('FL',)] - 1})")
        A(f"v_cmp_gt_u32 vcc, {k << 4}, v{vFD}\ns_nop 0\ns_cmp_lg_u64 vcc, 0\ns_cselect_b32 s{sTHR}, 1, 0")
    if os.environ.get("PROG") and li in (30, 60, 90, 120) and li not in done_pos:
        if li == 120 and PROFILE: A("s_waitcnt lgkmcnt(0)")
        stamp(15 + (30, 60, 90, 120).index(li))
    if li == 4 and li not in done_pos:
        late_setup()
        if RATE:
            A(f"s_mov_b32 s{sTHR}, 0\ns_memrealtime s[{sRT0}:{sRT0+1}]")
    done_pos.add(li)
    if li == QPOS and NOCA:
        A(f"s_mov_b32 s{sMODE}, 1")
        A(q_loads())
        nissued += 2
        last_of[("Q",)] = nissued - 1
    if li == QPOS and not NOCA:
        n = nissued - last_of[("CA",)] - 1
        ok, lp, ck = A.label("caok"), A.label("calp"), A.label("cack")
        A(f"s_waitcnt vmcnt({n})\ns_branch {ck}")
        A(f"{lp}:")
        spin_guard(ok)
        A(f"{ca_load[0]}\ns_waitcnt vmcnt(0)")
        A(f"{ck}:\nv_readlane_b32 s{sT3}, v{vCM}, s{sG}")
        A(f"s_cmp_eq_u32 s{sT3}, s{sID}\ns_cselect_b32 s{sMODE}, 1, 0")
        A(f"s_add_u32 s{sT3}, s{sT3}, 0x7f7f7f7f\ns_and_b32 s{sT3}, s{sT3}, 0x80808080\ns_cmp_eq_u32 s{sT3}, 0x80808080\ns_cbranch_scc0 {lp}")
        A(f"{ok}:")
        clear_next(DT, vT)
        A(q_loads())
        nissued += 2
        last_of[("Q",)] = nissued - 1
    if li == QPOS + 12:
        n = nissued - last_of[("Q",)] - 1
        slow, ok = A.label("qslow"), A.label("qok")
        A(f"s_waitcnt vmcnt({n})")
        sentinel_check(range(QA, QA + 8), vT, slow)
        A(f"s_branch {ok}\n{slow}:")
        poll_q_blocking()
        A(f"{ok}:")
        stamp(1)
        A(f"s_lshl_b32 s{sW4}, s{sWAVE}, 2")
        cm_addr()
        if RATE:
            A(f"s_mov_b32 s{sTHR}, 0")
        qready = True
    t, tag, req = loads[li]
    if req is not None and req not in released:
        emit_comp(comp[ci])
        ci += 1
        continue
    A(t.replace(" nt", "") if li < VPOL else t)
    if TSCH:
        tv = [v for (p, v) in TSCH if li >= p][-1]
        if tv:
            A(f"s_waitcnt vmcnt({tv})")
    elif THR and not qready:
        A(f"s_waitcnt vmcnt({THR + (THRX if li & 1 else 0)})")
    if THR2 and qready:
        A(f"s_waitcnt vmcnt({THR2})")
    if li > (12 if RATE else 40) and not (RATE and qready):
        athr()
    if not qready:
        rate_ctl(li)
    last_of[tag] = nissued
    nissued += 1
    li += 1
    if qready:
        cnt = 0
        while ci < len(comp) and cnt < 6:
            need = comp[ci][1]
            if need is not None and (need not in last_of or nissued - last_of[need] - 1 < LAG or
                                     (li < len(loads) and loads[li][1] == need)):
                break
            emit_comp(comp[ci])
            ci += 1
            cnt += 1
stamp(2)
A(f"s_max_u32 s{sT3}, s{sWAVE}, 1\ns_lshl_b32 s{sT3}, s{sT3}, 10\ns_add_u32 s{sT3}, s{sT3}, {XBASE - 1024}\nv_lshl_add_u32 v{vX}, v0, 4, s{sT3}")
while ci < len(comp):
    emit_comp(comp[ci])
    ci += 1

A("L_reduce:")
A(f"v_add_f32_dpp v{vLS}, v{vLS}, v{vLS} row_half_mirror {DPPF}")
xrow_reduce("v_add_f32", vLS, vT)
A(f"v_mul_f32 v{vLS}, v{vLS}, v{vF}\ns_mov_b32 exec_lo, 1\ns_mov_b32 exec_hi, 0x100")
A(f"ds_write_b32 v{vCMw}, v{vLS} offset:32\ns_mov_b64 exec, -1")
for r in range(0, 8, 2):
    A(f"v_pk_mul_f32 v[{QA+r}:{QA+r+1}], v[{QA+r}:{QA+r+1}], v[{vF}:{vF+1}] op_sel_hi:[1,0]")
XR = 20
xr = [20, 24, 56]
A(f"s_cmp_eq_u32 s{sWAVE}, 0\ns_cbranch_scc0 L_red_n0")
for wv in range(2):
    own, give = QA + 4 * wv, QA + 4 * (1 - wv)
    if wv == 1:
        A("L_red_1:")
    A(f"ds_write_b128 v{vX}, {vr(give)} offset:{3072*(1-wv)}")
    A(f"s_add_u32 s{sT0}, s{sPOOFF}, {512*wv}\ns_cmp_eq_u32 s{sMODE}, 1")
    A("s_waitcnt lgkmcnt(0)\ns_barrier")
    for s_ in range(3):
        A(f"ds_read_b128 {vr(xr[s_])}, v{vX} offset:{3072*wv+1024*s_}")
    for s_ in range(3):
        A(f"s_waitcnt lgkmcnt({2-s_})")
        for r in (0, 2):
            A(f"v_pk_add_f32 v[{own+r}:{own+r+1}], v[{own+r}:{own+r+1}], v[{xr[s_]+r}:{xr[s_]+r+1}]")
    for r in range(4):
        A(f"v_min_u32 v{own+r}, -2, v{own+r}")
    far = A.label("far")
    A(f"s_cbranch_scc0 {far}")
    A(f"buffer_store_dwordx4 {vr(own)}, v{vPO}, {srd(SRD_WS)}, s{sT0} offen\ns_branch L_red_done")
    A(f"{far}:\nbuffer_store_dwordx4 {vr(own)}, v{vPO}, {srd(SRD_WS)}, s{sT0} offen sc1\ns_branch L_red_done")
A("L_red_n0:")
A(f"s_cmp_eq_u32 s{sWAVE}, 1\ns_cbranch_scc1 L_red_1")
A(f"ds_write_b128 v{vX}, {vr(QA)}\nds_write_b128 v{vX}, {vr(QA+4)} offset:3072")
A(f"v_lshrrev_b32 v{vT}, 5, v0\nv_lshlrev_b32 v{vT}, 12, v{vT}\nv_min_u32 v24, -2, v{vMX}")
A(f"s_cmp_eq_u32 s{sWAVE}, 2")
A("s_waitcnt lgkmcnt(0)\ns_barrier\ns_cbranch_scc0 L_red_done")
A(f"ds_read_b128 v[20:23], v{vCMr} offset:32\ns_cmp_eq_u32 s{sMODE}, 1\ns_waitcnt lgkmcnt(0)")
A("v_add_f32 v20, v20, v21\nv_add_f32 v22, v22, v23\nv_add_f32 v25, v20, v22\nv_min_u32 v25, -2, v25")
A("s_mov_b32 exec_lo, 1\ns_mov_b32 exec_hi, 1\ns_cbranch_scc0 L_ml_far")
A(f"buffer_store_dwordx2 v[24:25], v{vT}, {srd(SRD_WS)}, s{sMLOFF} offen\ns_branch L_ml_done")
A(f"L_ml_far:\nbuffer_store_dwordx2 v[24:25], v{vT}, {srd(SRD_WS)}, s{sMLOFF} offen sc1")
A("L_ml_done:\ns_mov_b64 exec, -1")
A("L_red_done:")
A("s_barrier")
A(f"s_add_u32 s{sQOFF}, s{sQOFF}, 8192\ns_add_u32 s{sPOOFF}, s{sPOOFF}, {PO_L}\ns_add_u32 s{sMLOFF}, s{sMLOFF}, {ML_L}")
A(f"s_add_u32 s{sLAYER}, s{sLAYER}, 1")
A(f"s_cmp_eq_u32 s{sLAYER}, 2\ns_cbranch_scc1 L_after2")
A(f"s_cmp_eq_u32 s{sLAYER}, 3\ns_cbranch_scc1 L_after3")
A(f"s_cmp_eq_u32 s{sLAYER}, 4\ns_cbranch_scc1 L_att_end")
stamp(3)
if GATE:
    vFA = vT
    flow_load = f"buffer_load_ubyte v{vFD}, v{vFA}, {srd(SRD_DBG)}, 0 offen offset:4 sc1"
    A(f"v_and_b32 v{vFA}, 7, v0\nv_lshlrev_b32 v{vFA}, 5, v{vFA}")
    flow_wait(7, None)
    stamp(13)


DRY = int(os.environ.get("DRY", "0"))


def stream_then_q(items, E, st_a, st_b, thr=0, pre=(), dry=None):
    n = len(items)
    for i, (t, tag, req) in enumerate(items):
        if i == n - E:
            A(q_loads())
        A(t)
        if thr and i < n - E:
            A(f"s_waitcnt vmcnt({thr})")
        if st_a == 4 and i < n - E and os.environ.get("ATHB"):
            athr()
            rate_ctl(NA_LOADS + NB_EARLY + i + 6)
    if dry and DRY:
        A(f"s_mov_b64 exec, 0\ns_branch L_{dry}_body\nL_{dry}_ret:\ns_mov_b64 exec, -1\ns_nop 7")
    if E == 0:
        qs = int(os.environ.get(f"QS{st_a}", "0"))
        if qs:
            A(f"s_sleep {qs}")
        A(q_loads())
    slow, ok = A.label("qslow"), A.label("qok")
    A(f"s_waitcnt vmcnt({E})")
    stamp(st_a)
    emit_groups(pre)
    sentinel_check(range(QA, QA + 8), vT, slow)
    A(f"s_branch {ok}\n{slow}:")
    poll_q_blocking()
    A(f"{ok}:")
    stamp(st_b)
    if dry:
        A(f"L_{dry}_body:")
    younger = {}
    for i, (t, tag, req) in enumerate(items):
        if i >= n - E:
            younger[tag] = n - 1 - i
    return younger


def emit_counted(gs, younger, extra=None, every=1):
    extra = list(extra or [])
    cnt = 0
    for g in gs:
        need = g[1]
        if need in younger:
            A(f"s_waitcnt vmcnt({younger[need]})")
            lim = younger[need]
            for k in [k for k, v in younger.items() if v >= lim]:
                del younger[k]
        A(g[0])
        if "v_mfma" in g[0]:
            cnt += 1
            if extra and cnt % every == 0:
                t, tag, req = extra.pop(0)
                A(t)
                for k in younger:
                    younger[k] += 1
                younger[tag] = 0
    assert not extra


def btext(key, q):
    nm, u, m = key
    p, o = (u // 2, (u & 1) * 2048) if u < 8 else (u - 4, 0)
    return f"buffer_load_dwordx4 {vr(q)}, v{vK if nm == 'K' else vV}, {srd(SRD_KB if nm == 'K' else SRD_VB)}, s{sBO+p} offen offset:{o+256*m}"


ring = GRing([(nm, u, m) for nm in "KV" for u in range(10) for m in range(2)], btext, RING_B)
clear_next(DT, vT)
A(ring.issue(NPRE))
ring.landed = NPRE
CPF = int(os.environ.get("CPF", "2"))
if CPF:
    code_prefetch("L_l2body", CPF * 4096, vPF, vJ, sT0)
ksrcB = lambda u: ("gl", ring, None)
g0, pre, body = qk_groups(10, ksrcB, sBIASB, STG_B)
emit_groups(g0)
yg = stream_then_q(BL[NB_EARLY:], int(os.environ.get("E2", "2")), 4, 5)
A("L_l2body:")
emit_groups(body + [max_group()] + pv_groups(list(range(10)), ksrcB, STG_B, 5, 42))
A("s_branch L_reduce")

A("L_after2:")
stamp(6)
def hook3(u, m):
    j = 2 * (u - 1) + m
    if u >= 1 and j < 2 * NSLOT:
        w = "s_waitcnt lgkmcnt(6)\n" if j % 8 == 7 else ""
        return w + f"ds_read_b128 {vr(radd(half(j // 2), 4 * (j & 1)))}, v{vL} offset:{j*1024}"
    return None


g0, pre, body = qk_groups(NKA, ksrcA, sBIASA, STG_A, hook3)
vsrc3 = lambda u: ("reg", half(NKA + u) if u < NVREG else half(u - NVREG), None)
clear_next(DT, vT)
emit_groups(g0)
rl = ld_items_reg(SRD_VA, vV, sOFFA, list(range(NVREG - XD, NVREG)), lambda u: half(NKA + u)) if XD else []
yg = stream_then_q([(t, ("V", u), None) for t, u in rl], 0, 14, 7, dry="l3")
emit_counted(body, yg)
emit_groups([max_group()])
stamp(8)
HB1 = 0
b4 = []
for srdr, voff, base, nm in ((SRD_KB, vK, 0, "BK"), (SRD_VB, vV, 10, "BV")):
    b4 += [(t, (nm, u), None) for t, u in ld_items_reg(srdr, voff, sOFFB, list(range(8)), lambda u: half(base + u))]
    b4 += [(t, (nm, 8), None) for t, u in ld_items_reg(srdr, voff, sOFFB8, [0], lambda u: half(base + 8))]
    b4 += [(t, (nm, 9), None) for t, u in ld_items_reg(srdr, voff, sOFFB9, [0], lambda u: half(base + 9))]
NB4 = int(os.environ.get("NB4", "0"))
order3 = list(range(NVREG)) + [NVREG + x for x in list(range(HB1, NSLOT)) + list(range(0, HB1))]
emit_groups(pv_groups(order3, vsrc3, STG_A, 12, STG_A[0]))
stamp(15)
if DRY:
    A("s_cbranch_execz L_l3_ret")
A("s_branch L_reduce")

A("L_after3:")
if os.environ.get("WBL") == "2":
    A(f"s_cmp_eq_u32 s{sSP}, 27\ns_cbranch_scc0 L_wb_skip2\ns_cmp_eq_u32 s{sWAVE}, 3\ns_cbranch_scc0 L_wb_skip2")
    A("buffer_wbl2 sc1")
    A("L_wb_skip2:")
stamp(9)
ksrc4 = lambda u: ("reg", half(u), ("BK", u))
vsrc4 = lambda u: ("reg", half(10 + u), ("BV", u))
g0, pre, body = qk_groups(10, ksrc4, sBIASB, STG_B)
emit_groups(g0)
yg = stream_then_q(b4[NB4:], int(os.environ.get("E4", "0")), 10, 11, int(os.environ.get("THR4", "0")), dry="l4")
emit_counted(body + [max_group()] + pv_groups(list(range(10)), vsrc4, STG_B, 5, 42), yg)
if DRY:
    A("s_cbranch_execz L_l4_ret")
A("s_branch L_reduce")

A("L_att_end:")
if os.environ.get("WBL"):
    A(f"s_cmp_eq_u32 s{sSP}, 0\ns_cbranch_scc0 L_wb_skip\ns_cmp_eq_u32 s{sWAVE}, 3\ns_cbranch_scc0 L_wb_skip")
    A("buffer_wbl2 sc1\ns_waitcnt vmcnt(0)")
    A("L_wb_skip:")
stamp(12)
A("s_branch L_fin")

A("L_chain:")
cWq, cWo, cPOg, cMLg, cL16, cYg, cT = 1, 2, 3, 4, 5, 6, 7
cX = 12
cVAL, cYst, cSCR, cXw, cXa, cXs = 14, 15, 16, 17, 18, 19
cTT = [20, 24]
cACC = 28
cG = 36
cN = 68
cXA = 36
cCS = {0: 92, 1: 93}
cQst, cV56 = 94, 95
cWo1 = 91
WQ = {0: ("a", 0), 1: ("a", 112)}
WO0 = {0: ("v", 96), 1: ("v", 160)}
sYG = 52


def wo1(t):
    return ("v", 224 + 4 * t) if t < 8 else ("a", 224 + 4 * (t - 8))


CSCR = 131072
YX = CSCR
XB = CSCR + 4096
sCH = sSP
WQB = 448 * 4096 * 2

if "n" in os.environ.get("EXP", ""):
    A("s_branch L_end")
if "l" in os.environ.get("EXP", ""):
    mk_srd(SRD_KB, pBK, 67108864)
    stamp(0)
    A(f"s_lshl_b32 s{sT0}, s{sG}, 23\ns_mul_i32 s{sT1}, s{sSP}, 491520\ns_add_u32 s{sT0}, s{sT0}, s{sT1}\ns_lshl_b32 s{sT1}, s{sWAVE}, 12\ns_add_u32 s{sT0}, s{sT0}, s{sT1}\nv_lshlrev_b32 v1, 4, v0")
    for i in range(30):
        for n in range(4):
            A(f"buffer_load_dwordx4 a[{(i*16+n*4)%256}:{(i*16+n*4)%256+3}], v1, {srd(SRD_KB)}, s{sT0} offen offset:{n*1024} nt")
        A(f"s_add_u32 s{sT0}, s{sT0}, 16384")
    A("s_waitcnt vmcnt(0)")
    stamp(3)
    A("s_branch L_fin")
A("s_waitcnt lgkmcnt(0)")
common_setup()
mk_srd(SRD_WQA, pAWQ, WQB)
mk_srd(SRD_WOA, pAWO, WQB)
mk_srd(SRD_WQB, pBWQ, WQB)
mk_srd(SRD_WOB, pBWO, WQB)
mk_srd(SRD_X, pAX, 896)
A(f"s_mov_b64 s[{sOUTP}:{sOUTP+1}], s[{pOUT}:{pOUT+1}]")
A(f"s_lshl_b32 s{sT0}, s{sG}, 2\ns_add_u32 s{sCH}, s{sT0}, s{sSP}")
A("v_lshrrev_b32 v20, 4, v0       ; s / row")
A("v_and_b32 v21, 15, v0          ; j / c16")
A("v_lshlrev_b32 v22, 4, v21      ; j*16")
A(f"s_lshr_b32 s{sT0}, s{sWAVE}, 1\ns_lshl_b32 s{sT0}, s{sT0}, 2\nv_or_b32 v23, s{sT0}, v20\nv_lshlrev_b32 v23, 5, v23\nv_xor_b32 v23, v23, v22")
A(f"v_lshl_add_u32 v{cWq}, v20, 13, v23")
A(f"v_mul_u32_u24 v{cWo}, 896, v20\nv_add_u32 v{cWo}, v{cWo}, v22")
A("v_and_b32 v23, 31, v0\nv_min_u32 v23, 27, v23\nv_lshrrev_b32 v24, 5, v0")
A(f"s_mul_i32 s{sT0}, s{sWAVE}, 224\nv_lshlrev_b32 v25, 3, v23\nv_lshl_add_u32 v25, v24, 2, v25\nv_add_u32 v25, s{sT0}, v25")
A(f"buffer_load_dword v{cX}, v25, {srd(SRD_X)}, 0 offen")
A(f"v_add_u32 v{cXw}, {XB}, v25")
A(f"v_lshlrev_b32 v{cYg}, 4, v23\nv_lshl_add_u32 v{cYg}, v24, 11, v{cYg}")


def wq_dma(which):
    s_ = SRD_WQA if which == 0 else SRD_WQB
    A(f"s_lshl_b32 s{sT0}, s{sWAVE}, 15\ns_lshl_b32 s{sT1}, s{sCH}, 8\ns_add_u32 s{sT0}, s{sT0}, s{sT1}\ns_lshl_b32 s{sT2}, s{sWAVE}, 10")
    for ii in range(28):
        A(f"s_add_u32 s{sT1}, s{sT0}, {ii*131072}\ns_add_u32 s{sT3}, s{sT2}, {ii*4096}\ns_mov_b32 m0, s{sT3}\ns_nop 0")
        A(f"buffer_load_dwordx4 v{cWq}, {srd(s_)}, s{sT1} offen nt lds")


def wq_tr(which):
    A("v_lshrrev_b32 v20, 4, v0\nv_bfe_u32 v21, v0, 2, 2\nv_and_b32 v22, 1, v20\nv_lshl_add_u32 v22, v22, 2, v21")
    A(f"s_lshl_b32 s{sT0}, s{sWAVE}, 1\nv_xor_b32 v22, s{sT0}, v22\nv_lshlrev_b32 v22, 5, v22")
    A("v_lshl_add_u32 v20, v20, 3, v21\nv_lshl_add_u32 v20, v20, 8, v22\nv_and_b32 v21, 3, v0\nv_lshl_add_u32 v20, v21, 3, v20")
    A(f"v_xor_b32 v21, 32, v20\nv_add_u32 v22, {7*8192}, v20\nv_add_u32 v23, {7*8192}, v21")
    for kb in range(14):
        for cb in range(2):
            for hf in range(2):
                d = radd(WQ[which], (kb * 2 + cb) * 4 + hf * 2)
                A(f"ds_read_b64_tr_b16 {vr(d, 2)}, v{20 + cb + (0 if kb < 7 else 2)} offset:{(kb%7)*8192+hf*1024}")
        if kb % 3 == 2:
            A("s_waitcnt lgkmcnt(3)")
    A("s_waitcnt lgkmcnt(0)")


def sel_cb(dst):
    A(f"v_mov_b32 v{dst}, v{cACC}\ns_mov_b32 exec_lo, 0xffff0000\ns_mov_b32 exec_hi, 0xffff0000\nv_mov_b32 v{dst}, v{cACC+4}\ns_mov_b64 exec, -1")


def colsum(which):
    for r in range(4):
        A(f"v_mov_b32 v{20+r}, 0x3f803f80")
    A("s_nop 1")
    for kb in range(14):
        for cb in range(2):
            acc = cACC + 4 * cb
            A(f"v_mfma_f32_16x16x32_bf16 {vr(acc)}, v[20:23], {vr(radd(WQ[which], (kb*2+cb)*4))}, {'0' if kb == 0 else vr(acc)}")
    A("s_nop 7")
    sel_cb(cCS[which])


def wo_base():
    A(f"s_lshr_b32 s{sT0}, s{sCH}, 1\ns_lshl_b32 s{sT0}, s{sT0}, 2\ns_add_u32 s{sT0}, s{sT0}, s{sWAVE}\ns_mul_i32 s{sT0}, s{sT0}, {64*896}")
    A(f"s_and_b32 s{sT1}, s{sCH}, 1\ns_lshl_b32 s{sT1}, s{sT1}, 9\ns_add_u32 s{sT0}, s{sT0}, s{sT1}")


def wo0_loads(which, ts):
    s_ = SRD_WOA if which == 0 else SRD_WOB
    wo_base()
    for t in ts:
        A(f"s_add_u32 s{sT1}, s{sT0}, {4*t*896}")
        A(f"buffer_load_dwordx4 {vr(radd(WO0[which], 4*t))}, v{cWo}, {srd(s_)}, s{sT1} offen nt")


def wo1_addr():
    A(f"s_and_b32 s{sT1}, s{sCH}, 1\ns_lshl_b32 s{sT1}, s{sT1}, 7\ns_not_b32 s{sT1}, s{sT1}")
    A(f"v_lshlrev_b32 v{cWo1}, 4, v0\nv_and_b32 v{cWo1}, 0xf0, v{cWo1}\nv_sub_u32 v{cT}, v{cWo}, v{cWo1}\nv_and_b32 v{cWo1}, s{sT1}, v{cWo1}\nv_add_u32 v{cWo1}, v{cWo1}, v{cT}")


def wo1_regs(ts):
    wo1_addr()
    wo_base()
    for t in ts:
        A(f"s_add_u32 s{sT1}, s{sT0}, {4*t*896+256}")
        A(f"buffer_load_dwordx4 {vr(wo1(t))}, v{cWo1}, {srd(SRD_WOA)}, s{sT1} offen nt")


def wo1_dma(which):
    s_ = SRD_WOA if which == 0 else SRD_WOB
    wo_base()
    A(f"s_lshl_b32 s{sT2}, s{sWAVE}, 14\ns_add_u32 s{sT2}, s{sT2}, {which*65536}")
    for t in range(16):
        A(f"s_add_u32 s{sT1}, s{sT0}, {4*t*896+256}\ns_add_u32 s{sT3}, s{sT2}, {t*1024}\ns_mov_b32 m0, s{sT3}\ns_nop 0")
        A(f"buffer_load_dwordx4 v{cWo1}, {srd(s_)}, s{sT1} offen nt lds")


def lstamp(base):
    if PROFILE == 1:
        for l in range(4):
            lb = A.label("ps")
            A(f"s_cmp_eq_u32 s{sLAYER}, {l}\ns_cbranch_scc0 {lb}")
            stamp(base + 4 * l)
            A(f"{lb}:")


stamp(0)
if int(os.environ.get("PRET", "0")):
    A(f"v_lshlrev_b32 v26, 16, v0\ns_cmp_eq_u32 s{sWAVE}, 1\ns_cbranch_scc0 L_pt2")
    A(f"buffer_load_dword v27, v26, {srd(SRD_WQB)}, 0 offen nt")
    wo_base()
    A(f"s_mov_b64 exec, 0xf\nbuffer_load_dword v32, v26, {srd(SRD_WOA)}, s{sT0} offen nt\nbuffer_load_dword v33, v26, {srd(SRD_WOB)}, s{sT0} offen nt\ns_mov_b64 exec, -1")
    A("L_pt2:")
A(f"v_lshlrev_b32 v{cL16}, 4, v0")
A(f"s_lshl_b32 s{sYST}, s{sCH}, 10\ns_add_u32 s{sYST}, s{sYST}, {WS_Y}")
A(f"s_lshl_b32 s{sQST}, s{sCH}, 8")
A("v_mov_b32 v28, -1\nv_mov_b32 v29, -1\nv_mov_b32 v30, -1\nv_mov_b32 v31, -1")
A(f"s_lshl_b32 s{sT1}, s{sWAVE}, 13\ns_add_u32 s{sT1}, s{sT1}, s{sQST}")
A(f"s_cmp_eq_u32 s{sWAVE}, 0\ns_cbranch_scc0 L_ch_cl1")
A(f"buffer_store_dwordx4 v[28:31], v{cL16}, {srd(SRD_WS)}, s{sYST} offen sc1")
A("L_ch_cl1:\ns_mov_b64 exec, 0xffff")
A(f"buffer_store_dwordx4 v[28:31], v{cL16}, {srd(SRD_WS)}, s{sT1} offen sc1")
A("s_mov_b64 exec, -1")
wq_dma(0)
A(f"v_mul_u32_u24 v{cPOg}, 7168, v20\nv_add_u32 v{cPOg}, v{cPOg}, v22\ns_lshl_b32 s{sT0}, s{sWAVE}, 8\nv_add_u32 v{cPOg}, s{sT0}, v{cPOg}")
A(f"v_min_u32 v23, 6, v21\nv_mul_u32_u24 v24, 7, v20\nv_add_u32 v23, v23, v24\nv_lshlrev_b32 v{cMLg}, 7, v23")
A(f"v_cmp_gt_u32 vcc, 7, v21\ns_nop 1\nv_cndmask_b32 v{cVAL}, 0, 1.0, vcc")
A(f"v_cmp_gt_u32 vcc, 56, v0\ns_nop 1\nv_cndmask_b32 v{cV56}, 0, 1.0, vcc")
A(f"v_lshrrev_b32 v23, 5, v0\nv_lshlrev_b32 v23, 9, v23\nv_lshl_add_u32 v23, v21, 5, v23\nv_and_b32 v24, 1, v20\nv_lshl_add_u32 v{cYst}, v24, 4, v23")
A(f"s_lshl_b32 s{sT0}, s{sWAVE}, 6\nv_lshl_add_u32 v{cQst}, v0, 1, s{sT0}")
A(f"v_add_u32 v{cSCR}, {CSCR}, v{cL16}")
A(f"v_lshlrev_b32 v{cXa}, 4, v20\nv_add_u32 v{cXa}, {XB}, v{cXa}")
A(f"v_min_u32 v{cXs}, 55, v0\nv_lshlrev_b32 v{cXs}, 4, v{cXs}\nv_add_u32 v{cXs}, {XB}, v{cXs}")
A(f"s_lshr_b32 s{sT0}, s{sCH}, 1\ns_mul_i32 s{sPOOFF}, s{sT0}, 28672\ns_add_u32 s{sPOOFF}, s{sPOOFF}, {WS_PO}")
A(f"s_lshl_b32 s{sMLOFF}, s{sT0}, 12\ns_add_u32 s{sMLOFF}, s{sMLOFF}, {WS_ML}")
A(f"s_mul_i32 s{sYOFF}, s{sWAVE}, 448\ns_add_u32 s{sYOFF}, s{sYOFF}, {WS_Y}")
emit_masks(0, MASK, 20, 21)
A("s_waitcnt vmcnt(0)")
wo0_loads(0, range(8))
mk_srd(SRD_OUT, sOUTP, 896)
A(f"ds_write_b32 v{cXw}, v{cX}")
A(f"v_and_b32 v{cX+1}, 0xffff0000, v{cX}\nv_lshlrev_b32 v{cX}, 16, v{cX}")
A("s_waitcnt lgkmcnt(0)\ns_barrier")
A(f"s_cmp_eq_u32 s{sWAVE}, 3\ns_cbranch_scc0 L_ch_noflag")
A(f"s_lshl_b32 s{sT0}, s{sG}, 5\ns_and_b32 s{sT1}, s{sCH}, 3\ns_add_u32 s{sT0}, s{sT0}, s{sT1}")
A(f"v_mov_b32 v28, s{sT0}\nv_mov_b32 v29, s{sID}\ns_mov_b64 exec, 1")
A(f"buffer_store_byte v29, v28, {srd(SRD_DBG)}, 0 offen sc1\ns_mov_b64 exec, -1")
A("L_ch_noflag:")
stamp(1)
wq_tr(0)
colsum(0)
A(f"v_and_b32 v{cT}, 7, v0\nv_lshlrev_b32 v{cT}, 2, v{cT}\ns_lshl_b32 s{sT2}, s{sG}, 5")
A("L_ch_id:")
spin_guard("L_ch_id_ok")
A(f"buffer_load_dword v{cG}, v{cT}, {srd(SRD_DBG)}, s{sT2} offen sc1\ns_waitcnt vmcnt(0)")
A(f"v_and_b32 v{cG+1}, 0x0f0f0f0f, v{cG}\nv_cmp_ne_u32 s[{sT0}:{sT1}], s{sID}, v{cG+1}")
A(f"v_add_u32 v{cG+1}, 0x7f7f7f7f, v{cG}\nv_and_b32 v{cG+1}, 0x80808080, v{cG+1}\nv_cmp_ne_u32 vcc, 0x80808080, v{cG+1}")
A(f"s_cmp_eq_u64 s[{sT0}:{sT1}], 0\ns_cselect_b32 s{sMODE}, 1, 0")
A("s_cmp_lg_u64 vcc, 0\ns_cbranch_scc1 L_ch_id")
A("L_ch_id_ok:")
A("v_mov_b32 v28, -1\nv_mov_b32 v29, -1\nv_mov_b32 v30, -1\nv_mov_b32 v31, -1")
A(f"s_mul_i32 s{sT1}, s{sWAVE}, 7168\ns_add_u32 s{sT1}, s{sT1}, s{sPOOFF}\ns_add_u32 s{sT2}, s{sT1}, 4096")
A(f"s_mul_i32 s{sT0}, s{sWAVE}, {7*128}\ns_add_u32 s{sT0}, s{sT0}, s{sMLOFF}\nv_lshlrev_b32 v{cT}, 7, v0")
A(f"s_cmp_eq_u32 s{sMODE}, 1\ns_cbranch_scc0 L_ch_clf")
for fl in ("", " sc1"):
    if fl:
        A("L_ch_clf:")
    for i in range(7):
        A(f"buffer_store_dwordx4 v[28:31], v{cL16}, {srd(SRD_WS)}, s{sT1 if i < 4 else sT2} offen offset:{1024*(i%4)}{fl}")
    A(f"s_mov_b64 exec, 0x7f\nbuffer_store_dwordx2 v[28:29], v{cT}, {srd(SRD_WS)}, s{sT0} offen{fl}\ns_mov_b64 exec, -1")
    if not fl:
        A("s_branch L_ch_cld")
A("L_ch_cld:")
A("s_waitcnt vmcnt(0)\ns_barrier")
wo0_loads(0, range(8, 16))
A("s_branch L_ch_qp")


def bf16r(dst, src):
    A(f"v_cvt_pk_bf16_f32 v{dst}, 0, v{src}")


A("L_ch_stageA:")
if int(os.environ.get("DEFW", "1")):
    A(f"s_cmp_eq_u32 s{sLAYER}, 1\ns_cbranch_scc0 L_sa_nw")
    wo0_loads(1, range(16))
    A("L_sa_nw:")
A(f"s_and_b32 s{sT0}, s{sLAYER}, 1\ns_lshl_b32 s{sT0}, s{sT0}, 16\ns_lshl_b32 s{sT1}, s{sWAVE}, 14\ns_add_u32 s{sT0}, s{sT0}, s{sT1}")
A(f"v_add_u32 v{cT}, s{sT0}, v{cL16}")
for t in range(16):
    A(f"ds_read_b128 {vr(wo1(t))}, v{cT} offset:{t*1024}")
    if t == 7:
        A("s_waitcnt lgkmcnt(0)")
for i in range(8):
    A(f"s_add_u32 s{sYG+i}, s{sYOFF}, {4096*i}")
A("s_waitcnt lgkmcnt(0)")
A(f"s_cmp_eq_u32 s{sWAVE}, 0\ns_cbranch_scc0 L_sa_nc\ns_cmp_eq_u32 s{sLAYER}, 3\ns_cbranch_scc1 L_sa_nc")
A(f"v_mov_b32 v28, -1\nv_mov_b32 v29, -1\nv_mov_b32 v30, -1\nv_mov_b32 v31, -1\ns_add_u32 s{sT0}, s{sYST}, 32768")
A(f"buffer_store_dwordx4 v[28:31], v{cL16}, {srd(SRD_WS)}, s{sT0} offen sc1")
A("L_sa_nc:")
A(f"s_add_u32 s{sT0}, s{sPOOFF}, 4096")
cML = cG + 28
A("L_sa_poll:")
spin_guard("L_sa_go")
A(f"buffer_load_dwordx2 v[{cML}:{cML+1}], v{cMLg}, {srd(SRD_WS)}, s{sMLOFF} offen sc1")
for u in range(7):
    so = sPOOFF if u < 4 else sT0
    A(f"buffer_load_dwordx4 {vr(cG+4*u)}, v{cPOg}, {srd(SRD_WS)}, s{so} offen offset:{(u%4)*1024} sc1")
A("s_waitcnt vmcnt(0)")
sentinel_check(range(cG, cG + 30), cT, "L_sa_poll")
A("L_sa_go:")
lstamp(3)
mM, mW, mL = cN, cN + 1, cN + 2
A(f"v_max_f32_dpp v{mM}, v{cML}, v{cML} quad_perm:[1,0,3,2] {DPPF}")
for ctl in ("quad_perm:[2,3,0,1]", "row_half_mirror"):
    A(f"s_nop 1\nv_max_f32_dpp v{mM}, v{mM}, v{mM} {ctl} {DPPF}")
xrow_reduce("v_max_f32", mM, cT)
A(f"v_sub_f32 v{mW}, v{cML}, v{mM}\nv_exp_f32 v{mW}, v{mW}\nv_mul_f32 v{mL}, v{cML+1}, v{cVAL}\nv_mul_f32 v{mL}, v{mL}, v{mW}")
oa = cN + 4
red_steps = [f"v_add_f32_dpp v{mL}, v{mL}, v{mL} {c} {DPPF}" for c in
             ("quad_perm:[1,0,3,2]", "quad_perm:[2,3,0,1]", "row_half_mirror", "row_mirror")]
red_steps[3] += f"\nv_mov_b32 v{cT}, v{mL}"
red_steps.append(f"v_permlane32_swap_b32 v{mL}, v{cT}\nv_add_f32 v{mL}, v{mL}, v{cT}\nv_mov_b32 v{cT}, v{mL}")
red_steps.append(f"v_permlane16_swap_b32 v{mL}, v{cT}\nv_add_f32 v{mL}, v{mL}, v{cT}\nv_rcp_f32 v{mL}, v{mL}")
A("s_nop 0")
for u in range(7):
    for r in range(4):
        op = "v_mul_f32_dpp" if u == 0 else "v_fmac_f32_dpp"
        A(f"{op} v{oa+r}, v{mW}, v{cG+4*u+r} row_newbcast:{u} {DPPF}")
    if u < 6:
        A(red_steps[u])
A("s_nop 0")
A(f"v_permlane32_swap_b32 v{oa}, v{oa+2}\nv_permlane32_swap_b32 v{oa+1}, v{oa+3}")
A(f"v_add_f32 v{oa}, v{oa}, v{oa+2}\nv_add_f32 v{oa+1}, v{oa+1}, v{oa+3}\ns_nop 1")
A(f"v_permlane16_swap_b32 v{oa}, v{oa+1}\nv_add_f32 v{oa}, v{oa}, v{oa+1}")
A(f"v_mul_f32 v{oa}, v{oa}, v{mL}\nv_cvt_pk_bf16_f32 v{oa}, v{oa}, v{oa}")
A(f"s_and_b32 s{sT0}, s{sLAYER}, 1\ns_cmp_eq_u32 s{sT0}, 1\ns_cbranch_scc1 L_sa_B")
for which in range(2):
    if which == 1:
        A("L_sa_B:")

    def gmh(t, hf):
        for r in (0, 1) if hf == 0 else (2, 3):
            A(f"v_and_b32_dpp v{cTT[t&1]+r}, v{oa}, v{MASK+r} row_newbcast:{t} {DPPF}")
    gmh(0, 0)
    gmh(0, 1)
    for t in range(16):
        if t + 1 < 16:
            gmh(t + 1, 0)
        else:
            A("s_nop 0")
        A(f"v_mfma_f32_16x16x32_bf16 {vr(cACC)}, {vr(cTT[t&1])}, {vr(radd(WO0[which],4*t))}, {'0' if t == 0 else vr(cACC)}")
        if t + 1 < 16:
            gmh(t + 1, 1)
        A(f"v_mfma_f32_16x16x32_bf16 {vr(cACC+4)}, {vr(cTT[t&1])}, {vr(wo1(t))}, {'0' if t == 0 else vr(cACC+4)}")
    if which == 0:
        A("s_branch L_sa_red")
A("L_sa_red:")
A(f"s_lshl_b32 s{sT0}, s{sWAVE}, 10\nv_add_u32 v{cT}, s{sT0}, v{cSCR}")
A("s_mov_b32 exec_lo, 0\ns_nop 5")
for r in range(4):
    A(f"v_mov_b32 v{cACC+r}, v{cACC+4+r}")
A("s_mov_b32 exec_lo, -1")
A(f"s_cmp_eq_u32 s{sWAVE}, 0\ns_cbranch_scc1 L_sa_w0")
A(f"ds_write_b128 v{cT}, {vr(cACC)}\ns_waitcnt lgkmcnt(0)\ns_barrier")
H2S = int(os.environ.get("H2S", "8"))
A(f"s_sleep {H2S+2}\ns_branch L_sb")
A("L_sa_w0:\ns_barrier")
for s_ in range(1, 4):
    A(f"ds_read_b128 {vr(cG+4*s_)}, v{cSCR} offset:{1024*s_}")
for s_ in range(1, 4):
    A(f"s_waitcnt lgkmcnt({3-s_})")
    for r in range(0, 4, 2):
        A(f"v_pk_add_f32 v[{cACC+r}:{cACC+r+1}], v[{cACC+r}:{cACC+r+1}], v[{cG+4*s_+r}:{cG+4*s_+r+1}]")
for r in range(4):
    A(f"v_min_u32 v{cACC+r}, -2, v{cACC+r}")
A(f"buffer_store_dwordx4 {vr(cACC)}, v{cYst}, {srd(SRD_WS)}, s{sYST} offen sc1")
lstamp(4)
if H2S:
    A(f"s_sleep {H2S}")
A("L_sb:")
A(f"s_cmp_eq_u32 s{sLAYER}, 3\ns_cbranch_scc0 L_sb_go0\ns_cmp_eq_u32 s{sCH}, 0\ns_cbranch_scc0 L_fin\nL_sb_go0:")


def yload(i):
    return f"buffer_load_dwordx4 {vr(cG+4*i)}, v{cYg}, {srd(SRD_WS)}, s{sYG+i} offen sc1"


for i in range(8):
    A(yload(i))
A("L_sb_poll:")
for i in range(4):
    A(f"s_waitcnt vmcnt({6-2*i})")
    for r in range(0, 4, 2):
        A(f"v_pk_add_f32 v[{cN+4*i+r}:{cN+4*i+r+1}], v[{cG+8*i+r}:{cG+8*i+r+1}], v[{cG+8*i+4+r}:{cG+8*i+4+r+1}]")
    if i & 1:
        for r in range(0, 4, 2):
            A(f"v_pk_add_f32 v[{cN+4*(i-1)+r}:{cN+4*(i-1)+r+1}], v[{cN+4*(i-1)+r}:{cN+4*(i-1)+r+1}], v[{cN+4*i+r}:{cN+4*i+r+1}]")
for r in range(0, 4, 2):
    A(f"v_pk_add_f32 v[{cN+r}:{cN+r+1}], v[{cN+r}:{cN+r+1}], v[{cN+8+r}:{cN+8+r+1}]")
A("s_nop 1")
A(f"v_permlane32_swap_b32 v{cN}, v{cN+2}\nv_permlane32_swap_b32 v{cN+1}, v{cN+3}")
A(f"v_pk_add_f32 v[{cN}:{cN+1}], v[{cN}:{cN+1}], v[{cN+2}:{cN+3}]")
A(f"v_cmp_u_f32 vcc, v{cN}, v{cN+1}")
bf16r(cN, cN)
bf16r(cN + 1, cN + 1)
A("s_cmp_lg_u64 vcc, 0\ns_cbranch_scc0 L_sb_go")
spin_guard("L_sb_go")
A(f"s_mov_b32 s{sT0}, 0")
for i in range(8):
    sk = A.label("ysk")
    g_ = cG + 4 * i
    A(f"v_max3_u32 v{cT}, v{g_}, v{g_+1}, v{g_+2}\nv_max_u32 v{cT}, v{cT}, v{g_+3}\nv_cmp_eq_u32 vcc, -1, v{cT}\ns_nop 0\ns_cmp_lg_u64 vcc, 0\ns_cbranch_scc0 {sk}")
    A(yload(i))
    A(f"s_mov_b32 s{sT0}, 1\n{sk}:")
A(f"s_waitcnt vmcnt(0)\ns_cmp_eq_u32 s{sT0}, 1\ns_cbranch_scc1 L_sb_poll")
A("L_sb_go:")
lstamp(5)
A(f"v_pk_add_f32 v[{cX}:{cX+1}], v[{cX}:{cX+1}], v[{cN}:{cN+1}]")
A(f"v_cvt_pk_bf16_f32 v{cN}, v{cX}, v{cX+1}")
A(f"s_cmp_eq_u32 s{sLAYER}, 3\ns_cbranch_scc1 L_ch_out")
A(f"ds_write_b32 v{cXw}, v{cN}")
A(f"v_and_b32 v{cX+1}, 0xffff0000, v{cN}\nv_lshlrev_b32 v{cX}, 16, v{cN}")
A(f"s_add_u32 s{sLAYER}, s{sLAYER}, 1")
A(f"s_add_u32 s{sPOOFF}, s{sPOOFF}, {PO_L}\ns_add_u32 s{sMLOFF}, s{sMLOFF}, {ML_L}\ns_add_u32 s{sYOFF}, s{sYOFF}, 32768\ns_add_u32 s{sYST}, s{sYST}, 32768\ns_add_u32 s{sQST}, s{sQST}, 8192")
A("s_waitcnt lgkmcnt(0)\ns_barrier")
A("L_ch_qp:")
SV = 20
s1, s2, t0, t1 = 24, 25, 26, 27
A(f"ds_read_b128 {vr(cXA)}, v{cXa}\nds_read_b128 {vr(SV)}, v{cXs}")
for kb in range(1, 14):
    A(f"ds_read_b128 {vr(cXA+4*kb)}, v{cXa} offset:{64*kb}")
st = []
st += [f"v_readfirstlane_b32 s{sT0}, v{cXA}", f"s_lshl_b32 s{sT0}, s{sT0}, 16"]
for r in range(4):
    st += [f"v_lshlrev_b32 v{t0}, 16, v{SV+r}", f"v_and_b32 v{t1}, 0xffff0000, v{SV+r}",
           f"v_subrev_f32 v{t0}, s{sT0}, v{t0}", f"v_subrev_f32 v{t1}, s{sT0}, v{t1}"]
    if r == 0:
        st += [f"v_add_f32 v{s1}, v{t0}, v{t1}", f"v_mul_f32 v{s2}, v{t0}, v{t0}", f"v_fmac_f32 v{s2}, v{t1}, v{t1}"]
    else:
        st += [f"v_add_f32 v{s1}, v{s1}, v{t0}", f"v_fmac_f32 v{s2}, v{t0}, v{t0}", f"v_add_f32 v{s1}, v{s1}, v{t1}", f"v_fmac_f32 v{s2}, v{t1}, v{t1}"]
st += [f"v_mul_f32 v{s1}, v{s1}, v{cV56}", f"v_mul_f32 v{s2}, v{s2}, v{cV56}"]
for ctl in ("quad_perm:[1,0,3,2]", "quad_perm:[2,3,0,1]", "row_half_mirror", "row_mirror"):
    st += ["s_nop 0", f"v_add_f32_dpp v{s1}, v{s1}, v{s1} {ctl} {DPPF}", f"v_add_f32_dpp v{s2}, v{s2}, v{s2} {ctl} {DPPF}"]
for sw in ("v_permlane32_swap_b32", "v_permlane16_swap_b32"):
    st += [f"v_mov_b32 v{t0}, v{s1}", f"v_mov_b32 v{t1}, v{s2}", "s_nop 1", f"{sw} v{s1}, v{t0}", f"{sw} v{s2}, v{t1}",
           f"v_add_f32 v{s1}, v{s1}, v{t0}", f"v_add_f32 v{s2}, v{s2}, v{t1}"]
st += [f"v_mul_f32 v{s1}, {f2u(1.0/448.0)}, v{s1}", f"v_mul_f32 v{s2}, {f2u(1.0/448.0)}, v{s2}",
       f"v_fma_f32 v{s2}, -v{s1}, v{s1}, v{s2}", f"v_max_f32 v{s2}, 0, v{s2}", f"v_add_f32 v{s1}, s{sT0}, v{s1}",
       f"v_cvt_pk_bf16_f32 v{s2}, 0, v{s2}", f"v_cvt_pk_bf16_f32 v{s1}, 0, v{s1}",
       f"v_add_f32 v{s2}, {f2u(1e-5)}, v{s2}", f"v_cvt_pk_bf16_f32 v{s2}, 0, v{s2}", f"v_sqrt_f32 v{s2}, v{s2}", "s_nop 0",
       f"v_cvt_pk_bf16_f32 v{s2}, 0, v{s2}", f"v_rcp_f32 v{s2}, v{s2}"]
A(f"s_and_b32 s{sT1}, s{sLAYER}, 1\ns_cmp_eq_u32 s{sT1}, 1\ns_cbranch_scc1 L_qp_B")
for which in range(2):
    if which == 1:
        A("L_qp_B:")
    sp_ = 0
    nm = 0
    for kb in range(14):
        A(f"s_waitcnt lgkmcnt({13 if kb == 0 else 13-kb})")
        for cb in range(2):
            acc = cACC + 4 * cb
            A(f"v_mfma_f32_16x16x32_bf16 {vr(acc)}, {vr(cXA+4*kb)}, {vr(radd(WQ[which], (kb*2+cb)*4))}, {'0' if kb == 0 else vr(acc)}")
            nm += 1
            upto = min(len(st), (nm * len(st) + 26) // 27)
            while sp_ < upto:
                A(st[sp_])
                sp_ += 1
    A(f"v_mul_f32 v{s1}, v{s1}, v{cCS[which]}")
    if which == 0:
        A("s_branch L_qp_red")
A("L_qp_red:")
A("s_nop 5")
sel_cb(t0)
A(f"v_sub_f32 v{t0}, v{t0}, v{s1}\nv_mul_f32 v{t0}, v{t0}, v{s2}\ns_nop 1")
A(f"v_mov_b32_dpp v{t1}, v{t0} quad_perm:[1,1,3,3] {DPPF}")
A(f"v_cvt_pk_bf16_f32 v{t0}, v{t0}, v{t1}\nv_min_u32 v{t0}, -2, v{t0}")
A("s_mov_b32 exec_lo, 0x55555555\ns_mov_b32 exec_hi, 0")
A(f"s_cmp_eq_u32 s{sMODE}, 1\ns_cbranch_scc0 L_qp_far")
A(f"buffer_store_dword v{t0}, v{cQst}, {srd(SRD_WS)}, s{sQST} offen\ns_branch L_qp_st")
A("L_qp_far:")
A(f"buffer_store_dword v{t0}, v{cQst}, {srd(SRD_WS)}, s{sQST} offen sc1")
A("L_qp_st:")
A("s_mov_b64 exec, -1")
lstamp(2)
A(f"s_cmp_eq_u32 s{sLAYER}, 0\ns_cbranch_scc0 L_ch_stageA")
A("s_barrier")
wq_dma(1)
wo1_regs(range(16))
A("s_waitcnt vmcnt(16)\ns_barrier")
wq_tr(1)
A("s_barrier")
DEFW = int(os.environ.get("DEFW", "1"))
if not DEFW:
    wo0_loads(1, range(16))
wo1_dma(1)
colsum(1)
A(f"s_waitcnt vmcnt({16 if DEFW else 32})\ns_lshl_b32 s{sT1}, s{sWAVE}, 14\nv_add_u32 v{cT}, s{sT1}, v{cL16}")
for t in range(16):
    A(f"ds_write_b128 v{cT}, {vr(wo1(t))} offset:{t*1024}")
A("s_waitcnt lgkmcnt(0)")
if os.environ.get("EXP", ""):
    A("s_waitcnt vmcnt(0)")
    stamp(3)
    A("s_branch L_fin")
A("L_ch_cnt:")
spin_guard("L_ch_cnt_ok")
A(f"v_lshlrev_b32 v{cT}, 2, v0")
A(f"buffer_load_dword v{cG}, v{cT}, {srd(SRD_DBG)}, 0 offen sc1\ns_waitcnt vmcnt(0)")
A(f"v_add_u32 v{cG+1}, 0x7f7f7f7f, v{cG}\nv_and_b32 v{cG+1}, 0x80808080, v{cG+1}\nv_cmp_ne_u32 vcc, 0x80808080, v{cG+1}\ns_nop 0")
A("s_cmp_lg_u64 vcc, 0\ns_cbranch_scc1 L_ch_cnt")
A("L_ch_cnt_ok:")
stamp(18)
A("L_ch_pre:")
spin_guard("L_ch_stageA")
if int(os.environ.get("CPC", "1")):
    BACKWARD.add("L_ch_stageA")
    code_prefetch("L_ch_stageA", 8192, cT, cG, sT0)
A("s_sleep 16\ns_mov_b64 exec, 1")
A(f"buffer_load_dword v{cML}, v{cMLg}, {srd(SRD_WS)}, s{sMLOFF} offen sc1\ns_waitcnt vmcnt(0)")
A(f"v_readfirstlane_b32 s{sT0}, v{cML}\ns_mov_b64 exec, -1\ns_cmp_eq_u32 s{sT0}, -1\ns_cbranch_scc1 L_ch_pre")
A("s_branch L_ch_stageA")
A("L_ch_out:")
A(f"v_subrev_u32 v{cT}, {XB}, v{cXw}")
A(f"buffer_store_dword v{cN}, v{cT}, {srd(SRD_OUT)}, 0 offen")
stamp(19)
if os.environ.get("DIAG"):
    da, db = [int(x) for x in os.environ["DIAG"].split(",")]
    ra = 100 if da == 99 else sSTAMP + 2 * da
    A(f"s_sub_u32 s{sT0}, s{sSTAMP+2*db}, s{ra}\ns_lshl_b32 s{sT0}, s{sT0}, 2\ns_min_u32 s{sT0}, s{sT0}, 100000\ns_add_u32 s{sT0}, s{sT0}, s{sSTAMP+38}")
    A(f"L_diag:\ns_memrealtime s[{sT2}:{sT3}]\ns_waitcnt lgkmcnt(0)\ns_sub_u32 s{sT1}, s{sT2}, s{sT0}\ns_cmp_lt_i32 s{sT1}, 0\ns_cbranch_scc1 L_diag")

A("L_fin:")
if PROFILE:
    A(f"s_mul_i32 s{sT0}, s2, 640\ns_mul_i32 s{sT1}, s{sWAVE}, 160\ns_add_u32 s{sT0}, s{sT0}, s{sT1}\ns_add_u32 s{sT0}, s{sT0}, {WS_STAMP}")
    A("s_mov_b64 exec, 1\nv_mov_b32 v1, 0")
    for i in range(10):
        for r in range(4):
            A(f"v_mov_b32 v{4+r}, s{sSTAMP+4*i+r}")
        A(f"buffer_store_dwordx4 v[4:7], v1, {srd(SRD_WS)}, s{sT0} offen offset:{16*i}\ns_nop 1")
if PROFILE:
    pass
A("L_end:")
A("s_endpgm")

for l in A.L:
    OUT.append(l if l.endswith(":") else "    " + l)
OUT.append('.section .rodata,"a"')
OUT.append(".p2align 6")
OUT.append(f".amdhsa_kernel {NAME}_kernel")
OUT.append("""  .amdhsa_next_free_vgpr 512
  .amdhsa_next_free_sgpr 102
  .amdhsa_accum_offset 256
  .amdhsa_group_segment_fixed_size 0
  .amdhsa_kernarg_size 104
  .amdhsa_user_sgpr_count 2
  .amdhsa_user_sgpr_kernarg_segment_ptr 1
  .amdhsa_system_sgpr_workgroup_id_x 1
  .amdhsa_float_denorm_mode_32 3
.end_amdhsa_kernel""")
out = sys.argv[1] if len(sys.argv) > 1 else f"cdna_kernels/{NAME}.s"
open(out, "w").write("\n".join(OUT) + "\n")
print("wrote", out, len(A.L), "lines")
```

```python
import sys, os, struct

PROFILE = int(os.environ.get("PROFILE", "0"))
NAME = "interleave_layers__gqa_block_cached__sliding_block_cached__decode"

WS_Q = 0
WS_Y = 49152
WS_PO = 196608
WS_ML = 196608 + 4 * 458752
ML_L = 65536
PO_L = 16 * 28 * 1024
WS_STAMP = 4 << 20
WS_SIZE = 283117312
SPIN_MAX = 1 << 18

CSCALE = struct.unpack("<I", struct.pack("<f", 1.4426950408889634 / 16.0))[0]
NEG_INF = 0xFF800000


def f2u(x):
    return struct.unpack("<I", struct.pack("<f", x))[0]


class Asm:
    def __init__(self):
        self.L = []
        self.nlabel = 0

    def __call__(self, s):
        for line in s.split("\n"):
            line = line.strip()
            if line:
                self.L.append(line)

    def label(self, base):
        self.nlabel += 1
        return f"L_{base}_{self.nlabel}"


A = Asm()


def vr(r, n=4):
    if isinstance(r, int):
        r = ("v", r)
    k, i = r
    return f"{k}[{i}:{i+n-1}]" if n > 1 else f"{k}{i}"


def radd(r, d):
    if isinstance(r, int):
        return r + d
    return (r[0], r[1] + d)


DPPF = "row_mask:0xf bank_mask:0xf"

sWAVE = 3
SRD_KA, SRD_VA, SRD_KB, SRD_VB, SRD_WS, SRD_DBG = 4, 8, 12, 16, 20, 24
SRD_WQA, SRD_WOA, SRD_WQB, SRD_WOB = 4, 8, 12, 16
SRD_X, SRD_OUT = 28, 80
sOFFA, sOFFA36, sOFFB, sOFFB9 = 28, 29, 30, 31
sBIASA, sBIASB = 32, 33
sC = 36
sLDSW = 37
sT0, sT1, sT2, sT3 = 38, 39, 40, 41
sLAYER = 42
sSPIN = 43
sQOFF, sPOOFF, sMLOFF, sYOFF = 44, 45, 46, 47
sG, sSP = 48, 49
sYST, sQST = 50, 51
sOFFB8 = 50
sCL = 47
sW4 = 58
sID, sMODE = 34, 35
KARG = 52
sSTAMP = 60
SRD_OUT = 28
sOUTP = 32

nstamp = [0]


def srd(r):
    return f"s[{r}:{r+3}]"


def stamp(idx):
    if PROFILE == 2 and idx not in (0, 5, 19):
        return
    if PROFILE:
        assert idx < 20
        if idx == 0:
            for i in range(1, 20):
                A(f"s_mov_b64 s[{sSTAMP+2*i}:{sSTAMP+2*i+1}], 0")
            A(f"s_mov_b64 s[{sSTAMP}:{sSTAMP+1}], s[100:101]")
            return
        A(f"s_memrealtime s[{sSTAMP+2*idx}:{sSTAMP+2*idx+1}]\ns_waitcnt lgkmcnt(0)")


def mk_srd(dst, ptr, size):
    A(f"s_mov_b32 s{dst}, s{ptr}\ns_and_b32 s{dst+1}, s{ptr+1}, 0xffff\ns_mov_b32 s{dst+2}, {size}\ns_mov_b32 s{dst+3}, 0x20000")


def emit_masks(vlane, m0, t0, t1):
    A(f"v_and_b32 v{t0}, 1, v{vlane}")
    A(f"v_lshlrev_b32 v{t0}, 4, v{t0}")
    A(f"v_mov_b32 v{t1}, 0xffff")
    A(f"v_lshlrev_b32 v{t0}, v{t0}, v{t1}")
    A(f"v_bfe_u32 v{t1}, v{vlane}, 1, 2")
    for r in range(4):
        A(f"v_cmp_eq_u32 vcc, {r}, v{t1}")
        A("s_nop 1")
        A(f"v_cndmask_b32 v{m0+r}, 0, v{t0}, vcc")


def xrow_reduce(op, v, t):
    A(f"v_mov_b32 v{t}, v{v}\ns_nop 1\nv_permlane32_swap_b32 v{v}, v{t}\n{op} v{v}, v{v}, v{t}")
    A(f"v_mov_b32 v{t}, v{v}\ns_nop 1\nv_permlane16_swap_b32 v{v}, v{t}\n{op} v{v}, v{v}, v{t}")


def sentinel_check(regs, t, retry_label):
    regs = list(regs)
    A(f"v_max3_u32 v{t}, v{regs[0]}, v{regs[1]}, v{regs[2]}")
    i = 3
    while i + 1 < len(regs):
        A(f"v_max3_u32 v{t}, v{t}, v{regs[i]}, v{regs[i+1]}")
        i += 2
    if i < len(regs):
        A(f"v_max_u32 v{t}, v{t}, v{regs[i]}")
    A(f"v_cmp_eq_u32 vcc, -1, v{t}")
    A("s_nop 0")
    A(f"s_cmp_lg_u64 vcc, 0\ns_cbranch_scc1 {retry_label}")


def spin_guard(giveup_label):
    A(f"s_cmp_eq_u32 s{sSPIN}, 0\ns_cbranch_scc1 {giveup_label}\ns_sub_u32 s{sSPIN}, s{sSPIN}, 1")
    if os.environ.get("PSLEEP"):
        A(f"s_sleep {os.environ['PSLEEP']}")


hdr = open(f"cdna_kernels/{NAME}.s.ref").read().split("\n")
head = [l for l in hdr if l.startswith(";") and "@launch" not in l]
OUT = list(head)
OUT.append("; @launch grid=(256,1,1) block=(256,1,1) lds=163840")
OUT.append('.amdgcn_target "amdgcn-amd-amdhsa--gfx950"')
OUT.append(".text")
OUT.append(f".globl {NAME}_kernel")
OUT.append(".p2align 8")
OUT.append(f".type {NAME}_kernel,@function")
OUT.append(f"{NAME}_kernel:")

if PROFILE:
    A("s_memrealtime s[100:101]")
A("s_cmp_ge_u32 s2, 256\ns_cbranch_scc1 L_end")
A(f"s_load_dwordx16 s[{KARG}:{KARG+15}], s[0:1], 0")
A(f"s_load_dwordx8 s[{KARG+16}:{KARG+23}], s[0:1], 64")
A(f"s_load_dwordx2 s[{KARG+24}:{KARG+25}], s[0:1], 96")
pAX, pAK, pAV, pAWQ, pAWO, pBX, pBK, pBV, pBWQ, pBWO, pOUT, pDBG, pWS = [KARG + 2 * i for i in range(13)]
A("v_lshrrev_b32 v1, 6, v0\nv_and_b32 v0, 63, v0")
if os.environ.get("PERM"):
    A(f"s_mul_i32 s2, s2, {os.environ['PERM']}\ns_lshr_b32 s4, s2, 3\ns_and_b32 s4, s4, {os.environ.get('PERMX', '1')}\ns_xor_b32 s2, s2, s4\ns_and_b32 s2, s2, 255")
A(f"s_and_b32 s{sG}, s2, 7\ns_lshr_b32 s{sSP}, s2, 3")
A(f"v_readfirstlane_b32 s{sWAVE}, v1")
A(f"s_cmp_lt_u32 s{sSP}, 4\ns_cbranch_scc1 L_chain")


def common_setup():
    A(f"s_mov_b32 s{sC}, {CSCALE}\ns_mov_b32 s{sSPIN}, {SPIN_MAX}\ns_mov_b32 s{sLAYER}, 0")
    A(f"s_getreg_b32 s{sID}, hwreg(HW_REG_XCC_ID, 0, 4)\ns_min_u32 s{sID}, s{sID}, 14\ns_add_u32 s{sID}, s{sID}, 1\ns_mul_i32 s{sID}, s{sID}, 0x01010101\ns_mov_b32 s{sMODE}, 0")
    mk_srd(SRD_WS, pWS, WS_SIZE)
    mk_srd(SRD_DBG, pDBG, 256)


vK, vV, vKd, vVd, vL, vQ, vT = 1, 2, 3, 4, 5, 6, 7
MASK = 8
QA = 12
DT = 20
vCM, vLS, vMX, vPO, vX = 32, 33, 34, 35, 36
vCMr, vCMw, vF = 3, 4, 30
vFA, vFD = 36, 3
SC = 37
STG_A = [56, 60, 64, 68]
NSLOT = 19
XBASE = 4 * NSLOT * 2048
MLBASE = XBASE + 6144


def half(h):
    return ("v", 72 + 8 * h) if h < 23 else ("a", 8 * (h - 23))


NKA = 37
NVREG = 18
KVBYTES = 67108864

PSTRIDE = 16384
sHB = 59
A(f"s_sub_u32 s{sSP}, s{sSP}, 4")
A(f"s_mul_i32 s{sT1}, s{sSP}, 36\ns_min_u32 s{sT2}, s{sSP}, 16\ns_add_u32 s{sT1}, s{sT1}, s{sT2}\ns_lshl_b32 s{sT1}, s{sT1}, 13")
A(f"s_lshl_b32 s{sT3}, s{sG}, 23\ns_add_u32 s{sOFFA36}, s{sT1}, s{sT3}")
A(f"s_lshl_b32 s{sT0}, s{sWAVE}, 12\ns_add_u32 s{sOFFA}, s{sOFFA36}, s{sT0}")
A(f"s_mul_i32 s{sLDSW}, s{sWAVE}, {NSLOT*2048}")
A(f"v_lshrrev_b32 v20, 4, v0       ; s / row")
A(f"v_and_b32 v21, 15, v0          ; j")
A(f"v_lshlrev_b32 v25, 4, v21")
A(f"v_lshl_add_u32 v{vV}, v20, 9, v25")
A(f"v_add_u32 v{vVd}, 768, v{vV}")
A("s_waitcnt lgkmcnt(0)")
mk_srd(SRD_VA, pAV, KVBYTES)


def late_setup():
    common_setup()
    mk_srd(SRD_KA, pAK, KVBYTES)
    mk_srd(SRD_KB, pBK, KVBYTES)
    mk_srd(SRD_VB, pBV, KVBYTES)
    stamp(0)
    A(f"v_and_b32 v{vFA}, 7, v0\nv_lshlrev_b32 v{vFA}, 5, v{vFA}")
    A(f"s_cmp_eq_u32 s{sWAVE}, 0\ns_cbranch_scc0 L_nc")
    A(f"v_mov_b32 v{vT}, s{sID}\ns_lshl_b64 exec, 1, s{sG}")
    A(f"buffer_store_byte v{vT}, v{vFA}, {srd(SRD_DBG)}, s{sSP} offen offset:4 sc1\ns_mov_b64 exec, -1")
    A("L_nc:")
    A(f"s_cmp_lt_u32 s{sSP}, 16")
    A(f"s_cselect_b32 s{sT2}, 36, 35")
    A(f"s_cselect_b32 s{sBIASA}, 0, {NEG_INF}")
    A(f"s_lshl_b32 s{sT2}, s{sT2}, 13\ns_lshl_b32 s{sT0}, s{sWAVE}, 11\ns_add_u32 s{sT2}, s{sT2}, s{sT0}")
    A(f"s_add_u32 s{sOFFA36}, s{sOFFA36}, s{sT2}")
    A(f"s_mul_i32 s{sT1}, s{sSP}, 9\ns_max_u32 s{sT2}, s{sSP}, 24\ns_sub_u32 s{sT2}, s{sT2}, 24\ns_add_u32 s{sT1}, s{sT1}, s{sT2}")
    A(f"s_lshl_b32 s{sT1}, s{sT1}, 13\ns_add_u32 s{sT1}, s{sT1}, s{sT3}\ns_add_u32 s{sT1}, s{sT1}, {12288*512}")
    A(f"s_lshl_b32 s{sT2}, s{sWAVE}, 12\ns_add_u32 s{sOFFB}, s{sT1}, s{sT2}")
    A(f"s_add_u32 s{sOFFB8}, s{sT1}, s{sT0}\ns_add_u32 s{sOFFB8}, s{sOFFB8}, {32*2048}")
    A(f"s_cmp_ge_u32 s{sSP}, 24")
    A(f"s_cselect_b32 s{sT1}, 1, 0")
    A(f"s_cselect_b32 s{sBIASB}, 0, {NEG_INF}")
    A(f"s_lshl_b32 s{sT1}, s{sT1}, 13")
    A(f"s_add_u32 s{sOFFB9}, s{sOFFB8}, s{sT1}")
    for p in range(4):
        A(f"s_add_u32 s{sBO+p}, s{sOFFB}, {p*PSTRIDE}")
    A(f"s_mov_b32 s{sBO+4}, s{sOFFB8}\ns_mov_b32 s{sBO+5}, s{sOFFB9}")
    A(f"v_and_b32 v22, 3, v0           ; c")
    A(f"v_bfe_u32 v23, v0, 2, 2        ; a")
    A(f"v_lshl_add_u32 v24, v20, 2, v22   ; 4s+c")
    A(f"v_lshlrev_b32 v24, 4, v24")
    A(f"v_lshl_add_u32 v{vK}, v23, 9, v24")
    A(f"v_lshl_add_u32 v{vL}, v0, 4, s{sLDSW}")
    A(f"v_lshrrev_b32 v27, 3, v21      ; head(j)")
    A(f"v_lshl_add_u32 v{vQ}, v27, 9, v24")
    A(f"v_lshrrev_b32 v27, 5, v0\nv_mul_u32_u24 v27, 28672, v27\nv_lshl_add_u32 v27, v21, 5, v27")
    A(f"v_and_b32 v28, 1, v20\nv_lshl_add_u32 v{vPO}, v28, 4, v27")
    A(f"s_lshl_b32 s{sQOFF}, s{sG}, 10")
    A(f"s_mul_i32 s{sPOOFF}, s{sG}, 56\ns_add_u32 s{sPOOFF}, s{sPOOFF}, s{sSP}\ns_lshl_b32 s{sPOOFF}, s{sPOOFF}, 10\ns_add_u32 s{sPOOFF}, s{sPOOFF}, {WS_PO}")
    A(f"s_lshl_b32 s{sMLOFF}, s{sG}, 13\ns_lshl_b32 s{sT0}, s{sSP}, 7\ns_add_u32 s{sMLOFF}, s{sMLOFF}, s{sT0}\ns_add_u32 s{sMLOFF}, s{sMLOFF}, {WS_ML}")
    emit_masks(0, MASK, 20, 21)


def ld_items_reg(srdr, voff, soff_base, ulist, regs_of):
    items = []
    i = 0
    while i < len(ulist):
        u = ulist[i]
        pair = ulist[i:i + 2]
        assert u % 2 == 0
        pre = f"s_add_u32 s{sT0}, s{soff_base}, {(u//2)*PSTRIDE}"
        first = True
        for k, uu in enumerate(pair):
            for m in range(2):
                txt = f"buffer_load_dwordx4 {vr(radd(regs_of(uu), 4*m))}, v{voff}, {srd(srdr)}, s{sT0} offen offset:{k*2048+m*256} nt"
                if first:
                    txt = pre + "\n" + txt
                    first = False
                items.append((txt, uu))
        i += 2
    return items


def ld_items_lds(srdr, voff, voffd, soff_base, ulist, slot_of):
    items = []
    i = 0
    while i < len(ulist):
        u = ulist[i]
        pair = ulist[i:i + 2]
        assert u % 2 == 0
        d = (u // 2) * PSTRIDE - 768
        pre = (f"s_add_u32 s{sT1}, s{soff_base}, {d}" if d >= 0 else f"s_sub_u32 s{sT1}, s{soff_base}, {-d}")
        pre += f"\ns_add_u32 s{sT2}, s{sLDSW}, {slot_of(u)*2048}\ns_mov_b32 m0, s{sT2}\ns_nop 0"
        first = True
        for k, uu in enumerate(pair):
            assert slot_of(uu) == slot_of(u) + k
            for m in range(2):
                v = voffd if m == 0 else voff
                txt = f"buffer_load_dwordx4 v{v}, {srd(srdr)}, s{sT1} offen offset:{k*2048+m*1024} nt lds"
                if first:
                    txt = pre + "\n" + txt
                    first = False
                items.append((txt, uu))
        i += 2
    return items


class GRing:
    def __init__(self, keys, text_of, quads):
        self.keys, self.text_of, self.quads = keys, text_of, quads
        self.pos = {k: i for i, k in enumerate(keys)}
        self.issued = 0
        self.landed = 0

    def issue(self, upto):
        out = []
        while self.issued < min(upto, len(self.keys)):
            out.append(self.text_of(self.keys[self.issued], self.quads[self.issued % len(self.quads)]))
            self.issued += 1
        return "\n".join(out)

    def consume(self, key):
        i = self.pos[key]
        w = "" if i < self.landed else f"s_waitcnt vmcnt({self.issued - i - 1})\n"
        return w, self.quads[i % len(self.quads)], i + 1 + len(self.quads)


def qk_groups(n, ksrc, bias_sgpr, stg, hook=None):
    G = []
    nC = (n + 1) // 2
    G.append((f"v_mov_b32 v{vMX}, {NEG_INF}" + (f"\nv_mov_b32 v{SC+nC-1}, {NEG_INF}" if n & 1 else ""), None))
    reads = [(u, m) for u in range(n) if ksrc(u)[0] == "lds" for m in range(2)]
    rpos = {rm: i for i, rm in enumerate(reads)}
    issued = [0]

    def issue_reads(upto, out):
        while issued[0] < min(upto, len(reads)):
            u, m = reads[issued[0]]
            q = stg[issued[0] % len(stg)]
            out.append((f"ds_read_b128 {vr(q)}, v{vL} offset:{ksrc(u)[1]*2048+m*1024}", ksrc(u)[2]))
            issued[0] += 1

    pre = []
    issue_reads(len(stg), pre)

    def bops(u):
        d = DT + 4 * (u % 3)
        c = SC + u // 2
        bm = 0x5 if (u & 1) == 0 else 0xA
        t = f"v_mov_b32_dpp v{d}, v{d} quad_perm:[0,0,0,0] {DPPF}\n"
        t += f"v_add_f32_dpp v{d}, v{d+1}, v{d} quad_perm:[1,1,1,1] {DPPF}\n"
        t += f"v_add_f32_dpp v{d}, v{d+2}, v{d} quad_perm:[2,2,2,2] {DPPF}\n"
        if u == n - 1:
            t += f"v_add_f32 v{d}, s{bias_sgpr}, v{d}\n"
        t += f"v_add_f32_dpp v{c}, v{d+3}, v{d} quad_perm:[3,3,3,3] row_mask:0xf bank_mask:{bm:#x}\n"
        if (u & 1) or u == n - 1:
            t += f"v_max_f32 v{vMX}, v{vMX}, v{c}\n"
        return t

    body = []
    for u in range(n):
        d = DT + 4 * (u % 3)
        src = ksrc(u)
        b = bops(u - 2).strip().split("\n") if u >= 2 else []
        if u == 2:
            b = ["s_nop 4"] + b
        parts = [b[:len(b) // 2], b[len(b) // 2:]]
        for m in range(2):
            cin = "0" if m == 0 else vr(d)
            if src[0] == "reg":
                t = f"v_mfma_f32_16x16x32_bf16 {vr(d)}, {vr(radd(src[1],4*m))}, {vr(QA+4*m)}, {cin}"
                if hook and hook(u, m):
                    t += "\n" + hook(u, m)
                body.append((t, src[2]))
            elif src[0] == "gl":
                w, q, upto = src[1].consume(("K", u, m))
                body.append((w + f"v_mfma_f32_16x16x32_bf16 {vr(d)}, {vr(q)}, {vr(QA+4*m)}, {cin}", None))
                if parts[m]:
                    body.append(("\n".join(parts[m]), None))
                    parts[m] = []
                body.append((src[1].issue(upto), None))
            else:
                i = rpos[(u, m)]
                q = stg[i % len(stg)]
                t = f"s_waitcnt lgkmcnt({issued[0]-i-1})\n"
                t += f"v_mfma_f32_16x16x32_bf16 {vr(d)}, {vr(q)}, {vr(QA+4*m)}, {cin}"
                body.append((t, None))
                issue_reads(i + 1 + len(stg), body)
            if parts[m]:
                body.append(("\n".join(parts[m]), None))
    body.append((bops(n - 2), None))
    body.append(("s_nop 1\n" + bops(n - 1), None))
    return G, pre, body


def max_group():
    t = "s_nop 1\n"
    t += f"v_max_f32_dpp v{vMX}, v{vMX}, v{vMX} row_half_mirror {DPPF}\n"
    t += f"v_mov_b32 v{vT}, v{vMX}\ns_nop 1\nv_permlane32_swap_b32 v{vMX}, v{vT}\nv_max_f32 v{vMX}, v{vMX}, v{vT}\n"
    t += f"v_mov_b32 v{vT}, v{vMX}\ns_nop 1\nv_permlane16_swap_b32 v{vMX}, v{vT}\nv_max_f32 v{vMX}, v{vMX}, v{vT}\n"
    t += f"v_mul_f32 v{vCM}, s{sC}, v{vMX}\nv_mov_b32 v{vLS}, 0\nds_write_b32 v{vCMw}, v{vCM}"
    return (t, None)


def pv_groups(order, vsrc, stg, bar_at, tp):
    T = [DT, DT + 4]
    PP = [DT + 8, DT + 9]
    n = len(order)
    reads = [(u, m) for u in order if vsrc(u)[0] == "lds" for m in range(2)]
    rpos = {rm: i for i, rm in enumerate(reads)}
    issued = [0]
    body = []

    def issue_reads(upto):
        while issued[0] < min(upto, len(reads)):
            u, m = reads[issued[0]]
            q = stg[issued[0] % len(stg)]
            body.append((f"ds_read_b128 {vr(q)}, v{vL} offset:{vsrc(u)[1]*2048+m*1024}", vsrc(u)[2], None))
            issued[0] += 1

    pairs = []
    for u in order:
        if u // 2 not in pairs:
            pairs.append(u // 2)
    pidx = {k: i for i, k in enumerate(pairs)}

    def E(k):
        c = SC + k
        return f"v_fma_f32 v{c}, v{c}, s{sC}, -v{vCM}\nv_exp_f32 v{c}, v{c}\n"

    def F(k):
        c = SC + k
        return f"v_add_f32 v{vLS}, v{vLS}, v{c}\nv_cvt_pk_bf16_f32 v{PP[pidx[k]&1]}, v{c}, v{c}\n"

    def Gm(i):
        u = order[i]
        pp = PP[pidx[u // 2] & 1]
        rho = u & 1
        t = ""
        for r in range(4):
            if (r >> 1) == rho:
                t += f"v_and_b32 v{T[i&1]+r}, v{pp}, v{MASK+r}\n"
        for r in range(4):
            if (r >> 1) != rho:
                sh = "row_shr:4" if rho == 0 else "row_shl:4"
                t += f"v_and_b32_dpp v{T[i&1]+r}, v{pp}, v{MASK+r} {sh} {DPPF} bound_ctrl:0\n"
        return t

    t = E(pairs[0])
    if len(pairs) > 1:
        t += E(pairs[1])
    else:
        t += "s_nop 0\n"
    t += F(pairs[0]) + Gm(0)
    body.append((t, None, None))
    edone = min(2, len(pairs))
    fdone = 1
    first_lds_started = False
    for i in range(n):
        u = order[i]
        nxt = [order[j] for j in range(i, min(n, i + 3))]
        if not first_lds_started and any(vsrc(x)[0] == "lds" for x in nxt):
            issue_reads(len(stg))
            first_lds_started = True
        t = ""
        if i + 1 < n:
            k1 = pidx[order[i + 1] // 2]
            if k1 >= fdone:
                t += F(pairs[k1])
                fdone = k1 + 1
                if edone < len(pairs):
                    t += E(pairs[edone])
                    edone += 1
            t += Gm(i + 1)
        if i == bar_at:
            body.append((f"v_add_u32 v{vT}, s{sW4}, v{vCMr}\ns_waitcnt lgkmcnt(0)\ns_barrier\n"
                         f"ds_read_b64 v[{vF}:{vF+1}], v{vCMr}\nds_read_b64 v[{tp}:{tp+1}], v{vCMr} offset:8\nds_read_b32 v{vT}, v{vT}", None, None))
        if i == min(bar_at + 2, n - 1):
            t += (f"s_waitcnt lgkmcnt(0)\nv_max3_f32 v{vMX}, v{vF}, v{vF+1}, v{tp}\nv_max_f32 v{vMX}, v{vMX}, v{tp+1}\n"
                  f"v_sub_f32 v{vF}, v{vT}, v{vMX}\nv_exp_f32 v{vF}, v{vF}\n")
        tl = [x for x in t.strip().split("\n") if x]
        parts = [tl[:len(tl) // 2], tl[len(tl) // 2:]]
        if not tl:
            parts[0] = ["s_nop 0"]
        src = vsrc(u)
        for m in range(2):
            acc = QA + 4 * m
            cin = "0" if i == 0 else vr(acc)
            if parts[m]:
                body.append(("\n".join(parts[m]), None, None))
            if src[0] == "reg":
                body.append((f"v_mfma_f32_16x16x32_bf16 {vr(acc)}, {vr(T[i&1])}, {vr(radd(src[1],4*m))}, {cin}", src[2], None))
            elif src[0] == "gl":
                w, q, upto = src[1].consume(("V", u, m))
                body.append((w + f"v_mfma_f32_16x16x32_bf16 {vr(acc)}, {vr(T[i&1])}, {vr(q)}, {cin}", None, None))
                body.append((src[1].issue(upto), None, None))
            else:
                j = rpos[(u, m)]
                q = stg[j % len(stg)]
                body.append((f"s_waitcnt lgkmcnt({issued[0]-j-1})\nv_mfma_f32_16x16x32_bf16 {vr(acc)}, {vr(T[i&1])}, {vr(q)}, {cin}", None, u if m == 1 else None))
                issue_reads(j + 1 + len(stg))
    return body


def emit_groups(gs):
    for g in gs:
        A(g[0])


def clear_next(t4, ta):
    sk, far = A.label("clsk"), A.label("clfar")
    A(f"s_cmp_lt_u32 s{sWAVE}, 2\ns_cbranch_scc1 {sk}")
    for r in range(4):
        A(f"v_mov_b32 v{t4+r}, -1")
    A(f"v_lshlrev_b32 v{ta}, 4, v0")
    A(f"s_sub_u32 s{sT3}, s{sWAVE}, 2\ns_lshl_b32 s{sCL}, s{sT3}, 12\ns_add_u32 s{sCL}, s{sCL}, s{sMLOFF}\ns_add_u32 s{sCL}, s{sCL}, {ML_L}")
    A(f"s_mul_i32 s{sT3}, s{sT3}, 28672\ns_add_u32 s{sT3}, s{sT3}, s{sPOOFF}\ns_add_u32 s{sT3}, s{sT3}, {PO_L}")
    A(f"s_cmp_eq_u32 s{sMODE}, 1\ns_cbranch_scc0 {far}")
    for fl in ("", " sc1"):
        if fl:
            A(f"{far}:")
        A(f"buffer_store_dwordx4 {vr(t4)}, v{ta}, {srd(SRD_WS)}, s{sT3} offen{fl}")
        A(f"s_mov_b64 exec, 1\nbuffer_store_dwordx2 {vr(t4, 2)}, v{ta}, {srd(SRD_WS)}, s{sCL} offen{fl}\ns_mov_b64 exec, -1")
        if not fl:
            A(f"s_branch {sk}")
    A(f"{sk}:\ns_nop 1")


def code_prefetch(lab_from, nbytes, vaddr, vjunk, sp):
    here = A.label("pc")
    A(f"s_getpc_b64 s[{sp}:{sp+1}]\n{here}:")
    A(f"s_add_u32 s{sp}, s{sp}, {lab_from}-{here}\ns_addc_u32 s{sp+1}, s{sp+1}, {'-1' if lab_from in BACKWARD else '0'}")
    A(f"v_lshlrev_b32 v{vaddr}, 6, v0")
    for o in range(0, nbytes, 4096):
        A(f"global_load_dword v{vjunk}, v{vaddr}, s[{sp}:{sp+1}]")
        if o + 4096 < nbytes:
            A(f"v_add_u32 v{vaddr}, 4096, v{vaddr}")


BACKWARD = set()


def cm_addr():
    A(f"v_lshrrev_b32 v{vCMr}, 5, v0\nv_lshlrev_b32 v{vCMr}, 4, v{vCMr}\nv_add_u32 v{vCMr}, {MLBASE}, v{vCMr}")
    A(f"v_bfe_u32 v{vCMw}, v0, 3, 1\nv_lshlrev_b32 v{vCMw}, 4, v{vCMw}\nv_add_u32 v{vCMw}, s{sW4}, v{vCMw}\nv_add_u32 v{vCMw}, {MLBASE}, v{vCMw}")


def q_loads():
    return (f"buffer_load_dwordx4 {vr(QA)}, v{vQ}, {srd(SRD_WS)}, s{sQOFF} offen sc1\n"
            f"buffer_load_dwordx4 {vr(QA+4)}, v{vQ}, {srd(SRD_WS)}, s{sQOFF} offen offset:256 sc1")


def poll_q_blocking():
    lp, done = A.label("qpoll"), A.label("qdone")
    A(f"{lp}:")
    spin_guard(done)
    if os.environ.get("QPS"):
        A(f"s_sleep {os.environ['QPS']}")
    A(q_loads())
    A("s_waitcnt vmcnt(0)")
    sentinel_check(range(QA, QA + 8), vT, lp)
    A(f"{done}:")
    A("s_nop 1")


VL_UNITS = list(range(NVREG, NKA))
vslot = lambda u: u - NVREG
loads = []
it = ld_items_lds(SRD_VA, vV, vVd, sOFFA, VL_UNITS[:-1], vslot)
loads += [(t, ("V", u), None) for t, u in it]
it = ld_items_lds(SRD_VA, vV, vVd, sOFFA36, [0], lambda u: vslot(36))
loads += [(t, ("V", 36), None) for t, u in it]
it = ld_items_reg(SRD_KA, vK, sOFFA, list(range(36)), half)
kl = [(t, ("K", u), None) for t, u in it]
it = ld_items_reg(SRD_KA, vK, sOFFA36, [0], lambda u: half(36))
kl += [(t, ("K", 36), None) for t, u in it]
ca_load = (f"buffer_load_dword v{vCM}, v{vFA}, {srd(SRD_DBG)}, 0 offen sc1", ("CA",), None)
FPOS = 32
NOCA = int(os.environ.get("NOCA", "0"))
QK0 = int(os.environ.get("QK0", "40"))
loads += kl[:QK0 - 20] + ([] if NOCA else [ca_load]) + kl[QK0 - 20:QK0]
QPOS = len(loads)
loads += kl[QK0:]
it = ld_items_reg(SRD_VA, vV, sOFFA, list(range(NVREG)), lambda u: half(NKA + u))
loads += [(t, ("V", u), None) for t, u in it]
NA_LOADS = len(loads)
sBO = 52
vPF, vJ = 42, 43
XD = int(os.environ.get("XD", "4"))
STG_B = [44, 48, 52, 56, 60, 64, 68]
RING_B = STG_B + [radd(half(NKA + u), 4 * m) for u in range(NVREG - XD, NVREG) for m in range(2)]
NPRE = len(RING_B)
PFS = int(os.environ.get("PFS", "6"))
bpf = []
first = True
for srdr, nm in ((SRD_KB, "K"), (SRD_VB, "V")):
    for p in range(6):
        nbytes = 4096 if p < 4 else 2048
        per = 64 << PFS
        for o in range(0, nbytes, per):
            nbefore = (0 if nm == "K" else 20) + (4 * p if p < 4 else 16 + 2 * (p - 4))
            if nbefore + nbytes // 1024 <= NPRE:
                continue
            t = ""
            if first:
                t += f"v_lshlrev_b32 v{vPF}, {PFS}, v0\n"
                first = False
            lanes = min(64, nbytes >> PFS)
            if lanes < 64:
                t += f"s_mov_b64 exec, {(1 << lanes) - 1}\n" if lanes < 32 else "s_mov_b32 exec_hi, 0\n"
            t += f"buffer_load_dword v{vJ}, v{vPF}, {srd(srdr)}, s{sBO+p} offen offset:{o}"
            if lanes < 64:
                t += "\ns_mov_b64 exec, -1"
            bpf.append((t, ("PF", len(bpf)), None))
GATE = 0
NB_EARLY = int(os.environ.get('NBE', '0'))
BL = bpf
early = [(t.replace(f"v{vPF},", "v62,").replace(f"v{vJ},", "v63,"), tag, NSLOT - 1) for t, tag, req in BL[:NB_EARLY]]
loads += early
if NB_EARLY:
    t0_, tag0_, r0_ = BL[NB_EARLY]
    BL[NB_EARLY] = (f"v_lshlrev_b32 v{vPF}, {PFS}, v0\n" + t0_, tag0_, r0_)

ksrcA = lambda u: ("reg", half(u), ("K", u))
vsrcA = lambda u: ("reg", half(NKA + u), ("V", u)) if u < NVREG else ("lds", vslot(u), ("V", u))

g0, pre, body = qk_groups(NKA, ksrcA, sBIASA, STG_A)
comp = [(t, n, None) for t, n in g0 + pre + body] + [max_group() + (None,)]
comp += pv_groups(VL_UNITS + list(range(NVREG)), vsrcA, STG_A, 33, STG_A[0])

EXP = os.environ.get("EXP", "")
if EXP:
    order = loads[:NA_LOADS] + BL
    if "r" in EXP:
        order = [(t, ("K", u), None) for t, u in ld_items_reg(SRD_KA, vV if "v" in EXP else vK, sOFFA, list(range(36)), half)]
        order += [(t, ("V", u), None) for t, u in ld_items_reg(SRD_VA, vV, sOFFA, list(range(36)), lambda u: half(u + 18))]
        order += [(t, ("BK", u), None) for t, u in ld_items_reg(SRD_KB, vV if "v" in EXP else vK, sOFFB, list(range(8)), half)]
        order += [(t, ("BV", u), None) for t, u in ld_items_reg(SRD_VB, vV, sOFFB, list(range(8)), lambda u: half(u + 18))]
    for i, (t, tag, req) in enumerate(order):
        if tag == ("CA",): continue
        if tag == ("BK", 0) and "s_add" in t:
            stamp(3)
        if i in (30, 60, 90, 120): stamp(15 + (30, 60, 90, 120).index(i))
        A(t)
        if os.environ.get("THR"): A(f"s_waitcnt vmcnt({os.environ['THR']})")
    A("s_waitcnt vmcnt(0)")
    stamp(4)
    A("s_branch L_fin")
THR = int(os.environ.get("THR", "4"))
THRX = int(os.environ.get("THRX", "0"))
TSCH = eval(os.environ.get("TSCH", "[(0,4),(118,0)]"))
VPOL = int(os.environ.get("VPOL", "0"))
THR2 = int(os.environ.get("THR2", "0"))
THRB = int(os.environ.get("THRB", "0"))
LAG = int(os.environ.get("LAG", "10"))
last_of = {}
nissued = 0
released = set()
ci = 0


def emit_comp(g):
    t, need, rel = g
    if need is not None:
        n = nissued - last_of[need] - 1
        A(f"s_waitcnt vmcnt({min(n, 63)})")
    A(t)
    if rel is not None:
        released.add(vslot(rel))


qready = False
li = 0
done_pos = set()
LEAD = int(os.environ.get("LEAD", "0"))
ADAPT = int(os.environ.get("ADAPT", "0"))
ATHR = int(os.environ.get("ATHR", "3"))
sTHR = 51
MARKS = ([40, 56, 72, 88, 104, 120] if LEAD else [-1] * 6) + [NA_LOADS - GATE] if GATE else []
if ADAPT:
    MARKS = [34, 50, 66, 82, 98, 114, 130]
    A(f"s_mov_b32 s{sTHR}, 0")


RATE = int(os.environ.get("RATE", "0"))
sRT0, sRT = 64, 66
if RATE:
    pass


def rate_ctl(li):
    if RATE and li % 6 == 0 and 12 <= li:
        A(f"s_memrealtime s[{sRT}:{sRT+1}]")
    if RATE and li % 6 == 1 and 12 <= li:
        A(f"s_waitcnt lgkmcnt(0)\ns_sub_u32 s{sRT}, s{sRT}, s{sRT0}\ns_cmp_lt_u32 s{sRT}, {max(0, (li - int(os.environ.get('ROFF', '4'))) * RATE // 10)}\ns_cselect_b32 s{sTHR}, 1, 0")


def athr():
    if ADAPT or RATE:
        sk = A.label("nt")
        A(f"s_cmp_eq_u32 s{sTHR}, 0\ns_cbranch_scc1 {sk}\ns_waitcnt vmcnt({ATHR})\n{sk}:")


flow_load = f"buffer_load_ubyte v{vFD}, v{vFA}, {srd(SRD_DBG)}, 0 offen offset:4 sc1"


def flow_wait(k, n):
    ok, lp, ck = A.label("flok"), A.label("fllp"), A.label("flck")
    if n is not None:
        A(f"s_waitcnt vmcnt({n})\ns_branch {ck}")
    A(f"{lp}:")
    spin_guard(ok)
    A(f"{flow_load}\ns_waitcnt vmcnt(0)")
    A(f"{ck}:\nv_cmp_gt_u32 vcc, {k << 4}, v{vFD}\ns_nop 0\ns_cmp_lg_u64 vcc, 0\ns_cbranch_scc0 {ok}\ns_sleep 4\ns_branch {lp}")
    A(f"{ok}:")


while li < len(loads):
    if li in MARKS and li not in done_pos:
        k = MARKS.index(li) + 1
        nf = A.label("nomark")
        A(f"s_or_b32 s{sT3}, s{sWAVE}, s{sSP}\ns_cmp_eq_u32 s{sT3}, 0\ns_cbranch_scc0 {nf}")
        A(f"s_or_b32 s{sT3}, s{sID}, {k << 4}\nv_mov_b32 v{vT}, s{sT3}\ns_lshl_b64 exec, 1, s{sG}")
        A(f"buffer_store_byte v{vT}, v{vFA}, {srd(SRD_DBG)}, 0 offen offset:4 sc1\ns_mov_b64 exec, -1")
        A(f"{nf}:")
    if LEAD and (li - LEAD + 8) in MARKS[:-1] and li + 8 < NA_LOADS and li not in done_pos:
        A(flow_load)
        last_of[("FL",)] = nissued
        nissued += 1
    if LEAD and (li - LEAD) in MARKS[:-1] and li < NA_LOADS and li not in done_pos:
        k = MARKS.index(li - LEAD) + 1
        flow_wait(k, nissued - last_of[("FL",)] - 1)
    if ADAPT and (li - ADAPT) in MARKS and li + 8 < NA_LOADS and li not in done_pos:
        A(flow_load)
        last_of[("FL",)] = nissued
        nissued += 1
    if ADAPT and (li - ADAPT - 8) in MARKS and li < NA_LOADS and li not in done_pos:
        k = MARKS.index(li - ADAPT - 8) + 1
        A(f"s_waitcnt vmcnt({nissued - last_of[('FL',)] - 1})")
        A(f"v_cmp_gt_u32 vcc, {k << 4}, v{vFD}\ns_nop 0\ns_cmp_lg_u64 vcc, 0\ns_cselect_b32 s{sTHR}, 1, 0")
    if os.environ.get("PROG") and li in (30, 60, 90, 120) and li not in done_pos:
        if li == 120 and PROFILE: A("s_waitcnt lgkmcnt(0)")
        stamp(15 + (30, 60, 90, 120).index(li))
    if li == 4 and li not in done_pos:
        late_setup()
        if RATE:
            A(f"s_mov_b32 s{sTHR}, 0\ns_memrealtime s[{sRT0}:{sRT0+1}]")
    done_pos.add(li)
    if li == QPOS and NOCA:
        A(f"s_mov_b32 s{sMODE}, 1")
        A(q_loads())
        nissued += 2
        last_of[("Q",)] = nissued - 1
    if li == QPOS and not NOCA:
        n = nissued - last_of[("CA",)] - 1
        ok, lp, ck = A.label("caok"), A.label("calp"), A.label("cack")
        A(f"s_waitcnt vmcnt({n})\ns_branch {ck}")
        A(f"{lp}:")
        spin_guard(ok)
        A(f"{ca_load[0]}\ns_waitcnt vmcnt(0)")
        A(f"{ck}:\nv_readlane_b32 s{sT3}, v{vCM}, s{sG}")
        A(f"s_cmp_eq_u32 s{sT3}, s{sID}\ns_cselect_b32 s{sMODE}, 1, 0")
        A(f"s_add_u32 s{sT3}, s{sT3}, 0x7f7f7f7f\ns_and_b32 s{sT3}, s{sT3}, 0x80808080\ns_cmp_eq_u32 s{sT3}, 0x80808080\ns_cbranch_scc0 {lp}")
        A(f"{ok}:")
        clear_next(DT, vT)
        A(q_loads())
        nissued += 2
        last_of[("Q",)] = nissued - 1
    if li == QPOS + 12:
        n = nissued - last_of[("Q",)] - 1
        slow, ok = A.label("qslow"), A.label("qok")
        A(f"s_waitcnt vmcnt({n})")
        sentinel_check(range(QA, QA + 8), vT, slow)
        A(f"s_branch {ok}\n{slow}:")
        poll_q_blocking()
        A(f"{ok}:")
        stamp(1)
        A(f"s_lshl_b32 s{sW4}, s{sWAVE}, 2")
        cm_addr()
        if RATE:
            A(f"s_mov_b32 s{sTHR}, 0")
        qready = True
    t, tag, req = loads[li]
    if req is not None and req not in released:
        emit_comp(comp[ci])
        ci += 1
        continue
    A(t.replace(" nt", "") if li < VPOL else t)
    if TSCH:
        tv = [v for (p, v) in TSCH if li >= p][-1]
        if tv:
            A(f"s_waitcnt vmcnt({tv})")
    elif THR and not qready:
        A(f"s_waitcnt vmcnt({THR + (THRX if li & 1 else 0)})")
    if THR2 and qready:
        A(f"s_waitcnt vmcnt({THR2})")
    if li > (12 if RATE else 40) and not (RATE and qready):
        athr()
    if not qready:
        rate_ctl(li)
    last_of[tag] = nissued
    nissued += 1
    li += 1
    if qready:
        cnt = 0
        while ci < len(comp) and cnt < int(os.environ.get("GPL", "8")):
            need = comp[ci][1]
            if need is not None and (need not in last_of or nissued - last_of[need] - 1 < LAG or
                                     (li < len(loads) and loads[li][1] == need)):
                break
            emit_comp(comp[ci])
            ci += 1
            cnt += 1
stamp(2)
A(f"s_max_u32 s{sT3}, s{sWAVE}, 1\ns_lshl_b32 s{sT3}, s{sT3}, 10\ns_add_u32 s{sT3}, s{sT3}, {XBASE - 1024}\nv_lshl_add_u32 v{vX}, v0, 4, s{sT3}")
while ci < len(comp):
    emit_comp(comp[ci])
    ci += 1

A("L_reduce:")
A(f"v_add_f32_dpp v{vLS}, v{vLS}, v{vLS} row_half_mirror {DPPF}")
xrow_reduce("v_add_f32", vLS, vT)
A(f"v_mul_f32 v{vLS}, v{vLS}, v{vF}\ns_mov_b32 exec_lo, 1\ns_mov_b32 exec_hi, 0x100")
A(f"ds_write_b32 v{vCMw}, v{vLS} offset:32\ns_mov_b64 exec, -1")
for r in range(0, 8, 2):
    A(f"v_pk_mul_f32 v[{QA+r}:{QA+r+1}], v[{QA+r}:{QA+r+1}], v[{vF}:{vF+1}] op_sel_hi:[1,0]")
XR = 20
xr = [20, 24, 56]
A(f"s_cmp_eq_u32 s{sWAVE}, 0\ns_cbranch_scc0 L_red_n0")
for wv in range(2):
    own, give = QA + 4 * wv, QA + 4 * (1 - wv)
    if wv == 1:
        A("L_red_1:")
    A(f"ds_write_b128 v{vX}, {vr(give)} offset:{3072*(1-wv)}")
    A(f"s_add_u32 s{sT0}, s{sPOOFF}, {512*wv}\ns_cmp_eq_u32 s{sMODE}, 1")
    A("s_waitcnt lgkmcnt(0)\ns_barrier")
    for s_ in range(3):
        A(f"ds_read_b128 {vr(xr[s_])}, v{vX} offset:{3072*wv+1024*s_}")
    for s_ in range(3):
        A(f"s_waitcnt lgkmcnt({2-s_})")
        for r in (0, 2):
            A(f"v_pk_add_f32 v[{own+r}:{own+r+1}], v[{own+r}:{own+r+1}], v[{xr[s_]+r}:{xr[s_]+r+1}]")
    for r in range(4):
        A(f"v_min_u32 v{own+r}, -2, v{own+r}")
    far = A.label("far")
    A(f"s_cbranch_scc0 {far}")
    A(f"buffer_store_dwordx4 {vr(own)}, v{vPO}, {srd(SRD_WS)}, s{sT0} offen\ns_branch L_red_done")
    A(f"{far}:\nbuffer_store_dwordx4 {vr(own)}, v{vPO}, {srd(SRD_WS)}, s{sT0} offen sc1\ns_branch L_red_done")
A("L_red_n0:")
A(f"s_cmp_eq_u32 s{sWAVE}, 1\ns_cbranch_scc1 L_red_1")
A(f"ds_write_b128 v{vX}, {vr(QA)}\nds_write_b128 v{vX}, {vr(QA+4)} offset:3072")
A(f"v_lshrrev_b32 v{vT}, 5, v0\nv_lshlrev_b32 v{vT}, 12, v{vT}\nv_min_u32 v24, -2, v{vMX}")
A(f"s_cmp_eq_u32 s{sWAVE}, 2")
A("s_waitcnt lgkmcnt(0)\ns_barrier\ns_cbranch_scc0 L_red_done")
A(f"ds_read_b128 v[20:23], v{vCMr} offset:32\ns_cmp_eq_u32 s{sMODE}, 1\ns_waitcnt lgkmcnt(0)")
A("v_add_f32 v20, v20, v21\nv_add_f32 v22, v22, v23\nv_add_f32 v25, v20, v22\nv_min_u32 v25, -2, v25")
A("s_mov_b32 exec_lo, 1\ns_mov_b32 exec_hi, 1\ns_cbranch_scc0 L_ml_far")
A(f"buffer_store_dwordx2 v[24:25], v{vT}, {srd(SRD_WS)}, s{sMLOFF} offen\ns_branch L_ml_done")
A(f"L_ml_far:\nbuffer_store_dwordx2 v[24:25], v{vT}, {srd(SRD_WS)}, s{sMLOFF} offen sc1")
A("L_ml_done:\ns_mov_b64 exec, -1")
A("L_red_done:")
A("s_barrier")
A(f"s_add_u32 s{sQOFF}, s{sQOFF}, 8192\ns_add_u32 s{sPOOFF}, s{sPOOFF}, {PO_L}\ns_add_u32 s{sMLOFF}, s{sMLOFF}, {ML_L}")
A(f"s_add_u32 s{sLAYER}, s{sLAYER}, 1")
A(f"s_cmp_eq_u32 s{sLAYER}, 2\ns_cbranch_scc1 L_after2")
A(f"s_cmp_eq_u32 s{sLAYER}, 3\ns_cbranch_scc1 L_after3")
A(f"s_cmp_eq_u32 s{sLAYER}, 4\ns_cbranch_scc1 L_att_end")
stamp(3)
if GATE:
    vFA = vT
    flow_load = f"buffer_load_ubyte v{vFD}, v{vFA}, {srd(SRD_DBG)}, 0 offen offset:4 sc1"
    A(f"v_and_b32 v{vFA}, 7, v0\nv_lshlrev_b32 v{vFA}, 5, v{vFA}")
    flow_wait(7, None)
    stamp(13)


DRY = int(os.environ.get("DRY", "0"))


def stream_then_q(items, E, st_a, st_b, thr=0, pre=(), dry=None):
    n = len(items)
    for i, (t, tag, req) in enumerate(items):
        if i == n - E:
            A(q_loads())
        A(t)
        if thr and i < n - E:
            A(f"s_waitcnt vmcnt({thr})")
        if st_a == 4 and i < n - E and os.environ.get("ATHB"):
            athr()
            rate_ctl(NA_LOADS + NB_EARLY + i + 6)
    if dry and DRY:
        A(f"s_mov_b64 exec, 0\ns_branch L_{dry}_body\nL_{dry}_ret:\ns_mov_b64 exec, -1\ns_nop 7")
    if E == 0:
        qs = int(os.environ.get(f"QS{st_a}", "0"))
        if qs:
            A(f"s_sleep {qs}")
        A(q_loads())
    slow, ok = A.label("qslow"), A.label("qok")
    A(f"s_waitcnt vmcnt({E})")
    stamp(st_a)
    emit_groups(pre)
    sentinel_check(range(QA, QA + 8), vT, slow)
    A(f"s_branch {ok}\n{slow}:")
    poll_q_blocking()
    A(f"{ok}:")
    stamp(st_b)
    if dry:
        A(f"L_{dry}_body:")
    younger = {}
    for i, (t, tag, req) in enumerate(items):
        if i >= n - E:
            younger[tag] = n - 1 - i
    return younger


def emit_counted(gs, younger, extra=None, every=1):
    extra = list(extra or [])
    cnt = 0
    for g in gs:
        need = g[1]
        if need in younger:
            A(f"s_waitcnt vmcnt({younger[need]})")
            lim = younger[need]
            for k in [k for k, v in younger.items() if v >= lim]:
                del younger[k]
        A(g[0])
        if "v_mfma" in g[0]:
            cnt += 1
            if extra and cnt % every == 0:
                t, tag, req = extra.pop(0)
                A(t)
                for k in younger:
                    younger[k] += 1
                younger[tag] = 0
    assert not extra


def btext(key, q):
    nm, u, m = key
    p, o = (u // 2, (u & 1) * 2048) if u < 8 else (u - 4, 0)
    return f"buffer_load_dwordx4 {vr(q)}, v{vK if nm == 'K' else vV}, {srd(SRD_KB if nm == 'K' else SRD_VB)}, s{sBO+p} offen offset:{o+256*m}"


ring = GRing([(nm, u, m) for nm in "KV" for u in range(10) for m in range(2)], btext, RING_B)
clear_next(DT, vT)
A(ring.issue(NPRE))
ring.landed = NPRE
CPF = int(os.environ.get("CPF", "2"))
if CPF:
    code_prefetch("L_l2body", CPF * 4096, vPF, vJ, sT0)
ksrcB = lambda u: ("gl", ring, None)
g0, pre, body = qk_groups(10, ksrcB, sBIASB, STG_B)
emit_groups(g0)
yg = stream_then_q(BL[NB_EARLY:], int(os.environ.get("E2", "2")), 4, 5)
A("L_l2body:")
emit_groups(body + [max_group()] + pv_groups(list(range(10)), ksrcB, STG_B, 5, 42))
A("s_branch L_reduce")

A("L_after2:")
stamp(6)
def hook3(u, m):
    j = 2 * (u - 1) + m
    if u >= 1 and j < 2 * NSLOT:
        w = "s_waitcnt lgkmcnt(6)\n" if j % 8 == 7 else ""
        return w + f"ds_read_b128 {vr(radd(half(j // 2), 4 * (j & 1)))}, v{vL} offset:{j*1024}"
    return None


g0, pre, body = qk_groups(NKA, ksrcA, sBIASA, STG_A, hook3)
vsrc3 = lambda u: ("reg", half(NKA + u) if u < NVREG else half(u - NVREG), None)
clear_next(DT, vT)
emit_groups(g0)
rl = ld_items_reg(SRD_VA, vV, sOFFA, list(range(NVREG - XD, NVREG)), lambda u: half(NKA + u)) if XD else []
yg = stream_then_q([(t, ("V", u), None) for t, u in rl], 0, 14, 7, dry="l3")
emit_counted(body, yg)
emit_groups([max_group()])
stamp(8)
HB1 = 0
b4 = []
for srdr, voff, base, nm in ((SRD_KB, vK, 0, "BK"), (SRD_VB, vV, 10, "BV")):
    b4 += [(t, (nm, u), None) for t, u in ld_items_reg(srdr, voff, sOFFB, list(range(8)), lambda u: half(base + u))]
    b4 += [(t, (nm, 8), None) for t, u in ld_items_reg(srdr, voff, sOFFB8, [0], lambda u: half(base + 8))]
    b4 += [(t, (nm, 9), None) for t, u in ld_items_reg(srdr, voff, sOFFB9, [0], lambda u: half(base + 9))]
NB4 = int(os.environ.get("NB4", "0"))
order3 = list(range(NVREG)) + [NVREG + x for x in list(range(HB1, NSLOT)) + list(range(0, HB1))]
emit_groups(pv_groups(order3, vsrc3, STG_A, 12, STG_A[0]))
stamp(15)
if DRY:
    A("s_cbranch_execz L_l3_ret")
A("s_branch L_reduce")

A("L_after3:")
if os.environ.get("WBL") == "2":
    A(f"s_cmp_eq_u32 s{sSP}, 27\ns_cbranch_scc0 L_wb_skip2\ns_cmp_eq_u32 s{sWAVE}, 3\ns_cbranch_scc0 L_wb_skip2")
    A("buffer_wbl2 sc1")
    A("L_wb_skip2:")
stamp(9)
ksrc4 = lambda u: ("reg", half(u), ("BK", u))
vsrc4 = lambda u: ("reg", half(10 + u), ("BV", u))
g0, pre, body = qk_groups(10, ksrc4, sBIASB, STG_B)
emit_groups(g0)
yg = stream_then_q(b4[NB4:], int(os.environ.get("E4", "0")), 10, 11, int(os.environ.get("THR4", "0")), dry="l4")
emit_counted(body + [max_group()] + pv_groups(list(range(10)), vsrc4, STG_B, 5, 42), yg)
if DRY:
    A("s_cbranch_execz L_l4_ret")
A("s_branch L_reduce")

A("L_att_end:")
if os.environ.get("WBL"):
    A(f"s_cmp_eq_u32 s{sSP}, 0\ns_cbranch_scc0 L_wb_skip\ns_cmp_eq_u32 s{sWAVE}, 3\ns_cbranch_scc0 L_wb_skip")
    A("buffer_wbl2 sc1\ns_waitcnt vmcnt(0)")
    A("L_wb_skip:")
stamp(12)
A("s_branch L_fin")

A("L_chain:")
cWq, cWo, cPOg, cMLg, cL16, cYg, cT = 1, 2, 3, 4, 5, 6, 7
cX = 12
cVAL, cYst, cSCR, cXw, cXa, cXs = 14, 15, 16, 17, 18, 19
cTT = [20, 24]
cACC = 28
cG = 36
cN = 68
cXA = 36
cCS = {0: 92, 1: 93}
cQst, cV56 = 94, 95
cWo1 = 91
WQ = {0: ("a", 0), 1: ("a", 112)}
WO0 = {0: ("v", 96), 1: ("v", 160)}
sYG = 52


def wo1(t):
    return ("v", 224 + 4 * t) if t < 8 else ("a", 224 + 4 * (t - 8))


CSCR = 131072
YX = CSCR
XB = CSCR + 4096
sCH = sSP
WQB = 448 * 4096 * 2

if "n" in os.environ.get("EXP", ""):
    A("s_branch L_end")
if "l" in os.environ.get("EXP", ""):
    mk_srd(SRD_KB, pBK, 67108864)
    stamp(0)
    A(f"s_lshl_b32 s{sT0}, s{sG}, 23\ns_mul_i32 s{sT1}, s{sSP}, 491520\ns_add_u32 s{sT0}, s{sT0}, s{sT1}\ns_lshl_b32 s{sT1}, s{sWAVE}, 12\ns_add_u32 s{sT0}, s{sT0}, s{sT1}\nv_lshlrev_b32 v1, 4, v0")
    for i in range(30):
        for n in range(4):
            A(f"buffer_load_dwordx4 a[{(i*16+n*4)%256}:{(i*16+n*4)%256+3}], v1, {srd(SRD_KB)}, s{sT0} offen offset:{n*1024} nt")
        A(f"s_add_u32 s{sT0}, s{sT0}, 16384")
    A("s_waitcnt vmcnt(0)")
    stamp(3)
    A("s_branch L_fin")
A("s_waitcnt lgkmcnt(0)")
common_setup()
mk_srd(SRD_WQA, pAWQ, WQB)
mk_srd(SRD_WOA, pAWO, WQB)
mk_srd(SRD_WQB, pBWQ, WQB)
mk_srd(SRD_WOB, pBWO, WQB)
mk_srd(SRD_X, pAX, 896)
A(f"s_mov_b64 s[{sOUTP}:{sOUTP+1}], s[{pOUT}:{pOUT+1}]")
A(f"s_mov_b64 s[0:1], s[{pBK}:{pBK+1}]")
A(f"s_lshl_b32 s{sT0}, s{sG}, 2\ns_add_u32 s{sCH}, s{sT0}, s{sSP}")
A("v_lshrrev_b32 v20, 4, v0       ; s / row")
A("v_and_b32 v21, 15, v0          ; j / c16")
A("v_lshlrev_b32 v22, 4, v21      ; j*16")
A(f"s_lshr_b32 s{sT0}, s{sWAVE}, 1\ns_lshl_b32 s{sT0}, s{sT0}, 2\nv_or_b32 v23, s{sT0}, v20\nv_lshlrev_b32 v23, 5, v23\nv_xor_b32 v23, v23, v22")
A(f"v_lshl_add_u32 v{cWq}, v20, 13, v23")
A(f"v_mul_u32_u24 v{cWo}, 896, v20\nv_add_u32 v{cWo}, v{cWo}, v22")
A("v_and_b32 v23, 31, v0\nv_min_u32 v23, 27, v23\nv_lshrrev_b32 v24, 5, v0")
A(f"s_mul_i32 s{sT0}, s{sWAVE}, 224\nv_lshlrev_b32 v25, 3, v23\nv_lshl_add_u32 v25, v24, 2, v25\nv_add_u32 v25, s{sT0}, v25")
A(f"buffer_load_dword v{cX}, v25, {srd(SRD_X)}, 0 offen")
A(f"v_add_u32 v{cXw}, {XB}, v25")
A(f"v_lshlrev_b32 v{cYg}, 4, v23\nv_lshl_add_u32 v{cYg}, v24, 11, v{cYg}")


def wq_dma(which):
    s_ = SRD_WQA if which == 0 else SRD_WQB
    A(f"s_lshl_b32 s{sT0}, s{sWAVE}, 15\ns_lshl_b32 s{sT1}, s{sCH}, 8\ns_add_u32 s{sT0}, s{sT0}, s{sT1}\ns_lshl_b32 s{sT2}, s{sWAVE}, 10")
    for ii in range(28):
        A(f"s_add_u32 s{sT1}, s{sT0}, {ii*131072}\ns_add_u32 s{sT3}, s{sT2}, {ii*4096}\ns_mov_b32 m0, s{sT3}\ns_nop 0")
        A(f"buffer_load_dwordx4 v{cWq}, {srd(s_)}, s{sT1} offen nt lds")


def wq_tr(which):
    A("v_lshrrev_b32 v20, 4, v0\nv_bfe_u32 v21, v0, 2, 2\nv_and_b32 v22, 1, v20\nv_lshl_add_u32 v22, v22, 2, v21")
    A(f"s_lshl_b32 s{sT0}, s{sWAVE}, 1\nv_xor_b32 v22, s{sT0}, v22\nv_lshlrev_b32 v22, 5, v22")
    A("v_lshl_add_u32 v20, v20, 3, v21\nv_lshl_add_u32 v20, v20, 8, v22\nv_and_b32 v21, 3, v0\nv_lshl_add_u32 v20, v21, 3, v20")
    A(f"v_xor_b32 v21, 32, v20\nv_add_u32 v22, {7*8192}, v20\nv_add_u32 v23, {7*8192}, v21")
    for kb in range(14):
        for cb in range(2):
            for hf in range(2):
                d = radd(WQ[which], (kb * 2 + cb) * 4 + hf * 2)
                A(f"ds_read_b64_tr_b16 {vr(d, 2)}, v{20 + cb + (0 if kb < 7 else 2)} offset:{(kb%7)*8192+hf*1024}")
        if kb % 3 == 2:
            A("s_waitcnt lgkmcnt(3)")
    A("s_waitcnt lgkmcnt(0)")


def sel_cb(dst):
    A(f"v_mov_b32 v{dst}, v{cACC}\ns_mov_b32 exec_lo, 0xffff0000\ns_mov_b32 exec_hi, 0xffff0000\nv_mov_b32 v{dst}, v{cACC+4}\ns_mov_b64 exec, -1")


def colsum(which):
    for r in range(4):
        A(f"v_mov_b32 v{20+r}, 0x3f803f80")
    A("s_nop 1")
    for kb in range(14):
        for cb in range(2):
            acc = cACC + 4 * cb
            A(f"v_mfma_f32_16x16x32_bf16 {vr(acc)}, v[20:23], {vr(radd(WQ[which], (kb*2+cb)*4))}, {'0' if kb == 0 else vr(acc)}")
    A("s_nop 7")
    sel_cb(cCS[which])


def wo_base():
    A(f"s_lshr_b32 s{sT0}, s{sCH}, 1\ns_lshl_b32 s{sT0}, s{sT0}, 2\ns_add_u32 s{sT0}, s{sT0}, s{sWAVE}\ns_mul_i32 s{sT0}, s{sT0}, {64*896}")
    A(f"s_and_b32 s{sT1}, s{sCH}, 1\ns_lshl_b32 s{sT1}, s{sT1}, 9\ns_add_u32 s{sT0}, s{sT0}, s{sT1}")


def wo0_loads(which, ts):
    s_ = SRD_WOA if which == 0 else SRD_WOB
    wo_base()
    for t in ts:
        A(f"s_add_u32 s{sT1}, s{sT0}, {4*t*896}")
        A(f"buffer_load_dwordx4 {vr(radd(WO0[which], 4*t))}, v{cWo}, {srd(s_)}, s{sT1} offen nt")


def wo1_addr():
    A(f"s_and_b32 s{sT1}, s{sCH}, 1\ns_lshl_b32 s{sT1}, s{sT1}, 7\ns_not_b32 s{sT1}, s{sT1}")
    A(f"v_lshlrev_b32 v{cWo1}, 4, v0\nv_and_b32 v{cWo1}, 0xf0, v{cWo1}\nv_sub_u32 v{cT}, v{cWo}, v{cWo1}\nv_and_b32 v{cWo1}, s{sT1}, v{cWo1}\nv_add_u32 v{cWo1}, v{cWo1}, v{cT}")


def wo1_regs(ts):
    wo1_addr()
    wo_base()
    for t in ts:
        A(f"s_add_u32 s{sT1}, s{sT0}, {4*t*896+256}")
        A(f"buffer_load_dwordx4 {vr(wo1(t))}, v{cWo1}, {srd(SRD_WOA)}, s{sT1} offen nt")


def wo1_dma(which):
    s_ = SRD_WOA if which == 0 else SRD_WOB
    wo_base()
    A(f"s_lshl_b32 s{sT2}, s{sWAVE}, 14\ns_add_u32 s{sT2}, s{sT2}, {which*65536}")
    for t in range(16):
        A(f"s_add_u32 s{sT1}, s{sT0}, {4*t*896+256}\ns_add_u32 s{sT3}, s{sT2}, {t*1024}\ns_mov_b32 m0, s{sT3}\ns_nop 0")
        A(f"buffer_load_dwordx4 v{cWo1}, {srd(s_)}, s{sT1} offen nt lds")


def lstamp(base):
    if PROFILE == 1:
        for l in range(4):
            lb = A.label("ps")
            A(f"s_cmp_eq_u32 s{sLAYER}, {l}\ns_cbranch_scc0 {lb}")
            stamp(base + 4 * l)
            A(f"{lb}:")


stamp(0)
if int(os.environ.get("PRET", "0")):
    A(f"v_lshlrev_b32 v26, 16, v0\ns_cmp_eq_u32 s{sWAVE}, 1\ns_cbranch_scc0 L_pt2")
    A(f"buffer_load_dword v27, v26, {srd(SRD_WQB)}, 0 offen nt")
    wo_base()
    A(f"s_mov_b64 exec, 0xf\nbuffer_load_dword v32, v26, {srd(SRD_WOA)}, s{sT0} offen nt\nbuffer_load_dword v33, v26, {srd(SRD_WOB)}, s{sT0} offen nt\ns_mov_b64 exec, -1")
    A("L_pt2:")
A(f"v_lshlrev_b32 v{cL16}, 4, v0")
A(f"s_lshl_b32 s{sYST}, s{sCH}, 10\ns_add_u32 s{sYST}, s{sYST}, {WS_Y}")
A(f"s_lshl_b32 s{sQST}, s{sCH}, 8")
A("v_mov_b32 v28, -1\nv_mov_b32 v29, -1\nv_mov_b32 v30, -1\nv_mov_b32 v31, -1")
A(f"s_lshl_b32 s{sT1}, s{sWAVE}, 13\ns_add_u32 s{sT1}, s{sT1}, s{sQST}")
A(f"s_cmp_eq_u32 s{sWAVE}, 0\ns_cbranch_scc0 L_ch_cl1")
A(f"buffer_store_dwordx4 v[28:31], v{cL16}, {srd(SRD_WS)}, s{sYST} offen sc1")
A("L_ch_cl1:\ns_mov_b64 exec, 0xffff")
A(f"buffer_store_dwordx4 v[28:31], v{cL16}, {srd(SRD_WS)}, s{sT1} offen sc1")
A("s_mov_b64 exec, -1")
wq_dma(0)
A(f"v_mul_u32_u24 v{cPOg}, 7168, v20\nv_add_u32 v{cPOg}, v{cPOg}, v22\ns_lshl_b32 s{sT0}, s{sWAVE}, 8\nv_add_u32 v{cPOg}, s{sT0}, v{cPOg}")
A(f"v_min_u32 v23, 6, v21\nv_mul_u32_u24 v24, 7, v20\nv_add_u32 v23, v23, v24\nv_lshlrev_b32 v{cMLg}, 7, v23")
A(f"v_cmp_gt_u32 vcc, 7, v21\ns_nop 1\nv_cndmask_b32 v{cVAL}, 0, 1.0, vcc")
A(f"v_cmp_gt_u32 vcc, 56, v0\ns_nop 1\nv_cndmask_b32 v{cV56}, 0, 1.0, vcc")
A(f"v_lshrrev_b32 v23, 5, v0\nv_lshlrev_b32 v23, 9, v23\nv_lshl_add_u32 v23, v21, 5, v23\nv_and_b32 v24, 1, v20\nv_lshl_add_u32 v{cYst}, v24, 4, v23")
A(f"s_lshl_b32 s{sT0}, s{sWAVE}, 6\nv_lshl_add_u32 v{cQst}, v0, 1, s{sT0}")
A(f"v_add_u32 v{cSCR}, {CSCR}, v{cL16}")
A(f"v_lshlrev_b32 v{cXa}, 4, v20\nv_add_u32 v{cXa}, {XB}, v{cXa}")
A(f"v_min_u32 v{cXs}, 55, v0\nv_lshlrev_b32 v{cXs}, 4, v{cXs}\nv_add_u32 v{cXs}, {XB}, v{cXs}")
A(f"s_lshr_b32 s{sT0}, s{sCH}, 1\ns_mul_i32 s{sPOOFF}, s{sT0}, 28672\ns_add_u32 s{sPOOFF}, s{sPOOFF}, {WS_PO}")
A(f"s_lshl_b32 s{sMLOFF}, s{sT0}, 12\ns_add_u32 s{sMLOFF}, s{sMLOFF}, {WS_ML}")
A(f"s_mul_i32 s{sYOFF}, s{sWAVE}, 448\ns_add_u32 s{sYOFF}, s{sYOFF}, {WS_Y}")
emit_masks(0, MASK, 20, 21)
A("s_waitcnt vmcnt(0)")
wo0_loads(0, range(8))
mk_srd(SRD_OUT, sOUTP, 896)
A(f"ds_write_b32 v{cXw}, v{cX}")
A(f"v_and_b32 v{cX+1}, 0xffff0000, v{cX}\nv_lshlrev_b32 v{cX}, 16, v{cX}")
A("s_waitcnt lgkmcnt(0)\ns_barrier")
A(f"s_cmp_eq_u32 s{sWAVE}, 3\ns_cbranch_scc0 L_ch_noflag")
A(f"s_lshl_b32 s{sT0}, s{sG}, 5\ns_and_b32 s{sT1}, s{sCH}, 3\ns_add_u32 s{sT0}, s{sT0}, s{sT1}")
A(f"v_mov_b32 v28, s{sT0}\nv_mov_b32 v29, s{sID}\ns_mov_b64 exec, 1")
A(f"buffer_store_byte v29, v28, {srd(SRD_DBG)}, 0 offen sc1\ns_mov_b64 exec, -1")
A("L_ch_noflag:")
stamp(1)
wq_tr(0)
colsum(0)
A(f"v_and_b32 v{cT}, 7, v0\nv_lshlrev_b32 v{cT}, 2, v{cT}\ns_lshl_b32 s{sT2}, s{sG}, 5")
A("L_ch_id:")
spin_guard("L_ch_id_ok")
A(f"buffer_load_dword v{cG}, v{cT}, {srd(SRD_DBG)}, s{sT2} offen sc1\ns_waitcnt vmcnt(0)")
A(f"v_and_b32 v{cG+1}, 0x0f0f0f0f, v{cG}\nv_cmp_ne_u32 s[{sT0}:{sT1}], s{sID}, v{cG+1}")
A(f"v_add_u32 v{cG+1}, 0x7f7f7f7f, v{cG}\nv_and_b32 v{cG+1}, 0x80808080, v{cG+1}\nv_cmp_ne_u32 vcc, 0x80808080, v{cG+1}")
A(f"s_cmp_eq_u64 s[{sT0}:{sT1}], 0\ns_cselect_b32 s{sMODE}, 1, 0")
A("s_cmp_lg_u64 vcc, 0\ns_cbranch_scc1 L_ch_id")
A("L_ch_id_ok:")
A("v_mov_b32 v28, -1\nv_mov_b32 v29, -1\nv_mov_b32 v30, -1\nv_mov_b32 v31, -1")
A(f"s_mul_i32 s{sT1}, s{sWAVE}, 7168\ns_add_u32 s{sT1}, s{sT1}, s{sPOOFF}\ns_add_u32 s{sT2}, s{sT1}, 4096")
A(f"s_mul_i32 s{sT0}, s{sWAVE}, {7*128}\ns_add_u32 s{sT0}, s{sT0}, s{sMLOFF}\nv_lshlrev_b32 v{cT}, 7, v0")
A(f"s_cmp_eq_u32 s{sMODE}, 1\ns_cbranch_scc0 L_ch_clf")
for fl in ("", " sc1"):
    if fl:
        A("L_ch_clf:")
    for i in range(7):
        A(f"buffer_store_dwordx4 v[28:31], v{cL16}, {srd(SRD_WS)}, s{sT1 if i < 4 else sT2} offen offset:{1024*(i%4)}{fl}")
    A(f"s_mov_b64 exec, 0x7f\nbuffer_store_dwordx2 v[28:29], v{cT}, {srd(SRD_WS)}, s{sT0} offen{fl}\ns_mov_b64 exec, -1")
    if not fl:
        A("s_branch L_ch_cld")
A("L_ch_cld:")
A("s_waitcnt vmcnt(0)\ns_barrier")
wo0_loads(0, range(8, 16))
A("s_branch L_ch_qp")


def bf16r(dst, src):
    A(f"v_cvt_pk_bf16_f32 v{dst}, 0, v{src}")


A("L_ch_stageA:")
if int(os.environ.get("DEFW", "0")):
    A(f"s_cmp_eq_u32 s{sLAYER}, 1\ns_cbranch_scc0 L_sa_nw")
    wo0_loads(1, range(16))
    A("L_sa_nw:")
A(f"s_and_b32 s{sT0}, s{sLAYER}, 1\ns_lshl_b32 s{sT0}, s{sT0}, 16\ns_lshl_b32 s{sT1}, s{sWAVE}, 14\ns_add_u32 s{sT0}, s{sT0}, s{sT1}")
A(f"v_add_u32 v{cT}, s{sT0}, v{cL16}")
for t in range(16):
    A(f"ds_read_b128 {vr(wo1(t))}, v{cT} offset:{t*1024}")
    if t == 7:
        A("s_waitcnt lgkmcnt(0)")
for i in range(8):
    A(f"s_add_u32 s{sYG+i}, s{sYOFF}, {4096*i}")
A("s_waitcnt lgkmcnt(0)")
A(f"s_cmp_eq_u32 s{sWAVE}, 0\ns_cbranch_scc0 L_sa_nc\ns_cmp_eq_u32 s{sLAYER}, 3\ns_cbranch_scc1 L_sa_nc")
A(f"v_mov_b32 v28, -1\nv_mov_b32 v29, -1\nv_mov_b32 v30, -1\nv_mov_b32 v31, -1\ns_add_u32 s{sT0}, s{sYST}, 32768")
A(f"buffer_store_dwordx4 v[28:31], v{cL16}, {srd(SRD_WS)}, s{sT0} offen sc1")
A("L_sa_nc:")
A(f"s_add_u32 s{sT0}, s{sPOOFF}, 4096")
cML = cG + 28
A("L_sa_poll:")
spin_guard("L_sa_go")
A(f"buffer_load_dwordx2 v[{cML}:{cML+1}], v{cMLg}, {srd(SRD_WS)}, s{sMLOFF} offen sc1")
for u in range(7):
    so = sPOOFF if u < 4 else sT0
    A(f"buffer_load_dwordx4 {vr(cG+4*u)}, v{cPOg}, {srd(SRD_WS)}, s{so} offen offset:{(u%4)*1024} sc1")
A("s_waitcnt vmcnt(0)")
sentinel_check(range(cG, cG + 30), cT, "L_sa_poll")
A("L_sa_go:")
lstamp(3)
mM, mW, mL = cN, cN + 1, cN + 2
A(f"v_max_f32_dpp v{mM}, v{cML}, v{cML} quad_perm:[1,0,3,2] {DPPF}")
for ctl in ("quad_perm:[2,3,0,1]", "row_half_mirror"):
    A(f"s_nop 1\nv_max_f32_dpp v{mM}, v{mM}, v{mM} {ctl} {DPPF}")
xrow_reduce("v_max_f32", mM, cT)
A(f"v_sub_f32 v{mW}, v{cML}, v{mM}\nv_exp_f32 v{mW}, v{mW}\nv_mul_f32 v{mL}, v{cML+1}, v{cVAL}\nv_mul_f32 v{mL}, v{mL}, v{mW}")
oa = cN + 4
red_steps = [f"v_add_f32_dpp v{mL}, v{mL}, v{mL} {c} {DPPF}" for c in
             ("quad_perm:[1,0,3,2]", "quad_perm:[2,3,0,1]", "row_half_mirror", "row_mirror")]
red_steps[3] += f"\nv_mov_b32 v{cT}, v{mL}"
red_steps.append(f"v_permlane32_swap_b32 v{mL}, v{cT}\nv_add_f32 v{mL}, v{mL}, v{cT}\nv_mov_b32 v{cT}, v{mL}")
red_steps.append(f"v_permlane16_swap_b32 v{mL}, v{cT}\nv_add_f32 v{mL}, v{mL}, v{cT}\nv_rcp_f32 v{mL}, v{mL}")
A("s_nop 0")
for u in range(7):
    for r in range(4):
        op = "v_mul_f32_dpp" if u == 0 else "v_fmac_f32_dpp"
        A(f"{op} v{oa+r}, v{mW}, v{cG+4*u+r} row_newbcast:{u} {DPPF}")
    if u < 6:
        A(red_steps[u])
A("s_nop 0")
A(f"v_permlane32_swap_b32 v{oa}, v{oa+2}\nv_permlane32_swap_b32 v{oa+1}, v{oa+3}")
A(f"v_add_f32 v{oa}, v{oa}, v{oa+2}\nv_add_f32 v{oa+1}, v{oa+1}, v{oa+3}\ns_nop 1")
A(f"v_permlane16_swap_b32 v{oa}, v{oa+1}\nv_add_f32 v{oa}, v{oa}, v{oa+1}")
A(f"v_mul_f32 v{oa}, v{oa}, v{mL}\nv_cvt_pk_bf16_f32 v{oa}, v{oa}, v{oa}")
A(f"s_and_b32 s{sT0}, s{sLAYER}, 1\ns_cmp_eq_u32 s{sT0}, 1\ns_cbranch_scc1 L_sa_B")
for which in range(2):
    if which == 1:
        A("L_sa_B:")

    def gmh(t, hf):
        for r in (0, 1) if hf == 0 else (2, 3):
            A(f"v_and_b32_dpp v{cTT[t&1]+r}, v{oa}, v{MASK+r} row_newbcast:{t} {DPPF}")
    gmh(0, 0)
    gmh(0, 1)
    for t in range(16):
        if t + 1 < 16:
            gmh(t + 1, 0)
        else:
            A("s_nop 0")
        A(f"v_mfma_f32_16x16x32_bf16 {vr(cACC)}, {vr(cTT[t&1])}, {vr(radd(WO0[which],4*t))}, {'0' if t == 0 else vr(cACC)}")
        if t + 1 < 16:
            gmh(t + 1, 1)
        A(f"v_mfma_f32_16x16x32_bf16 {vr(cACC+4)}, {vr(cTT[t&1])}, {vr(wo1(t))}, {'0' if t == 0 else vr(cACC+4)}")
    if which == 0:
        A("s_branch L_sa_red")
A("L_sa_red:")
A(f"s_lshl_b32 s{sT0}, s{sWAVE}, 10\nv_add_u32 v{cT}, s{sT0}, v{cSCR}")
A("s_mov_b32 exec_lo, 0\ns_nop 5")
for r in range(4):
    A(f"v_mov_b32 v{cACC+r}, v{cACC+4+r}")
A("s_mov_b32 exec_lo, -1")
A(f"s_cmp_eq_u32 s{sWAVE}, 0\ns_cbranch_scc1 L_sa_w0")
A(f"ds_write_b128 v{cT}, {vr(cACC)}\ns_waitcnt lgkmcnt(0)\ns_barrier")
H2S = int(os.environ.get("H2S", "8"))
A(f"s_sleep {H2S+2}\ns_branch L_sb")
A("L_sa_w0:\ns_barrier")
for s_ in range(1, 4):
    A(f"ds_read_b128 {vr(cG+4*s_)}, v{cSCR} offset:{1024*s_}")
for s_ in range(1, 4):
    A(f"s_waitcnt lgkmcnt({3-s_})")
    for r in range(0, 4, 2):
        A(f"v_pk_add_f32 v[{cACC+r}:{cACC+r+1}], v[{cACC+r}:{cACC+r+1}], v[{cG+4*s_+r}:{cG+4*s_+r+1}]")
for r in range(4):
    A(f"v_min_u32 v{cACC+r}, -2, v{cACC+r}")
A(f"buffer_store_dwordx4 {vr(cACC)}, v{cYst}, {srd(SRD_WS)}, s{sYST} offen sc1")
lstamp(4)
if H2S:
    A(f"s_sleep {H2S}")
A("L_sb:")
A(f"s_cmp_eq_u32 s{sLAYER}, 3\ns_cbranch_scc0 L_sb_go0\ns_cmp_eq_u32 s{sCH}, 0\ns_cbranch_scc0 L_fin\nL_sb_go0:")


def yload(i):
    return f"buffer_load_dwordx4 {vr(cG+4*i)}, v{cYg}, {srd(SRD_WS)}, s{sYG+i} offen sc1"


for i in range(8):
    A(yload(i))
A("L_sb_poll:")
for i in range(4):
    A(f"s_waitcnt vmcnt({6-2*i})")
    for r in range(0, 4, 2):
        A(f"v_pk_add_f32 v[{cN+4*i+r}:{cN+4*i+r+1}], v[{cG+8*i+r}:{cG+8*i+r+1}], v[{cG+8*i+4+r}:{cG+8*i+4+r+1}]")
    if i & 1:
        for r in range(0, 4, 2):
            A(f"v_pk_add_f32 v[{cN+4*(i-1)+r}:{cN+4*(i-1)+r+1}], v[{cN+4*(i-1)+r}:{cN+4*(i-1)+r+1}], v[{cN+4*i+r}:{cN+4*i+r+1}]")
for r in range(0, 4, 2):
    A(f"v_pk_add_f32 v[{cN+r}:{cN+r+1}], v[{cN+r}:{cN+r+1}], v[{cN+8+r}:{cN+8+r+1}]")
A("s_nop 1")
A(f"v_permlane32_swap_b32 v{cN}, v{cN+2}\nv_permlane32_swap_b32 v{cN+1}, v{cN+3}")
A(f"v_pk_add_f32 v[{cN}:{cN+1}], v[{cN}:{cN+1}], v[{cN+2}:{cN+3}]")
A(f"v_cmp_u_f32 vcc, v{cN}, v{cN+1}")
bf16r(cN, cN)
bf16r(cN + 1, cN + 1)
A("s_cmp_lg_u64 vcc, 0\ns_cbranch_scc0 L_sb_go")
spin_guard("L_sb_go")
A(f"s_mov_b32 s{sT0}, 0")
for i in range(8):
    sk = A.label("ysk")
    g_ = cG + 4 * i
    A(f"v_max3_u32 v{cT}, v{g_}, v{g_+1}, v{g_+2}\nv_max_u32 v{cT}, v{cT}, v{g_+3}\nv_cmp_eq_u32 vcc, -1, v{cT}\ns_nop 0\ns_cmp_lg_u64 vcc, 0\ns_cbranch_scc0 {sk}")
    A(yload(i))
    A(f"s_mov_b32 s{sT0}, 1\n{sk}:")
A(f"s_waitcnt vmcnt(0)\ns_cmp_eq_u32 s{sT0}, 1\ns_cbranch_scc1 L_sb_poll")
A("L_sb_go:")
lstamp(5)
A(f"v_pk_add_f32 v[{cX}:{cX+1}], v[{cX}:{cX+1}], v[{cN}:{cN+1}]")
A(f"v_cvt_pk_bf16_f32 v{cN}, v{cX}, v{cX+1}")
A(f"s_cmp_eq_u32 s{sLAYER}, 3\ns_cbranch_scc1 L_ch_out")
A(f"ds_write_b32 v{cXw}, v{cN}")
A(f"v_and_b32 v{cX+1}, 0xffff0000, v{cN}\nv_lshlrev_b32 v{cX}, 16, v{cN}")
A(f"s_add_u32 s{sLAYER}, s{sLAYER}, 1")
A(f"s_add_u32 s{sPOOFF}, s{sPOOFF}, {PO_L}\ns_add_u32 s{sMLOFF}, s{sMLOFF}, {ML_L}\ns_add_u32 s{sYOFF}, s{sYOFF}, 32768\ns_add_u32 s{sYST}, s{sYST}, 32768\ns_add_u32 s{sQST}, s{sQST}, 8192")
A("s_waitcnt lgkmcnt(0)\ns_barrier")
A("L_ch_qp:")
SV = 20
s1, s2, t0, t1 = 24, 25, 26, 27
A(f"ds_read_b128 {vr(cXA)}, v{cXa}\nds_read_b128 {vr(SV)}, v{cXs}")
for kb in range(1, 14):
    A(f"ds_read_b128 {vr(cXA+4*kb)}, v{cXa} offset:{64*kb}")
st = []
st += [f"v_readfirstlane_b32 s{sT0}, v{cXA}", f"s_lshl_b32 s{sT0}, s{sT0}, 16"]
for r in range(4):
    st += [f"v_lshlrev_b32 v{t0}, 16, v{SV+r}", f"v_and_b32 v{t1}, 0xffff0000, v{SV+r}",
           f"v_subrev_f32 v{t0}, s{sT0}, v{t0}", f"v_subrev_f32 v{t1}, s{sT0}, v{t1}"]
    if r == 0:
        st += [f"v_add_f32 v{s1}, v{t0}, v{t1}", f"v_mul_f32 v{s2}, v{t0}, v{t0}", f"v_fmac_f32 v{s2}, v{t1}, v{t1}"]
    else:
        st += [f"v_add_f32 v{s1}, v{s1}, v{t0}", f"v_fmac_f32 v{s2}, v{t0}, v{t0}", f"v_add_f32 v{s1}, v{s1}, v{t1}", f"v_fmac_f32 v{s2}, v{t1}, v{t1}"]
st += [f"v_mul_f32 v{s1}, v{s1}, v{cV56}", f"v_mul_f32 v{s2}, v{s2}, v{cV56}"]
for ctl in ("quad_perm:[1,0,3,2]", "quad_perm:[2,3,0,1]", "row_half_mirror", "row_mirror"):
    st += ["s_nop 0", f"v_add_f32_dpp v{s1}, v{s1}, v{s1} {ctl} {DPPF}", f"v_add_f32_dpp v{s2}, v{s2}, v{s2} {ctl} {DPPF}"]
for sw in ("v_permlane32_swap_b32", "v_permlane16_swap_b32"):
    st += [f"v_mov_b32 v{t0}, v{s1}", f"v_mov_b32 v{t1}, v{s2}", "s_nop 1", f"{sw} v{s1}, v{t0}", f"{sw} v{s2}, v{t1}",
           f"v_add_f32 v{s1}, v{s1}, v{t0}", f"v_add_f32 v{s2}, v{s2}, v{t1}"]
st += [f"v_mul_f32 v{s1}, {f2u(1.0/448.0)}, v{s1}", f"v_mul_f32 v{s2}, {f2u(1.0/448.0)}, v{s2}",
       f"v_fma_f32 v{s2}, -v{s1}, v{s1}, v{s2}", f"v_max_f32 v{s2}, 0, v{s2}", f"v_add_f32 v{s1}, s{sT0}, v{s1}",
       f"v_cvt_pk_bf16_f32 v{s2}, 0, v{s2}", f"v_cvt_pk_bf16_f32 v{s1}, 0, v{s1}",
       f"v_add_f32 v{s2}, {f2u(1e-5)}, v{s2}", f"v_cvt_pk_bf16_f32 v{s2}, 0, v{s2}", f"v_sqrt_f32 v{s2}, v{s2}", "s_nop 0",
       f"v_cvt_pk_bf16_f32 v{s2}, 0, v{s2}", f"v_rcp_f32 v{s2}, v{s2}"]
A(f"s_and_b32 s{sT1}, s{sLAYER}, 1\ns_cmp_eq_u32 s{sT1}, 1\ns_cbranch_scc1 L_qp_B")
for which in range(2):
    if which == 1:
        A("L_qp_B:")
    sp_ = 0
    nm = 0
    for kb in range(14):
        A(f"s_waitcnt lgkmcnt({13 if kb == 0 else 13-kb})")
        for cb in range(2):
            acc = cACC + 4 * cb
            A(f"v_mfma_f32_16x16x32_bf16 {vr(acc)}, {vr(cXA+4*kb)}, {vr(radd(WQ[which], (kb*2+cb)*4))}, {'0' if kb == 0 else vr(acc)}")
            nm += 1
            upto = min(len(st), (nm * len(st) + 26) // 27)
            while sp_ < upto:
                A(st[sp_])
                sp_ += 1
    A(f"v_mul_f32 v{s1}, v{s1}, v{cCS[which]}")
    if which == 0:
        A("s_branch L_qp_red")
A("L_qp_red:")
A("s_nop 5")
sel_cb(t0)
A(f"v_sub_f32 v{t0}, v{t0}, v{s1}\nv_mul_f32 v{t0}, v{t0}, v{s2}\ns_nop 1")
A(f"v_mov_b32_dpp v{t1}, v{t0} quad_perm:[1,1,3,3] {DPPF}")
A(f"v_cvt_pk_bf16_f32 v{t0}, v{t0}, v{t1}\nv_min_u32 v{t0}, -2, v{t0}")
A("s_mov_b32 exec_lo, 0x55555555\ns_mov_b32 exec_hi, 0")
A(f"s_cmp_eq_u32 s{sMODE}, 1\ns_cbranch_scc0 L_qp_far")
A(f"buffer_store_dword v{t0}, v{cQst}, {srd(SRD_WS)}, s{sQST} offen\ns_branch L_qp_st")
A("L_qp_far:")
A(f"buffer_store_dword v{t0}, v{cQst}, {srd(SRD_WS)}, s{sQST} offen sc1")
A("L_qp_st:")
A("s_mov_b64 exec, -1")
lstamp(2)
A(f"s_cmp_eq_u32 s{sLAYER}, 0\ns_cbranch_scc0 L_ch_stageA")
A("s_barrier")
wq_dma(1)
wo1_regs(range(16))
A("s_waitcnt vmcnt(16)\ns_barrier")
wq_tr(1)
A("s_barrier")
DEFW = int(os.environ.get("DEFW", "0"))
if not DEFW:
    wo0_loads(1, range(16))
wo1_dma(1)
colsum(1)
A(f"s_waitcnt vmcnt({16 if DEFW else 32})\ns_lshl_b32 s{sT1}, s{sWAVE}, 14\nv_add_u32 v{cT}, s{sT1}, v{cL16}")
for t in range(16):
    A(f"ds_write_b128 v{cT}, {vr(wo1(t))} offset:{t*1024}")
A("s_waitcnt lgkmcnt(0)")
if os.environ.get("EXP", ""):
    A("s_waitcnt vmcnt(0)")
    stamp(3)
    A("s_branch L_fin")
A("L_ch_cnt:")
spin_guard("L_ch_cnt_ok")
A(f"v_lshlrev_b32 v{cT}, 2, v0")
A(f"buffer_load_dword v{cG}, v{cT}, {srd(SRD_DBG)}, 0 offen sc1\ns_waitcnt vmcnt(0)")
A(f"v_add_u32 v{cG+1}, 0x7f7f7f7f, v{cG}\nv_and_b32 v{cG+1}, 0x80808080, v{cG+1}\nv_cmp_ne_u32 vcc, 0x80808080, v{cG+1}\ns_nop 0")
A("s_cmp_lg_u64 vcc, 0\ns_cbranch_scc1 L_ch_cnt")
A("L_ch_cnt_ok:")
stamp(18)
CPB = int(os.environ.get("CPB", "0"))
CPN = int(os.environ.get("CPN", "16"))
if int(os.environ.get("CPC", "1")):
    BACKWARD.add("L_ch_stageA")
if CPB:
    mk_srd(SRD_WQA, 0, KVBYTES)
    A(f"s_lshl_b32 s{sT2}, s{sG}, 23\ns_and_b32 s{sT3}, s{sCH}, 3\ns_lshl_b32 s{sT3}, s{sT3}, 2\ns_add_u32 s{sT3}, s{sT3}, s{sWAVE}\ns_lshl_b32 s{sT3}, s{sT3}, 13")
    A(f"s_add_u32 s{sT2}, s{sT2}, s{sT3}\ns_add_u32 s{sT2}, s{sT2}, {12288*512}\ns_mov_b32 s{sT3}, {CPN // CPB}\nv_lshlrev_b32 v{cG+2}, 7, v0")
A("L_ch_pre:")
spin_guard("L_ch_stageA")
if CPB:
    A(f"s_cmp_eq_u32 s{sT3}, 0\ns_cbranch_scc1 L_ch_pre_s\ns_sub_u32 s{sT3}, s{sT3}, 1")
    for i in range(CPB):
        A(f"buffer_load_dword v{cG+3}, v{cG+2}, {srd(SRD_WQA)}, s{sT2} offen\ns_add_u32 s{sT2}, s{sT2}, 131072")
    A("s_branch L_ch_pre_p")
A("L_ch_pre_s:")
if int(os.environ.get("CPC", "1")):
    code_prefetch("L_ch_stageA", 8192, cT, cG, sT0)
A("s_sleep 16")
A("L_ch_pre_p:\ns_mov_b64 exec, 1")
A(f"buffer_load_dword v{cML}, v{cMLg}, {srd(SRD_WS)}, s{sMLOFF} offen sc1\ns_waitcnt vmcnt(0)")
A(f"v_readfirstlane_b32 s{sT0}, v{cML}\ns_mov_b64 exec, -1\ns_cmp_eq_u32 s{sT0}, -1\ns_cbranch_scc1 L_ch_pre")
A("s_branch L_ch_stageA")
A("L_ch_out:")
A(f"v_subrev_u32 v{cT}, {XB}, v{cXw}")
A(f"buffer_store_dword v{cN}, v{cT}, {srd(SRD_OUT)}, 0 offen")
stamp(19)
if os.environ.get("DIAG"):
    da, db = [int(x) for x in os.environ["DIAG"].split(",")]
    ra = 100 if da == 99 else sSTAMP + 2 * da
    A(f"s_sub_u32 s{sT0}, s{sSTAMP+2*db}, s{ra}\ns_lshl_b32 s{sT0}, s{sT0}, 2\ns_min_u32 s{sT0}, s{sT0}, 100000\ns_add_u32 s{sT0}, s{sT0}, s{sSTAMP+38}")
    A(f"L_diag:\ns_memrealtime s[{sT2}:{sT3}]\ns_waitcnt lgkmcnt(0)\ns_sub_u32 s{sT1}, s{sT2}, s{sT0}\ns_cmp_lt_i32 s{sT1}, 0\ns_cbranch_scc1 L_diag")

A("L_fin:")
if PROFILE:
    A(f"s_mul_i32 s{sT0}, s2, 640\ns_mul_i32 s{sT1}, s{sWAVE}, 160\ns_add_u32 s{sT0}, s{sT0}, s{sT1}\ns_add_u32 s{sT0}, s{sT0}, {WS_STAMP}")
    A("s_mov_b64 exec, 1\nv_mov_b32 v1, 0")
    for i in range(10):
        for r in range(4):
            A(f"v_mov_b32 v{4+r}, s{sSTAMP+4*i+r}")
        A(f"buffer_store_dwordx4 v[4:7], v1, {srd(SRD_WS)}, s{sT0} offen offset:{16*i}\ns_nop 1")
if PROFILE:
    pass
A("L_end:")
A("s_endpgm")

for l in A.L:
    OUT.append(l if l.endswith(":") else "    " + l)
OUT.append('.section .rodata,"a"')
OUT.append(".p2align 6")
OUT.append(f".amdhsa_kernel {NAME}_kernel")
OUT.append("""  .amdhsa_next_free_vgpr 512
  .amdhsa_next_free_sgpr 102
  .amdhsa_accum_offset 256
  .amdhsa_group_segment_fixed_size 0
  .amdhsa_kernarg_size 104
  .amdhsa_user_sgpr_count 2
  .amdhsa_user_sgpr_kernarg_segment_ptr 1
  .amdhsa_system_sgpr_workgroup_id_x 1
  .amdhsa_float_denorm_mode_32 3
.end_amdhsa_kernel""")
out = sys.argv[1] if len(sys.argv) > 1 else f"cdna_kernels/{NAME}.s"
open(out, "w").write("\n".join(OUT) + "\n")
print("wrote", out, len(A.L), "lines")
```

```python
import sys, os, struct

PROFILE = int(os.environ.get("PROFILE", "0"))
NAME = "interleave_layers__gqa_block_cached__sliding_block_cached__decode"

WS_Q = 0
WS_Y = 49152
WS_PO = 196608
WS_ML = 196608 + 4 * 458752
ML_L = 65536
PO_L = 16 * 28 * 1024
WS_STAMP = 4 << 20
WS_SIZE = 283117312
SPIN_MAX = 1 << 18

CSCALE = struct.unpack("<I", struct.pack("<f", 1.4426950408889634 / 16.0))[0]
NEG_INF = 0xFF800000


def f2u(x):
    return struct.unpack("<I", struct.pack("<f", x))[0]


class Asm:
    def __init__(self):
        self.L = []
        self.nlabel = 0

    def __call__(self, s):
        for line in s.split("\n"):
            line = line.strip()
            if line:
                self.L.append(line)

    def label(self, base):
        self.nlabel += 1
        return f"L_{base}_{self.nlabel}"


A = Asm()


def vr(r, n=4):
    if isinstance(r, int):
        r = ("v", r)
    k, i = r
    return f"{k}[{i}:{i+n-1}]" if n > 1 else f"{k}{i}"


def radd(r, d):
    if isinstance(r, int):
        return r + d
    return (r[0], r[1] + d)


DPPF = "row_mask:0xf bank_mask:0xf"

sWAVE = 3
SRD_KA, SRD_VA, SRD_KB, SRD_VB, SRD_WS, SRD_DBG = 4, 8, 12, 16, 20, 24
SRD_WQA, SRD_WOA, SRD_WQB, SRD_WOB = 4, 8, 12, 16
SRD_X, SRD_OUT = 28, 80
sOFFA, sOFFA36, sOFFB, sOFFB9 = 28, 29, 30, 31
sBIASA, sBIASB = 32, 33
sC = 36
sLDSW = 37
sT0, sT1, sT2, sT3 = 38, 39, 40, 41
sLAYER = 42
sSPIN = 43
sQOFF, sPOOFF, sMLOFF, sYOFF = 44, 45, 46, 47
sG, sSP = 48, 49
sYST, sQST = 50, 51
sOFFB8 = 50
sCL = 47
sW4 = 58
sID, sMODE = 34, 35
KARG = 52
sSTAMP = 60
SRD_OUT = 28
sOUTP = 32

nstamp = [0]


def srd(r):
    return f"s[{r}:{r+3}]"


def stamp(idx):
    if PROFILE == 2 and idx not in (0, 5, 19):
        return
    if PROFILE:
        assert idx < 20
        if idx == 0:
            for i in range(1, 20):
                A(f"s_mov_b64 s[{sSTAMP+2*i}:{sSTAMP+2*i+1}], 0")
            A(f"s_mov_b64 s[{sSTAMP}:{sSTAMP+1}], s[100:101]")
            return
        A(f"s_memrealtime s[{sSTAMP+2*idx}:{sSTAMP+2*idx+1}]\ns_waitcnt lgkmcnt(0)")


def mk_srd(dst, ptr, size):
    A(f"s_mov_b32 s{dst}, s{ptr}\ns_and_b32 s{dst+1}, s{ptr+1}, 0xffff\ns_mov_b32 s{dst+2}, {size}\ns_mov_b32 s{dst+3}, 0x20000")


def emit_masks(vlane, m0, t0, t1):
    A(f"v_and_b32 v{t0}, 1, v{vlane}")
    A(f"v_lshlrev_b32 v{t0}, 4, v{t0}")
    A(f"v_mov_b32 v{t1}, 0xffff")
    A(f"v_lshlrev_b32 v{t0}, v{t0}, v{t1}")
    A(f"v_bfe_u32 v{t1}, v{vlane}, 1, 2")
    for r in range(4):
        A(f"v_cmp_eq_u32 vcc, {r}, v{t1}")
        A("s_nop 1")
        A(f"v_cndmask_b32 v{m0+r}, 0, v{t0}, vcc")


def xrow_reduce(op, v, t):
    A(f"v_mov_b32 v{t}, v{v}\ns_nop 1\nv_permlane32_swap_b32 v{v}, v{t}\n{op} v{v}, v{v}, v{t}")
    A(f"v_mov_b32 v{t}, v{v}\ns_nop 1\nv_permlane16_swap_b32 v{v}, v{t}\n{op} v{v}, v{v}, v{t}")


def sentinel_check(regs, t, retry_label):
    regs = list(regs)
    A(f"v_max3_u32 v{t}, v{regs[0]}, v{regs[1]}, v{regs[2]}")
    i = 3
    while i + 1 < len(regs):
        A(f"v_max3_u32 v{t}, v{t}, v{regs[i]}, v{regs[i+1]}")
        i += 2
    if i < len(regs):
        A(f"v_max_u32 v{t}, v{t}, v{regs[i]}")
    A(f"v_cmp_eq_u32 vcc, -1, v{t}")
    A("s_nop 0")
    A(f"s_cmp_lg_u64 vcc, 0\ns_cbranch_scc1 {retry_label}")


def spin_guard(giveup_label):
    A(f"s_cmp_eq_u32 s{sSPIN}, 0\ns_cbranch_scc1 {giveup_label}\ns_sub_u32 s{sSPIN}, s{sSPIN}, 1")
    if os.environ.get("PSLEEP"):
        A(f"s_sleep {os.environ['PSLEEP']}")


hdr = open(f"cdna_kernels/{NAME}.s.ref").read().split("\n")
head = [l for l in hdr if l.startswith(";") and "@launch" not in l]
OUT = list(head)
OUT.append("; @launch grid=(256,1,1) block=(256,1,1) lds=163840")
OUT.append('.amdgcn_target "amdgcn-amd-amdhsa--gfx950"')
OUT.append(".text")
OUT.append(f".globl {NAME}_kernel")
OUT.append(".p2align 8")
OUT.append(f".type {NAME}_kernel,@function")
OUT.append(f"{NAME}_kernel:")

if PROFILE:
    A("s_memrealtime s[100:101]")
A("s_cmp_ge_u32 s2, 256\ns_cbranch_scc1 L_end")
A(f"s_load_dwordx16 s[{KARG}:{KARG+15}], s[0:1], 0")
A(f"s_load_dwordx8 s[{KARG+16}:{KARG+23}], s[0:1], 64")
A(f"s_load_dwordx2 s[{KARG+24}:{KARG+25}], s[0:1], 96")
pAX, pAK, pAV, pAWQ, pAWO, pBX, pBK, pBV, pBWQ, pBWO, pOUT, pDBG, pWS = [KARG + 2 * i for i in range(13)]
A("v_lshrrev_b32 v1, 6, v0\nv_and_b32 v0, 63, v0")
if os.environ.get("PERM"):
    A(f"s_mul_i32 s2, s2, {os.environ['PERM']}\ns_lshr_b32 s4, s2, 3\ns_and_b32 s4, s4, {os.environ.get('PERMX', '1')}\ns_xor_b32 s2, s2, s4\ns_and_b32 s2, s2, 255")
A(f"s_and_b32 s{sG}, s2, 7\ns_lshr_b32 s{sSP}, s2, 3")
A(f"v_readfirstlane_b32 s{sWAVE}, v1")
A(f"s_cmp_lt_u32 s{sSP}, 4\ns_cbranch_scc1 L_chain")


def common_setup():
    A(f"s_mov_b32 s{sC}, {CSCALE}\ns_mov_b32 s{sSPIN}, {SPIN_MAX}\ns_mov_b32 s{sLAYER}, 0")
    A(f"s_getreg_b32 s{sID}, hwreg(HW_REG_XCC_ID, 0, 4)\ns_min_u32 s{sID}, s{sID}, 14\ns_add_u32 s{sID}, s{sID}, 1\ns_mul_i32 s{sID}, s{sID}, 0x01010101\ns_mov_b32 s{sMODE}, 0")
    mk_srd(SRD_WS, pWS, WS_SIZE)
    mk_srd(SRD_DBG, pDBG, 256)


vK, vV, vKd, vVd, vL, vQ, vT = 1, 2, 3, 4, 5, 6, 7
MASK = 8
QA = 12
DT = 20
vCM, vLS, vMX, vPO, vX = 32, 33, 34, 35, 36
vCMr, vCMw, vF = 3, 4, 30
vFA, vFD = 36, 3
SC = 37
STG_A = [56, 60, 64, 68]
NSLOT = 19
XBASE = 4 * NSLOT * 2048
MLBASE = XBASE + 6144


def half(h):
    return ("v", 72 + 8 * h) if h < 23 else ("a", 8 * (h - 23))


NKA = 37
NVREG = 18
KVBYTES = 67108864

PSTRIDE = 16384
sHB = 59
A(f"s_sub_u32 s{sSP}, s{sSP}, 4")
A(f"s_mul_i32 s{sT1}, s{sSP}, 36\ns_min_u32 s{sT2}, s{sSP}, 16\ns_add_u32 s{sT1}, s{sT1}, s{sT2}\ns_lshl_b32 s{sT1}, s{sT1}, 13")
A(f"s_lshl_b32 s{sT3}, s{sG}, 23\ns_add_u32 s{sOFFA36}, s{sT1}, s{sT3}")
A(f"s_lshl_b32 s{sT0}, s{sWAVE}, 12\ns_add_u32 s{sOFFA}, s{sOFFA36}, s{sT0}")
A(f"s_mul_i32 s{sLDSW}, s{sWAVE}, {NSLOT*2048}")
A(f"v_lshrrev_b32 v20, 4, v0       ; s / row")
A(f"v_and_b32 v21, 15, v0          ; j")
A(f"v_lshlrev_b32 v25, 4, v21")
A(f"v_lshl_add_u32 v{vV}, v20, 9, v25")
A(f"v_add_u32 v{vVd}, 768, v{vV}")
A("s_waitcnt lgkmcnt(0)")
mk_srd(SRD_VA, pAV, KVBYTES)


def late_setup():
    common_setup()
    mk_srd(SRD_KA, pAK, KVBYTES)
    mk_srd(SRD_KB, pBK, KVBYTES)
    mk_srd(SRD_VB, pBV, KVBYTES)
    stamp(0)
    A(f"v_and_b32 v{vFA}, 7, v0\nv_lshlrev_b32 v{vFA}, 5, v{vFA}")
    A(f"s_cmp_eq_u32 s{sWAVE}, 0\ns_cbranch_scc0 L_nc")
    A(f"v_mov_b32 v{vT}, s{sID}\ns_lshl_b64 exec, 1, s{sG}")
    A(f"buffer_store_byte v{vT}, v{vFA}, {srd(SRD_DBG)}, s{sSP} offen offset:4 sc1\ns_mov_b64 exec, -1")
    A("L_nc:")
    A(f"s_cmp_lt_u32 s{sSP}, 16")
    A(f"s_cselect_b32 s{sT2}, 36, 35")
    A(f"s_cselect_b32 s{sBIASA}, 0, {NEG_INF}")
    A(f"s_lshl_b32 s{sT2}, s{sT2}, 13\ns_lshl_b32 s{sT0}, s{sWAVE}, 11\ns_add_u32 s{sT2}, s{sT2}, s{sT0}")
    A(f"s_add_u32 s{sOFFA36}, s{sOFFA36}, s{sT2}")
    A(f"s_mul_i32 s{sT1}, s{sSP}, 9\ns_max_u32 s{sT2}, s{sSP}, 24\ns_sub_u32 s{sT2}, s{sT2}, 24\ns_add_u32 s{sT1}, s{sT1}, s{sT2}")
    A(f"s_lshl_b32 s{sT1}, s{sT1}, 13\ns_add_u32 s{sT1}, s{sT1}, s{sT3}\ns_add_u32 s{sT1}, s{sT1}, {12288*512}")
    A(f"s_lshl_b32 s{sT2}, s{sWAVE}, 12\ns_add_u32 s{sOFFB}, s{sT1}, s{sT2}")
    A(f"s_add_u32 s{sOFFB8}, s{sT1}, s{sT0}\ns_add_u32 s{sOFFB8}, s{sOFFB8}, {32*2048}")
    A(f"s_cmp_ge_u32 s{sSP}, 24")
    A(f"s_cselect_b32 s{sT1}, 1, 0")
    A(f"s_cselect_b32 s{sBIASB}, 0, {NEG_INF}")
    A(f"s_lshl_b32 s{sT1}, s{sT1}, 13")
    A(f"s_add_u32 s{sOFFB9}, s{sOFFB8}, s{sT1}")
    for p in range(4):
        A(f"s_add_u32 s{sBO+p}, s{sOFFB}, {p*PSTRIDE}")
    A(f"s_mov_b32 s{sBO+4}, s{sOFFB8}\ns_mov_b32 s{sBO+5}, s{sOFFB9}")
    A(f"v_and_b32 v22, 3, v0           ; c")
    A(f"v_bfe_u32 v23, v0, 2, 2        ; a")
    A(f"v_lshl_add_u32 v24, v20, 2, v22   ; 4s+c")
    A(f"v_lshlrev_b32 v24, 4, v24")
    A(f"v_lshl_add_u32 v{vK}, v23, 9, v24")
    A(f"v_lshl_add_u32 v{vL}, v0, 4, s{sLDSW}")
    A(f"v_lshrrev_b32 v27, 3, v21      ; head(j)")
    A(f"v_lshl_add_u32 v{vQ}, v27, 9, v24")
    A(f"v_lshrrev_b32 v27, 5, v0\nv_mul_u32_u24 v27, 28672, v27\nv_lshl_add_u32 v27, v21, 5, v27")
    A(f"v_and_b32 v28, 1, v20\nv_lshl_add_u32 v{vPO}, v28, 4, v27")
    A(f"s_lshl_b32 s{sQOFF}, s{sG}, 10")
    A(f"s_mul_i32 s{sPOOFF}, s{sG}, 56\ns_add_u32 s{sPOOFF}, s{sPOOFF}, s{sSP}\ns_lshl_b32 s{sPOOFF}, s{sPOOFF}, 10\ns_add_u32 s{sPOOFF}, s{sPOOFF}, {WS_PO}")
    A(f"s_lshl_b32 s{sMLOFF}, s{sG}, 13\ns_lshl_b32 s{sT0}, s{sSP}, 7\ns_add_u32 s{sMLOFF}, s{sMLOFF}, s{sT0}\ns_add_u32 s{sMLOFF}, s{sMLOFF}, {WS_ML}")
    emit_masks(0, MASK, 20, 21)


def ld_items_reg(srdr, voff, soff_base, ulist, regs_of):
    items = []
    i = 0
    while i < len(ulist):
        u = ulist[i]
        pair = ulist[i:i + 2]
        assert u % 2 == 0
        pre = f"s_add_u32 s{sT0}, s{soff_base}, {(u//2)*PSTRIDE}"
        first = True
        for k, uu in enumerate(pair):
            for m in range(2):
                txt = f"buffer_load_dwordx4 {vr(radd(regs_of(uu), 4*m))}, v{voff}, {srd(srdr)}, s{sT0} offen offset:{k*2048+m*256} nt"
                if first:
                    txt = pre + "\n" + txt
                    first = False
                items.append((txt, uu))
        i += 2
    return items


def ld_items_lds(srdr, voff, voffd, soff_base, ulist, slot_of):
    items = []
    i = 0
    while i < len(ulist):
        u = ulist[i]
        pair = ulist[i:i + 2]
        assert u % 2 == 0
        d = (u // 2) * PSTRIDE - 768
        pre = (f"s_add_u32 s{sT1}, s{soff_base}, {d}" if d >= 0 else f"s_sub_u32 s{sT1}, s{soff_base}, {-d}")
        pre += f"\ns_add_u32 s{sT2}, s{sLDSW}, {slot_of(u)*2048}\ns_mov_b32 m0, s{sT2}\ns_nop 0"
        first = True
        for k, uu in enumerate(pair):
            assert slot_of(uu) == slot_of(u) + k
            for m in range(2):
                v = voffd if m == 0 else voff
                txt = f"buffer_load_dwordx4 v{v}, {srd(srdr)}, s{sT1} offen offset:{k*2048+m*1024} nt lds"
                if first:
                    txt = pre + "\n" + txt
                    first = False
                items.append((txt, uu))
        i += 2
    return items


class GRing:
    def __init__(self, keys, text_of, quads):
        self.keys, self.text_of, self.quads = keys, text_of, quads
        self.pos = {k: i for i, k in enumerate(keys)}
        self.issued = 0
        self.landed = 0

    def issue(self, upto):
        out = []
        while self.issued < min(upto, len(self.keys)):
            out.append(self.text_of(self.keys[self.issued], self.quads[self.issued % len(self.quads)]))
            self.issued += 1
        return "\n".join(out)

    def consume(self, key):
        i = self.pos[key]
        w = "" if i < self.landed else f"s_waitcnt vmcnt({self.issued - i - 1})\n"
        return w, self.quads[i % len(self.quads)], i + 1 + len(self.quads)


def qk_groups(n, ksrc, bias_sgpr, stg, hook=None):
    G = []
    nC = (n + 1) // 2
    G.append((f"v_mov_b32 v{vMX}, {NEG_INF}" + (f"\nv_mov_b32 v{SC+nC-1}, {NEG_INF}" if n & 1 else ""), None))
    reads = [(u, m) for u in range(n) if ksrc(u)[0] == "lds" for m in range(2)]
    rpos = {rm: i for i, rm in enumerate(reads)}
    issued = [0]

    def issue_reads(upto, out):
        while issued[0] < min(upto, len(reads)):
            u, m = reads[issued[0]]
            q = stg[issued[0] % len(stg)]
            out.append((f"ds_read_b128 {vr(q)}, v{vL} offset:{ksrc(u)[1]*2048+m*1024}", ksrc(u)[2]))
            issued[0] += 1

    pre = []
    issue_reads(len(stg), pre)

    def bops(u):
        d = DT + 4 * (u % 3)
        c = SC + u // 2
        bm = 0x5 if (u & 1) == 0 else 0xA
        t = f"v_mov_b32_dpp v{d}, v{d} quad_perm:[0,0,0,0] {DPPF}\n"
        t += f"v_add_f32_dpp v{d}, v{d+1}, v{d} quad_perm:[1,1,1,1] {DPPF}\n"
        t += f"v_add_f32_dpp v{d}, v{d+2}, v{d} quad_perm:[2,2,2,2] {DPPF}\n"
        if u == n - 1:
            t += f"v_add_f32 v{d}, s{bias_sgpr}, v{d}\n"
        t += f"v_add_f32_dpp v{c}, v{d+3}, v{d} quad_perm:[3,3,3,3] row_mask:0xf bank_mask:{bm:#x}\n"
        if (u & 1) or u == n - 1:
            t += f"v_max_f32 v{vMX}, v{vMX}, v{c}\n"
        return t

    body = []
    for u in range(n):
        d = DT + 4 * (u % 3)
        src = ksrc(u)
        b = bops(u - 2).strip().split("\n") if u >= 2 else []
        if u == 2:
            b = ["s_nop 4"] + b
        parts = [b[:len(b) // 2], b[len(b) // 2:]]
        for m in range(2):
            cin = "0" if m == 0 else vr(d)
            if src[0] == "reg":
                t = f"v_mfma_f32_16x16x32_bf16 {vr(d)}, {vr(radd(src[1],4*m))}, {vr(QA+4*m)}, {cin}"
                if hook and hook(u, m):
                    t += "\n" + hook(u, m)
                body.append((t, src[2]))
            elif src[0] == "gl":
                w, q, upto = src[1].consume(("K", u, m))
                body.append((w + f"v_mfma_f32_16x16x32_bf16 {vr(d)}, {vr(q)}, {vr(QA+4*m)}, {cin}", None))
                if parts[m]:
                    body.append(("\n".join(parts[m]), None))
                    parts[m] = []
                body.append((src[1].issue(upto), None))
            else:
                i = rpos[(u, m)]
                q = stg[i % len(stg)]
                t = f"s_waitcnt lgkmcnt({issued[0]-i-1})\n"
                t += f"v_mfma_f32_16x16x32_bf16 {vr(d)}, {vr(q)}, {vr(QA+4*m)}, {cin}"
                body.append((t, None))
                issue_reads(i + 1 + len(stg), body)
            if parts[m]:
                body.append(("\n".join(parts[m]), None))
    body.append((bops(n - 2), None))
    body.append(("s_nop 1\n" + bops(n - 1), None))
    return G, pre, body


def max_group():
    t = "s_nop 1\n"
    t += f"v_max_f32_dpp v{vMX}, v{vMX}, v{vMX} row_half_mirror {DPPF}\n"
    t += f"v_mov_b32 v{vT}, v{vMX}\ns_nop 1\nv_permlane32_swap_b32 v{vMX}, v{vT}\nv_max_f32 v{vMX}, v{vMX}, v{vT}\n"
    t += f"v_mov_b32 v{vT}, v{vMX}\ns_nop 1\nv_permlane16_swap_b32 v{vMX}, v{vT}\nv_max_f32 v{vMX}, v{vMX}, v{vT}\n"
    t += f"v_mul_f32 v{vCM}, s{sC}, v{vMX}\nv_mov_b32 v{vLS}, 0\nds_write_b32 v{vCMw}, v{vCM}"
    return (t, None)


def pv_groups(order, vsrc, stg, bar_at, tp):
    T = [DT, DT + 4]
    PP = [DT + 8, DT + 9]
    n = len(order)
    reads = [(u, m) for u in order if vsrc(u)[0] == "lds" for m in range(2)]
    rpos = {rm: i for i, rm in enumerate(reads)}
    issued = [0]
    body = []

    def issue_reads(upto):
        while issued[0] < min(upto, len(reads)):
            u, m = reads[issued[0]]
            q = stg[issued[0] % len(stg)]
            body.append((f"ds_read_b128 {vr(q)}, v{vL} offset:{vsrc(u)[1]*2048+m*1024}", vsrc(u)[2], None))
            issued[0] += 1

    pairs = []
    for u in order:
        if u // 2 not in pairs:
            pairs.append(u // 2)
    pidx = {k: i for i, k in enumerate(pairs)}

    def E(k):
        c = SC + k
        return f"v_fma_f32 v{c}, v{c}, s{sC}, -v{vCM}\nv_exp_f32 v{c}, v{c}\n"

    def F(k):
        c = SC + k
        return f"v_add_f32 v{vLS}, v{vLS}, v{c}\nv_cvt_pk_bf16_f32 v{PP[pidx[k]&1]}, v{c}, v{c}\n"

    def Gm(i):
        u = order[i]
        pp = PP[pidx[u // 2] & 1]
        rho = u & 1
        t = ""
        for r in range(4):
            if (r >> 1) == rho:
                t += f"v_and_b32 v{T[i&1]+r}, v{pp}, v{MASK+r}\n"
        for r in range(4):
            if (r >> 1) != rho:
                sh = "row_shr:4" if rho == 0 else "row_shl:4"
                t += f"v_and_b32_dpp v{T[i&1]+r}, v{pp}, v{MASK+r} {sh} {DPPF} bound_ctrl:0\n"
        return t

    t = E(pairs[0])
    if len(pairs) > 1:
        t += E(pairs[1])
    else:
        t += "s_nop 0\n"
    t += F(pairs[0]) + Gm(0)
    body.append((t, None, None))
    edone = min(2, len(pairs))
    fdone = 1
    first_lds_started = False
    for i in range(n):
        u = order[i]
        nxt = [order[j] for j in range(i, min(n, i + 3))]
        if not first_lds_started and any(vsrc(x)[0] == "lds" for x in nxt):
            issue_reads(len(stg))
            first_lds_started = True
        t = ""
        if i + 1 < n:
            k1 = pidx[order[i + 1] // 2]
            if k1 >= fdone:
                t += F(pairs[k1])
                fdone = k1 + 1
                if edone < len(pairs):
                    t += E(pairs[edone])
                    edone += 1
            t += Gm(i + 1)
        if i == bar_at:
            body.append((f"v_add_u32 v{vT}, s{sW4}, v{vCMr}\ns_waitcnt lgkmcnt(0)\ns_barrier\n"
                         f"ds_read_b64 v[{vF}:{vF+1}], v{vCMr}\nds_read_b64 v[{tp}:{tp+1}], v{vCMr} offset:8\nds_read_b32 v{vT}, v{vT}", None, None))
        if i == min(bar_at + 2, n - 1):
            t += (f"s_waitcnt lgkmcnt(0)\nv_max3_f32 v{vMX}, v{vF}, v{vF+1}, v{tp}\nv_max_f32 v{vMX}, v{vMX}, v{tp+1}\n"
                  f"v_sub_f32 v{vF}, v{vT}, v{vMX}\nv_exp_f32 v{vF}, v{vF}\n")
        tl = [x for x in t.strip().split("\n") if x]
        parts = [tl[:len(tl) // 2], tl[len(tl) // 2:]]
        if not tl:
            parts[0] = ["s_nop 0"]
        src = vsrc(u)
        for m in range(2):
            acc = QA + 4 * m
            cin = "0" if i == 0 else vr(acc)
            if parts[m]:
                body.append(("\n".join(parts[m]), None, None))
            if src[0] == "reg":
                body.append((f"v_mfma_f32_16x16x32_bf16 {vr(acc)}, {vr(T[i&1])}, {vr(radd(src[1],4*m))}, {cin}", src[2], None))
            elif src[0] == "gl":
                w, q, upto = src[1].consume(("V", u, m))
                body.append((w + f"v_mfma_f32_16x16x32_bf16 {vr(acc)}, {vr(T[i&1])}, {vr(q)}, {cin}", None, None))
                body.append((src[1].issue(upto), None, None))
            else:
                j = rpos[(u, m)]
                q = stg[j % len(stg)]
                body.append((f"s_waitcnt lgkmcnt({issued[0]-j-1})\nv_mfma_f32_16x16x32_bf16 {vr(acc)}, {vr(T[i&1])}, {vr(q)}, {cin}", None, u if m == 1 else None))
                issue_reads(j + 1 + len(stg))
    return body


def emit_groups(gs):
    for g in gs:
        A(g[0])


def clear_next(t4, ta):
    sk, far = A.label("clsk"), A.label("clfar")
    A(f"s_cmp_lt_u32 s{sWAVE}, 2\ns_cbranch_scc1 {sk}")
    for r in range(4):
        A(f"v_mov_b32 v{t4+r}, -1")
    A(f"v_lshlrev_b32 v{ta}, 4, v0")
    A(f"s_sub_u32 s{sT3}, s{sWAVE}, 2\ns_lshl_b32 s{sCL}, s{sT3}, 12\ns_add_u32 s{sCL}, s{sCL}, s{sMLOFF}\ns_add_u32 s{sCL}, s{sCL}, {ML_L}")
    A(f"s_mul_i32 s{sT3}, s{sT3}, 28672\ns_add_u32 s{sT3}, s{sT3}, s{sPOOFF}\ns_add_u32 s{sT3}, s{sT3}, {PO_L}")
    A(f"s_cmp_eq_u32 s{sMODE}, 1\ns_cbranch_scc0 {far}")
    for fl in ("", " sc1"):
        if fl:
            A(f"{far}:")
        A(f"buffer_store_dwordx4 {vr(t4)}, v{ta}, {srd(SRD_WS)}, s{sT3} offen{fl}")
        A(f"s_mov_b64 exec, 1\nbuffer_store_dwordx2 {vr(t4, 2)}, v{ta}, {srd(SRD_WS)}, s{sCL} offen{fl}\ns_mov_b64 exec, -1")
        if not fl:
            A(f"s_branch {sk}")
    A(f"{sk}:\ns_nop 1")


def code_prefetch(lab_from, nbytes, vaddr, vjunk, sp):
    here = A.label("pc")
    A(f"s_getpc_b64 s[{sp}:{sp+1}]\n{here}:")
    A(f"s_add_u32 s{sp}, s{sp}, {lab_from}-{here}\ns_addc_u32 s{sp+1}, s{sp+1}, {'-1' if lab_from in BACKWARD else '0'}")
    A(f"v_lshlrev_b32 v{vaddr}, 6, v0")
    for o in range(0, nbytes, 4096):
        A(f"global_load_dword v{vjunk}, v{vaddr}, s[{sp}:{sp+1}]")
        if o + 4096 < nbytes:
            A(f"v_add_u32 v{vaddr}, 4096, v{vaddr}")


BACKWARD = set()


def cm_addr():
    A(f"v_lshrrev_b32 v{vCMr}, 5, v0\nv_lshlrev_b32 v{vCMr}, 4, v{vCMr}\nv_add_u32 v{vCMr}, {MLBASE}, v{vCMr}")
    A(f"v_bfe_u32 v{vCMw}, v0, 3, 1\nv_lshlrev_b32 v{vCMw}, 4, v{vCMw}\nv_add_u32 v{vCMw}, s{sW4}, v{vCMw}\nv_add_u32 v{vCMw}, {MLBASE}, v{vCMw}")


def q_loads():
    return (f"buffer_load_dwordx4 {vr(QA)}, v{vQ}, {srd(SRD_WS)}, s{sQOFF} offen sc1\n"
            f"buffer_load_dwordx4 {vr(QA+4)}, v{vQ}, {srd(SRD_WS)}, s{sQOFF} offen offset:256 sc1")


def poll_q_blocking():
    lp, done = A.label("qpoll"), A.label("qdone")
    A(f"{lp}:")
    spin_guard(done)
    if os.environ.get("QPS"):
        A(f"s_sleep {os.environ['QPS']}")
    A(q_loads())
    A("s_waitcnt vmcnt(0)")
    sentinel_check(range(QA, QA + 8), vT, lp)
    A(f"{done}:")
    A("s_nop 1")


VL_UNITS = list(range(NVREG, NKA))
vslot = lambda u: u - NVREG
loads = []
it = ld_items_lds(SRD_VA, vV, vVd, sOFFA, VL_UNITS[:-1], vslot)
loads += [(t, ("V", u), None) for t, u in it]
it = ld_items_lds(SRD_VA, vV, vVd, sOFFA36, [0], lambda u: vslot(36))
loads += [(t, ("V", 36), None) for t, u in it]
it = ld_items_reg(SRD_KA, vK, sOFFA, list(range(36)), half)
kl = [(t, ("K", u), None) for t, u in it]
it = ld_items_reg(SRD_KA, vK, sOFFA36, [0], lambda u: half(36))
kl += [(t, ("K", 36), None) for t, u in it]
ca_load = (f"buffer_load_dword v{vCM}, v{vFA}, {srd(SRD_DBG)}, 0 offen sc1", ("CA",), None)
FPOS = 32
NOCA = int(os.environ.get("NOCA", "0"))
QK0 = int(os.environ.get("QK0", "40"))
loads += kl[:QK0 - 20] + ([] if NOCA else [ca_load]) + kl[QK0 - 20:QK0]
QPOS = len(loads)
loads += kl[QK0:]
it = ld_items_reg(SRD_VA, vV, sOFFA, list(range(NVREG)), lambda u: half(NKA + u))
loads += [(t, ("V", u), None) for t, u in it]
NA_LOADS = len(loads)
sBO = 52
vPF, vJ = 42, 43
XD = int(os.environ.get("XD", "4"))
STG_B = [44, 48, 52, 56, 60, 64, 68]
RING_B = STG_B + [radd(half(NKA + u), 4 * m) for u in range(NVREG - XD, NVREG) for m in range(2)]
NPRE = len(RING_B)
PFS = int(os.environ.get("PFS", "6"))
bpf = []
first = True
for srdr, nm in ((SRD_KB, "K"), (SRD_VB, "V")):
    for p in range(6):
        nbytes = 4096 if p < 4 else 2048
        per = 64 << PFS
        for o in range(0, nbytes, per):
            nbefore = (0 if nm == "K" else 20) + (4 * p if p < 4 else 16 + 2 * (p - 4))
            if nbefore + nbytes // 1024 <= NPRE:
                continue
            t = ""
            if first:
                t += f"v_lshlrev_b32 v{vPF}, {PFS}, v0\n"
                first = False
            lanes = min(64, nbytes >> PFS)
            if lanes < 64:
                t += f"s_mov_b64 exec, {(1 << lanes) - 1}\n" if lanes < 32 else "s_mov_b32 exec_hi, 0\n"
            t += f"buffer_load_dword v{vJ}, v{vPF}, {srd(srdr)}, s{sBO+p} offen offset:{o}"
            if lanes < 64:
                t += "\ns_mov_b64 exec, -1"
            bpf.append((t, ("PF", len(bpf)), None))
GATE = 0
NB_EARLY = int(os.environ.get('NBE', '0'))
BL = bpf
early = [(t.replace(f"v{vPF},", "v62,").replace(f"v{vJ},", "v63,"), tag, NSLOT - 1) for t, tag, req in BL[:NB_EARLY]]
loads += early
if NB_EARLY:
    t0_, tag0_, r0_ = BL[NB_EARLY]
    BL[NB_EARLY] = (f"v_lshlrev_b32 v{vPF}, {PFS}, v0\n" + t0_, tag0_, r0_)

ksrcA = lambda u: ("reg", half(u), ("K", u))
vsrcA = lambda u: ("reg", half(NKA + u), ("V", u)) if u < NVREG else ("lds", vslot(u), ("V", u))

g0, pre, body = qk_groups(NKA, ksrcA, sBIASA, STG_A)
comp = [(t, n, None) for t, n in g0 + pre + body] + [max_group() + (None,)]
comp += pv_groups(VL_UNITS + list(range(NVREG)), vsrcA, STG_A, 33, STG_A[0])

EXP = os.environ.get("EXP", "")
if EXP:
    order = loads[:NA_LOADS] + BL
    if "r" in EXP:
        order = [(t, ("K", u), None) for t, u in ld_items_reg(SRD_KA, vV if "v" in EXP else vK, sOFFA, list(range(36)), half)]
        order += [(t, ("V", u), None) for t, u in ld_items_reg(SRD_VA, vV, sOFFA, list(range(36)), lambda u: half(u + 18))]
        order += [(t, ("BK", u), None) for t, u in ld_items_reg(SRD_KB, vV if "v" in EXP else vK, sOFFB, list(range(8)), half)]
        order += [(t, ("BV", u), None) for t, u in ld_items_reg(SRD_VB, vV, sOFFB, list(range(8)), lambda u: half(u + 18))]
    for i, (t, tag, req) in enumerate(order):
        if tag == ("CA",): continue
        if tag == ("BK", 0) and "s_add" in t:
            stamp(3)
        if i in (30, 60, 90, 120): stamp(15 + (30, 60, 90, 120).index(i))
        A(t)
        if os.environ.get("THR"): A(f"s_waitcnt vmcnt({os.environ['THR']})")
    A("s_waitcnt vmcnt(0)")
    stamp(4)
    A("s_branch L_fin")
THR = int(os.environ.get("THR", "4"))
THRX = int(os.environ.get("THRX", "0"))
TSCH = eval(os.environ.get("TSCH", "[(0,4),(118,0)]"))
VPOL = int(os.environ.get("VPOL", "0"))
THR2 = int(os.environ.get("THR2", "0"))
THRB = int(os.environ.get("THRB", "0"))
LAG = int(os.environ.get("LAG", "10"))
last_of = {}
nissued = 0
released = set()
ci = 0


def emit_comp(g):
    t, need, rel = g
    if need is not None:
        n = nissued - last_of[need] - 1
        A(f"s_waitcnt vmcnt({min(n, 63)})")
    A(t)
    if rel is not None:
        released.add(vslot(rel))


qready = False
li = 0
done_pos = set()
LEAD = int(os.environ.get("LEAD", "0"))
ADAPT = int(os.environ.get("ADAPT", "0"))
ATHR = int(os.environ.get("ATHR", "3"))
sTHR = 51
MARKS = ([40, 56, 72, 88, 104, 120] if LEAD else [-1] * 6) + [NA_LOADS - GATE] if GATE else []
if ADAPT:
    MARKS = [34, 50, 66, 82, 98, 114, 130]
    A(f"s_mov_b32 s{sTHR}, 0")


RATE = int(os.environ.get("RATE", "0"))
sRT0, sRT = 64, 66
if RATE:
    pass


def rate_ctl(li):
    if RATE and li % 6 == 0 and 12 <= li:
        A(f"s_memrealtime s[{sRT}:{sRT+1}]")
    if RATE and li % 6 == 1 and 12 <= li:
        A(f"s_waitcnt lgkmcnt(0)\ns_sub_u32 s{sRT}, s{sRT}, s{sRT0}\ns_cmp_lt_u32 s{sRT}, {max(0, (li - int(os.environ.get('ROFF', '4'))) * RATE // 10)}\ns_cselect_b32 s{sTHR}, 1, 0")


def athr():
    if ADAPT or RATE:
        sk = A.label("nt")
        A(f"s_cmp_eq_u32 s{sTHR}, 0\ns_cbranch_scc1 {sk}\ns_waitcnt vmcnt({ATHR})\n{sk}:")


flow_load = f"buffer_load_ubyte v{vFD}, v{vFA}, {srd(SRD_DBG)}, 0 offen offset:4 sc1"


def flow_wait(k, n):
    ok, lp, ck = A.label("flok"), A.label("fllp"), A.label("flck")
    if n is not None:
        A(f"s_waitcnt vmcnt({n})\ns_branch {ck}")
    A(f"{lp}:")
    spin_guard(ok)
    A(f"{flow_load}\ns_waitcnt vmcnt(0)")
    A(f"{ck}:\nv_cmp_gt_u32 vcc, {k << 4}, v{vFD}\ns_nop 0\ns_cmp_lg_u64 vcc, 0\ns_cbranch_scc0 {ok}\ns_sleep 4\ns_branch {lp}")
    A(f"{ok}:")


while li < len(loads):
    if li in MARKS and li not in done_pos:
        k = MARKS.index(li) + 1
        nf = A.label("nomark")
        A(f"s_or_b32 s{sT3}, s{sWAVE}, s{sSP}\ns_cmp_eq_u32 s{sT3}, 0\ns_cbranch_scc0 {nf}")
        A(f"s_or_b32 s{sT3}, s{sID}, {k << 4}\nv_mov_b32 v{vT}, s{sT3}\ns_lshl_b64 exec, 1, s{sG}")
        A(f"buffer_store_byte v{vT}, v{vFA}, {srd(SRD_DBG)}, 0 offen offset:4 sc1\ns_mov_b64 exec, -1")
        A(f"{nf}:")
    if LEAD and (li - LEAD + 8) in MARKS[:-1] and li + 8 < NA_LOADS and li not in done_pos:
        A(flow_load)
        last_of[("FL",)] = nissued
        nissued += 1
    if LEAD and (li - LEAD) in MARKS[:-1] and li < NA_LOADS and li not in done_pos:
        k = MARKS.index(li - LEAD) + 1
        flow_wait(k, nissued - last_of[("FL",)] - 1)
    if ADAPT and (li - ADAPT) in MARKS and li + 8 < NA_LOADS and li not in done_pos:
        A(flow_load)
        last_of[("FL",)] = nissued
        nissued += 1
    if ADAPT and (li - ADAPT - 8) in MARKS and li < NA_LOADS and li not in done_pos:
        k = MARKS.index(li - ADAPT - 8) + 1
        A(f"s_waitcnt vmcnt({nissued - last_of[('FL',)] - 1})")
        A(f"v_cmp_gt_u32 vcc, {k << 4}, v{vFD}\ns_nop 0\ns_cmp_lg_u64 vcc, 0\ns_cselect_b32 s{sTHR}, 1, 0")
    if os.environ.get("PROG") and li in (30, 60, 90, 120) and li not in done_pos:
        if li == 120 and PROFILE: A("s_waitcnt lgkmcnt(0)")
        stamp(15 + (30, 60, 90, 120).index(li))
    if li == 4 and li not in done_pos:
        late_setup()
        if RATE:
            A(f"s_mov_b32 s{sTHR}, 0\ns_memrealtime s[{sRT0}:{sRT0+1}]")
    done_pos.add(li)
    if li == QPOS and NOCA:
        A(f"s_mov_b32 s{sMODE}, 1")
        A(q_loads())
        nissued += 2
        last_of[("Q",)] = nissued - 1
    if li == QPOS and not NOCA:
        n = nissued - last_of[("CA",)] - 1
        ok, lp, ck = A.label("caok"), A.label("calp"), A.label("cack")
        A(f"s_waitcnt vmcnt({n})\ns_branch {ck}")
        A(f"{lp}:")
        spin_guard(ok)
        A(f"{ca_load[0]}\ns_waitcnt vmcnt(0)")
        A(f"{ck}:\nv_readlane_b32 s{sT3}, v{vCM}, s{sG}")
        A(f"s_cmp_eq_u32 s{sT3}, s{sID}\ns_cselect_b32 s{sMODE}, 1, 0")
        A(f"s_add_u32 s{sT3}, s{sT3}, 0x7f7f7f7f\ns_and_b32 s{sT3}, s{sT3}, 0x80808080\ns_cmp_eq_u32 s{sT3}, 0x80808080\ns_cbranch_scc0 {lp}")
        A(f"{ok}:")
        clear_next(DT, vT)
        A(q_loads())
        nissued += 2
        last_of[("Q",)] = nissued - 1
    if li == QPOS + 12:
        n = nissued - last_of[("Q",)] - 1
        slow, ok = A.label("qslow"), A.label("qok")
        A(f"s_waitcnt vmcnt({n})")
        sentinel_check(range(QA, QA + 8), vT, slow)
        A(f"s_branch {ok}\n{slow}:")
        poll_q_blocking()
        A(f"{ok}:")
        stamp(1)
        A(f"s_lshl_b32 s{sW4}, s{sWAVE}, 2")
        cm_addr()
        if RATE:
            A(f"s_mov_b32 s{sTHR}, 0")
        qready = True
    t, tag, req = loads[li]
    if req is not None and req not in released:
        emit_comp(comp[ci])
        ci += 1
        continue
    A(t.replace(" nt", "") if li < VPOL else t)
    if TSCH:
        tv = [v for (p, v) in TSCH if li >= p][-1]
        if tv:
            A(f"s_waitcnt vmcnt({tv})")
    elif THR and not qready:
        A(f"s_waitcnt vmcnt({THR + (THRX if li & 1 else 0)})")
    if THR2 and qready:
        A(f"s_waitcnt vmcnt({THR2})")
    if li > (12 if RATE else 40) and not (RATE and qready):
        athr()
    if not qready:
        rate_ctl(li)
    last_of[tag] = nissued
    nissued += 1
    li += 1
    if qready:
        cnt = 0
        while ci < len(comp) and cnt < int(os.environ.get("GPL", "8")):
            need = comp[ci][1]
            if need is not None and (need not in last_of or nissued - last_of[need] - 1 < LAG or
                                     (li < len(loads) and loads[li][1] == need)):
                break
            emit_comp(comp[ci])
            ci += 1
            cnt += 1
stamp(2)
A(f"s_max_u32 s{sT3}, s{sWAVE}, 1\ns_lshl_b32 s{sT3}, s{sT3}, 10\ns_add_u32 s{sT3}, s{sT3}, {XBASE - 1024}\nv_lshl_add_u32 v{vX}, v0, 4, s{sT3}")
while ci < len(comp):
    emit_comp(comp[ci])
    ci += 1

A("L_reduce:")
A(f"v_add_f32_dpp v{vLS}, v{vLS}, v{vLS} row_half_mirror {DPPF}")
xrow_reduce("v_add_f32", vLS, vT)
A(f"v_mul_f32 v{vLS}, v{vLS}, v{vF}\ns_mov_b32 exec_lo, 1\ns_mov_b32 exec_hi, 0x100")
A(f"ds_write_b32 v{vCMw}, v{vLS} offset:32\ns_mov_b64 exec, -1")
for r in range(0, 8, 2):
    A(f"v_pk_mul_f32 v[{QA+r}:{QA+r+1}], v[{QA+r}:{QA+r+1}], v[{vF}:{vF+1}] op_sel_hi:[1,0]")
XR = 20
xr = [20, 24, 56]
A(f"s_cmp_eq_u32 s{sWAVE}, 0\ns_cbranch_scc0 L_red_n0")
for wv in range(2):
    own, give = QA + 4 * wv, QA + 4 * (1 - wv)
    if wv == 1:
        A("L_red_1:")
    A(f"ds_write_b128 v{vX}, {vr(give)} offset:{3072*(1-wv)}")
    A(f"s_add_u32 s{sT0}, s{sPOOFF}, {512*wv}\ns_cmp_eq_u32 s{sMODE}, 1")
    A("s_waitcnt lgkmcnt(0)\ns_barrier")
    for s_ in range(3):
        A(f"ds_read_b128 {vr(xr[s_])}, v{vX} offset:{3072*wv+1024*s_}")
    for s_ in range(3):
        A(f"s_waitcnt lgkmcnt({2-s_})")
        for r in (0, 2):
            A(f"v_pk_add_f32 v[{own+r}:{own+r+1}], v[{own+r}:{own+r+1}], v[{xr[s_]+r}:{xr[s_]+r+1}]")
    for r in range(4):
        A(f"v_min_u32 v{own+r}, -2, v{own+r}")
    far = A.label("far")
    A(f"s_cbranch_scc0 {far}")
    A(f"buffer_store_dwordx4 {vr(own)}, v{vPO}, {srd(SRD_WS)}, s{sT0} offen\ns_branch L_red_done")
    A(f"{far}:\nbuffer_store_dwordx4 {vr(own)}, v{vPO}, {srd(SRD_WS)}, s{sT0} offen sc1\ns_branch L_red_done")
A("L_red_n0:")
A(f"s_cmp_eq_u32 s{sWAVE}, 1\ns_cbranch_scc1 L_red_1")
A(f"ds_write_b128 v{vX}, {vr(QA)}\nds_write_b128 v{vX}, {vr(QA+4)} offset:3072")
A(f"v_lshrrev_b32 v{vT}, 5, v0\nv_lshlrev_b32 v{vT}, 12, v{vT}\nv_min_u32 v24, -2, v{vMX}")
A(f"s_cmp_eq_u32 s{sWAVE}, 2")
A("s_waitcnt lgkmcnt(0)\ns_barrier\ns_cbranch_scc0 L_red_done")
A(f"ds_read_b128 v[20:23], v{vCMr} offset:32\ns_cmp_eq_u32 s{sMODE}, 1\ns_waitcnt lgkmcnt(0)")
A("v_add_f32 v20, v20, v21\nv_add_f32 v22, v22, v23\nv_add_f32 v25, v20, v22\nv_min_u32 v25, -2, v25")
A("s_mov_b32 exec_lo, 1\ns_mov_b32 exec_hi, 1\ns_cbranch_scc0 L_ml_far")
A(f"buffer_store_dwordx2 v[24:25], v{vT}, {srd(SRD_WS)}, s{sMLOFF} offen\ns_branch L_ml_done")
A(f"L_ml_far:\nbuffer_store_dwordx2 v[24:25], v{vT}, {srd(SRD_WS)}, s{sMLOFF} offen sc1")
A("L_ml_done:\ns_mov_b64 exec, -1")
A("L_red_done:")
A("s_barrier")
A(f"s_add_u32 s{sQOFF}, s{sQOFF}, 8192\ns_add_u32 s{sPOOFF}, s{sPOOFF}, {PO_L}\ns_add_u32 s{sMLOFF}, s{sMLOFF}, {ML_L}")
A(f"s_add_u32 s{sLAYER}, s{sLAYER}, 1")
A(f"s_cmp_eq_u32 s{sLAYER}, 2\ns_cbranch_scc1 L_after2")
A(f"s_cmp_eq_u32 s{sLAYER}, 3\ns_cbranch_scc1 L_after3")
A(f"s_cmp_eq_u32 s{sLAYER}, 4\ns_cbranch_scc1 L_att_end")
stamp(3)
if GATE:
    vFA = vT
    flow_load = f"buffer_load_ubyte v{vFD}, v{vFA}, {srd(SRD_DBG)}, 0 offen offset:4 sc1"
    A(f"v_and_b32 v{vFA}, 7, v0\nv_lshlrev_b32 v{vFA}, 5, v{vFA}")
    flow_wait(7, None)
    stamp(13)


DRYS = os.environ.get("DRYS", "")


def stream_then_q(items, E, st_a, st_b, thr=0, pre=(), dry=None):
    n = len(items)
    for i, (t, tag, req) in enumerate(items):
        if i == n - E:
            A(q_loads())
        A(t)
        if thr and i < n - E:
            A(f"s_waitcnt vmcnt({thr})")
        if st_a == 4 and i < n - E and os.environ.get("ATHB"):
            athr()
            rate_ctl(NA_LOADS + NB_EARLY + i + 6)
    if dry and int(os.environ.get("CPL", "1")):
        code_prefetch(f"L_{dry}_body", 8192 if dry == "l3" else 4096, STG_A[3], STG_A[3] + 1, sT2)
    if dry and dry in DRYS:
        A(f"s_mov_b64 exec, 0\ns_branch L_{dry}_body\nL_{dry}_ret:\ns_mov_b64 exec, -1\ns_nop 7")
    if E == 0:
        qs = int(os.environ.get(f"QS{st_a}", "0"))
        if qs:
            A(f"s_sleep {qs}")
        A(q_loads())
    slow, ok = A.label("qslow"), A.label("qok")
    A(f"s_waitcnt vmcnt({E})")
    stamp(st_a)
    emit_groups(pre)
    sentinel_check(range(QA, QA + 8), vT, slow)
    A(f"s_branch {ok}\n{slow}:")
    poll_q_blocking()
    A(f"{ok}:")
    stamp(st_b)
    if dry:
        A(f"L_{dry}_body:")
    younger = {}
    for i, (t, tag, req) in enumerate(items):
        if i >= n - E:
            younger[tag] = n - 1 - i
    return younger


def emit_counted(gs, younger, extra=None, every=1):
    extra = list(extra or [])
    cnt = 0
    for g in gs:
        need = g[1]
        if need in younger:
            A(f"s_waitcnt vmcnt({younger[need]})")
            lim = younger[need]
            for k in [k for k, v in younger.items() if v >= lim]:
                del younger[k]
        A(g[0])
        if "v_mfma" in g[0]:
            cnt += 1
            if extra and cnt % every == 0:
                t, tag, req = extra.pop(0)
                A(t)
                for k in younger:
                    younger[k] += 1
                younger[tag] = 0
    assert not extra


def btext(key, q):
    nm, u, m = key
    p, o = (u // 2, (u & 1) * 2048) if u < 8 else (u - 4, 0)
    return f"buffer_load_dwordx4 {vr(q)}, v{vK if nm == 'K' else vV}, {srd(SRD_KB if nm == 'K' else SRD_VB)}, s{sBO+p} offen offset:{o+256*m}"


ring = GRing([(nm, u, m) for nm in "KV" for u in range(10) for m in range(2)], btext, RING_B)
clear_next(DT, vT)
A(ring.issue(NPRE))
ring.landed = NPRE
CPF = int(os.environ.get("CPF", "2"))
if CPF:
    code_prefetch("L_l2body", CPF * 4096, vPF, vJ, sT0)
ksrcB = lambda u: ("gl", ring, None)
g0, pre, body = qk_groups(10, ksrcB, sBIASB, STG_B)
emit_groups(g0)
yg = stream_then_q(BL[NB_EARLY:], int(os.environ.get("E2", "2")), 4, 5)
A("L_l2body:")
emit_groups(body + [max_group()] + pv_groups(list(range(10)), ksrcB, STG_B, 5, 42))
A("s_branch L_reduce")

A("L_after2:")
stamp(6)
def hook3(u, m):
    j = 2 * (u - 1) + m
    if u >= 1 and j < 2 * NSLOT:
        w = "s_waitcnt lgkmcnt(6)\n" if j % 8 == 7 else ""
        return w + f"ds_read_b128 {vr(radd(half(j // 2), 4 * (j & 1)))}, v{vL} offset:{j*1024}"
    return None


g0, pre, body = qk_groups(NKA, ksrcA, sBIASA, STG_A, hook3)
vsrc3 = lambda u: ("reg", half(NKA + u) if u < NVREG else half(u - NVREG), None)
clear_next(DT, vT)
emit_groups(g0)
rl = ld_items_reg(SRD_VA, vV, sOFFA, list(range(NVREG - XD, NVREG)), lambda u: half(NKA + u)) if XD else []
yg = stream_then_q([(t, ("V", u), None) for t, u in rl], 0, 14, 7, dry="l3")
emit_counted(body, yg)
emit_groups([max_group()])
stamp(8)
HB1 = 0
b4 = []
for srdr, voff, base, nm in ((SRD_KB, vK, 0, "BK"), (SRD_VB, vV, 10, "BV")):
    b4 += [(t, (nm, u), None) for t, u in ld_items_reg(srdr, voff, sOFFB, list(range(8)), lambda u: half(base + u))]
    b4 += [(t, (nm, 8), None) for t, u in ld_items_reg(srdr, voff, sOFFB8, [0], lambda u: half(base + 8))]
    b4 += [(t, (nm, 9), None) for t, u in ld_items_reg(srdr, voff, sOFFB9, [0], lambda u: half(base + 9))]
NB4 = int(os.environ.get("NB4", "0"))
order3 = list(range(NVREG)) + [NVREG + x for x in list(range(HB1, NSLOT)) + list(range(0, HB1))]
emit_groups(pv_groups(order3, vsrc3, STG_A, 12, STG_A[0]))
stamp(15)
if "l3" in DRYS:
    A("s_cbranch_execz L_l3_ret")
A("s_branch L_reduce")

A("L_after3:")
if os.environ.get("WBL") == "2":
    A(f"s_cmp_eq_u32 s{sSP}, 27\ns_cbranch_scc0 L_wb_skip2\ns_cmp_eq_u32 s{sWAVE}, 3\ns_cbranch_scc0 L_wb_skip2")
    A("buffer_wbl2 sc1")
    A("L_wb_skip2:")
stamp(9)
ksrc4 = lambda u: ("reg", half(u), ("BK", u))
vsrc4 = lambda u: ("reg", half(10 + u), ("BV", u))
g0, pre, body = qk_groups(10, ksrc4, sBIASB, STG_B)
emit_groups(g0)
yg = stream_then_q(b4[NB4:], int(os.environ.get("E4", "0")), 10, 11, int(os.environ.get("THR4", "0")), dry="l4")
emit_counted(body + [max_group()] + pv_groups(list(range(10)), vsrc4, STG_B, 5, 42), yg)
if "l4" in DRYS:
    A("s_cbranch_execz L_l4_ret")
A("s_branch L_reduce")

A("L_att_end:")
if os.environ.get("WBL"):
    A(f"s_cmp_eq_u32 s{sSP}, 0\ns_cbranch_scc0 L_wb_skip\ns_cmp_eq_u32 s{sWAVE}, 3\ns_cbranch_scc0 L_wb_skip")
    A("buffer_wbl2 sc1\ns_waitcnt vmcnt(0)")
    A("L_wb_skip:")
stamp(12)
A("s_branch L_fin")

A("L_chain:")
cWq, cWo, cPOg, cMLg, cL16, cYg, cT = 1, 2, 3, 4, 5, 6, 7
cX = 12
cVAL, cYst, cSCR, cXw, cXa, cXs = 14, 15, 16, 17, 18, 19
cTT = [20, 24]
cACC = 28
cG = 36
cN = 68
cXA = 36
cCS = {0: 92, 1: 93}
cQst, cV56 = 94, 95
cWo1 = 91
WQ = {0: ("a", 0), 1: ("a", 112)}
WO0 = {0: ("v", 96), 1: ("v", 160)}
sYG = 52


def wo1(t):
    return ("v", 224 + 4 * t) if t < 8 else ("a", 224 + 4 * (t - 8))


CSCR = 131072
YX = CSCR
XB = CSCR + 4096
sCH = sSP
WQB = 448 * 4096 * 2

if "n" in os.environ.get("EXP", ""):
    A("s_branch L_end")
if "l" in os.environ.get("EXP", ""):
    mk_srd(SRD_KB, pBK, 67108864)
    stamp(0)
    A(f"s_lshl_b32 s{sT0}, s{sG}, 23\ns_mul_i32 s{sT1}, s{sSP}, 491520\ns_add_u32 s{sT0}, s{sT0}, s{sT1}\ns_lshl_b32 s{sT1}, s{sWAVE}, 12\ns_add_u32 s{sT0}, s{sT0}, s{sT1}\nv_lshlrev_b32 v1, 4, v0")
    for i in range(30):
        for n in range(4):
            A(f"buffer_load_dwordx4 a[{(i*16+n*4)%256}:{(i*16+n*4)%256+3}], v1, {srd(SRD_KB)}, s{sT0} offen offset:{n*1024} nt")
        A(f"s_add_u32 s{sT0}, s{sT0}, 16384")
    A("s_waitcnt vmcnt(0)")
    stamp(3)
    A("s_branch L_fin")
A("s_waitcnt lgkmcnt(0)")
common_setup()
mk_srd(SRD_WQA, pAWQ, WQB)
mk_srd(SRD_WOA, pAWO, WQB)
mk_srd(SRD_WQB, pBWQ, WQB)
mk_srd(SRD_WOB, pBWO, WQB)
mk_srd(SRD_X, pAX, 896)
A(f"s_mov_b64 s[{sOUTP}:{sOUTP+1}], s[{pOUT}:{pOUT+1}]")
A(f"s_mov_b64 s[0:1], s[{pBK}:{pBK+1}]")
A(f"s_lshl_b32 s{sT0}, s{sG}, 2\ns_add_u32 s{sCH}, s{sT0}, s{sSP}")
A("v_lshrrev_b32 v20, 4, v0       ; s / row")
A("v_and_b32 v21, 15, v0          ; j / c16")
A("v_lshlrev_b32 v22, 4, v21      ; j*16")
A(f"s_lshr_b32 s{sT0}, s{sWAVE}, 1\ns_lshl_b32 s{sT0}, s{sT0}, 2\nv_or_b32 v23, s{sT0}, v20\nv_lshlrev_b32 v23, 5, v23\nv_xor_b32 v23, v23, v22")
A(f"v_lshl_add_u32 v{cWq}, v20, 13, v23")
A(f"v_mul_u32_u24 v{cWo}, 896, v20\nv_add_u32 v{cWo}, v{cWo}, v22")
A("v_and_b32 v23, 31, v0\nv_min_u32 v23, 27, v23\nv_lshrrev_b32 v24, 5, v0")
A(f"s_mul_i32 s{sT0}, s{sWAVE}, 224\nv_lshlrev_b32 v25, 3, v23\nv_lshl_add_u32 v25, v24, 2, v25\nv_add_u32 v25, s{sT0}, v25")
A(f"buffer_load_dword v{cX}, v25, {srd(SRD_X)}, 0 offen")
A(f"v_add_u32 v{cXw}, {XB}, v25")
A(f"v_lshlrev_b32 v{cYg}, 4, v23\nv_lshl_add_u32 v{cYg}, v24, 11, v{cYg}")


def wq_dma(which):
    s_ = SRD_WQA if which == 0 else SRD_WQB
    A(f"s_lshl_b32 s{sT0}, s{sWAVE}, 15\ns_lshl_b32 s{sT1}, s{sCH}, 8\ns_add_u32 s{sT0}, s{sT0}, s{sT1}\ns_lshl_b32 s{sT2}, s{sWAVE}, 10")
    for ii in range(28):
        A(f"s_add_u32 s{sT1}, s{sT0}, {ii*131072}\ns_add_u32 s{sT3}, s{sT2}, {ii*4096}\ns_mov_b32 m0, s{sT3}\ns_nop 0")
        A(f"buffer_load_dwordx4 v{cWq}, {srd(s_)}, s{sT1} offen nt lds")


def wq_tr(which):
    A("v_lshrrev_b32 v20, 4, v0\nv_bfe_u32 v21, v0, 2, 2\nv_and_b32 v22, 1, v20\nv_lshl_add_u32 v22, v22, 2, v21")
    A(f"s_lshl_b32 s{sT0}, s{sWAVE}, 1\nv_xor_b32 v22, s{sT0}, v22\nv_lshlrev_b32 v22, 5, v22")
    A("v_lshl_add_u32 v20, v20, 3, v21\nv_lshl_add_u32 v20, v20, 8, v22\nv_and_b32 v21, 3, v0\nv_lshl_add_u32 v20, v21, 3, v20")
    A(f"v_xor_b32 v21, 32, v20\nv_add_u32 v22, {7*8192}, v20\nv_add_u32 v23, {7*8192}, v21")
    for kb in range(14):
        for cb in range(2):
            for hf in range(2):
                d = radd(WQ[which], (kb * 2 + cb) * 4 + hf * 2)
                A(f"ds_read_b64_tr_b16 {vr(d, 2)}, v{20 + cb + (0 if kb < 7 else 2)} offset:{(kb%7)*8192+hf*1024}")
        if kb % 3 == 2:
            A("s_waitcnt lgkmcnt(3)")
    A("s_waitcnt lgkmcnt(0)")


def sel_cb(dst):
    A(f"v_mov_b32 v{dst}, v{cACC}\ns_mov_b32 exec_lo, 0xffff0000\ns_mov_b32 exec_hi, 0xffff0000\nv_mov_b32 v{dst}, v{cACC+4}\ns_mov_b64 exec, -1")


def colsum(which):
    for r in range(4):
        A(f"v_mov_b32 v{20+r}, 0x3f803f80")
    A("s_nop 1")
    for kb in range(14):
        for cb in range(2):
            acc = cACC + 4 * cb
            A(f"v_mfma_f32_16x16x32_bf16 {vr(acc)}, v[20:23], {vr(radd(WQ[which], (kb*2+cb)*4))}, {'0' if kb == 0 else vr(acc)}")
    A("s_nop 7")
    sel_cb(cCS[which])


def wo_base():
    A(f"s_lshr_b32 s{sT0}, s{sCH}, 1\ns_lshl_b32 s{sT0}, s{sT0}, 2\ns_add_u32 s{sT0}, s{sT0}, s{sWAVE}\ns_mul_i32 s{sT0}, s{sT0}, {64*896}")
    A(f"s_and_b32 s{sT1}, s{sCH}, 1\ns_lshl_b32 s{sT1}, s{sT1}, 9\ns_add_u32 s{sT0}, s{sT0}, s{sT1}")


def wo0_loads(which, ts):
    s_ = SRD_WOA if which == 0 else SRD_WOB
    wo_base()
    for t in ts:
        A(f"s_add_u32 s{sT1}, s{sT0}, {4*t*896}")
        A(f"buffer_load_dwordx4 {vr(radd(WO0[which], 4*t))}, v{cWo}, {srd(s_)}, s{sT1} offen nt")


def wo1_addr():
    A(f"s_and_b32 s{sT1}, s{sCH}, 1\ns_lshl_b32 s{sT1}, s{sT1}, 7\ns_not_b32 s{sT1}, s{sT1}")
    A(f"v_lshlrev_b32 v{cWo1}, 4, v0\nv_and_b32 v{cWo1}, 0xf0, v{cWo1}\nv_sub_u32 v{cT}, v{cWo}, v{cWo1}\nv_and_b32 v{cWo1}, s{sT1}, v{cWo1}\nv_add_u32 v{cWo1}, v{cWo1}, v{cT}")


def wo1_regs(ts):
    wo1_addr()
    wo_base()
    for t in ts:
        A(f"s_add_u32 s{sT1}, s{sT0}, {4*t*896+256}")
        A(f"buffer_load_dwordx4 {vr(wo1(t))}, v{cWo1}, {srd(SRD_WOA)}, s{sT1} offen nt")


def wo1_dma(which):
    s_ = SRD_WOA if which == 0 else SRD_WOB
    wo_base()
    A(f"s_lshl_b32 s{sT2}, s{sWAVE}, 14\ns_add_u32 s{sT2}, s{sT2}, {which*65536}")
    for t in range(16):
        A(f"s_add_u32 s{sT1}, s{sT0}, {4*t*896+256}\ns_add_u32 s{sT3}, s{sT2}, {t*1024}\ns_mov_b32 m0, s{sT3}\ns_nop 0")
        A(f"buffer_load_dwordx4 v{cWo1}, {srd(s_)}, s{sT1} offen nt lds")


def lstamp(base):
    if PROFILE == 1:
        for l in range(4):
            lb = A.label("ps")
            A(f"s_cmp_eq_u32 s{sLAYER}, {l}\ns_cbranch_scc0 {lb}")
            stamp(base + 4 * l)
            A(f"{lb}:")


stamp(0)
if int(os.environ.get("PRET", "0")):
    A(f"v_lshlrev_b32 v26, 16, v0\ns_cmp_eq_u32 s{sWAVE}, 1\ns_cbranch_scc0 L_pt2")
    A(f"buffer_load_dword v27, v26, {srd(SRD_WQB)}, 0 offen nt")
    wo_base()
    A(f"s_mov_b64 exec, 0xf\nbuffer_load_dword v32, v26, {srd(SRD_WOA)}, s{sT0} offen nt\nbuffer_load_dword v33, v26, {srd(SRD_WOB)}, s{sT0} offen nt\ns_mov_b64 exec, -1")
    A("L_pt2:")
A(f"v_lshlrev_b32 v{cL16}, 4, v0")
A(f"s_lshl_b32 s{sYST}, s{sCH}, 10\ns_add_u32 s{sYST}, s{sYST}, {WS_Y}")
A(f"s_lshl_b32 s{sQST}, s{sCH}, 8")
A("v_mov_b32 v28, -1\nv_mov_b32 v29, -1\nv_mov_b32 v30, -1\nv_mov_b32 v31, -1")
A(f"s_lshl_b32 s{sT1}, s{sWAVE}, 13\ns_add_u32 s{sT1}, s{sT1}, s{sQST}")
A(f"s_cmp_eq_u32 s{sWAVE}, 0\ns_cbranch_scc0 L_ch_cl1")
A(f"buffer_store_dwordx4 v[28:31], v{cL16}, {srd(SRD_WS)}, s{sYST} offen sc1")
A("L_ch_cl1:\ns_mov_b64 exec, 0xffff")
A(f"buffer_store_dwordx4 v[28:31], v{cL16}, {srd(SRD_WS)}, s{sT1} offen sc1")
A("s_mov_b64 exec, -1")
wq_dma(0)
A(f"v_mul_u32_u24 v{cPOg}, 7168, v20\nv_add_u32 v{cPOg}, v{cPOg}, v22\ns_lshl_b32 s{sT0}, s{sWAVE}, 8\nv_add_u32 v{cPOg}, s{sT0}, v{cPOg}")
A(f"v_min_u32 v23, 6, v21\nv_mul_u32_u24 v24, 7, v20\nv_add_u32 v23, v23, v24\nv_lshlrev_b32 v{cMLg}, 7, v23")
A(f"v_cmp_gt_u32 vcc, 7, v21\ns_nop 1\nv_cndmask_b32 v{cVAL}, 0, 1.0, vcc")
A(f"v_cmp_gt_u32 vcc, 56, v0\ns_nop 1\nv_cndmask_b32 v{cV56}, 0, 1.0, vcc")
A(f"v_lshrrev_b32 v23, 5, v0\nv_lshlrev_b32 v23, 9, v23\nv_lshl_add_u32 v23, v21, 5, v23\nv_and_b32 v24, 1, v20\nv_lshl_add_u32 v{cYst}, v24, 4, v23")
A(f"s_lshl_b32 s{sT0}, s{sWAVE}, 6\nv_lshl_add_u32 v{cQst}, v0, 1, s{sT0}")
A(f"v_add_u32 v{cSCR}, {CSCR}, v{cL16}")
A(f"v_lshlrev_b32 v{cXa}, 4, v20\nv_add_u32 v{cXa}, {XB}, v{cXa}")
A(f"v_min_u32 v{cXs}, 55, v0\nv_lshlrev_b32 v{cXs}, 4, v{cXs}\nv_add_u32 v{cXs}, {XB}, v{cXs}")
A(f"s_lshr_b32 s{sT0}, s{sCH}, 1\ns_mul_i32 s{sPOOFF}, s{sT0}, 28672\ns_add_u32 s{sPOOFF}, s{sPOOFF}, {WS_PO}")
A(f"s_lshl_b32 s{sMLOFF}, s{sT0}, 12\ns_add_u32 s{sMLOFF}, s{sMLOFF}, {WS_ML}")
A(f"s_mul_i32 s{sYOFF}, s{sWAVE}, 448\ns_add_u32 s{sYOFF}, s{sYOFF}, {WS_Y}")
emit_masks(0, MASK, 20, 21)
A("s_waitcnt vmcnt(0)")
wo0_loads(0, range(8))
mk_srd(SRD_OUT, sOUTP, 896)
A(f"ds_write_b32 v{cXw}, v{cX}")
A(f"v_and_b32 v{cX+1}, 0xffff0000, v{cX}\nv_lshlrev_b32 v{cX}, 16, v{cX}")
A("s_waitcnt lgkmcnt(0)\ns_barrier")
A(f"s_cmp_eq_u32 s{sWAVE}, 3\ns_cbranch_scc0 L_ch_noflag")
A(f"s_lshl_b32 s{sT0}, s{sG}, 5\ns_and_b32 s{sT1}, s{sCH}, 3\ns_add_u32 s{sT0}, s{sT0}, s{sT1}")
A(f"v_mov_b32 v28, s{sT0}\nv_mov_b32 v29, s{sID}\ns_mov_b64 exec, 1")
A(f"buffer_store_byte v29, v28, {srd(SRD_DBG)}, 0 offen sc1\ns_mov_b64 exec, -1")
A("L_ch_noflag:")
stamp(1)
wq_tr(0)
colsum(0)
A(f"v_and_b32 v{cT}, 7, v0\nv_lshlrev_b32 v{cT}, 2, v{cT}\ns_lshl_b32 s{sT2}, s{sG}, 5")
A("L_ch_id:")
spin_guard("L_ch_id_ok")
A(f"buffer_load_dword v{cG}, v{cT}, {srd(SRD_DBG)}, s{sT2} offen sc1\ns_waitcnt vmcnt(0)")
A(f"v_and_b32 v{cG+1}, 0x0f0f0f0f, v{cG}\nv_cmp_ne_u32 s[{sT0}:{sT1}], s{sID}, v{cG+1}")
A(f"v_add_u32 v{cG+1}, 0x7f7f7f7f, v{cG}\nv_and_b32 v{cG+1}, 0x80808080, v{cG+1}\nv_cmp_ne_u32 vcc, 0x80808080, v{cG+1}")
A(f"s_cmp_eq_u64 s[{sT0}:{sT1}], 0\ns_cselect_b32 s{sMODE}, 1, 0")
A("s_cmp_lg_u64 vcc, 0\ns_cbranch_scc1 L_ch_id")
A("L_ch_id_ok:")
A("v_mov_b32 v28, -1\nv_mov_b32 v29, -1\nv_mov_b32 v30, -1\nv_mov_b32 v31, -1")
A(f"s_mul_i32 s{sT1}, s{sWAVE}, 7168\ns_add_u32 s{sT1}, s{sT1}, s{sPOOFF}\ns_add_u32 s{sT2}, s{sT1}, 4096")
A(f"s_mul_i32 s{sT0}, s{sWAVE}, {7*128}\ns_add_u32 s{sT0}, s{sT0}, s{sMLOFF}\nv_lshlrev_b32 v{cT}, 7, v0")
A(f"s_cmp_eq_u32 s{sMODE}, 1\ns_cbranch_scc0 L_ch_clf")
for fl in ("", " sc1"):
    if fl:
        A("L_ch_clf:")
    for i in range(7):
        A(f"buffer_store_dwordx4 v[28:31], v{cL16}, {srd(SRD_WS)}, s{sT1 if i < 4 else sT2} offen offset:{1024*(i%4)}{fl}")
    A(f"s_mov_b64 exec, 0x7f\nbuffer_store_dwordx2 v[28:29], v{cT}, {srd(SRD_WS)}, s{sT0} offen{fl}\ns_mov_b64 exec, -1")
    if not fl:
        A("s_branch L_ch_cld")
A("L_ch_cld:")
A("s_waitcnt vmcnt(0)\ns_barrier")
wo0_loads(0, range(8, 16))
A("s_branch L_ch_qp")


def bf16r(dst, src):
    A(f"v_cvt_pk_bf16_f32 v{dst}, 0, v{src}")


A("L_ch_stageA:")
if int(os.environ.get("DEFW", "0")):
    A(f"s_cmp_eq_u32 s{sLAYER}, 1\ns_cbranch_scc0 L_sa_nw")
    wo0_loads(1, range(16))
    A("L_sa_nw:")
A(f"s_and_b32 s{sT0}, s{sLAYER}, 1\ns_lshl_b32 s{sT0}, s{sT0}, 16\ns_lshl_b32 s{sT1}, s{sWAVE}, 14\ns_add_u32 s{sT0}, s{sT0}, s{sT1}")
A(f"v_add_u32 v{cT}, s{sT0}, v{cL16}")
for t in range(16):
    A(f"ds_read_b128 {vr(wo1(t))}, v{cT} offset:{t*1024}")
    if t == 7:
        A("s_waitcnt lgkmcnt(0)")
for i in range(8):
    A(f"s_add_u32 s{sYG+i}, s{sYOFF}, {4096*i}")
A("s_waitcnt lgkmcnt(0)")
A(f"s_cmp_eq_u32 s{sWAVE}, 0\ns_cbranch_scc0 L_sa_nc\ns_cmp_eq_u32 s{sLAYER}, 3\ns_cbranch_scc1 L_sa_nc")
A(f"v_mov_b32 v28, -1\nv_mov_b32 v29, -1\nv_mov_b32 v30, -1\nv_mov_b32 v31, -1\ns_add_u32 s{sT0}, s{sYST}, 32768")
A(f"buffer_store_dwordx4 v[28:31], v{cL16}, {srd(SRD_WS)}, s{sT0} offen sc1")
A("L_sa_nc:")
A(f"s_add_u32 s{sT0}, s{sPOOFF}, 4096")
cML = cG + 28
A("L_sa_poll:")
spin_guard("L_sa_go")
A(f"buffer_load_dwordx2 v[{cML}:{cML+1}], v{cMLg}, {srd(SRD_WS)}, s{sMLOFF} offen sc1")
for u in range(7):
    so = sPOOFF if u < 4 else sT0
    A(f"buffer_load_dwordx4 {vr(cG+4*u)}, v{cPOg}, {srd(SRD_WS)}, s{so} offen offset:{(u%4)*1024} sc1")
A("s_waitcnt vmcnt(0)")
sentinel_check(range(cG, cG + 30), cT, "L_sa_poll")
A("L_sa_go:")
lstamp(3)
mM, mW, mL = cN, cN + 1, cN + 2
A(f"v_max_f32_dpp v{mM}, v{cML}, v{cML} quad_perm:[1,0,3,2] {DPPF}")
for ctl in ("quad_perm:[2,3,0,1]", "row_half_mirror"):
    A(f"s_nop 1\nv_max_f32_dpp v{mM}, v{mM}, v{mM} {ctl} {DPPF}")
xrow_reduce("v_max_f32", mM, cT)
A(f"v_sub_f32 v{mW}, v{cML}, v{mM}\nv_exp_f32 v{mW}, v{mW}\nv_mul_f32 v{mL}, v{cML+1}, v{cVAL}\nv_mul_f32 v{mL}, v{mL}, v{mW}")
oa = cN + 4
red_steps = [f"v_add_f32_dpp v{mL}, v{mL}, v{mL} {c} {DPPF}" for c in
             ("quad_perm:[1,0,3,2]", "quad_perm:[2,3,0,1]", "row_half_mirror", "row_mirror")]
red_steps[3] += f"\nv_mov_b32 v{cT}, v{mL}"
red_steps.append(f"v_permlane32_swap_b32 v{mL}, v{cT}\nv_add_f32 v{mL}, v{mL}, v{cT}\nv_mov_b32 v{cT}, v{mL}")
red_steps.append(f"v_permlane16_swap_b32 v{mL}, v{cT}\nv_add_f32 v{mL}, v{mL}, v{cT}\nv_rcp_f32 v{mL}, v{mL}")
A("s_nop 0")
for u in range(7):
    for r in range(4):
        op = "v_mul_f32_dpp" if u == 0 else "v_fmac_f32_dpp"
        A(f"{op} v{oa+r}, v{mW}, v{cG+4*u+r} row_newbcast:{u} {DPPF}")
    if u < 6:
        A(red_steps[u])
A("s_nop 0")
A(f"v_permlane32_swap_b32 v{oa}, v{oa+2}\nv_permlane32_swap_b32 v{oa+1}, v{oa+3}")
A(f"v_add_f32 v{oa}, v{oa}, v{oa+2}\nv_add_f32 v{oa+1}, v{oa+1}, v{oa+3}\ns_nop 1")
A(f"v_permlane16_swap_b32 v{oa}, v{oa+1}\nv_add_f32 v{oa}, v{oa}, v{oa+1}")
A(f"v_mul_f32 v{oa}, v{oa}, v{mL}\nv_cvt_pk_bf16_f32 v{oa}, v{oa}, v{oa}")
A(f"s_and_b32 s{sT0}, s{sLAYER}, 1\ns_cmp_eq_u32 s{sT0}, 1\ns_cbranch_scc1 L_sa_B")
for which in range(2):
    if which == 1:
        A("L_sa_B:")

    def gmh(t, hf):
        for r in (0, 1) if hf == 0 else (2, 3):
            A(f"v_and_b32_dpp v{cTT[t&1]+r}, v{oa}, v{MASK+r} row_newbcast:{t} {DPPF}")
    gmh(0, 0)
    gmh(0, 1)
    for t in range(16):
        if t + 1 < 16:
            gmh(t + 1, 0)
        else:
            A("s_nop 0")
        A(f"v_mfma_f32_16x16x32_bf16 {vr(cACC)}, {vr(cTT[t&1])}, {vr(radd(WO0[which],4*t))}, {'0' if t == 0 else vr(cACC)}")
        if t + 1 < 16:
            gmh(t + 1, 1)
        A(f"v_mfma_f32_16x16x32_bf16 {vr(cACC+4)}, {vr(cTT[t&1])}, {vr(wo1(t))}, {'0' if t == 0 else vr(cACC+4)}")
    if which == 0:
        A("s_branch L_sa_red")
A("L_sa_red:")
A(f"s_lshl_b32 s{sT0}, s{sWAVE}, 10\nv_add_u32 v{cT}, s{sT0}, v{cSCR}")
A("s_mov_b32 exec_lo, 0\ns_nop 5")
for r in range(4):
    A(f"v_mov_b32 v{cACC+r}, v{cACC+4+r}")
A("s_mov_b32 exec_lo, -1")
A(f"s_cmp_eq_u32 s{sWAVE}, 0\ns_cbranch_scc1 L_sa_w0")
A(f"ds_write_b128 v{cT}, {vr(cACC)}\ns_waitcnt lgkmcnt(0)\ns_barrier")
H2S = int(os.environ.get("H2S", "8"))
A(f"s_sleep {H2S+2}\ns_branch L_sb")
A("L_sa_w0:\ns_barrier")
for s_ in range(1, 4):
    A(f"ds_read_b128 {vr(cG+4*s_)}, v{cSCR} offset:{1024*s_}")
for s_ in range(1, 4):
    A(f"s_waitcnt lgkmcnt({3-s_})")
    for r in range(0, 4, 2):
        A(f"v_pk_add_f32 v[{cACC+r}:{cACC+r+1}], v[{cACC+r}:{cACC+r+1}], v[{cG+4*s_+r}:{cG+4*s_+r+1}]")
for r in range(4):
    A(f"v_min_u32 v{cACC+r}, -2, v{cACC+r}")
A(f"buffer_store_dwordx4 {vr(cACC)}, v{cYst}, {srd(SRD_WS)}, s{sYST} offen sc1")
lstamp(4)
if H2S:
    A(f"s_sleep {H2S}")
A("L_sb:")
A(f"s_cmp_eq_u32 s{sLAYER}, 3\ns_cbranch_scc0 L_sb_go0\ns_cmp_eq_u32 s{sCH}, 0\ns_cbranch_scc0 L_fin\nL_sb_go0:")


def yload(i):
    return f"buffer_load_dwordx4 {vr(cG+4*i)}, v{cYg}, {srd(SRD_WS)}, s{sYG+i} offen sc1"


for i in range(8):
    A(yload(i))
A("L_sb_poll:")
for i in range(4):
    A(f"s_waitcnt vmcnt({6-2*i})")
    for r in range(0, 4, 2):
        A(f"v_pk_add_f32 v[{cN+4*i+r}:{cN+4*i+r+1}], v[{cG+8*i+r}:{cG+8*i+r+1}], v[{cG+8*i+4+r}:{cG+8*i+4+r+1}]")
    if i & 1:
        for r in range(0, 4, 2):
            A(f"v_pk_add_f32 v[{cN+4*(i-1)+r}:{cN+4*(i-1)+r+1}], v[{cN+4*(i-1)+r}:{cN+4*(i-1)+r+1}], v[{cN+4*i+r}:{cN+4*i+r+1}]")
for r in range(0, 4, 2):
    A(f"v_pk_add_f32 v[{cN+r}:{cN+r+1}], v[{cN+r}:{cN+r+1}], v[{cN+8+r}:{cN+8+r+1}]")
A("s_nop 1")
A(f"v_permlane32_swap_b32 v{cN}, v{cN+2}\nv_permlane32_swap_b32 v{cN+1}, v{cN+3}")
A(f"v_pk_add_f32 v[{cN}:{cN+1}], v[{cN}:{cN+1}], v[{cN+2}:{cN+3}]")
A(f"v_cmp_u_f32 vcc, v{cN}, v{cN+1}")
bf16r(cN, cN)
bf16r(cN + 1, cN + 1)
A("s_cmp_lg_u64 vcc, 0\ns_cbranch_scc0 L_sb_go")
spin_guard("L_sb_go")
A(f"s_mov_b32 s{sT0}, 0")
for i in range(8):
    sk = A.label("ysk")
    g_ = cG + 4 * i
    A(f"v_max3_u32 v{cT}, v{g_}, v{g_+1}, v{g_+2}\nv_max_u32 v{cT}, v{cT}, v{g_+3}\nv_cmp_eq_u32 vcc, -1, v{cT}\ns_nop 0\ns_cmp_lg_u64 vcc, 0\ns_cbranch_scc0 {sk}")
    A(yload(i))
    A(f"s_mov_b32 s{sT0}, 1\n{sk}:")
A(f"s_waitcnt vmcnt(0)\ns_cmp_eq_u32 s{sT0}, 1\ns_cbranch_scc1 L_sb_poll")
A("L_sb_go:")
lstamp(5)
A(f"v_pk_add_f32 v[{cX}:{cX+1}], v[{cX}:{cX+1}], v[{cN}:{cN+1}]")
A(f"v_cvt_pk_bf16_f32 v{cN}, v{cX}, v{cX+1}")
A(f"s_cmp_eq_u32 s{sLAYER}, 3\ns_cbranch_scc1 L_ch_out")
A(f"ds_write_b32 v{cXw}, v{cN}")
A(f"v_and_b32 v{cX+1}, 0xffff0000, v{cN}\nv_lshlrev_b32 v{cX}, 16, v{cN}")
A(f"s_add_u32 s{sLAYER}, s{sLAYER}, 1")
A(f"s_add_u32 s{sPOOFF}, s{sPOOFF}, {PO_L}\ns_add_u32 s{sMLOFF}, s{sMLOFF}, {ML_L}\ns_add_u32 s{sYOFF}, s{sYOFF}, 32768\ns_add_u32 s{sYST}, s{sYST}, 32768\ns_add_u32 s{sQST}, s{sQST}, 8192")
A("s_waitcnt lgkmcnt(0)\ns_barrier")
A("L_ch_qp:")
SV = 20
s1, s2, t0, t1 = 24, 25, 26, 27
A(f"ds_read_b128 {vr(cXA)}, v{cXa}\nds_read_b128 {vr(SV)}, v{cXs}")
for kb in range(1, 14):
    A(f"ds_read_b128 {vr(cXA+4*kb)}, v{cXa} offset:{64*kb}")
st = []
st += [f"v_readfirstlane_b32 s{sT0}, v{cXA}", f"s_lshl_b32 s{sT0}, s{sT0}, 16"]
for r in range(4):
    st += [f"v_lshlrev_b32 v{t0}, 16, v{SV+r}", f"v_and_b32 v{t1}, 0xffff0000, v{SV+r}",
           f"v_subrev_f32 v{t0}, s{sT0}, v{t0}", f"v_subrev_f32 v{t1}, s{sT0}, v{t1}"]
    if r == 0:
        st += [f"v_add_f32 v{s1}, v{t0}, v{t1}", f"v_mul_f32 v{s2}, v{t0}, v{t0}", f"v_fmac_f32 v{s2}, v{t1}, v{t1}"]
    else:
        st += [f"v_add_f32 v{s1}, v{s1}, v{t0}", f"v_fmac_f32 v{s2}, v{t0}, v{t0}", f"v_add_f32 v{s1}, v{s1}, v{t1}", f"v_fmac_f32 v{s2}, v{t1}, v{t1}"]
st += [f"v_mul_f32 v{s1}, v{s1}, v{cV56}", f"v_mul_f32 v{s2}, v{s2}, v{cV56}"]
for ctl in ("quad_perm:[1,0,3,2]", "quad_perm:[2,3,0,1]", "row_half_mirror", "row_mirror"):
    st += ["s_nop 0", f"v_add_f32_dpp v{s1}, v{s1}, v{s1} {ctl} {DPPF}", f"v_add_f32_dpp v{s2}, v{s2}, v{s2} {ctl} {DPPF}"]
for sw in ("v_permlane32_swap_b32", "v_permlane16_swap_b32"):
    st += [f"v_mov_b32 v{t0}, v{s1}", f"v_mov_b32 v{t1}, v{s2}", "s_nop 1", f"{sw} v{s1}, v{t0}", f"{sw} v{s2}, v{t1}",
           f"v_add_f32 v{s1}, v{s1}, v{t0}", f"v_add_f32 v{s2}, v{s2}, v{t1}"]
st += [f"v_mul_f32 v{s1}, {f2u(1.0/448.0)}, v{s1}", f"v_mul_f32 v{s2}, {f2u(1.0/448.0)}, v{s2}",
       f"v_fma_f32 v{s2}, -v{s1}, v{s1}, v{s2}", f"v_max_f32 v{s2}, 0, v{s2}", f"v_add_f32 v{s1}, s{sT0}, v{s1}",
       f"v_cvt_pk_bf16_f32 v{s2}, 0, v{s2}", f"v_cvt_pk_bf16_f32 v{s1}, 0, v{s1}",
       f"v_add_f32 v{s2}, {f2u(1e-5)}, v{s2}", f"v_cvt_pk_bf16_f32 v{s2}, 0, v{s2}", f"v_sqrt_f32 v{s2}, v{s2}", "s_nop 0",
       f"v_cvt_pk_bf16_f32 v{s2}, 0, v{s2}", f"v_rcp_f32 v{s2}, v{s2}"]
A(f"s_and_b32 s{sT1}, s{sLAYER}, 1\ns_cmp_eq_u32 s{sT1}, 1\ns_cbranch_scc1 L_qp_B")
for which in range(2):
    if which == 1:
        A("L_qp_B:")
    sp_ = 0
    nm = 0
    for kb in range(14):
        A(f"s_waitcnt lgkmcnt({13 if kb == 0 else 13-kb})")
        for cb in range(2):
            acc = cACC + 4 * cb
            A(f"v_mfma_f32_16x16x32_bf16 {vr(acc)}, {vr(cXA+4*kb)}, {vr(radd(WQ[which], (kb*2+cb)*4))}, {'0' if kb == 0 else vr(acc)}")
            nm += 1
            upto = min(len(st), (nm * len(st) + 26) // 27)
            while sp_ < upto:
                A(st[sp_])
                sp_ += 1
    A(f"v_mul_f32 v{s1}, v{s1}, v{cCS[which]}")
    if which == 0:
        A("s_branch L_qp_red")
A("L_qp_red:")
A("s_nop 5")
sel_cb(t0)
A(f"v_sub_f32 v{t0}, v{t0}, v{s1}\nv_mul_f32 v{t0}, v{t0}, v{s2}\ns_nop 1")
A(f"v_mov_b32_dpp v{t1}, v{t0} quad_perm:[1,1,3,3] {DPPF}")
A(f"v_cvt_pk_bf16_f32 v{t0}, v{t0}, v{t1}\nv_min_u32 v{t0}, -2, v{t0}")
A("s_mov_b32 exec_lo, 0x55555555\ns_mov_b32 exec_hi, 0")
A(f"s_cmp_eq_u32 s{sMODE}, 1\ns_cbranch_scc0 L_qp_far")
A(f"buffer_store_dword v{t0}, v{cQst}, {srd(SRD_WS)}, s{sQST} offen\ns_branch L_qp_st")
A("L_qp_far:")
A(f"buffer_store_dword v{t0}, v{cQst}, {srd(SRD_WS)}, s{sQST} offen sc1")
A("L_qp_st:")
A("s_mov_b64 exec, -1")
lstamp(2)
A(f"s_cmp_eq_u32 s{sLAYER}, 0\ns_cbranch_scc0 L_ch_stageA")
A("s_barrier")
wq_dma(1)
wo1_regs(range(16))
A("s_waitcnt vmcnt(16)\ns_barrier")
wq_tr(1)
A("s_barrier")
DEFW = int(os.environ.get("DEFW", "0"))
if not DEFW:
    wo0_loads(1, range(16))
wo1_dma(1)
colsum(1)
A(f"s_waitcnt vmcnt({16 if DEFW else 32})\ns_lshl_b32 s{sT1}, s{sWAVE}, 14\nv_add_u32 v{cT}, s{sT1}, v{cL16}")
for t in range(16):
    A(f"ds_write_b128 v{cT}, {vr(wo1(t))} offset:{t*1024}")
A("s_waitcnt lgkmcnt(0)")
if os.environ.get("EXP", ""):
    A("s_waitcnt vmcnt(0)")
    stamp(3)
    A("s_branch L_fin")
A("L_ch_cnt:")
spin_guard("L_ch_cnt_ok")
A(f"v_lshlrev_b32 v{cT}, 2, v0")
A(f"buffer_load_dword v{cG}, v{cT}, {srd(SRD_DBG)}, 0 offen sc1\ns_waitcnt vmcnt(0)")
A(f"v_add_u32 v{cG+1}, 0x7f7f7f7f, v{cG}\nv_and_b32 v{cG+1}, 0x80808080, v{cG+1}\nv_cmp_ne_u32 vcc, 0x80808080, v{cG+1}\ns_nop 0")
A("s_cmp_lg_u64 vcc, 0\ns_cbranch_scc1 L_ch_cnt")
A("L_ch_cnt_ok:")
stamp(18)
CPB = int(os.environ.get("CPB", "0"))
CPN = int(os.environ.get("CPN", "16"))
if int(os.environ.get("CPC", "1")):
    BACKWARD.add("L_ch_stageA")
if CPB:
    mk_srd(SRD_WQA, 0, KVBYTES)
    A(f"s_lshl_b32 s{sT2}, s{sG}, 23\ns_and_b32 s{sT3}, s{sCH}, 3\ns_lshl_b32 s{sT3}, s{sT3}, 2\ns_add_u32 s{sT3}, s{sT3}, s{sWAVE}\ns_lshl_b32 s{sT3}, s{sT3}, 13")
    A(f"s_add_u32 s{sT2}, s{sT2}, s{sT3}\ns_add_u32 s{sT2}, s{sT2}, {12288*512}\ns_mov_b32 s{sT3}, {CPN // CPB}\nv_lshlrev_b32 v{cG+2}, 7, v0")
A("L_ch_pre:")
spin_guard("L_ch_stageA")
if CPB:
    A(f"s_cmp_eq_u32 s{sT3}, 0\ns_cbranch_scc1 L_ch_pre_s\ns_sub_u32 s{sT3}, s{sT3}, 1")
    for i in range(CPB):
        A(f"buffer_load_dword v{cG+3}, v{cG+2}, {srd(SRD_WQA)}, s{sT2} offen\ns_add_u32 s{sT2}, s{sT2}, 131072")
    A("s_branch L_ch_pre_p")
A("L_ch_pre_s:")
if int(os.environ.get("CPC", "1")):
    code_prefetch("L_ch_stageA", 8192, cT, cG, sT0)
A("s_sleep 16")
A("L_ch_pre_p:\ns_mov_b64 exec, 1")
A(f"buffer_load_dword v{cML}, v{cMLg}, {srd(SRD_WS)}, s{sMLOFF} offen sc1\ns_waitcnt vmcnt(0)")
A(f"v_readfirstlane_b32 s{sT0}, v{cML}\ns_mov_b64 exec, -1\ns_cmp_eq_u32 s{sT0}, -1\ns_cbranch_scc1 L_ch_pre")
A("s_branch L_ch_stageA")
A("L_ch_out:")
A(f"v_subrev_u32 v{cT}, {XB}, v{cXw}")
A(f"buffer_store_dword v{cN}, v{cT}, {srd(SRD_OUT)}, 0 offen")
stamp(19)
if os.environ.get("DIAG"):
    da, db = [int(x) for x in os.environ["DIAG"].split(",")]
    ra = 100 if da == 99 else sSTAMP + 2 * da
    A(f"s_sub_u32 s{sT0}, s{sSTAMP+2*db}, s{ra}\ns_lshl_b32 s{sT0}, s{sT0}, 2\ns_min_u32 s{sT0}, s{sT0}, 100000\ns_add_u32 s{sT0}, s{sT0}, s{sSTAMP+38}")
    A(f"L_diag:\ns_memrealtime s[{sT2}:{sT3}]\ns_waitcnt lgkmcnt(0)\ns_sub_u32 s{sT1}, s{sT2}, s{sT0}\ns_cmp_lt_i32 s{sT1}, 0\ns_cbranch_scc1 L_diag")

A("L_fin:")
if PROFILE:
    A(f"s_mul_i32 s{sT0}, s2, 640\ns_mul_i32 s{sT1}, s{sWAVE}, 160\ns_add_u32 s{sT0}, s{sT0}, s{sT1}\ns_add_u32 s{sT0}, s{sT0}, {WS_STAMP}")
    A("s_mov_b64 exec, 1\nv_mov_b32 v1, 0")
    for i in range(10):
        for r in range(4):
            A(f"v_mov_b32 v{4+r}, s{sSTAMP+4*i+r}")
        A(f"buffer_store_dwordx4 v[4:7], v1, {srd(SRD_WS)}, s{sT0} offen offset:{16*i}\ns_nop 1")
if PROFILE:
    pass
A("L_end:")
A("s_endpgm")

for l in A.L:
    OUT.append(l if l.endswith(":") else "    " + l)
OUT.append('.section .rodata,"a"')
OUT.append(".p2align 6")
OUT.append(f".amdhsa_kernel {NAME}_kernel")
OUT.append("""  .amdhsa_next_free_vgpr 512
  .amdhsa_next_free_sgpr 102
  .amdhsa_accum_offset 256
  .amdhsa_group_segment_fixed_size 0
  .amdhsa_kernarg_size 104
  .amdhsa_user_sgpr_count 2
  .amdhsa_user_sgpr_kernarg_segment_ptr 1
  .amdhsa_system_sgpr_workgroup_id_x 1
  .amdhsa_float_denorm_mode_32 3
.end_amdhsa_kernel""")
out = sys.argv[1] if len(sys.argv) > 1 else f"cdna_kernels/{NAME}.s"
open(out, "w").write("\n".join(OUT) + "\n")
print("wrote", out, len(A.L), "lines")
```

```python
import sys, os, struct

PROFILE = int(os.environ.get("PROFILE", "0"))
NAME = "interleave_layers__gqa_block_cached__sliding_block_cached__decode"

WS_Q = 0
WS_Y = 49152
WS_PO = 196608
WS_ML = 196608 + 4 * 458752
ML_L = 65536
PO_L = 16 * 28 * 1024
WS_STAMP = 4 << 20
WS_SIZE = 283117312
SPIN_MAX = 1 << 18

CSCALE = struct.unpack("<I", struct.pack("<f", 1.4426950408889634 / 16.0))[0]
NEG_INF = 0xFF800000


def f2u(x):
    return struct.unpack("<I", struct.pack("<f", x))[0]


class Asm:
    def __init__(self):
        self.L = []
        self.nlabel = 0

    def __call__(self, s):
        for line in s.split("\n"):
            line = line.strip()
            if line:
                self.L.append(line)

    def label(self, base):
        self.nlabel += 1
        return f"L_{base}_{self.nlabel}"


A = Asm()


def vr(r, n=4):
    if isinstance(r, int):
        r = ("v", r)
    k, i = r
    return f"{k}[{i}:{i+n-1}]" if n > 1 else f"{k}{i}"


def radd(r, d):
    if isinstance(r, int):
        return r + d
    return (r[0], r[1] + d)


DPPF = "row_mask:0xf bank_mask:0xf"

sWAVE = 3
SRD_KA, SRD_VA, SRD_KB, SRD_VB, SRD_WS, SRD_DBG = 4, 8, 12, 16, 20, 24
SRD_WQA, SRD_WOA, SRD_WQB, SRD_WOB = 4, 8, 12, 16
SRD_X, SRD_OUT = 28, 80
sOFFA, sOFFA36, sOFFB, sOFFB9 = 28, 29, 30, 31
sBIASA, sBIASB = 32, 33
sC = 36
sLDSW = 37
sT0, sT1, sT2, sT3 = 38, 39, 40, 41
sLAYER = 42
sSPIN = 43
sQOFF, sPOOFF, sMLOFF, sYOFF = 44, 45, 46, 47
sG, sSP = 48, 49
sYST, sQST = 50, 51
sOFFB8 = 50
sCL = 47
sW4 = 58
sID, sMODE = 34, 35
KARG = 52
sSTAMP = 60
SRD_OUT = 28
sOUTP = 32

nstamp = [0]


def srd(r):
    return f"s[{r}:{r+3}]"


def stamp(idx):
    if PROFILE == 2 and idx not in (0, 5, 19):
        return
    if PROFILE:
        assert idx < 20
        if idx == 0:
            for i in range(1, 20):
                A(f"s_mov_b64 s[{sSTAMP+2*i}:{sSTAMP+2*i+1}], 0")
            A(f"s_mov_b64 s[{sSTAMP}:{sSTAMP+1}], s[100:101]")
            return
        A(f"s_memrealtime s[{sSTAMP+2*idx}:{sSTAMP+2*idx+1}]\ns_waitcnt lgkmcnt(0)")


def mk_srd(dst, ptr, size):
    A(f"s_mov_b32 s{dst}, s{ptr}\ns_and_b32 s{dst+1}, s{ptr+1}, 0xffff\ns_mov_b32 s{dst+2}, {size}\ns_mov_b32 s{dst+3}, 0x20000")


def emit_masks(vlane, m0, t0, t1):
    A(f"v_and_b32 v{t0}, 1, v{vlane}")
    A(f"v_lshlrev_b32 v{t0}, 4, v{t0}")
    A(f"v_mov_b32 v{t1}, 0xffff")
    A(f"v_lshlrev_b32 v{t0}, v{t0}, v{t1}")
    A(f"v_bfe_u32 v{t1}, v{vlane}, 1, 2")
    for r in range(4):
        A(f"v_cmp_eq_u32 vcc, {r}, v{t1}")
        A("s_nop 1")
        A(f"v_cndmask_b32 v{m0+r}, 0, v{t0}, vcc")


def xrow_reduce(op, v, t):
    A(f"v_mov_b32 v{t}, v{v}\ns_nop 1\nv_permlane32_swap_b32 v{v}, v{t}\n{op} v{v}, v{v}, v{t}")
    A(f"v_mov_b32 v{t}, v{v}\ns_nop 1\nv_permlane16_swap_b32 v{v}, v{t}\n{op} v{v}, v{v}, v{t}")


def sentinel_check(regs, t, retry_label):
    regs = list(regs)
    A(f"v_max3_u32 v{t}, v{regs[0]}, v{regs[1]}, v{regs[2]}")
    i = 3
    while i + 1 < len(regs):
        A(f"v_max3_u32 v{t}, v{t}, v{regs[i]}, v{regs[i+1]}")
        i += 2
    if i < len(regs):
        A(f"v_max_u32 v{t}, v{t}, v{regs[i]}")
    A(f"v_cmp_eq_u32 vcc, -1, v{t}")
    A("s_nop 0")
    A(f"s_cmp_lg_u64 vcc, 0\ns_cbranch_scc1 {retry_label}")


def spin_guard(giveup_label):
    A(f"s_cmp_eq_u32 s{sSPIN}, 0\ns_cbranch_scc1 {giveup_label}\ns_sub_u32 s{sSPIN}, s{sSPIN}, 1")
    if os.environ.get("PSLEEP"):
        A(f"s_sleep {os.environ['PSLEEP']}")


hdr = open(f"cdna_kernels/{NAME}.s.ref").read().split("\n")
head = [l for l in hdr if l.startswith(";") and "@launch" not in l]
OUT = list(head)
OUT.append("; @launch grid=(256,1,1) block=(256,1,1) lds=163840")
OUT.append('.amdgcn_target "amdgcn-amd-amdhsa--gfx950"')
OUT.append(".text")
OUT.append(f".globl {NAME}_kernel")
OUT.append(".p2align 8")
OUT.append(f".type {NAME}_kernel,@function")
OUT.append(f"{NAME}_kernel:")

if PROFILE:
    A("s_memrealtime s[100:101]")
A("s_cmp_ge_u32 s2, 256\ns_cbranch_scc1 L_end")
A(f"s_load_dwordx16 s[{KARG}:{KARG+15}], s[0:1], 0")
A(f"s_load_dwordx8 s[{KARG+16}:{KARG+23}], s[0:1], 64")
A(f"s_load_dwordx2 s[{KARG+24}:{KARG+25}], s[0:1], 96")
pAX, pAK, pAV, pAWQ, pAWO, pBX, pBK, pBV, pBWQ, pBWO, pOUT, pDBG, pWS = [KARG + 2 * i for i in range(13)]
A("v_lshrrev_b32 v1, 6, v0\nv_and_b32 v0, 63, v0")
if os.environ.get("PERM"):
    A(f"s_mul_i32 s2, s2, {os.environ['PERM']}\ns_lshr_b32 s4, s2, 3\ns_and_b32 s4, s4, {os.environ.get('PERMX', '1')}\ns_xor_b32 s2, s2, s4\ns_and_b32 s2, s2, 255")
A(f"s_and_b32 s{sG}, s2, 7\ns_lshr_b32 s{sSP}, s2, 3")
A(f"v_readfirstlane_b32 s{sWAVE}, v1")
A(f"s_cmp_lt_u32 s{sSP}, 4\ns_cbranch_scc1 L_chain")


def common_setup():
    A(f"s_mov_b32 s{sC}, {CSCALE}\ns_mov_b32 s{sSPIN}, {SPIN_MAX}\ns_mov_b32 s{sLAYER}, 0")
    A(f"s_getreg_b32 s{sID}, hwreg(HW_REG_XCC_ID, 0, 4)\ns_min_u32 s{sID}, s{sID}, 14\ns_add_u32 s{sID}, s{sID}, 1\ns_mul_i32 s{sID}, s{sID}, 0x01010101\ns_mov_b32 s{sMODE}, 0")
    mk_srd(SRD_WS, pWS, WS_SIZE)
    mk_srd(SRD_DBG, pDBG, 256)


vK, vV, vKd, vVd, vL, vQ, vT = 1, 2, 3, 4, 5, 6, 7
MASK = 8
QA = 12
DT = 20
vCM, vLS, vMX, vPO, vX = 32, 33, 34, 35, 36
vCMr, vCMw, vF = 3, 4, 30
vFA, vFD = 36, 3
SC = 37
STG_A = [56, 60, 64, 68]
NSLOT = 19
XBASE = 4 * NSLOT * 2048
MLBASE = XBASE + 6144


def half(h):
    return ("v", 72 + 8 * h) if h < 23 else ("a", 8 * (h - 23))


NKA = 37
NVREG = 18
KVBYTES = 67108864

PSTRIDE = 16384
sHB = 59
A(f"s_sub_u32 s{sSP}, s{sSP}, 4")
A(f"s_mul_i32 s{sT1}, s{sSP}, 36\ns_min_u32 s{sT2}, s{sSP}, 16\ns_add_u32 s{sT1}, s{sT1}, s{sT2}\ns_lshl_b32 s{sT1}, s{sT1}, 13")
A(f"s_lshl_b32 s{sT3}, s{sG}, 23\ns_add_u32 s{sOFFA36}, s{sT1}, s{sT3}")
A(f"s_lshl_b32 s{sT0}, s{sWAVE}, 12\ns_add_u32 s{sOFFA}, s{sOFFA36}, s{sT0}")
A(f"s_mul_i32 s{sLDSW}, s{sWAVE}, {NSLOT*2048}")
A(f"v_lshrrev_b32 v20, 4, v0       ; s / row")
A(f"v_and_b32 v21, 15, v0          ; j")
A(f"v_lshlrev_b32 v25, 4, v21")
A(f"v_lshl_add_u32 v{vV}, v20, 9, v25")
A(f"v_add_u32 v{vVd}, 768, v{vV}")
A("s_waitcnt lgkmcnt(0)")
mk_srd(SRD_VA, pAV, KVBYTES)


def late_setup():
    common_setup()
    mk_srd(SRD_KA, pAK, KVBYTES)
    mk_srd(SRD_KB, pBK, KVBYTES)
    mk_srd(SRD_VB, pBV, KVBYTES)
    stamp(0)
    A(f"v_and_b32 v{vFA}, 7, v0\nv_lshlrev_b32 v{vFA}, 5, v{vFA}")
    A(f"s_cmp_eq_u32 s{sWAVE}, 0\ns_cbranch_scc0 L_nc")
    A(f"v_mov_b32 v{vT}, s{sID}\ns_lshl_b64 exec, 1, s{sG}")
    A(f"buffer_store_byte v{vT}, v{vFA}, {srd(SRD_DBG)}, s{sSP} offen offset:4 sc1\ns_mov_b64 exec, -1")
    A("L_nc:")
    A(f"s_cmp_lt_u32 s{sSP}, 16")
    A(f"s_cselect_b32 s{sT2}, 36, 35")
    A(f"s_cselect_b32 s{sBIASA}, 0, {NEG_INF}")
    A(f"s_lshl_b32 s{sT2}, s{sT2}, 13\ns_lshl_b32 s{sT0}, s{sWAVE}, 11\ns_add_u32 s{sT2}, s{sT2}, s{sT0}")
    A(f"s_add_u32 s{sOFFA36}, s{sOFFA36}, s{sT2}")
    A(f"s_mul_i32 s{sT1}, s{sSP}, 9\ns_max_u32 s{sT2}, s{sSP}, 24\ns_sub_u32 s{sT2}, s{sT2}, 24\ns_add_u32 s{sT1}, s{sT1}, s{sT2}")
    A(f"s_lshl_b32 s{sT1}, s{sT1}, 13\ns_add_u32 s{sT1}, s{sT1}, s{sT3}\ns_add_u32 s{sT1}, s{sT1}, {12288*512}")
    A(f"s_lshl_b32 s{sT2}, s{sWAVE}, 12\ns_add_u32 s{sOFFB}, s{sT1}, s{sT2}")
    A(f"s_add_u32 s{sOFFB8}, s{sT1}, s{sT0}\ns_add_u32 s{sOFFB8}, s{sOFFB8}, {32*2048}")
    A(f"s_cmp_ge_u32 s{sSP}, 24")
    A(f"s_cselect_b32 s{sT1}, 1, 0")
    A(f"s_cselect_b32 s{sBIASB}, 0, {NEG_INF}")
    A(f"s_lshl_b32 s{sT1}, s{sT1}, 13")
    A(f"s_add_u32 s{sOFFB9}, s{sOFFB8}, s{sT1}")
    for p in range(4):
        A(f"s_add_u32 s{sBO+p}, s{sOFFB}, {p*PSTRIDE}")
    A(f"s_mov_b32 s{sBO+4}, s{sOFFB8}\ns_mov_b32 s{sBO+5}, s{sOFFB9}")
    A(f"v_and_b32 v22, 3, v0           ; c")
    A(f"v_bfe_u32 v23, v0, 2, 2        ; a")
    A(f"v_lshl_add_u32 v24, v20, 2, v22   ; 4s+c")
    A(f"v_lshlrev_b32 v24, 4, v24")
    A(f"v_lshl_add_u32 v{vK}, v23, 9, v24")
    A(f"v_lshl_add_u32 v{vL}, v0, 4, s{sLDSW}")
    A(f"v_lshrrev_b32 v27, 3, v21      ; head(j)")
    A(f"v_lshl_add_u32 v{vQ}, v27, 9, v24")
    A(f"v_lshrrev_b32 v27, 5, v0\nv_mul_u32_u24 v27, 28672, v27\nv_lshl_add_u32 v27, v21, 5, v27")
    A(f"v_and_b32 v28, 1, v20\nv_lshl_add_u32 v{vPO}, v28, 4, v27")
    A(f"s_lshl_b32 s{sQOFF}, s{sG}, 10")
    A(f"s_mul_i32 s{sPOOFF}, s{sG}, 56\ns_add_u32 s{sPOOFF}, s{sPOOFF}, s{sSP}\ns_lshl_b32 s{sPOOFF}, s{sPOOFF}, 10\ns_add_u32 s{sPOOFF}, s{sPOOFF}, {WS_PO}")
    A(f"s_lshl_b32 s{sMLOFF}, s{sG}, 13\ns_lshl_b32 s{sT0}, s{sSP}, 7\ns_add_u32 s{sMLOFF}, s{sMLOFF}, s{sT0}\ns_add_u32 s{sMLOFF}, s{sMLOFF}, {WS_ML}")
    emit_masks(0, MASK, 20, 21)


def ld_items_reg(srdr, voff, soff_base, ulist, regs_of):
    items = []
    i = 0
    while i < len(ulist):
        u = ulist[i]
        pair = ulist[i:i + 2]
        assert u % 2 == 0
        pre = f"s_add_u32 s{sT0}, s{soff_base}, {(u//2)*PSTRIDE}"
        first = True
        for k, uu in enumerate(pair):
            for m in range(2):
                txt = f"buffer_load_dwordx4 {vr(radd(regs_of(uu), 4*m))}, v{voff}, {srd(srdr)}, s{sT0} offen offset:{k*2048+m*256} nt"
                if first:
                    txt = pre + "\n" + txt
                    first = False
                items.append((txt, uu))
        i += 2
    return items


def ld_items_lds(srdr, voff, voffd, soff_base, ulist, slot_of):
    items = []
    i = 0
    while i < len(ulist):
        u = ulist[i]
        pair = ulist[i:i + 2]
        assert u % 2 == 0
        d = (u // 2) * PSTRIDE - 768
        pre = (f"s_add_u32 s{sT1}, s{soff_base}, {d}" if d >= 0 else f"s_sub_u32 s{sT1}, s{soff_base}, {-d}")
        pre += f"\ns_add_u32 s{sT2}, s{sLDSW}, {slot_of(u)*2048}\ns_mov_b32 m0, s{sT2}\ns_nop 0"
        first = True
        for k, uu in enumerate(pair):
            assert slot_of(uu) == slot_of(u) + k
            for m in range(2):
                v = voffd if m == 0 else voff
                txt = f"buffer_load_dwordx4 v{v}, {srd(srdr)}, s{sT1} offen offset:{k*2048+m*1024} nt lds"
                if first:
                    txt = pre + "\n" + txt
                    first = False
                items.append((txt, uu))
        i += 2
    return items


class GRing:
    def __init__(self, keys, text_of, quads):
        self.keys, self.text_of, self.quads = keys, text_of, quads
        self.pos = {k: i for i, k in enumerate(keys)}
        self.issued = 0
        self.landed = 0

    def issue(self, upto):
        out = []
        while self.issued < min(upto, len(self.keys)):
            out.append(self.text_of(self.keys[self.issued], self.quads[self.issued % len(self.quads)]))
            self.issued += 1
        return "\n".join(out)

    def consume(self, key):
        i = self.pos[key]
        w = "" if i < self.landed else f"s_waitcnt vmcnt({self.issued - i - 1})\n"
        return w, self.quads[i % len(self.quads)], i + 1 + len(self.quads)


def qk_groups(n, ksrc, bias_sgpr, stg, hook=None):
    G = []
    nC = (n + 1) // 2
    G.append((f"v_mov_b32 v{vMX}, {NEG_INF}" + (f"\nv_mov_b32 v{SC+nC-1}, {NEG_INF}" if n & 1 else ""), None))
    reads = [(u, m) for u in range(n) if ksrc(u)[0] == "lds" for m in range(2)]
    rpos = {rm: i for i, rm in enumerate(reads)}
    issued = [0]

    def issue_reads(upto, out):
        while issued[0] < min(upto, len(reads)):
            u, m = reads[issued[0]]
            q = stg[issued[0] % len(stg)]
            out.append((f"ds_read_b128 {vr(q)}, v{vL} offset:{ksrc(u)[1]*2048+m*1024}", ksrc(u)[2]))
            issued[0] += 1

    pre = []
    issue_reads(len(stg), pre)

    def bops(u):
        d = DT + 4 * (u % 3)
        c = SC + u // 2
        bm = 0x5 if (u & 1) == 0 else 0xA
        t = f"v_mov_b32_dpp v{d}, v{d} quad_perm:[0,0,0,0] {DPPF}\n"
        t += f"v_add_f32_dpp v{d}, v{d+1}, v{d} quad_perm:[1,1,1,1] {DPPF}\n"
        t += f"v_add_f32_dpp v{d}, v{d+2}, v{d} quad_perm:[2,2,2,2] {DPPF}\n"
        if u == n - 1:
            t += f"v_add_f32 v{d}, s{bias_sgpr}, v{d}\n"
        t += f"v_add_f32_dpp v{c}, v{d+3}, v{d} quad_perm:[3,3,3,3] row_mask:0xf bank_mask:{bm:#x}\n"
        if (u & 1) or u == n - 1:
            t += f"v_max_f32 v{vMX}, v{vMX}, v{c}\n"
        return t

    body = []
    for u in range(n):
        d = DT + 4 * (u % 3)
        src = ksrc(u)
        b = bops(u - 2).strip().split("\n") if u >= 2 else []
        if u == 2:
            b = ["s_nop 4"] + b
        parts = [b[:len(b) // 2], b[len(b) // 2:]]
        for m in range(2):
            cin = "0" if m == 0 else vr(d)
            if src[0] == "reg":
                t = f"v_mfma_f32_16x16x32_bf16 {vr(d)}, {vr(radd(src[1],4*m))}, {vr(QA+4*m)}, {cin}"
                if hook and hook(u, m):
                    t += "\n" + hook(u, m)
                body.append((t, src[2]))
            elif src[0] == "gl":
                w, q, upto = src[1].consume(("K", u, m))
                body.append((w + f"v_mfma_f32_16x16x32_bf16 {vr(d)}, {vr(q)}, {vr(QA+4*m)}, {cin}", None))
                if parts[m]:
                    body.append(("\n".join(parts[m]), None))
                    parts[m] = []
                body.append((src[1].issue(upto), None))
            else:
                i = rpos[(u, m)]
                q = stg[i % len(stg)]
                t = f"s_waitcnt lgkmcnt({issued[0]-i-1})\n"
                t += f"v_mfma_f32_16x16x32_bf16 {vr(d)}, {vr(q)}, {vr(QA+4*m)}, {cin}"
                body.append((t, None))
                issue_reads(i + 1 + len(stg), body)
            if parts[m]:
                body.append(("\n".join(parts[m]), None))
    body.append((bops(n - 2), None))
    body.append(("s_nop 1\n" + bops(n - 1), None))
    return G, pre, body


def max_group():
    t = "s_nop 1\n"
    t += f"v_max_f32_dpp v{vMX}, v{vMX}, v{vMX} row_half_mirror {DPPF}\n"
    t += f"v_mov_b32 v{vT}, v{vMX}\ns_nop 1\nv_permlane32_swap_b32 v{vMX}, v{vT}\nv_max_f32 v{vMX}, v{vMX}, v{vT}\n"
    t += f"v_mov_b32 v{vT}, v{vMX}\ns_nop 1\nv_permlane16_swap_b32 v{vMX}, v{vT}\nv_max_f32 v{vMX}, v{vMX}, v{vT}\n"
    t += f"v_mul_f32 v{vCM}, s{sC}, v{vMX}\nv_mov_b32 v{vLS}, 0\nds_write_b32 v{vCMw}, v{vCM}"
    return (t, None)


def pv_groups(order, vsrc, stg, bar_at, tp):
    T = [DT, DT + 4]
    PP = [DT + 8, DT + 9]
    n = len(order)
    reads = [(u, m) for u in order if vsrc(u)[0] == "lds" for m in range(2)]
    rpos = {rm: i for i, rm in enumerate(reads)}
    issued = [0]
    body = []

    def issue_reads(upto):
        while issued[0] < min(upto, len(reads)):
            u, m = reads[issued[0]]
            q = stg[issued[0] % len(stg)]
            body.append((f"ds_read_b128 {vr(q)}, v{vL} offset:{vsrc(u)[1]*2048+m*1024}", vsrc(u)[2], None))
            issued[0] += 1

    pairs = []
    for u in order:
        if u // 2 not in pairs:
            pairs.append(u // 2)
    pidx = {k: i for i, k in enumerate(pairs)}

    def E(k):
        c = SC + k
        return f"v_fma_f32 v{c}, v{c}, s{sC}, -v{vCM}\nv_exp_f32 v{c}, v{c}\n"

    def F(k):
        c = SC + k
        return f"v_add_f32 v{vLS}, v{vLS}, v{c}\nv_cvt_pk_bf16_f32 v{PP[pidx[k]&1]}, v{c}, v{c}\n"

    def Gm(i):
        u = order[i]
        pp = PP[pidx[u // 2] & 1]
        rho = u & 1
        t = ""
        for r in range(4):
            if (r >> 1) == rho:
                t += f"v_and_b32 v{T[i&1]+r}, v{pp}, v{MASK+r}\n"
        for r in range(4):
            if (r >> 1) != rho:
                sh = "row_shr:4" if rho == 0 else "row_shl:4"
                t += f"v_and_b32_dpp v{T[i&1]+r}, v{pp}, v{MASK+r} {sh} {DPPF} bound_ctrl:0\n"
        return t

    t = E(pairs[0])
    if len(pairs) > 1:
        t += E(pairs[1])
    else:
        t += "s_nop 0\n"
    t += F(pairs[0]) + Gm(0)
    body.append((t, None, None))
    edone = min(2, len(pairs))
    fdone = 1
    first_lds_started = False
    for i in range(n):
        u = order[i]
        nxt = [order[j] for j in range(i, min(n, i + 3))]
        if not first_lds_started and any(vsrc(x)[0] == "lds" for x in nxt):
            issue_reads(len(stg))
            first_lds_started = True
        t = ""
        if i + 1 < n:
            k1 = pidx[order[i + 1] // 2]
            if k1 >= fdone:
                t += F(pairs[k1])
                fdone = k1 + 1
                if edone < len(pairs):
                    t += E(pairs[edone])
                    edone += 1
            t += Gm(i + 1)
        if i == bar_at:
            body.append((f"v_add_u32 v{vT}, s{sW4}, v{vCMr}\ns_waitcnt lgkmcnt(0)\ns_barrier\n"
                         f"ds_read_b64 v[{vF}:{vF+1}], v{vCMr}\nds_read_b64 v[{tp}:{tp+1}], v{vCMr} offset:8\nds_read_b32 v{vT}, v{vT}", None, None))
        if i == min(bar_at + 2, n - 1):
            t += (f"s_waitcnt lgkmcnt(0)\nv_max3_f32 v{vMX}, v{vF}, v{vF+1}, v{tp}\nv_max_f32 v{vMX}, v{vMX}, v{tp+1}\n"
                  f"v_sub_f32 v{vF}, v{vT}, v{vMX}\nv_exp_f32 v{vF}, v{vF}\n")
        tl = [x for x in t.strip().split("\n") if x]
        parts = [tl[:len(tl) // 2], tl[len(tl) // 2:]]
        if not tl:
            parts[0] = ["s_nop 0"]
        src = vsrc(u)
        for m in range(2):
            acc = QA + 4 * m
            cin = "0" if i == 0 else vr(acc)
            if parts[m]:
                body.append(("\n".join(parts[m]), None, None))
            if src[0] == "reg":
                body.append((f"v_mfma_f32_16x16x32_bf16 {vr(acc)}, {vr(T[i&1])}, {vr(radd(src[1],4*m))}, {cin}", src[2], None))
            elif src[0] == "gl":
                w, q, upto = src[1].consume(("V", u, m))
                body.append((w + f"v_mfma_f32_16x16x32_bf16 {vr(acc)}, {vr(T[i&1])}, {vr(q)}, {cin}", None, None))
                body.append((src[1].issue(upto), None, None))
            else:
                j = rpos[(u, m)]
                q = stg[j % len(stg)]
                body.append((f"s_waitcnt lgkmcnt({issued[0]-j-1})\nv_mfma_f32_16x16x32_bf16 {vr(acc)}, {vr(T[i&1])}, {vr(q)}, {cin}", None, u if m == 1 else None))
                issue_reads(j + 1 + len(stg))
    return body


def emit_groups(gs):
    for g in gs:
        A(g[0])


def clear_next(t4, ta):
    sk, far = A.label("clsk"), A.label("clfar")
    A(f"s_cmp_lt_u32 s{sWAVE}, 2\ns_cbranch_scc1 {sk}")
    for r in range(4):
        A(f"v_mov_b32 v{t4+r}, -1")
    A(f"v_lshlrev_b32 v{ta}, 4, v0")
    A(f"s_sub_u32 s{sT3}, s{sWAVE}, 2\ns_lshl_b32 s{sCL}, s{sT3}, 12\ns_add_u32 s{sCL}, s{sCL}, s{sMLOFF}\ns_add_u32 s{sCL}, s{sCL}, {ML_L}")
    A(f"s_mul_i32 s{sT3}, s{sT3}, 28672\ns_add_u32 s{sT3}, s{sT3}, s{sPOOFF}\ns_add_u32 s{sT3}, s{sT3}, {PO_L}")
    A(f"s_cmp_eq_u32 s{sMODE}, 1\ns_cbranch_scc0 {far}")
    for fl in ("", " sc1"):
        if fl:
            A(f"{far}:")
        A(f"buffer_store_dwordx4 {vr(t4)}, v{ta}, {srd(SRD_WS)}, s{sT3} offen{fl}")
        A(f"s_mov_b64 exec, 1\nbuffer_store_dwordx2 {vr(t4, 2)}, v{ta}, {srd(SRD_WS)}, s{sCL} offen{fl}\ns_mov_b64 exec, -1")
        if not fl:
            A(f"s_branch {sk}")
    A(f"{sk}:\ns_nop 1")


def code_prefetch(lab_from, nbytes, vaddr, vjunk, sp):
    here = A.label("pc")
    A(f"s_getpc_b64 s[{sp}:{sp+1}]\n{here}:")
    A(f"s_add_u32 s{sp}, s{sp}, {lab_from}-{here}\ns_addc_u32 s{sp+1}, s{sp+1}, {'-1' if lab_from in BACKWARD else '0'}")
    A(f"v_lshlrev_b32 v{vaddr}, 6, v0")
    for o in range(0, nbytes, 4096):
        A(f"global_load_dword v{vjunk}, v{vaddr}, s[{sp}:{sp+1}]")
        if o + 4096 < nbytes:
            A(f"v_add_u32 v{vaddr}, 4096, v{vaddr}")


BACKWARD = set()


def cm_addr():
    A(f"v_lshrrev_b32 v{vCMr}, 5, v0\nv_lshlrev_b32 v{vCMr}, 4, v{vCMr}\nv_add_u32 v{vCMr}, {MLBASE}, v{vCMr}")
    A(f"v_bfe_u32 v{vCMw}, v0, 3, 1\nv_lshlrev_b32 v{vCMw}, 4, v{vCMw}\nv_add_u32 v{vCMw}, s{sW4}, v{vCMw}\nv_add_u32 v{vCMw}, {MLBASE}, v{vCMw}")


def q_loads():
    return (f"buffer_load_dwordx4 {vr(QA)}, v{vQ}, {srd(SRD_WS)}, s{sQOFF} offen sc1\n"
            f"buffer_load_dwordx4 {vr(QA+4)}, v{vQ}, {srd(SRD_WS)}, s{sQOFF} offen offset:256 sc1")


def poll_q_blocking():
    lp, done = A.label("qpoll"), A.label("qdone")
    A(f"{lp}:")
    spin_guard(done)
    if os.environ.get("QPS"):
        A(f"s_sleep {os.environ['QPS']}")
    A(q_loads())
    A("s_waitcnt vmcnt(0)")
    sentinel_check(range(QA, QA + 8), vT, lp)
    A(f"{done}:")
    A("s_nop 1")


VL_UNITS = list(range(NVREG, NKA))
vslot = lambda u: u - NVREG
loads = []
it = ld_items_lds(SRD_VA, vV, vVd, sOFFA, VL_UNITS[:-1], vslot)
loads += [(t, ("V", u), None) for t, u in it]
it = ld_items_lds(SRD_VA, vV, vVd, sOFFA36, [0], lambda u: vslot(36))
loads += [(t, ("V", 36), None) for t, u in it]
it = ld_items_reg(SRD_KA, vK, sOFFA, list(range(36)), half)
kl = [(t, ("K", u), None) for t, u in it]
it = ld_items_reg(SRD_KA, vK, sOFFA36, [0], lambda u: half(36))
kl += [(t, ("K", 36), None) for t, u in it]
ca_load = (f"buffer_load_dword v{vCM}, v{vFA}, {srd(SRD_DBG)}, 0 offen sc1", ("CA",), None)
FPOS = 32
NOCA = int(os.environ.get("NOCA", "0"))
QK0 = int(os.environ.get("QK0", "40"))
loads += kl[:QK0 - 20] + ([] if NOCA else [ca_load]) + kl[QK0 - 20:QK0]
QPOS = len(loads)
loads += kl[QK0:]
it = ld_items_reg(SRD_VA, vV, sOFFA, list(range(NVREG)), lambda u: half(NKA + u))
loads += [(t, ("V", u), None) for t, u in it]
NA_LOADS = len(loads)
sBO = 52
vPF, vJ = 42, 43
XD = int(os.environ.get("XD", "4"))
STG_B = [44, 48, 52, 56, 60, 64, 68]
RING_B = STG_B + [radd(half(NKA + u), 4 * m) for u in range(NVREG - XD, NVREG) for m in range(2)]
NPRE = len(RING_B)
PFS = int(os.environ.get("PFS", "6"))
bpf = []
first = True
for srdr, nm in ((SRD_KB, "K"), (SRD_VB, "V")):
    for p in range(6):
        nbytes = 4096 if p < 4 else 2048
        per = 64 << PFS
        for o in range(0, nbytes, per):
            nbefore = (0 if nm == "K" else 20) + (4 * p if p < 4 else 16 + 2 * (p - 4))
            if nbefore + nbytes // 1024 <= NPRE:
                continue
            t = ""
            if first:
                t += f"v_lshlrev_b32 v{vPF}, {PFS}, v0\n"
                first = False
            lanes = min(64, nbytes >> PFS)
            if lanes < 64:
                t += f"s_mov_b64 exec, {(1 << lanes) - 1}\n" if lanes < 32 else "s_mov_b32 exec_hi, 0\n"
            t += f"buffer_load_dword v{vJ}, v{vPF}, {srd(srdr)}, s{sBO+p} offen offset:{o}"
            if lanes < 64:
                t += "\ns_mov_b64 exec, -1"
            bpf.append((t, ("PF", len(bpf)), None))
GATE = 0
NB_EARLY = int(os.environ.get('NBE', '0'))
BL = bpf
early = [(t.replace(f"v{vPF},", "v62,").replace(f"v{vJ},", "v63,"), tag, NSLOT - 1) for t, tag, req in BL[:NB_EARLY]]
loads += early
if NB_EARLY:
    t0_, tag0_, r0_ = BL[NB_EARLY]
    BL[NB_EARLY] = (f"v_lshlrev_b32 v{vPF}, {PFS}, v0\n" + t0_, tag0_, r0_)

ksrcA = lambda u: ("reg", half(u), ("K", u))
vsrcA = lambda u: ("reg", half(NKA + u), ("V", u)) if u < NVREG else ("lds", vslot(u), ("V", u))

g0, pre, body = qk_groups(NKA, ksrcA, sBIASA, STG_A)
comp = [(t, n, None) for t, n in g0 + pre + body] + [max_group() + (None,)]
comp += pv_groups(VL_UNITS + list(range(NVREG)), vsrcA, STG_A, 33, STG_A[0])

EXP = os.environ.get("EXP", "")
if EXP:
    order = loads[:NA_LOADS] + BL
    if "r" in EXP:
        order = [(t, ("K", u), None) for t, u in ld_items_reg(SRD_KA, vV if "v" in EXP else vK, sOFFA, list(range(36)), half)]
        order += [(t, ("V", u), None) for t, u in ld_items_reg(SRD_VA, vV, sOFFA, list(range(36)), lambda u: half(u + 18))]
        order += [(t, ("BK", u), None) for t, u in ld_items_reg(SRD_KB, vV if "v" in EXP else vK, sOFFB, list(range(8)), half)]
        order += [(t, ("BV", u), None) for t, u in ld_items_reg(SRD_VB, vV, sOFFB, list(range(8)), lambda u: half(u + 18))]
    for i, (t, tag, req) in enumerate(order):
        if tag == ("CA",): continue
        if tag == ("BK", 0) and "s_add" in t:
            stamp(3)
        if i in (30, 60, 90, 120): stamp(15 + (30, 60, 90, 120).index(i))
        A(t)
        if os.environ.get("THR"): A(f"s_waitcnt vmcnt({os.environ['THR']})")
    A("s_waitcnt vmcnt(0)")
    stamp(4)
    A("s_branch L_fin")
THR = int(os.environ.get("THR", "4"))
THRX = int(os.environ.get("THRX", "0"))
TSCH = eval(os.environ.get("TSCH", "[(0,4),(118,0)]"))
VPOL = int(os.environ.get("VPOL", "0"))
THR2 = int(os.environ.get("THR2", "0"))
THRB = int(os.environ.get("THRB", "0"))
LAG = int(os.environ.get("LAG", "10"))
last_of = {}
nissued = 0
released = set()
ci = 0


def emit_comp(g):
    t, need, rel = g
    if need is not None:
        n = nissued - last_of[need] - 1
        A(f"s_waitcnt vmcnt({min(n, 63)})")
    A(t)
    if rel is not None:
        released.add(vslot(rel))


qready = False
li = 0
done_pos = set()
LEAD = int(os.environ.get("LEAD", "0"))
ADAPT = int(os.environ.get("ADAPT", "0"))
ATHR = int(os.environ.get("ATHR", "3"))
sTHR = 51
MARKS = ([40, 56, 72, 88, 104, 120] if LEAD else [-1] * 6) + [NA_LOADS - GATE] if GATE else []
if ADAPT:
    MARKS = [34, 50, 66, 82, 98, 114, 130]
    A(f"s_mov_b32 s{sTHR}, 0")


RATE = int(os.environ.get("RATE", "0"))
sRT0, sRT = 64, 66
if RATE:
    pass


def rate_ctl(li):
    if RATE and li % 6 == 0 and 12 <= li:
        A(f"s_memrealtime s[{sRT}:{sRT+1}]")
    if RATE and li % 6 == 1 and 12 <= li:
        A(f"s_waitcnt lgkmcnt(0)\ns_sub_u32 s{sRT}, s{sRT}, s{sRT0}\ns_cmp_lt_u32 s{sRT}, {max(0, (li - int(os.environ.get('ROFF', '4'))) * RATE // 10)}\ns_cselect_b32 s{sTHR}, 1, 0")


def athr():
    if ADAPT or RATE:
        sk = A.label("nt")
        A(f"s_cmp_eq_u32 s{sTHR}, 0\ns_cbranch_scc1 {sk}\ns_waitcnt vmcnt({ATHR})\n{sk}:")


flow_load = f"buffer_load_ubyte v{vFD}, v{vFA}, {srd(SRD_DBG)}, 0 offen offset:4 sc1"


def flow_wait(k, n):
    ok, lp, ck = A.label("flok"), A.label("fllp"), A.label("flck")
    if n is not None:
        A(f"s_waitcnt vmcnt({n})\ns_branch {ck}")
    A(f"{lp}:")
    spin_guard(ok)
    A(f"{flow_load}\ns_waitcnt vmcnt(0)")
    A(f"{ck}:\nv_cmp_gt_u32 vcc, {k << 4}, v{vFD}\ns_nop 0\ns_cmp_lg_u64 vcc, 0\ns_cbranch_scc0 {ok}\ns_sleep 4\ns_branch {lp}")
    A(f"{ok}:")


while li < len(loads):
    if li in MARKS and li not in done_pos:
        k = MARKS.index(li) + 1
        nf = A.label("nomark")
        A(f"s_or_b32 s{sT3}, s{sWAVE}, s{sSP}\ns_cmp_eq_u32 s{sT3}, 0\ns_cbranch_scc0 {nf}")
        A(f"s_or_b32 s{sT3}, s{sID}, {k << 4}\nv_mov_b32 v{vT}, s{sT3}\ns_lshl_b64 exec, 1, s{sG}")
        A(f"buffer_store_byte v{vT}, v{vFA}, {srd(SRD_DBG)}, 0 offen offset:4 sc1\ns_mov_b64 exec, -1")
        A(f"{nf}:")
    if LEAD and (li - LEAD + 8) in MARKS[:-1] and li + 8 < NA_LOADS and li not in done_pos:
        A(flow_load)
        last_of[("FL",)] = nissued
        nissued += 1
    if LEAD and (li - LEAD) in MARKS[:-1] and li < NA_LOADS and li not in done_pos:
        k = MARKS.index(li - LEAD) + 1
        flow_wait(k, nissued - last_of[("FL",)] - 1)
    if ADAPT and (li - ADAPT) in MARKS and li + 8 < NA_LOADS and li not in done_pos:
        A(flow_load)
        last_of[("FL",)] = nissued
        nissued += 1
    if ADAPT and (li - ADAPT - 8) in MARKS and li < NA_LOADS and li not in done_pos:
        k = MARKS.index(li - ADAPT - 8) + 1
        A(f"s_waitcnt vmcnt({nissued - last_of[('FL',)] - 1})")
        A(f"v_cmp_gt_u32 vcc, {k << 4}, v{vFD}\ns_nop 0\ns_cmp_lg_u64 vcc, 0\ns_cselect_b32 s{sTHR}, 1, 0")
    if os.environ.get("PROG") and li in (30, 60, 90, 120) and li not in done_pos:
        if li == 120 and PROFILE: A("s_waitcnt lgkmcnt(0)")
        stamp(15 + (30, 60, 90, 120).index(li))
    if li == 4 and li not in done_pos:
        late_setup()
        if RATE:
            A(f"s_mov_b32 s{sTHR}, 0\ns_memrealtime s[{sRT0}:{sRT0+1}]")
    done_pos.add(li)
    if li == QPOS and NOCA:
        A(f"s_mov_b32 s{sMODE}, 1")
        A(q_loads())
        nissued += 2
        last_of[("Q",)] = nissued - 1
    if li == QPOS and not NOCA:
        n = nissued - last_of[("CA",)] - 1
        ok, lp, ck = A.label("caok"), A.label("calp"), A.label("cack")
        A(f"s_waitcnt vmcnt({n})\ns_branch {ck}")
        A(f"{lp}:")
        spin_guard(ok)
        A(f"{ca_load[0]}\ns_waitcnt vmcnt(0)")
        A(f"{ck}:\nv_readlane_b32 s{sT3}, v{vCM}, s{sG}")
        A(f"s_cmp_eq_u32 s{sT3}, s{sID}\ns_cselect_b32 s{sMODE}, 1, 0")
        A(f"s_add_u32 s{sT3}, s{sT3}, 0x7f7f7f7f\ns_and_b32 s{sT3}, s{sT3}, 0x80808080\ns_cmp_eq_u32 s{sT3}, 0x80808080\ns_cbranch_scc0 {lp}")
        A(f"{ok}:")
        clear_next(DT, vT)
        A(q_loads())
        nissued += 2
        last_of[("Q",)] = nissued - 1
    if li == QPOS + 12:
        n = nissued - last_of[("Q",)] - 1
        slow, ok = A.label("qslow"), A.label("qok")
        A(f"s_waitcnt vmcnt({n})")
        sentinel_check(range(QA, QA + 8), vT, slow)
        A(f"s_branch {ok}\n{slow}:")
        poll_q_blocking()
        A(f"{ok}:")
        stamp(1)
        A(f"s_lshl_b32 s{sW4}, s{sWAVE}, 2")
        cm_addr()
        if RATE:
            A(f"s_mov_b32 s{sTHR}, 0")
        qready = True
    t, tag, req = loads[li]
    if req is not None and req not in released:
        emit_comp(comp[ci])
        ci += 1
        continue
    A(t.replace(" nt", "") if li < VPOL else t)
    if TSCH:
        tv = [v for (p, v) in TSCH if li >= p][-1]
        if tv:
            A(f"s_waitcnt vmcnt({tv})")
    elif THR and not qready:
        A(f"s_waitcnt vmcnt({THR + (THRX if li & 1 else 0)})")
    if THR2 and qready:
        A(f"s_waitcnt vmcnt({THR2})")
    if li > (12 if RATE else 40) and not (RATE and qready):
        athr()
    if not qready:
        rate_ctl(li)
    last_of[tag] = nissued
    nissued += 1
    li += 1
    if qready:
        cnt = 0
        while ci < len(comp) and cnt < int(os.environ.get("GPL", "8")):
            need = comp[ci][1]
            if need is not None and (need not in last_of or nissued - last_of[need] - 1 < LAG or
                                     (li < len(loads) and loads[li][1] == need)):
                break
            emit_comp(comp[ci])
            ci += 1
            cnt += 1
stamp(2)
A(f"s_max_u32 s{sT3}, s{sWAVE}, 1\ns_lshl_b32 s{sT3}, s{sT3}, 10\ns_add_u32 s{sT3}, s{sT3}, {XBASE - 1024}\nv_lshl_add_u32 v{vX}, v0, 4, s{sT3}")
while ci < len(comp):
    emit_comp(comp[ci])
    ci += 1

A("L_reduce:")
A(f"v_add_f32_dpp v{vLS}, v{vLS}, v{vLS} row_half_mirror {DPPF}")
xrow_reduce("v_add_f32", vLS, vT)
A(f"v_mul_f32 v{vLS}, v{vLS}, v{vF}\ns_mov_b32 exec_lo, 1\ns_mov_b32 exec_hi, 0x100")
A(f"ds_write_b32 v{vCMw}, v{vLS} offset:32\ns_mov_b64 exec, -1")
for r in range(0, 8, 2):
    A(f"v_pk_mul_f32 v[{QA+r}:{QA+r+1}], v[{QA+r}:{QA+r+1}], v[{vF}:{vF+1}] op_sel_hi:[1,0]")
XR = 20
xr = [20, 24, 56]
A(f"s_cmp_eq_u32 s{sWAVE}, 0\ns_cbranch_scc0 L_red_n0")
for wv in range(2):
    own, give = QA + 4 * wv, QA + 4 * (1 - wv)
    if wv == 1:
        A("L_red_1:")
    A(f"ds_write_b128 v{vX}, {vr(give)} offset:{3072*(1-wv)}")
    A(f"s_add_u32 s{sT0}, s{sPOOFF}, {512*wv}\ns_cmp_eq_u32 s{sMODE}, 1")
    A("s_waitcnt lgkmcnt(0)\ns_barrier")
    for s_ in range(3):
        A(f"ds_read_b128 {vr(xr[s_])}, v{vX} offset:{3072*wv+1024*s_}")
    for s_ in range(3):
        A(f"s_waitcnt lgkmcnt({2-s_})")
        for r in (0, 2):
            A(f"v_pk_add_f32 v[{own+r}:{own+r+1}], v[{own+r}:{own+r+1}], v[{xr[s_]+r}:{xr[s_]+r+1}]")
    for r in range(4):
        A(f"v_min_u32 v{own+r}, -2, v{own+r}")
    far = A.label("far")
    A(f"s_cbranch_scc0 {far}")
    A(f"buffer_store_dwordx4 {vr(own)}, v{vPO}, {srd(SRD_WS)}, s{sT0} offen\ns_branch L_red_done")
    A(f"{far}:\nbuffer_store_dwordx4 {vr(own)}, v{vPO}, {srd(SRD_WS)}, s{sT0} offen sc1\ns_branch L_red_done")
A("L_red_n0:")
A(f"s_cmp_eq_u32 s{sWAVE}, 1\ns_cbranch_scc1 L_red_1")
A(f"ds_write_b128 v{vX}, {vr(QA)}\nds_write_b128 v{vX}, {vr(QA+4)} offset:3072")
A(f"v_lshrrev_b32 v{vT}, 5, v0\nv_lshlrev_b32 v{vT}, 12, v{vT}\nv_min_u32 v24, -2, v{vMX}")
A(f"s_cmp_eq_u32 s{sWAVE}, 2")
A("s_waitcnt lgkmcnt(0)\ns_barrier\ns_cbranch_scc0 L_red_done")
A(f"ds_read_b128 v[20:23], v{vCMr} offset:32\ns_cmp_eq_u32 s{sMODE}, 1\ns_waitcnt lgkmcnt(0)")
A("v_add_f32 v20, v20, v21\nv_add_f32 v22, v22, v23\nv_add_f32 v25, v20, v22\nv_min_u32 v25, -2, v25")
A("s_mov_b32 exec_lo, 1\ns_mov_b32 exec_hi, 1\ns_cbranch_scc0 L_ml_far")
A(f"buffer_store_dwordx2 v[24:25], v{vT}, {srd(SRD_WS)}, s{sMLOFF} offen\ns_branch L_ml_done")
A(f"L_ml_far:\nbuffer_store_dwordx2 v[24:25], v{vT}, {srd(SRD_WS)}, s{sMLOFF} offen sc1")
A("L_ml_done:\ns_mov_b64 exec, -1")
A("L_red_done:")
A("s_barrier")
A(f"s_add_u32 s{sQOFF}, s{sQOFF}, 8192\ns_add_u32 s{sPOOFF}, s{sPOOFF}, {PO_L}\ns_add_u32 s{sMLOFF}, s{sMLOFF}, {ML_L}")
A(f"s_add_u32 s{sLAYER}, s{sLAYER}, 1")
A(f"s_cmp_eq_u32 s{sLAYER}, 2\ns_cbranch_scc1 L_after2")
A(f"s_cmp_eq_u32 s{sLAYER}, 3\ns_cbranch_scc1 L_after3")
A(f"s_cmp_eq_u32 s{sLAYER}, 4\ns_cbranch_scc1 L_att_end")
stamp(3)
if GATE:
    vFA = vT
    flow_load = f"buffer_load_ubyte v{vFD}, v{vFA}, {srd(SRD_DBG)}, 0 offen offset:4 sc1"
    A(f"v_and_b32 v{vFA}, 7, v0\nv_lshlrev_b32 v{vFA}, 5, v{vFA}")
    flow_wait(7, None)
    stamp(13)


DRYS = os.environ.get("DRYS", "")


def stream_then_q(items, E, st_a, st_b, thr=0, pre=(), dry=None):
    n = len(items)
    for i, (t, tag, req) in enumerate(items):
        if i == n - E:
            A(q_loads())
        A(t)
        if thr and i < n - E:
            A(f"s_waitcnt vmcnt({thr})")
        if st_a == 4 and i < n - E and os.environ.get("ATHB"):
            athr()
            rate_ctl(NA_LOADS + NB_EARLY + i + 6)
    if dry and int(os.environ.get("CPL", "1")):
        code_prefetch(f"L_{dry}_body", 8192 if dry == "l3" else 4096, STG_A[3], STG_A[3] + 1, sT2)
    if dry and dry in DRYS:
        A(f"s_mov_b64 exec, 0\ns_branch L_{dry}_body\nL_{dry}_ret:\ns_mov_b64 exec, -1\ns_nop 7")
    if E == 0:
        qs = int(os.environ.get(f"QS{st_a}", "0"))
        if qs:
            A(f"s_sleep {qs}")
        A(q_loads())
    slow, ok = A.label("qslow"), A.label("qok")
    A(f"s_waitcnt vmcnt({E})")
    stamp(st_a)
    emit_groups(pre)
    sentinel_check(range(QA, QA + 8), vT, slow)
    A(f"s_branch {ok}\n{slow}:")
    poll_q_blocking()
    A(f"{ok}:")
    stamp(st_b)
    if dry:
        A(f"L_{dry}_body:")
    younger = {}
    for i, (t, tag, req) in enumerate(items):
        if i >= n - E:
            younger[tag] = n - 1 - i
    return younger


def emit_counted(gs, younger, extra=None, every=1):
    extra = list(extra or [])
    cnt = 0
    for g in gs:
        need = g[1]
        if need in younger:
            A(f"s_waitcnt vmcnt({younger[need]})")
            lim = younger[need]
            for k in [k for k, v in younger.items() if v >= lim]:
                del younger[k]
        A(g[0])
        if "v_mfma" in g[0]:
            cnt += 1
            if extra and cnt % every == 0:
                t, tag, req = extra.pop(0)
                A(t)
                for k in younger:
                    younger[k] += 1
                younger[tag] = 0
    assert not extra


def btext(key, q):
    nm, u, m = key
    p, o = (u // 2, (u & 1) * 2048) if u < 8 else (u - 4, 0)
    return f"buffer_load_dwordx4 {vr(q)}, v{vK if nm == 'K' else vV}, {srd(SRD_KB if nm == 'K' else SRD_VB)}, s{sBO+p} offen offset:{o+256*m}"


ring = GRing([(nm, u, m) for nm in "KV" for u in range(10) for m in range(2)], btext, RING_B)
clear_next(DT, vT)
RTH = os.environ.get("RTH", "")
for i_ in range(1, NPRE + 1):
    A(ring.issue(i_))
    if RTH:
        A(f"s_waitcnt vmcnt({RTH})")
ring.landed = NPRE
CPF = int(os.environ.get("CPF", "2"))
if CPF:
    code_prefetch("L_l2body", CPF * 4096, vPF, vJ, sT0)
ksrcB = lambda u: ("gl", ring, None)
g0, pre, body = qk_groups(10, ksrcB, sBIASB, STG_B)
emit_groups(g0)
yg = stream_then_q(BL[NB_EARLY:], int(os.environ.get("E2", "2")), 4, 5, int(os.environ.get("PTH", "0")))
A("L_l2body:")
emit_groups(body + [max_group()] + pv_groups(list(range(10)), ksrcB, STG_B, 5, 42))
A("s_branch L_reduce")

A("L_after2:")
stamp(6)
def hook3(u, m):
    j = 2 * (u - 1) + m
    if u >= 1 and j < 2 * NSLOT:
        w = "s_waitcnt lgkmcnt(6)\n" if j % 8 == 7 else ""
        return w + f"ds_read_b128 {vr(radd(half(j // 2), 4 * (j & 1)))}, v{vL} offset:{j*1024}"
    return None


g0, pre, body = qk_groups(NKA, ksrcA, sBIASA, STG_A, hook3)
vsrc3 = lambda u: ("reg", half(NKA + u) if u < NVREG else half(u - NVREG), None)
clear_next(DT, vT)
emit_groups(g0)
rl = ld_items_reg(SRD_VA, vV, sOFFA, list(range(NVREG - XD, NVREG)), lambda u: half(NKA + u)) if XD else []
yg = stream_then_q([(t, ("V", u), None) for t, u in rl], 0, 14, 7, dry="l3")
emit_counted(body, yg)
emit_groups([max_group()])
stamp(8)
HB1 = 0
b4 = []
for srdr, voff, base, nm in ((SRD_KB, vK, 0, "BK"), (SRD_VB, vV, 10, "BV")):
    b4 += [(t, (nm, u), None) for t, u in ld_items_reg(srdr, voff, sOFFB, list(range(8)), lambda u: half(base + u))]
    b4 += [(t, (nm, 8), None) for t, u in ld_items_reg(srdr, voff, sOFFB8, [0], lambda u: half(base + 8))]
    b4 += [(t, (nm, 9), None) for t, u in ld_items_reg(srdr, voff, sOFFB9, [0], lambda u: half(base + 9))]
NB4 = int(os.environ.get("NB4", "0"))
order3 = list(range(NVREG)) + [NVREG + x for x in list(range(HB1, NSLOT)) + list(range(0, HB1))]
emit_groups(pv_groups(order3, vsrc3, STG_A, 12, STG_A[0]))
stamp(15)
if "l3" in DRYS:
    A("s_cbranch_execz L_l3_ret")
A("s_branch L_reduce")

A("L_after3:")
if os.environ.get("WBL") == "2":
    A(f"s_cmp_eq_u32 s{sSP}, 27\ns_cbranch_scc0 L_wb_skip2\ns_cmp_eq_u32 s{sWAVE}, 3\ns_cbranch_scc0 L_wb_skip2")
    A("buffer_wbl2 sc1")
    A("L_wb_skip2:")
stamp(9)
ksrc4 = lambda u: ("reg", half(u), ("BK", u))
vsrc4 = lambda u: ("reg", half(10 + u), ("BV", u))
g0, pre, body = qk_groups(10, ksrc4, sBIASB, STG_B)
emit_groups(g0)
yg = stream_then_q(b4[NB4:], int(os.environ.get("E4", "0")), 10, 11, int(os.environ.get("THR4", "0")), dry="l4")
emit_counted(body + [max_group()] + pv_groups(list(range(10)), vsrc4, STG_B, 5, 42), yg)
if "l4" in DRYS:
    A("s_cbranch_execz L_l4_ret")
A("s_branch L_reduce")

A("L_att_end:")
if os.environ.get("WBL"):
    A(f"s_cmp_eq_u32 s{sSP}, 0\ns_cbranch_scc0 L_wb_skip\ns_cmp_eq_u32 s{sWAVE}, 3\ns_cbranch_scc0 L_wb_skip")
    A("buffer_wbl2 sc1\ns_waitcnt vmcnt(0)")
    A("L_wb_skip:")
stamp(12)
A("s_branch L_fin")

A("L_chain:")
cWq, cWo, cPOg, cMLg, cL16, cYg, cT = 1, 2, 3, 4, 5, 6, 7
cX = 12
cVAL, cYst, cSCR, cXw, cXa, cXs = 14, 15, 16, 17, 18, 19
cTT = [20, 24]
cACC = 28
cG = 36
cN = 68
cXA = 36
cCS = {0: 92, 1: 93}
cQst, cV56 = 94, 95
cWo1 = 91
WQ = {0: ("a", 0), 1: ("a", 112)}
WO0 = {0: ("v", 96), 1: ("v", 160)}
sYG = 52


def wo1(t):
    return ("v", 224 + 4 * t) if t < 8 else ("a", 224 + 4 * (t - 8))


CSCR = 131072
YX = CSCR
XB = CSCR + 4096
sCH = sSP
WQB = 448 * 4096 * 2

if "n" in os.environ.get("EXP", ""):
    A("s_branch L_end")
if "l" in os.environ.get("EXP", ""):
    mk_srd(SRD_KB, pBK, 67108864)
    stamp(0)
    A(f"s_lshl_b32 s{sT0}, s{sG}, 23\ns_mul_i32 s{sT1}, s{sSP}, 491520\ns_add_u32 s{sT0}, s{sT0}, s{sT1}\ns_lshl_b32 s{sT1}, s{sWAVE}, 12\ns_add_u32 s{sT0}, s{sT0}, s{sT1}\nv_lshlrev_b32 v1, 4, v0")
    for i in range(30):
        for n in range(4):
            A(f"buffer_load_dwordx4 a[{(i*16+n*4)%256}:{(i*16+n*4)%256+3}], v1, {srd(SRD_KB)}, s{sT0} offen offset:{n*1024} nt")
        A(f"s_add_u32 s{sT0}, s{sT0}, 16384")
    A("s_waitcnt vmcnt(0)")
    stamp(3)
    A("s_branch L_fin")
A("s_waitcnt lgkmcnt(0)")
common_setup()
mk_srd(SRD_WQA, pAWQ, WQB)
mk_srd(SRD_WOA, pAWO, WQB)
mk_srd(SRD_WQB, pBWQ, WQB)
mk_srd(SRD_WOB, pBWO, WQB)
mk_srd(SRD_X, pAX, 896)
A(f"s_mov_b64 s[{sOUTP}:{sOUTP+1}], s[{pOUT}:{pOUT+1}]")
A(f"s_mov_b64 s[0:1], s[{pBK}:{pBK+1}]")
A(f"s_lshl_b32 s{sT0}, s{sG}, 2\ns_add_u32 s{sCH}, s{sT0}, s{sSP}")
A("v_lshrrev_b32 v20, 4, v0       ; s / row")
A("v_and_b32 v21, 15, v0          ; j / c16")
A("v_lshlrev_b32 v22, 4, v21      ; j*16")
A(f"s_lshr_b32 s{sT0}, s{sWAVE}, 1\ns_lshl_b32 s{sT0}, s{sT0}, 2\nv_or_b32 v23, s{sT0}, v20\nv_lshlrev_b32 v23, 5, v23\nv_xor_b32 v23, v23, v22")
A(f"v_lshl_add_u32 v{cWq}, v20, 13, v23")
A(f"v_mul_u32_u24 v{cWo}, 896, v20\nv_add_u32 v{cWo}, v{cWo}, v22")
A("v_and_b32 v23, 31, v0\nv_min_u32 v23, 27, v23\nv_lshrrev_b32 v24, 5, v0")
A(f"s_mul_i32 s{sT0}, s{sWAVE}, 224\nv_lshlrev_b32 v25, 3, v23\nv_lshl_add_u32 v25, v24, 2, v25\nv_add_u32 v25, s{sT0}, v25")
A(f"buffer_load_dword v{cX}, v25, {srd(SRD_X)}, 0 offen")
A(f"v_add_u32 v{cXw}, {XB}, v25")
A(f"v_lshlrev_b32 v{cYg}, 4, v23\nv_lshl_add_u32 v{cYg}, v24, 11, v{cYg}")


def wq_dma(which):
    s_ = SRD_WQA if which == 0 else SRD_WQB
    A(f"s_lshl_b32 s{sT0}, s{sWAVE}, 15\ns_lshl_b32 s{sT1}, s{sCH}, 8\ns_add_u32 s{sT0}, s{sT0}, s{sT1}\ns_lshl_b32 s{sT2}, s{sWAVE}, 10")
    for ii in range(28):
        A(f"s_add_u32 s{sT1}, s{sT0}, {ii*131072}\ns_add_u32 s{sT3}, s{sT2}, {ii*4096}\ns_mov_b32 m0, s{sT3}\ns_nop 0")
        A(f"buffer_load_dwordx4 v{cWq}, {srd(s_)}, s{sT1} offen nt lds")


def wq_tr(which):
    A("v_lshrrev_b32 v20, 4, v0\nv_bfe_u32 v21, v0, 2, 2\nv_and_b32 v22, 1, v20\nv_lshl_add_u32 v22, v22, 2, v21")
    A(f"s_lshl_b32 s{sT0}, s{sWAVE}, 1\nv_xor_b32 v22, s{sT0}, v22\nv_lshlrev_b32 v22, 5, v22")
    A("v_lshl_add_u32 v20, v20, 3, v21\nv_lshl_add_u32 v20, v20, 8, v22\nv_and_b32 v21, 3, v0\nv_lshl_add_u32 v20, v21, 3, v20")
    A(f"v_xor_b32 v21, 32, v20\nv_add_u32 v22, {7*8192}, v20\nv_add_u32 v23, {7*8192}, v21")
    for kb in range(14):
        for cb in range(2):
            for hf in range(2):
                d = radd(WQ[which], (kb * 2 + cb) * 4 + hf * 2)
                A(f"ds_read_b64_tr_b16 {vr(d, 2)}, v{20 + cb + (0 if kb < 7 else 2)} offset:{(kb%7)*8192+hf*1024}")
        if kb % 3 == 2:
            A("s_waitcnt lgkmcnt(3)")
    A("s_waitcnt lgkmcnt(0)")


def sel_cb(dst):
    A(f"v_mov_b32 v{dst}, v{cACC}\ns_mov_b32 exec_lo, 0xffff0000\ns_mov_b32 exec_hi, 0xffff0000\nv_mov_b32 v{dst}, v{cACC+4}\ns_mov_b64 exec, -1")


def colsum(which):
    for r in range(4):
        A(f"v_mov_b32 v{20+r}, 0x3f803f80")
    A("s_nop 1")
    for kb in range(14):
        for cb in range(2):
            acc = cACC + 4 * cb
            A(f"v_mfma_f32_16x16x32_bf16 {vr(acc)}, v[20:23], {vr(radd(WQ[which], (kb*2+cb)*4))}, {'0' if kb == 0 else vr(acc)}")
    A("s_nop 7")
    sel_cb(cCS[which])


def wo_base():
    A(f"s_lshr_b32 s{sT0}, s{sCH}, 1\ns_lshl_b32 s{sT0}, s{sT0}, 2\ns_add_u32 s{sT0}, s{sT0}, s{sWAVE}\ns_mul_i32 s{sT0}, s{sT0}, {64*896}")
    A(f"s_and_b32 s{sT1}, s{sCH}, 1\ns_lshl_b32 s{sT1}, s{sT1}, 9\ns_add_u32 s{sT0}, s{sT0}, s{sT1}")


def wo0_loads(which, ts):
    s_ = SRD_WOA if which == 0 else SRD_WOB
    wo_base()
    for t in ts:
        A(f"s_add_u32 s{sT1}, s{sT0}, {4*t*896}")
        A(f"buffer_load_dwordx4 {vr(radd(WO0[which], 4*t))}, v{cWo}, {srd(s_)}, s{sT1} offen nt")


def wo1_addr():
    A(f"s_and_b32 s{sT1}, s{sCH}, 1\ns_lshl_b32 s{sT1}, s{sT1}, 7\ns_not_b32 s{sT1}, s{sT1}")
    A(f"v_lshlrev_b32 v{cWo1}, 4, v0\nv_and_b32 v{cWo1}, 0xf0, v{cWo1}\nv_sub_u32 v{cT}, v{cWo}, v{cWo1}\nv_and_b32 v{cWo1}, s{sT1}, v{cWo1}\nv_add_u32 v{cWo1}, v{cWo1}, v{cT}")


def wo1_regs(ts):
    wo1_addr()
    wo_base()
    for t in ts:
        A(f"s_add_u32 s{sT1}, s{sT0}, {4*t*896+256}")
        A(f"buffer_load_dwordx4 {vr(wo1(t))}, v{cWo1}, {srd(SRD_WOA)}, s{sT1} offen nt")


def wo1_dma(which):
    s_ = SRD_WOA if which == 0 else SRD_WOB
    wo_base()
    A(f"s_lshl_b32 s{sT2}, s{sWAVE}, 14\ns_add_u32 s{sT2}, s{sT2}, {which*65536}")
    for t in range(16):
        A(f"s_add_u32 s{sT1}, s{sT0}, {4*t*896+256}\ns_add_u32 s{sT3}, s{sT2}, {t*1024}\ns_mov_b32 m0, s{sT3}\ns_nop 0")
        A(f"buffer_load_dwordx4 v{cWo1}, {srd(s_)}, s{sT1} offen nt lds")


def lstamp(base):
    if PROFILE == 1:
        for l in range(4):
            lb = A.label("ps")
            A(f"s_cmp_eq_u32 s{sLAYER}, {l}\ns_cbranch_scc0 {lb}")
            stamp(base + 4 * l)
            A(f"{lb}:")


stamp(0)
if int(os.environ.get("PRET", "0")):
    A(f"v_lshlrev_b32 v26, 16, v0\ns_cmp_eq_u32 s{sWAVE}, 1\ns_cbranch_scc0 L_pt2")
    A(f"buffer_load_dword v27, v26, {srd(SRD_WQB)}, 0 offen nt")
    wo_base()
    A(f"s_mov_b64 exec, 0xf\nbuffer_load_dword v32, v26, {srd(SRD_WOA)}, s{sT0} offen nt\nbuffer_load_dword v33, v26, {srd(SRD_WOB)}, s{sT0} offen nt\ns_mov_b64 exec, -1")
    A("L_pt2:")
A(f"v_lshlrev_b32 v{cL16}, 4, v0")
A(f"s_lshl_b32 s{sYST}, s{sCH}, 10\ns_add_u32 s{sYST}, s{sYST}, {WS_Y}")
A(f"s_lshl_b32 s{sQST}, s{sCH}, 8")
A("v_mov_b32 v28, -1\nv_mov_b32 v29, -1\nv_mov_b32 v30, -1\nv_mov_b32 v31, -1")
A(f"s_lshl_b32 s{sT1}, s{sWAVE}, 13\ns_add_u32 s{sT1}, s{sT1}, s{sQST}")
A(f"s_cmp_eq_u32 s{sWAVE}, 0\ns_cbranch_scc0 L_ch_cl1")
A(f"buffer_store_dwordx4 v[28:31], v{cL16}, {srd(SRD_WS)}, s{sYST} offen sc1")
A("L_ch_cl1:\ns_mov_b64 exec, 0xffff")
A(f"buffer_store_dwordx4 v[28:31], v{cL16}, {srd(SRD_WS)}, s{sT1} offen sc1")
A("s_mov_b64 exec, -1")
wq_dma(0)
A(f"v_mul_u32_u24 v{cPOg}, 7168, v20\nv_add_u32 v{cPOg}, v{cPOg}, v22\ns_lshl_b32 s{sT0}, s{sWAVE}, 8\nv_add_u32 v{cPOg}, s{sT0}, v{cPOg}")
A(f"v_min_u32 v23, 6, v21\nv_mul_u32_u24 v24, 7, v20\nv_add_u32 v23, v23, v24\nv_lshlrev_b32 v{cMLg}, 7, v23")
A(f"v_cmp_gt_u32 vcc, 7, v21\ns_nop 1\nv_cndmask_b32 v{cVAL}, 0, 1.0, vcc")
A(f"v_cmp_gt_u32 vcc, 56, v0\ns_nop 1\nv_cndmask_b32 v{cV56}, 0, 1.0, vcc")
A(f"v_lshrrev_b32 v23, 5, v0\nv_lshlrev_b32 v23, 9, v23\nv_lshl_add_u32 v23, v21, 5, v23\nv_and_b32 v24, 1, v20\nv_lshl_add_u32 v{cYst}, v24, 4, v23")
A(f"s_lshl_b32 s{sT0}, s{sWAVE}, 6\nv_lshl_add_u32 v{cQst}, v0, 1, s{sT0}")
A(f"v_add_u32 v{cSCR}, {CSCR}, v{cL16}")
A(f"v_lshlrev_b32 v{cXa}, 4, v20\nv_add_u32 v{cXa}, {XB}, v{cXa}")
A(f"v_min_u32 v{cXs}, 55, v0\nv_lshlrev_b32 v{cXs}, 4, v{cXs}\nv_add_u32 v{cXs}, {XB}, v{cXs}")
A(f"s_lshr_b32 s{sT0}, s{sCH}, 1\ns_mul_i32 s{sPOOFF}, s{sT0}, 28672\ns_add_u32 s{sPOOFF}, s{sPOOFF}, {WS_PO}")
A(f"s_lshl_b32 s{sMLOFF}, s{sT0}, 12\ns_add_u32 s{sMLOFF}, s{sMLOFF}, {WS_ML}")
A(f"s_mul_i32 s{sYOFF}, s{sWAVE}, 448\ns_add_u32 s{sYOFF}, s{sYOFF}, {WS_Y}")
emit_masks(0, MASK, 20, 21)
A("s_waitcnt vmcnt(0)")
wo0_loads(0, range(8))
mk_srd(SRD_OUT, sOUTP, 896)
A(f"ds_write_b32 v{cXw}, v{cX}")
A(f"v_and_b32 v{cX+1}, 0xffff0000, v{cX}\nv_lshlrev_b32 v{cX}, 16, v{cX}")
A("s_waitcnt lgkmcnt(0)\ns_barrier")
A(f"s_cmp_eq_u32 s{sWAVE}, 3\ns_cbranch_scc0 L_ch_noflag")
A(f"s_lshl_b32 s{sT0}, s{sG}, 5\ns_and_b32 s{sT1}, s{sCH}, 3\ns_add_u32 s{sT0}, s{sT0}, s{sT1}")
A(f"v_mov_b32 v28, s{sT0}\nv_mov_b32 v29, s{sID}\ns_mov_b64 exec, 1")
A(f"buffer_store_byte v29, v28, {srd(SRD_DBG)}, 0 offen sc1\ns_mov_b64 exec, -1")
A("L_ch_noflag:")
stamp(1)
wq_tr(0)
colsum(0)
A(f"v_and_b32 v{cT}, 7, v0\nv_lshlrev_b32 v{cT}, 2, v{cT}\ns_lshl_b32 s{sT2}, s{sG}, 5")
A("L_ch_id:")
spin_guard("L_ch_id_ok")
A(f"buffer_load_dword v{cG}, v{cT}, {srd(SRD_DBG)}, s{sT2} offen sc1\ns_waitcnt vmcnt(0)")
A(f"v_and_b32 v{cG+1}, 0x0f0f0f0f, v{cG}\nv_cmp_ne_u32 s[{sT0}:{sT1}], s{sID}, v{cG+1}")
A(f"v_add_u32 v{cG+1}, 0x7f7f7f7f, v{cG}\nv_and_b32 v{cG+1}, 0x80808080, v{cG+1}\nv_cmp_ne_u32 vcc, 0x80808080, v{cG+1}")
A(f"s_cmp_eq_u64 s[{sT0}:{sT1}], 0\ns_cselect_b32 s{sMODE}, 1, 0")
A("s_cmp_lg_u64 vcc, 0\ns_cbranch_scc1 L_ch_id")
A("L_ch_id_ok:")
A("v_mov_b32 v28, -1\nv_mov_b32 v29, -1\nv_mov_b32 v30, -1\nv_mov_b32 v31, -1")
A(f"s_mul_i32 s{sT1}, s{sWAVE}, 7168\ns_add_u32 s{sT1}, s{sT1}, s{sPOOFF}\ns_add_u32 s{sT2}, s{sT1}, 4096")
A(f"s_mul_i32 s{sT0}, s{sWAVE}, {7*128}\ns_add_u32 s{sT0}, s{sT0}, s{sMLOFF}\nv_lshlrev_b32 v{cT}, 7, v0")
A(f"s_cmp_eq_u32 s{sMODE}, 1\ns_cbranch_scc0 L_ch_clf")
for fl in ("", " sc1"):
    if fl:
        A("L_ch_clf:")
    for i in range(7):
        A(f"buffer_store_dwordx4 v[28:31], v{cL16}, {srd(SRD_WS)}, s{sT1 if i < 4 else sT2} offen offset:{1024*(i%4)}{fl}")
    A(f"s_mov_b64 exec, 0x7f\nbuffer_store_dwordx2 v[28:29], v{cT}, {srd(SRD_WS)}, s{sT0} offen{fl}\ns_mov_b64 exec, -1")
    if not fl:
        A("s_branch L_ch_cld")
A("L_ch_cld:")
A("s_waitcnt vmcnt(0)\ns_barrier")
wo0_loads(0, range(8, 16))
A("s_branch L_ch_qp")


def bf16r(dst, src):
    A(f"v_cvt_pk_bf16_f32 v{dst}, 0, v{src}")


A("L_ch_stageA:")
if int(os.environ.get("DEFW", "0")):
    A(f"s_cmp_eq_u32 s{sLAYER}, 1\ns_cbranch_scc0 L_sa_nw")
    wo0_loads(1, range(16))
    A("L_sa_nw:")
A(f"s_and_b32 s{sT0}, s{sLAYER}, 1\ns_lshl_b32 s{sT0}, s{sT0}, 16\ns_lshl_b32 s{sT1}, s{sWAVE}, 14\ns_add_u32 s{sT0}, s{sT0}, s{sT1}")
A(f"v_add_u32 v{cT}, s{sT0}, v{cL16}")
for t in range(16):
    A(f"ds_read_b128 {vr(wo1(t))}, v{cT} offset:{t*1024}")
    if t == 7:
        A("s_waitcnt lgkmcnt(0)")
for i in range(8):
    A(f"s_add_u32 s{sYG+i}, s{sYOFF}, {4096*i}")
A("s_waitcnt lgkmcnt(0)")
A(f"s_cmp_eq_u32 s{sWAVE}, 0\ns_cbranch_scc0 L_sa_nc\ns_cmp_eq_u32 s{sLAYER}, 3\ns_cbranch_scc1 L_sa_nc")
A(f"v_mov_b32 v28, -1\nv_mov_b32 v29, -1\nv_mov_b32 v30, -1\nv_mov_b32 v31, -1\ns_add_u32 s{sT0}, s{sYST}, 32768")
A(f"buffer_store_dwordx4 v[28:31], v{cL16}, {srd(SRD_WS)}, s{sT0} offen sc1")
A("L_sa_nc:")
A(f"s_add_u32 s{sT0}, s{sPOOFF}, 4096")
cML = cG + 28
A("L_sa_poll:")
spin_guard("L_sa_go")
A(f"buffer_load_dwordx2 v[{cML}:{cML+1}], v{cMLg}, {srd(SRD_WS)}, s{sMLOFF} offen sc1")
for u in range(7):
    so = sPOOFF if u < 4 else sT0
    A(f"buffer_load_dwordx4 {vr(cG+4*u)}, v{cPOg}, {srd(SRD_WS)}, s{so} offen offset:{(u%4)*1024} sc1")
A("s_waitcnt vmcnt(0)")
sentinel_check(range(cG, cG + 30), cT, "L_sa_poll")
A("L_sa_go:")
lstamp(3)
mM, mW, mL = cN, cN + 1, cN + 2
A(f"v_max_f32_dpp v{mM}, v{cML}, v{cML} quad_perm:[1,0,3,2] {DPPF}")
for ctl in ("quad_perm:[2,3,0,1]", "row_half_mirror"):
    A(f"s_nop 1\nv_max_f32_dpp v{mM}, v{mM}, v{mM} {ctl} {DPPF}")
xrow_reduce("v_max_f32", mM, cT)
A(f"v_sub_f32 v{mW}, v{cML}, v{mM}\nv_exp_f32 v{mW}, v{mW}\nv_mul_f32 v{mL}, v{cML+1}, v{cVAL}\nv_mul_f32 v{mL}, v{mL}, v{mW}")
oa = cN + 4
red_steps = [f"v_add_f32_dpp v{mL}, v{mL}, v{mL} {c} {DPPF}" for c in
             ("quad_perm:[1,0,3,2]", "quad_perm:[2,3,0,1]", "row_half_mirror", "row_mirror")]
red_steps[3] += f"\nv_mov_b32 v{cT}, v{mL}"
red_steps.append(f"v_permlane32_swap_b32 v{mL}, v{cT}\nv_add_f32 v{mL}, v{mL}, v{cT}\nv_mov_b32 v{cT}, v{mL}")
red_steps.append(f"v_permlane16_swap_b32 v{mL}, v{cT}\nv_add_f32 v{mL}, v{mL}, v{cT}\nv_rcp_f32 v{mL}, v{mL}")
A("s_nop 0")
for u in range(7):
    for r in range(4):
        op = "v_mul_f32_dpp" if u == 0 else "v_fmac_f32_dpp"
        A(f"{op} v{oa+r}, v{mW}, v{cG+4*u+r} row_newbcast:{u} {DPPF}")
    if u < 6:
        A(red_steps[u])
A("s_nop 0")
A(f"v_permlane32_swap_b32 v{oa}, v{oa+2}\nv_permlane32_swap_b32 v{oa+1}, v{oa+3}")
A(f"v_add_f32 v{oa}, v{oa}, v{oa+2}\nv_add_f32 v{oa+1}, v{oa+1}, v{oa+3}\ns_nop 1")
A(f"v_permlane16_swap_b32 v{oa}, v{oa+1}\nv_add_f32 v{oa}, v{oa}, v{oa+1}")
A(f"v_mul_f32 v{oa}, v{oa}, v{mL}\nv_cvt_pk_bf16_f32 v{oa}, v{oa}, v{oa}")
A(f"s_and_b32 s{sT0}, s{sLAYER}, 1\ns_cmp_eq_u32 s{sT0}, 1\ns_cbranch_scc1 L_sa_B")
for which in range(2):
    if which == 1:
        A("L_sa_B:")

    def gmh(t, hf):
        for r in (0, 1) if hf == 0 else (2, 3):
            A(f"v_and_b32_dpp v{cTT[t&1]+r}, v{oa}, v{MASK+r} row_newbcast:{t} {DPPF}")
    gmh(0, 0)
    gmh(0, 1)
    for t in range(16):
        if t + 1 < 16:
            gmh(t + 1, 0)
        else:
            A("s_nop 0")
        A(f"v_mfma_f32_16x16x32_bf16 {vr(cACC)}, {vr(cTT[t&1])}, {vr(radd(WO0[which],4*t))}, {'0' if t == 0 else vr(cACC)}")
        if t + 1 < 16:
            gmh(t + 1, 1)
        A(f"v_mfma_f32_16x16x32_bf16 {vr(cACC+4)}, {vr(cTT[t&1])}, {vr(wo1(t))}, {'0' if t == 0 else vr(cACC+4)}")
    if which == 0:
        A("s_branch L_sa_red")
A("L_sa_red:")
A(f"s_lshl_b32 s{sT0}, s{sWAVE}, 10\nv_add_u32 v{cT}, s{sT0}, v{cSCR}")
A("s_mov_b32 exec_lo, 0\ns_nop 5")
for r in range(4):
    A(f"v_mov_b32 v{cACC+r}, v{cACC+4+r}")
A("s_mov_b32 exec_lo, -1")
A(f"s_cmp_eq_u32 s{sWAVE}, 0\ns_cbranch_scc1 L_sa_w0")
A(f"ds_write_b128 v{cT}, {vr(cACC)}\ns_waitcnt lgkmcnt(0)\ns_barrier")
H2S = int(os.environ.get("H2S", "8"))
A(f"s_sleep {H2S+2}\ns_branch L_sb")
A("L_sa_w0:\ns_barrier")
for s_ in range(1, 4):
    A(f"ds_read_b128 {vr(cG+4*s_)}, v{cSCR} offset:{1024*s_}")
for s_ in range(1, 4):
    A(f"s_waitcnt lgkmcnt({3-s_})")
    for r in range(0, 4, 2):
        A(f"v_pk_add_f32 v[{cACC+r}:{cACC+r+1}], v[{cACC+r}:{cACC+r+1}], v[{cG+4*s_+r}:{cG+4*s_+r+1}]")
for r in range(4):
    A(f"v_min_u32 v{cACC+r}, -2, v{cACC+r}")
A(f"buffer_store_dwordx4 {vr(cACC)}, v{cYst}, {srd(SRD_WS)}, s{sYST} offen sc1")
lstamp(4)
if H2S:
    A(f"s_sleep {H2S}")
A("L_sb:")
A(f"s_cmp_eq_u32 s{sLAYER}, 3\ns_cbranch_scc0 L_sb_go0\ns_cmp_eq_u32 s{sCH}, 0\ns_cbranch_scc0 L_fin\nL_sb_go0:")


def yload(i):
    return f"buffer_load_dwordx4 {vr(cG+4*i)}, v{cYg}, {srd(SRD_WS)}, s{sYG+i} offen sc1"


for i in range(8):
    A(yload(i))
A("L_sb_poll:")
for i in range(4):
    A(f"s_waitcnt vmcnt({6-2*i})")
    for r in range(0, 4, 2):
        A(f"v_pk_add_f32 v[{cN+4*i+r}:{cN+4*i+r+1}], v[{cG+8*i+r}:{cG+8*i+r+1}], v[{cG+8*i+4+r}:{cG+8*i+4+r+1}]")
    if i & 1:
        for r in range(0, 4, 2):
            A(f"v_pk_add_f32 v[{cN+4*(i-1)+r}:{cN+4*(i-1)+r+1}], v[{cN+4*(i-1)+r}:{cN+4*(i-1)+r+1}], v[{cN+4*i+r}:{cN+4*i+r+1}]")
for r in range(0, 4, 2):
    A(f"v_pk_add_f32 v[{cN+r}:{cN+r+1}], v[{cN+r}:{cN+r+1}], v[{cN+8+r}:{cN+8+r+1}]")
A("s_nop 1")
A(f"v_permlane32_swap_b32 v{cN}, v{cN+2}\nv_permlane32_swap_b32 v{cN+1}, v{cN+3}")
A(f"v_pk_add_f32 v[{cN}:{cN+1}], v[{cN}:{cN+1}], v[{cN+2}:{cN+3}]")
A(f"v_cmp_u_f32 vcc, v{cN}, v{cN+1}")
bf16r(cN, cN)
bf16r(cN + 1, cN + 1)
A("s_cmp_lg_u64 vcc, 0\ns_cbranch_scc0 L_sb_go")
spin_guard("L_sb_go")
A(f"s_mov_b32 s{sT0}, 0")
for i in range(8):
    sk = A.label("ysk")
    g_ = cG + 4 * i
    A(f"v_max3_u32 v{cT}, v{g_}, v{g_+1}, v{g_+2}\nv_max_u32 v{cT}, v{cT}, v{g_+3}\nv_cmp_eq_u32 vcc, -1, v{cT}\ns_nop 0\ns_cmp_lg_u64 vcc, 0\ns_cbranch_scc0 {sk}")
    A(yload(i))
    A(f"s_mov_b32 s{sT0}, 1\n{sk}:")
A(f"s_waitcnt vmcnt(0)\ns_cmp_eq_u32 s{sT0}, 1\ns_cbranch_scc1 L_sb_poll")
A("L_sb_go:")
lstamp(5)
A(f"v_pk_add_f32 v[{cX}:{cX+1}], v[{cX}:{cX+1}], v[{cN}:{cN+1}]")
A(f"v_cvt_pk_bf16_f32 v{cN}, v{cX}, v{cX+1}")
A(f"s_cmp_eq_u32 s{sLAYER}, 3\ns_cbranch_scc1 L_ch_out")
A(f"ds_write_b32 v{cXw}, v{cN}")
A(f"v_and_b32 v{cX+1}, 0xffff0000, v{cN}\nv_lshlrev_b32 v{cX}, 16, v{cN}")
A(f"s_add_u32 s{sLAYER}, s{sLAYER}, 1")
A(f"s_add_u32 s{sPOOFF}, s{sPOOFF}, {PO_L}\ns_add_u32 s{sMLOFF}, s{sMLOFF}, {ML_L}\ns_add_u32 s{sYOFF}, s{sYOFF}, 32768\ns_add_u32 s{sYST}, s{sYST}, 32768\ns_add_u32 s{sQST}, s{sQST}, 8192")
A("s_waitcnt lgkmcnt(0)\ns_barrier")
A("L_ch_qp:")
SV = 20
s1, s2, t0, t1 = 24, 25, 26, 27
A(f"ds_read_b128 {vr(cXA)}, v{cXa}\nds_read_b128 {vr(SV)}, v{cXs}")
for kb in range(1, 14):
    A(f"ds_read_b128 {vr(cXA+4*kb)}, v{cXa} offset:{64*kb}")
st = []
st += [f"v_readfirstlane_b32 s{sT0}, v{cXA}", f"s_lshl_b32 s{sT0}, s{sT0}, 16"]
for r in range(4):
    st += [f"v_lshlrev_b32 v{t0}, 16, v{SV+r}", f"v_and_b32 v{t1}, 0xffff0000, v{SV+r}",
           f"v_subrev_f32 v{t0}, s{sT0}, v{t0}", f"v_subrev_f32 v{t1}, s{sT0}, v{t1}"]
    if r == 0:
        st += [f"v_add_f32 v{s1}, v{t0}, v{t1}", f"v_mul_f32 v{s2}, v{t0}, v{t0}", f"v_fmac_f32 v{s2}, v{t1}, v{t1}"]
    else:
        st += [f"v_add_f32 v{s1}, v{s1}, v{t0}", f"v_fmac_f32 v{s2}, v{t0}, v{t0}", f"v_add_f32 v{s1}, v{s1}, v{t1}", f"v_fmac_f32 v{s2}, v{t1}, v{t1}"]
st += [f"v_mul_f32 v{s1}, v{s1}, v{cV56}", f"v_mul_f32 v{s2}, v{s2}, v{cV56}"]
for ctl in ("quad_perm:[1,0,3,2]", "quad_perm:[2,3,0,1]", "row_half_mirror", "row_mirror"):
    st += ["s_nop 0", f"v_add_f32_dpp v{s1}, v{s1}, v{s1} {ctl} {DPPF}", f"v_add_f32_dpp v{s2}, v{s2}, v{s2} {ctl} {DPPF}"]
for sw in ("v_permlane32_swap_b32", "v_permlane16_swap_b32"):
    st += [f"v_mov_b32 v{t0}, v{s1}", f"v_mov_b32 v{t1}, v{s2}", "s_nop 1", f"{sw} v{s1}, v{t0}", f"{sw} v{s2}, v{t1}",
           f"v_add_f32 v{s1}, v{s1}, v{t0}", f"v_add_f32 v{s2}, v{s2}, v{t1}"]
st += [f"v_mul_f32 v{s1}, {f2u(1.0/448.0)}, v{s1}", f"v_mul_f32 v{s2}, {f2u(1.0/448.0)}, v{s2}",
       f"v_fma_f32 v{s2}, -v{s1}, v{s1}, v{s2}", f"v_max_f32 v{s2}, 0, v{s2}", f"v_add_f32 v{s1}, s{sT0}, v{s1}",
       f"v_cvt_pk_bf16_f32 v{s2}, 0, v{s2}", f"v_cvt_pk_bf16_f32 v{s1}, 0, v{s1}",
       f"v_add_f32 v{s2}, {f2u(1e-5)}, v{s2}", f"v_cvt_pk_bf16_f32 v{s2}, 0, v{s2}", f"v_sqrt_f32 v{s2}, v{s2}", "s_nop 0",
       f"v_cvt_pk_bf16_f32 v{s2}, 0, v{s2}", f"v_rcp_f32 v{s2}, v{s2}"]
A(f"s_and_b32 s{sT1}, s{sLAYER}, 1\ns_cmp_eq_u32 s{sT1}, 1\ns_cbranch_scc1 L_qp_B")
for which in range(2):
    if which == 1:
        A("L_qp_B:")
    sp_ = 0
    nm = 0
    for kb in range(14):
        A(f"s_waitcnt lgkmcnt({13 if kb == 0 else 13-kb})")
        for cb in range(2):
            acc = cACC + 4 * cb
            A(f"v_mfma_f32_16x16x32_bf16 {vr(acc)}, {vr(cXA+4*kb)}, {vr(radd(WQ[which], (kb*2+cb)*4))}, {'0' if kb == 0 else vr(acc)}")
            nm += 1
            upto = min(len(st), (nm * len(st) + 26) // 27)
            while sp_ < upto:
                A(st[sp_])
                sp_ += 1
    A(f"v_mul_f32 v{s1}, v{s1}, v{cCS[which]}")
    if which == 0:
        A("s_branch L_qp_red")
A("L_qp_red:")
A("s_nop 5")
sel_cb(t0)
A(f"v_sub_f32 v{t0}, v{t0}, v{s1}\nv_mul_f32 v{t0}, v{t0}, v{s2}\ns_nop 1")
A(f"v_mov_b32_dpp v{t1}, v{t0} quad_perm:[1,1,3,3] {DPPF}")
A(f"v_cvt_pk_bf16_f32 v{t0}, v{t0}, v{t1}\nv_min_u32 v{t0}, -2, v{t0}")
A("s_mov_b32 exec_lo, 0x55555555\ns_mov_b32 exec_hi, 0")
A(f"s_cmp_eq_u32 s{sMODE}, 1\ns_cbranch_scc0 L_qp_far")
A(f"buffer_store_dword v{t0}, v{cQst}, {srd(SRD_WS)}, s{sQST} offen\ns_branch L_qp_st")
A("L_qp_far:")
A(f"buffer_store_dword v{t0}, v{cQst}, {srd(SRD_WS)}, s{sQST} offen sc1")
A("L_qp_st:")
A("s_mov_b64 exec, -1")
lstamp(2)
A(f"s_cmp_eq_u32 s{sLAYER}, 0\ns_cbranch_scc0 L_ch_stageA")
A("s_barrier")
wq_dma(1)
wo1_regs(range(16))
A("s_waitcnt vmcnt(16)\ns_barrier")
wq_tr(1)
A("s_barrier")
DEFW = int(os.environ.get("DEFW", "0"))
if not DEFW:
    wo0_loads(1, range(16))
wo1_dma(1)
colsum(1)
A(f"s_waitcnt vmcnt({16 if DEFW else 32})\ns_lshl_b32 s{sT1}, s{sWAVE}, 14\nv_add_u32 v{cT}, s{sT1}, v{cL16}")
for t in range(16):
    A(f"ds_write_b128 v{cT}, {vr(wo1(t))} offset:{t*1024}")
A("s_waitcnt lgkmcnt(0)")
if os.environ.get("EXP", ""):
    A("s_waitcnt vmcnt(0)")
    stamp(3)
    A("s_branch L_fin")
A("L_ch_cnt:")
spin_guard("L_ch_cnt_ok")
A(f"v_lshlrev_b32 v{cT}, 2, v0")
A(f"buffer_load_dword v{cG}, v{cT}, {srd(SRD_DBG)}, 0 offen sc1\ns_waitcnt vmcnt(0)")
A(f"v_add_u32 v{cG+1}, 0x7f7f7f7f, v{cG}\nv_and_b32 v{cG+1}, 0x80808080, v{cG+1}\nv_cmp_ne_u32 vcc, 0x80808080, v{cG+1}\ns_nop 0")
A("s_cmp_lg_u64 vcc, 0\ns_cbranch_scc1 L_ch_cnt")
A("L_ch_cnt_ok:")
stamp(18)
CPB = int(os.environ.get("CPB", "0"))
CPN = int(os.environ.get("CPN", "16"))
if int(os.environ.get("CPC", "1")):
    BACKWARD.add("L_ch_stageA")
if CPB:
    mk_srd(SRD_WQA, 0, KVBYTES)
    A(f"s_lshl_b32 s{sT2}, s{sG}, 23\ns_and_b32 s{sT3}, s{sCH}, 3\ns_lshl_b32 s{sT3}, s{sT3}, 2\ns_add_u32 s{sT3}, s{sT3}, s{sWAVE}\ns_lshl_b32 s{sT3}, s{sT3}, 13")
    A(f"s_add_u32 s{sT2}, s{sT2}, s{sT3}\ns_add_u32 s{sT2}, s{sT2}, {12288*512}\ns_mov_b32 s{sT3}, {CPN // CPB}\nv_lshlrev_b32 v{cG+2}, 7, v0")
A("L_ch_pre:")
spin_guard("L_ch_stageA")
if CPB:
    A(f"s_cmp_eq_u32 s{sT3}, 0\ns_cbranch_scc1 L_ch_pre_s\ns_sub_u32 s{sT3}, s{sT3}, 1")
    for i in range(CPB):
        A(f"buffer_load_dword v{cG+3}, v{cG+2}, {srd(SRD_WQA)}, s{sT2} offen\ns_add_u32 s{sT2}, s{sT2}, 131072")
    A("s_branch L_ch_pre_p")
A("L_ch_pre_s:")
if int(os.environ.get("CPC", "1")):
    code_prefetch("L_ch_stageA", 8192, cT, cG, sT0)
A("s_sleep 16")
A("L_ch_pre_p:\ns_mov_b64 exec, 1")
A(f"buffer_load_dword v{cML}, v{cMLg}, {srd(SRD_WS)}, s{sMLOFF} offen sc1\ns_waitcnt vmcnt(0)")
A(f"v_readfirstlane_b32 s{sT0}, v{cML}\ns_mov_b64 exec, -1\ns_cmp_eq_u32 s{sT0}, -1\ns_cbranch_scc1 L_ch_pre")
A("s_branch L_ch_stageA")
A("L_ch_out:")
A(f"v_subrev_u32 v{cT}, {XB}, v{cXw}")
A(f"buffer_store_dword v{cN}, v{cT}, {srd(SRD_OUT)}, 0 offen")
stamp(19)
if os.environ.get("DIAG"):
    da, db = [int(x) for x in os.environ["DIAG"].split(",")]
    ra = 100 if da == 99 else sSTAMP + 2 * da
    A(f"s_sub_u32 s{sT0}, s{sSTAMP+2*db}, s{ra}\ns_lshl_b32 s{sT0}, s{sT0}, 4\ns_min_u32 s{sT0}, s{sT0}, 200000\ns_add_u32 s{sT0}, s{sT0}, s{sSTAMP+38}")
    A(f"L_diag:\ns_memrealtime s[{sT2}:{sT3}]\ns_waitcnt lgkmcnt(0)\ns_sub_u32 s{sT1}, s{sT2}, s{sT0}\ns_cmp_lt_i32 s{sT1}, 0\ns_cbranch_scc1 L_diag")

A("L_fin:")
if PROFILE:
    A(f"s_mul_i32 s{sT0}, s2, 640\ns_mul_i32 s{sT1}, s{sWAVE}, 160\ns_add_u32 s{sT0}, s{sT0}, s{sT1}\ns_add_u32 s{sT0}, s{sT0}, {WS_STAMP}")
    A("s_mov_b64 exec, 1\nv_mov_b32 v1, 0")
    for i in range(10):
        for r in range(4):
            A(f"v_mov_b32 v{4+r}, s{sSTAMP+4*i+r}")
        A(f"buffer_store_dwordx4 v[4:7], v1, {srd(SRD_WS)}, s{sT0} offen offset:{16*i}\ns_nop 1")
if PROFILE:
    pass
A("L_end:")
A("s_endpgm")

for l in A.L:
    OUT.append(l if l.endswith(":") else "    " + l)
OUT.append('.section .rodata,"a"')
OUT.append(".p2align 6")
OUT.append(f".amdhsa_kernel {NAME}_kernel")
OUT.append("""  .amdhsa_next_free_vgpr 512
  .amdhsa_next_free_sgpr 102
  .amdhsa_accum_offset 256
  .amdhsa_group_segment_fixed_size 0
  .amdhsa_kernarg_size 104
  .amdhsa_user_sgpr_count 2
  .amdhsa_user_sgpr_kernarg_segment_ptr 1
  .amdhsa_system_sgpr_workgroup_id_x 1
  .amdhsa_float_denorm_mode_32 3
.end_amdhsa_kernel""")
out = sys.argv[1] if len(sys.argv) > 1 else f"cdna_kernels/{NAME}.s"
open(out, "w").write("\n".join(OUT) + "\n")
print("wrote", out, len(A.L), "lines")
```

```python
import sys, os, struct

PROFILE = int(os.environ.get("PROFILE", "0"))
NAME = "interleave_layers__gqa_block_cached__sliding_block_cached__decode"

WS_Q = 0
WS_Y = 49152
WS_PO = 196608
WS_ML = 196608 + 4 * 458752
ML_L = 65536
PO_L = 16 * 28 * 1024
WS_STAMP = 4 << 20
WS_SIZE = 283117312
SPIN_MAX = 1 << 18

CSCALE = struct.unpack("<I", struct.pack("<f", 1.4426950408889634 / 16.0))[0]
NEG_INF = 0xFF800000


def f2u(x):
    return struct.unpack("<I", struct.pack("<f", x))[0]


class Asm:
    def __init__(self):
        self.L = []
        self.nlabel = 0

    def __call__(self, s):
        for line in s.split("\n"):
            line = line.strip()
            if line:
                self.L.append(line)

    def label(self, base):
        self.nlabel += 1
        return f"L_{base}_{self.nlabel}"


A = Asm()


def vr(r, n=4):
    if isinstance(r, int):
        r = ("v", r)
    k, i = r
    return f"{k}[{i}:{i+n-1}]" if n > 1 else f"{k}{i}"


def radd(r, d):
    if isinstance(r, int):
        return r + d
    return (r[0], r[1] + d)


DPPF = "row_mask:0xf bank_mask:0xf"

sWAVE = 3
SRD_KA, SRD_VA, SRD_KB, SRD_VB, SRD_WS, SRD_DBG = 4, 8, 12, 16, 20, 24
SRD_WQA, SRD_WOA, SRD_WQB, SRD_WOB = 4, 8, 12, 16
SRD_X, SRD_OUT = 28, 80
sOFFA, sOFFA36, sOFFB, sOFFB9 = 28, 29, 30, 31
sBIASA, sBIASB = 32, 33
sC = 36
sLDSW = 37
sT0, sT1, sT2, sT3 = 38, 39, 40, 41
sLAYER = 42
sSPIN = 43
sQOFF, sPOOFF, sMLOFF, sYOFF = 44, 45, 46, 47
sG, sSP = 48, 49
sYST, sQST = 50, 51
sOFFB8 = 50
sCL = 47
sW4 = 58
sID, sMODE = 34, 35
KARG = 52
sSTAMP = 60
SRD_OUT = 28
sOUTP = 32

nstamp = [0]


def srd(r):
    return f"s[{r}:{r+3}]"


def stamp(idx):
    if PROFILE == 2 and idx not in (0, 5, 19):
        return
    if PROFILE:
        assert idx < 20
        if idx == 0:
            for i in range(1, 20):
                A(f"s_mov_b64 s[{sSTAMP+2*i}:{sSTAMP+2*i+1}], 0")
            A(f"s_mov_b64 s[{sSTAMP}:{sSTAMP+1}], s[100:101]")
            return
        A(f"s_memrealtime s[{sSTAMP+2*idx}:{sSTAMP+2*idx+1}]\ns_waitcnt lgkmcnt(0)")


def mk_srd(dst, ptr, size):
    A(f"s_mov_b32 s{dst}, s{ptr}\ns_and_b32 s{dst+1}, s{ptr+1}, 0xffff\ns_mov_b32 s{dst+2}, {size}\ns_mov_b32 s{dst+3}, 0x20000")


def emit_masks(vlane, m0, t0, t1):
    A(f"v_and_b32 v{t0}, 1, v{vlane}")
    A(f"v_lshlrev_b32 v{t0}, 4, v{t0}")
    A(f"v_mov_b32 v{t1}, 0xffff")
    A(f"v_lshlrev_b32 v{t0}, v{t0}, v{t1}")
    A(f"v_bfe_u32 v{t1}, v{vlane}, 1, 2")
    for r in range(4):
        A(f"v_cmp_eq_u32 vcc, {r}, v{t1}")
        A("s_nop 1")
        A(f"v_cndmask_b32 v{m0+r}, 0, v{t0}, vcc")


def xrow_reduce(op, v, t):
    A(f"v_mov_b32 v{t}, v{v}\ns_nop 1\nv_permlane32_swap_b32 v{v}, v{t}\n{op} v{v}, v{v}, v{t}")
    A(f"v_mov_b32 v{t}, v{v}\ns_nop 1\nv_permlane16_swap_b32 v{v}, v{t}\n{op} v{v}, v{v}, v{t}")


def sentinel_check(regs, t, retry_label):
    regs = list(regs)
    A(f"v_max3_u32 v{t}, v{regs[0]}, v{regs[1]}, v{regs[2]}")
    i = 3
    while i + 1 < len(regs):
        A(f"v_max3_u32 v{t}, v{t}, v{regs[i]}, v{regs[i+1]}")
        i += 2
    if i < len(regs):
        A(f"v_max_u32 v{t}, v{t}, v{regs[i]}")
    A(f"v_cmp_eq_u32 vcc, -1, v{t}")
    A("s_nop 0")
    A(f"s_cmp_lg_u64 vcc, 0\ns_cbranch_scc1 {retry_label}")


def spin_guard(giveup_label):
    A(f"s_cmp_eq_u32 s{sSPIN}, 0\ns_cbranch_scc1 {giveup_label}\ns_sub_u32 s{sSPIN}, s{sSPIN}, 1")
    if os.environ.get("PSLEEP"):
        A(f"s_sleep {os.environ['PSLEEP']}")


hdr = open(f"cdna_kernels/{NAME}.s.ref").read().split("\n")
head = [l for l in hdr if l.startswith(";") and "@launch" not in l]
OUT = list(head)
OUT += """;
; One persistent launch, 256 workgroups (one per CU), 4 waves x 512 registers, generated by a script.
;   wg>>3 <  4 : "chain" CU   - weights stay on chip; softmax combine + out-proj + residual + layernorm + q-proj
;   wg>>3 >= 4 : attention CU - its share of cache A is streamed once and stays in registers/LDS for layers 1 and 3;
;                the sliding window of cache B is parked in L2 for layers 2 and 4
; Hand-offs go through d_ws: every slot is reset to 0xffffffff by this launch before anyone polls it, data words are
; never 0xffffffff.  d_debug holds one byte per workgroup (its XCD id); producers whose consumers all share their L2
; use plain stores, otherwise write-through (sc1) stores, so any placement is correct.
;""".split("\n")
OUT.append("; @launch grid=(256,1,1) block=(256,1,1) lds=163840")
OUT.append('.amdgcn_target "amdgcn-amd-amdhsa--gfx950"')
OUT.append(".text")
OUT.append(f".globl {NAME}_kernel")
OUT.append(".p2align 8")
OUT.append(f".type {NAME}_kernel,@function")
OUT.append(f"{NAME}_kernel:")

if PROFILE:
    A("s_memrealtime s[100:101]")
A("s_cmp_ge_u32 s2, 256\ns_cbranch_scc1 L_end")
A(f"s_load_dwordx16 s[{KARG}:{KARG+15}], s[0:1], 0")
A(f"s_load_dwordx8 s[{KARG+16}:{KARG+23}], s[0:1], 64")
A(f"s_load_dwordx2 s[{KARG+24}:{KARG+25}], s[0:1], 96")
pAX, pAK, pAV, pAWQ, pAWO, pBX, pBK, pBV, pBWQ, pBWO, pOUT, pDBG, pWS = [KARG + 2 * i for i in range(13)]
A("v_lshrrev_b32 v1, 6, v0\nv_and_b32 v0, 63, v0")
if os.environ.get("PERM"):
    A(f"s_mul_i32 s2, s2, {os.environ['PERM']}\ns_lshr_b32 s4, s2, 3\ns_and_b32 s4, s4, {os.environ.get('PERMX', '1')}\ns_xor_b32 s2, s2, s4\ns_and_b32 s2, s2, 255")
A(f"s_and_b32 s{sG}, s2, 7\ns_lshr_b32 s{sSP}, s2, 3")
A(f"v_readfirstlane_b32 s{sWAVE}, v1")
A(f"s_cmp_lt_u32 s{sSP}, 4\ns_cbranch_scc1 L_chain")


def common_setup():
    A(f"s_mov_b32 s{sC}, {CSCALE}\ns_mov_b32 s{sSPIN}, {SPIN_MAX}\ns_mov_b32 s{sLAYER}, 0")
    A(f"s_getreg_b32 s{sID}, hwreg(HW_REG_XCC_ID, 0, 4)\ns_min_u32 s{sID}, s{sID}, 14\ns_add_u32 s{sID}, s{sID}, 1\ns_mul_i32 s{sID}, s{sID}, 0x01010101\ns_mov_b32 s{sMODE}, 0")
    mk_srd(SRD_WS, pWS, WS_SIZE)
    mk_srd(SRD_DBG, pDBG, 256)


vK, vV, vKd, vVd, vL, vQ, vT = 1, 2, 3, 4, 5, 6, 7
MASK = 8
QA = 12
DT = 20
vCM, vLS, vMX, vPO, vX = 32, 33, 34, 35, 36
vCMr, vCMw, vF = 3, 4, 30
vFA, vFD = 36, 3
SC = 37
STG_A = [56, 60, 64, 68]
NSLOT = 19
XBASE = 4 * NSLOT * 2048
MLBASE = XBASE + 6144


def half(h):
    return ("v", 72 + 8 * h) if h < 23 else ("a", 8 * (h - 23))


NKA = 37
NVREG = 18
KVBYTES = 67108864

PSTRIDE = 16384
sHB = 59
A(f"s_sub_u32 s{sSP}, s{sSP}, 4")
A(f"s_mul_i32 s{sT1}, s{sSP}, 36\ns_min_u32 s{sT2}, s{sSP}, 16\ns_add_u32 s{sT1}, s{sT1}, s{sT2}\ns_lshl_b32 s{sT1}, s{sT1}, 13")
A(f"s_lshl_b32 s{sT3}, s{sG}, 23\ns_add_u32 s{sOFFA36}, s{sT1}, s{sT3}")
A(f"s_lshl_b32 s{sT0}, s{sWAVE}, 12\ns_add_u32 s{sOFFA}, s{sOFFA36}, s{sT0}")
A(f"s_mul_i32 s{sLDSW}, s{sWAVE}, {NSLOT*2048}")
A(f"v_lshrrev_b32 v20, 4, v0       ; s / row")
A(f"v_and_b32 v21, 15, v0          ; j")
A(f"v_lshlrev_b32 v25, 4, v21")
A(f"v_lshl_add_u32 v{vV}, v20, 9, v25")
A(f"v_add_u32 v{vVd}, 768, v{vV}")
A("s_waitcnt lgkmcnt(0)")
mk_srd(SRD_VA, pAV, KVBYTES)


def late_setup():
    common_setup()
    mk_srd(SRD_KA, pAK, KVBYTES)
    mk_srd(SRD_KB, pBK, KVBYTES)
    mk_srd(SRD_VB, pBV, KVBYTES)
    stamp(0)
    A(f"v_and_b32 v{vFA}, 7, v0\nv_lshlrev_b32 v{vFA}, 5, v{vFA}")
    A(f"s_cmp_eq_u32 s{sWAVE}, 0\ns_cbranch_scc0 L_nc")
    A(f"v_mov_b32 v{vT}, s{sID}\ns_lshl_b64 exec, 1, s{sG}")
    A(f"buffer_store_byte v{vT}, v{vFA}, {srd(SRD_DBG)}, s{sSP} offen offset:4 sc1\ns_mov_b64 exec, -1")
    A("L_nc:")
    A(f"s_cmp_lt_u32 s{sSP}, 16")
    A(f"s_cselect_b32 s{sT2}, 36, 35")
    A(f"s_cselect_b32 s{sBIASA}, 0, {NEG_INF}")
    A(f"s_lshl_b32 s{sT2}, s{sT2}, 13\ns_lshl_b32 s{sT0}, s{sWAVE}, 11\ns_add_u32 s{sT2}, s{sT2}, s{sT0}")
    A(f"s_add_u32 s{sOFFA36}, s{sOFFA36}, s{sT2}")
    A(f"s_mul_i32 s{sT1}, s{sSP}, 9\ns_max_u32 s{sT2}, s{sSP}, 24\ns_sub_u32 s{sT2}, s{sT2}, 24\ns_add_u32 s{sT1}, s{sT1}, s{sT2}")
    A(f"s_lshl_b32 s{sT1}, s{sT1}, 13\ns_add_u32 s{sT1}, s{sT1}, s{sT3}\ns_add_u32 s{sT1}, s{sT1}, {12288*512}")
    A(f"s_lshl_b32 s{sT2}, s{sWAVE}, 12\ns_add_u32 s{sOFFB}, s{sT1}, s{sT2}")
    A(f"s_add_u32 s{sOFFB8}, s{sT1}, s{sT0}\ns_add_u32 s{sOFFB8}, s{sOFFB8}, {32*2048}")
    A(f"s_cmp_ge_u32 s{sSP}, 24")
    A(f"s_cselect_b32 s{sT1}, 1, 0")
    A(f"s_cselect_b32 s{sBIASB}, 0, {NEG_INF}")
    A(f"s_lshl_b32 s{sT1}, s{sT1}, 13")
    A(f"s_add_u32 s{sOFFB9}, s{sOFFB8}, s{sT1}")
    for p in range(4):
        A(f"s_add_u32 s{sBO+p}, s{sOFFB}, {p*PSTRIDE}")
    A(f"s_mov_b32 s{sBO+4}, s{sOFFB8}\ns_mov_b32 s{sBO+5}, s{sOFFB9}")
    A(f"v_and_b32 v22, 3, v0           ; c")
    A(f"v_bfe_u32 v23, v0, 2, 2        ; a")
    A(f"v_lshl_add_u32 v24, v20, 2, v22   ; 4s+c")
    A(f"v_lshlrev_b32 v24, 4, v24")
    A(f"v_lshl_add_u32 v{vK}, v23, 9, v24")
    A(f"v_lshl_add_u32 v{vL}, v0, 4, s{sLDSW}")
    A(f"v_lshrrev_b32 v27, 3, v21      ; head(j)")
    A(f"v_lshl_add_u32 v{vQ}, v27, 9, v24")
    A(f"v_lshrrev_b32 v27, 5, v0\nv_mul_u32_u24 v27, 28672, v27\nv_lshl_add_u32 v27, v21, 5, v27")
    A(f"v_and_b32 v28, 1, v20\nv_lshl_add_u32 v{vPO}, v28, 4, v27")
    A(f"s_lshl_b32 s{sQOFF}, s{sG}, 10")
    A(f"s_mul_i32 s{sPOOFF}, s{sG}, 56\ns_add_u32 s{sPOOFF}, s{sPOOFF}, s{sSP}\ns_lshl_b32 s{sPOOFF}, s{sPOOFF}, 10\ns_add_u32 s{sPOOFF}, s{sPOOFF}, {WS_PO}")
    A(f"s_lshl_b32 s{sMLOFF}, s{sG}, 13\ns_lshl_b32 s{sT0}, s{sSP}, 7\ns_add_u32 s{sMLOFF}, s{sMLOFF}, s{sT0}\ns_add_u32 s{sMLOFF}, s{sMLOFF}, {WS_ML}")
    emit_masks(0, MASK, 20, 21)


def ld_items_reg(srdr, voff, soff_base, ulist, regs_of):
    items = []
    i = 0
    while i < len(ulist):
        u = ulist[i]
        pair = ulist[i:i + 2]
        assert u % 2 == 0
        pre = f"s_add_u32 s{sT0}, s{soff_base}, {(u//2)*PSTRIDE}"
        first = True
        for k, uu in enumerate(pair):
            for m in range(2):
                txt = f"buffer_load_dwordx4 {vr(radd(regs_of(uu), 4*m))}, v{voff}, {srd(srdr)}, s{sT0} offen offset:{k*2048+m*256} nt"
                if first:
                    txt = pre + "\n" + txt
                    first = False
                items.append((txt, uu))
        i += 2
    return items


def ld_items_lds(srdr, voff, voffd, soff_base, ulist, slot_of):
    items = []
    i = 0
    while i < len(ulist):
        u = ulist[i]
        pair = ulist[i:i + 2]
        assert u % 2 == 0
        d = (u // 2) * PSTRIDE - 768
        pre = (f"s_add_u32 s{sT1}, s{soff_base}, {d}" if d >= 0 else f"s_sub_u32 s{sT1}, s{soff_base}, {-d}")
        pre += f"\ns_add_u32 s{sT2}, s{sLDSW}, {slot_of(u)*2048}\ns_mov_b32 m0, s{sT2}\ns_nop 0"
        first = True
        for k, uu in enumerate(pair):
            assert slot_of(uu) == slot_of(u) + k
            for m in range(2):
                v = voffd if m == 0 else voff
                txt = f"buffer_load_dwordx4 v{v}, {srd(srdr)}, s{sT1} offen offset:{k*2048+m*1024} nt lds"
                if first:
                    txt = pre + "\n" + txt
                    first = False
                items.append((txt, uu))
        i += 2
    return items


class GRing:
    def __init__(self, keys, text_of, quads):
        self.keys, self.text_of, self.quads = keys, text_of, quads
        self.pos = {k: i for i, k in enumerate(keys)}
        self.issued = 0
        self.landed = 0

    def issue(self, upto):
        out = []
        while self.issued < min(upto, len(self.keys)):
            out.append(self.text_of(self.keys[self.issued], self.quads[self.issued % len(self.quads)]))
            self.issued += 1
        return "\n".join(out)

    def consume(self, key):
        i = self.pos[key]
        w = "" if i < self.landed else f"s_waitcnt vmcnt({self.issued - i - 1})\n"
        return w, self.quads[i % len(self.quads)], i + 1 + len(self.quads)


def qk_groups(n, ksrc, bias_sgpr, stg, hook=None):
    G = []
    nC = (n + 1) // 2
    G.append((f"v_mov_b32 v{vMX}, {NEG_INF}" + (f"\nv_mov_b32 v{SC+nC-1}, {NEG_INF}" if n & 1 else ""), None))
    reads = [(u, m) for u in range(n) if ksrc(u)[0] == "lds" for m in range(2)]
    rpos = {rm: i for i, rm in enumerate(reads)}
    issued = [0]

    def issue_reads(upto, out):
        while issued[0] < min(upto, len(reads)):
            u, m = reads[issued[0]]
            q = stg[issued[0] % len(stg)]
            out.append((f"ds_read_b128 {vr(q)}, v{vL} offset:{ksrc(u)[1]*2048+m*1024}", ksrc(u)[2]))
            issued[0] += 1

    pre = []
    issue_reads(len(stg), pre)

    def bops(u):
        d = DT + 4 * (u % 3)
        c = SC + u // 2
        bm = 0x5 if (u & 1) == 0 else 0xA
        t = f"v_mov_b32_dpp v{d}, v{d} quad_perm:[0,0,0,0] {DPPF}\n"
        t += f"v_add_f32_dpp v{d}, v{d+1}, v{d} quad_perm:[1,1,1,1] {DPPF}\n"
        t += f"v_add_f32_dpp v{d}, v{d+2}, v{d} quad_perm:[2,2,2,2] {DPPF}\n"
        if u == n - 1:
            t += f"v_add_f32 v{d}, s{bias_sgpr}, v{d}\n"
        t += f"v_add_f32_dpp v{c}, v{d+3}, v{d} quad_perm:[3,3,3,3] row_mask:0xf bank_mask:{bm:#x}\n"
        if (u & 1) or u == n - 1:
            t += f"v_max_f32 v{vMX}, v{vMX}, v{c}\n"
        return t

    body = []
    for u in range(n):
        d = DT + 4 * (u % 3)
        src = ksrc(u)
        b = bops(u - 2).strip().split("\n") if u >= 2 else []
        if u == 2:
            b = ["s_nop 4"] + b
        parts = [b[:len(b) // 2], b[len(b) // 2:]]
        for m in range(2):
            cin = "0" if m == 0 else vr(d)
            if src[0] == "reg":
                t = f"v_mfma_f32_16x16x32_bf16 {vr(d)}, {vr(radd(src[1],4*m))}, {vr(QA+4*m)}, {cin}"
                if hook and hook(u, m):
                    t += "\n" + hook(u, m)
                body.append((t, src[2]))
            elif src[0] == "gl":
                w, q, upto = src[1].consume(("K", u, m))
                body.append((w + f"v_mfma_f32_16x16x32_bf16 {vr(d)}, {vr(q)}, {vr(QA+4*m)}, {cin}", None))
                if parts[m]:
                    body.append(("\n".join(parts[m]), None))
                    parts[m] = []
                body.append((src[1].issue(upto), None))
            else:
                i = rpos[(u, m)]
                q = stg[i % len(stg)]
                t = f"s_waitcnt lgkmcnt({issued[0]-i-1})\n"
                t += f"v_mfma_f32_16x16x32_bf16 {vr(d)}, {vr(q)}, {vr(QA+4*m)}, {cin}"
                body.append((t, None))
                issue_reads(i + 1 + len(stg), body)
            if parts[m]:
                body.append(("\n".join(parts[m]), None))
    body.append((bops(n - 2), None))
    body.append(("s_nop 1\n" + bops(n - 1), None))
    return G, pre, body


def max_group():
    t = "s_nop 1\n"
    t += f"v_max_f32_dpp v{vMX}, v{vMX}, v{vMX} row_half_mirror {DPPF}\n"
    t += f"v_mov_b32 v{vT}, v{vMX}\ns_nop 1\nv_permlane32_swap_b32 v{vMX}, v{vT}\nv_max_f32 v{vMX}, v{vMX}, v{vT}\n"
    t += f"v_mov_b32 v{vT}, v{vMX}\ns_nop 1\nv_permlane16_swap_b32 v{vMX}, v{vT}\nv_max_f32 v{vMX}, v{vMX}, v{vT}\n"
    t += f"v_mul_f32 v{vCM}, s{sC}, v{vMX}\nv_mov_b32 v{vLS}, 0\nds_write_b32 v{vCMw}, v{vCM}"
    return (t, None)


def pv_groups(order, vsrc, stg, bar_at, tp):
    T = [DT, DT + 4]
    PP = [DT + 8, DT + 9]
    n = len(order)
    reads = [(u, m) for u in order if vsrc(u)[0] == "lds" for m in range(2)]
    rpos = {rm: i for i, rm in enumerate(reads)}
    issued = [0]
    body = []

    def issue_reads(upto):
        while issued[0] < min(upto, len(reads)):
            u, m = reads[issued[0]]
            q = stg[issued[0] % len(stg)]
            body.append((f"ds_read_b128 {vr(q)}, v{vL} offset:{vsrc(u)[1]*2048+m*1024}", vsrc(u)[2], None))
            issued[0] += 1

    pairs = []
    for u in order:
        if u // 2 not in pairs:
            pairs.append(u // 2)
    pidx = {k: i for i, k in enumerate(pairs)}

    def E(k):
        c = SC + k
        return f"v_fma_f32 v{c}, v{c}, s{sC}, -v{vCM}\nv_exp_f32 v{c}, v{c}\n"

    def F(k):
        c = SC + k
        return f"v_add_f32 v{vLS}, v{vLS}, v{c}\nv_cvt_pk_bf16_f32 v{PP[pidx[k]&1]}, v{c}, v{c}\n"

    def Gm(i):
        u = order[i]
        pp = PP[pidx[u // 2] & 1]
        rho = u & 1
        t = ""
        for r in range(4):
            if (r >> 1) == rho:
                t += f"v_and_b32 v{T[i&1]+r}, v{pp}, v{MASK+r}\n"
        for r in range(4):
            if (r >> 1) != rho:
                sh = "row_shr:4" if rho == 0 else "row_shl:4"
                t += f"v_and_b32_dpp v{T[i&1]+r}, v{pp}, v{MASK+r} {sh} {DPPF} bound_ctrl:0\n"
        return t

    t = E(pairs[0])
    if len(pairs) > 1:
        t += E(pairs[1])
    else:
        t += "s_nop 0\n"
    t += F(pairs[0]) + Gm(0)
    body.append((t, None, None))
    edone = min(2, len(pairs))
    fdone = 1
    first_lds_started = False
    for i in range(n):
        u = order[i]
        nxt = [order[j] for j in range(i, min(n, i + 3))]
        if not first_lds_started and any(vsrc(x)[0] == "lds" for x in nxt):
            issue_reads(len(stg))
            first_lds_started = True
        t = ""
        if i + 1 < n:
            k1 = pidx[order[i + 1] // 2]
            if k1 >= fdone:
                t += F(pairs[k1])
                fdone = k1 + 1
                if edone < len(pairs):
                    t += E(pairs[edone])
                    edone += 1
            t += Gm(i + 1)
        if i == bar_at:
            body.append((f"v_add_u32 v{vT}, s{sW4}, v{vCMr}\ns_waitcnt lgkmcnt(0)\ns_barrier\n"
                         f"ds_read_b64 v[{vF}:{vF+1}], v{vCMr}\nds_read_b64 v[{tp}:{tp+1}], v{vCMr} offset:8\nds_read_b32 v{vT}, v{vT}", None, None))
        if i == min(bar_at + 2, n - 1):
            t += (f"s_waitcnt lgkmcnt(0)\nv_max3_f32 v{vMX}, v{vF}, v{vF+1}, v{tp}\nv_max_f32 v{vMX}, v{vMX}, v{tp+1}\n"
                  f"v_sub_f32 v{vF}, v{vT}, v{vMX}\nv_exp_f32 v{vF}, v{vF}\n")
        tl = [x for x in t.strip().split("\n") if x]
        parts = [tl[:len(tl) // 2], tl[len(tl) // 2:]]
        if not tl:
            parts[0] = ["s_nop 0"]
        src = vsrc(u)
        for m in range(2):
            acc = QA + 4 * m
            cin = "0" if i == 0 else vr(acc)
            if parts[m]:
                body.append(("\n".join(parts[m]), None, None))
            if src[0] == "reg":
                body.append((f"v_mfma_f32_16x16x32_bf16 {vr(acc)}, {vr(T[i&1])}, {vr(radd(src[1],4*m))}, {cin}", src[2], None))
            elif src[0] == "gl":
                w, q, upto = src[1].consume(("V", u, m))
                body.append((w + f"v_mfma_f32_16x16x32_bf16 {vr(acc)}, {vr(T[i&1])}, {vr(q)}, {cin}", None, None))
                body.append((src[1].issue(upto), None, None))
            else:
                j = rpos[(u, m)]
                q = stg[j % len(stg)]
                body.append((f"s_waitcnt lgkmcnt({issued[0]-j-1})\nv_mfma_f32_16x16x32_bf16 {vr(acc)}, {vr(T[i&1])}, {vr(q)}, {cin}", None, u if m == 1 else None))
                issue_reads(j + 1 + len(stg))
    return body


def emit_groups(gs):
    for g in gs:
        A(g[0])


def clear_next(t4, ta):
    sk, far = A.label("clsk"), A.label("clfar")
    A(f"s_cmp_lt_u32 s{sWAVE}, 2\ns_cbranch_scc1 {sk}")
    for r in range(4):
        A(f"v_mov_b32 v{t4+r}, -1")
    A(f"v_lshlrev_b32 v{ta}, 4, v0")
    A(f"s_sub_u32 s{sT3}, s{sWAVE}, 2\ns_lshl_b32 s{sCL}, s{sT3}, 12\ns_add_u32 s{sCL}, s{sCL}, s{sMLOFF}\ns_add_u32 s{sCL}, s{sCL}, {ML_L}")
    A(f"s_mul_i32 s{sT3}, s{sT3}, 28672\ns_add_u32 s{sT3}, s{sT3}, s{sPOOFF}\ns_add_u32 s{sT3}, s{sT3}, {PO_L}")
    A(f"s_cmp_eq_u32 s{sMODE}, 1\ns_cbranch_scc0 {far}")
    for fl in ("", " sc1"):
        if fl:
            A(f"{far}:")
        A(f"buffer_store_dwordx4 {vr(t4)}, v{ta}, {srd(SRD_WS)}, s{sT3} offen{fl}")
        A(f"s_mov_b64 exec, 1\nbuffer_store_dwordx2 {vr(t4, 2)}, v{ta}, {srd(SRD_WS)}, s{sCL} offen{fl}\ns_mov_b64 exec, -1")
        if not fl:
            A(f"s_branch {sk}")
    A(f"{sk}:\ns_nop 1")


def code_prefetch(lab_from, nbytes, vaddr, vjunk, sp):
    here = A.label("pc")
    A(f"s_getpc_b64 s[{sp}:{sp+1}]\n{here}:")
    A(f"s_add_u32 s{sp}, s{sp}, {lab_from}-{here}\ns_addc_u32 s{sp+1}, s{sp+1}, {'-1' if lab_from in BACKWARD else '0'}")
    A(f"v_lshlrev_b32 v{vaddr}, 6, v0")
    for o in range(0, nbytes, 4096):
        if o:
            A(f"v_add_u32 v{vaddr}, 4096, v{vaddr}")
        if nbytes - o < 4096:
            A(f"v_min_u32 v{vaddr}, {nbytes - 64}, v{vaddr}")
        A(f"global_load_dword v{vjunk}, v{vaddr}, s[{sp}:{sp+1}]")


BACKWARD = set()


def cm_addr():
    A(f"v_lshrrev_b32 v{vCMr}, 5, v0\nv_lshlrev_b32 v{vCMr}, 4, v{vCMr}\nv_add_u32 v{vCMr}, {MLBASE}, v{vCMr}")
    A(f"v_bfe_u32 v{vCMw}, v0, 3, 1\nv_lshlrev_b32 v{vCMw}, 4, v{vCMw}\nv_add_u32 v{vCMw}, s{sW4}, v{vCMw}\nv_add_u32 v{vCMw}, {MLBASE}, v{vCMw}")


def q_loads():
    return (f"buffer_load_dwordx4 {vr(QA)}, v{vQ}, {srd(SRD_WS)}, s{sQOFF} offen sc1\n"
            f"buffer_load_dwordx4 {vr(QA+4)}, v{vQ}, {srd(SRD_WS)}, s{sQOFF} offen offset:256 sc1")


def poll_q_blocking():
    lp, done = A.label("qpoll"), A.label("qdone")
    A(f"{lp}:")
    spin_guard(done)
    if os.environ.get("QPS"):
        A(f"s_sleep {os.environ['QPS']}")
    A(q_loads())
    A("s_waitcnt vmcnt(0)")
    sentinel_check(range(QA, QA + 8), vT, lp)
    A(f"{done}:")
    A("s_nop 1")


VL_UNITS = list(range(NVREG, NKA))
vslot = lambda u: u - NVREG
loads = []
it = ld_items_lds(SRD_VA, vV, vVd, sOFFA, VL_UNITS[:-1], vslot)
loads += [(t, ("V", u), None) for t, u in it]
it = ld_items_lds(SRD_VA, vV, vVd, sOFFA36, [0], lambda u: vslot(36))
loads += [(t, ("V", 36), None) for t, u in it]
it = ld_items_reg(SRD_KA, vK, sOFFA, list(range(36)), half)
kl = [(t, ("K", u), None) for t, u in it]
it = ld_items_reg(SRD_KA, vK, sOFFA36, [0], lambda u: half(36))
kl += [(t, ("K", 36), None) for t, u in it]
ca_load = (f"buffer_load_dword v{vCM}, v{vFA}, {srd(SRD_DBG)}, 0 offen sc1", ("CA",), None)
FPOS = 32
NOCA = int(os.environ.get("NOCA", "0"))
QK0 = int(os.environ.get("QK0", "40"))
loads += kl[:QK0 - 20] + ([] if NOCA else [ca_load]) + kl[QK0 - 20:QK0]
QPOS = len(loads)
loads += kl[QK0:]
it = ld_items_reg(SRD_VA, vV, sOFFA, list(range(NVREG)), lambda u: half(NKA + u))
loads += [(t, ("V", u), None) for t, u in it]
NA_LOADS = len(loads)
sBO = 52
vPF, vJ = 42, 43
XD = int(os.environ.get("XD", "4"))
STG_B = [44, 48, 52, 56, 60, 64, 68]
RING_B = STG_B + [radd(half(NKA + u), 4 * m) for u in range(NVREG - XD, NVREG) for m in range(2)]
NPRE = len(RING_B)
PFS = int(os.environ.get("PFS", "6"))
bpf = []
first = True
for srdr, nm in ((SRD_KB, "K"), (SRD_VB, "V")):
    for p in range(6):
        nbytes = 4096 if p < 4 else 2048
        per = 64 << PFS
        for o in range(0, nbytes, per):
            nbefore = (0 if nm == "K" else 20) + (4 * p if p < 4 else 16 + 2 * (p - 4))
            if nbefore + nbytes // 1024 <= NPRE:
                continue
            t = ""
            if first:
                t += f"v_lshlrev_b32 v{vPF}, {PFS}, v0\n"
                first = False
            lanes = min(64, nbytes >> PFS)
            if lanes < 64:
                t += f"s_mov_b64 exec, {(1 << lanes) - 1}\n" if lanes < 32 else "s_mov_b32 exec_hi, 0\n"
            t += f"buffer_load_dword v{vJ}, v{vPF}, {srd(srdr)}, s{sBO+p} offen offset:{o}"
            if lanes < 64:
                t += "\ns_mov_b64 exec, -1"
            bpf.append((t, ("PF", len(bpf)), None))
GATE = 0
NB_EARLY = int(os.environ.get('NBE', '0'))
BL = bpf
early = [(t.replace(f"v{vPF},", "v62,").replace(f"v{vJ},", "v63,"), tag, NSLOT - 1) for t, tag, req in BL[:NB_EARLY]]
loads += early
if NB_EARLY:
    t0_, tag0_, r0_ = BL[NB_EARLY]
    BL[NB_EARLY] = (f"v_lshlrev_b32 v{vPF}, {PFS}, v0\n" + t0_, tag0_, r0_)

ksrcA = lambda u: ("reg", half(u), ("K", u))
vsrcA = lambda u: ("reg", half(NKA + u), ("V", u)) if u < NVREG else ("lds", vslot(u), ("V", u))

g0, pre, body = qk_groups(NKA, ksrcA, sBIASA, STG_A)
comp = [(t, n, None) for t, n in g0 + pre + body] + [max_group() + (None,)]
comp += pv_groups(VL_UNITS + list(range(NVREG)), vsrcA, STG_A, 33, STG_A[0])

EXP = os.environ.get("EXP", "")
if EXP:
    order = loads[:NA_LOADS] + BL
    if "r" in EXP:
        order = [(t, ("K", u), None) for t, u in ld_items_reg(SRD_KA, vV if "v" in EXP else vK, sOFFA, list(range(36)), half)]
        order += [(t, ("V", u), None) for t, u in ld_items_reg(SRD_VA, vV, sOFFA, list(range(36)), lambda u: half(u + 18))]
        order += [(t, ("BK", u), None) for t, u in ld_items_reg(SRD_KB, vV if "v" in EXP else vK, sOFFB, list(range(8)), half)]
        order += [(t, ("BV", u), None) for t, u in ld_items_reg(SRD_VB, vV, sOFFB, list(range(8)), lambda u: half(u + 18))]
    for i, (t, tag, req) in enumerate(order):
        if tag == ("CA",): continue
        if tag == ("BK", 0) and "s_add" in t:
            stamp(3)
        if i in (30, 60, 90, 120): stamp(15 + (30, 60, 90, 120).index(i))
        A(t)
        if os.environ.get("THR"): A(f"s_waitcnt vmcnt({os.environ['THR']})")
    A("s_waitcnt vmcnt(0)")
    stamp(4)
    A("s_branch L_fin")
THR = int(os.environ.get("THR", "4"))
THRX = int(os.environ.get("THRX", "0"))
TSCH = eval(os.environ.get("TSCH", "[(0,4),(118,0)]"))
VPOL = int(os.environ.get("VPOL", "0"))
THR2 = int(os.environ.get("THR2", "0"))
THRB = int(os.environ.get("THRB", "0"))
LAG = int(os.environ.get("LAG", "10"))
last_of = {}
nissued = 0
released = set()
ci = 0


def emit_comp(g):
    t, need, rel = g
    if need is not None:
        n = nissued - last_of[need] - 1
        A(f"s_waitcnt vmcnt({min(n, 63)})")
    A(t)
    if rel is not None:
        released.add(vslot(rel))


qready = False
li = 0
done_pos = set()
LEAD = int(os.environ.get("LEAD", "0"))
ADAPT = int(os.environ.get("ADAPT", "0"))
ATHR = int(os.environ.get("ATHR", "3"))
sTHR = 51
MARKS = ([40, 56, 72, 88, 104, 120] if LEAD else [-1] * 6) + [NA_LOADS - GATE] if GATE else []
if ADAPT:
    MARKS = [34, 50, 66, 82, 98, 114, 130]
    A(f"s_mov_b32 s{sTHR}, 0")


RATE = int(os.environ.get("RATE", "0"))
sRT0, sRT = 64, 66
if RATE:
    pass


def rate_ctl(li):
    if RATE and li % 6 == 0 and 12 <= li:
        A(f"s_memrealtime s[{sRT}:{sRT+1}]")
    if RATE and li % 6 == 1 and 12 <= li:
        A(f"s_waitcnt lgkmcnt(0)\ns_sub_u32 s{sRT}, s{sRT}, s{sRT0}\ns_cmp_lt_u32 s{sRT}, {max(0, (li - int(os.environ.get('ROFF', '4'))) * RATE // 10)}\ns_cselect_b32 s{sTHR}, 1, 0")


def athr():
    if ADAPT or RATE:
        sk = A.label("nt")
        A(f"s_cmp_eq_u32 s{sTHR}, 0\ns_cbranch_scc1 {sk}\ns_waitcnt vmcnt({ATHR})\n{sk}:")


flow_load = f"buffer_load_ubyte v{vFD}, v{vFA}, {srd(SRD_DBG)}, 0 offen offset:4 sc1"


def flow_wait(k, n):
    ok, lp, ck = A.label("flok"), A.label("fllp"), A.label("flck")
    if n is not None:
        A(f"s_waitcnt vmcnt({n})\ns_branch {ck}")
    A(f"{lp}:")
    spin_guard(ok)
    A(f"{flow_load}\ns_waitcnt vmcnt(0)")
    A(f"{ck}:\nv_cmp_gt_u32 vcc, {k << 4}, v{vFD}\ns_nop 0\ns_cmp_lg_u64 vcc, 0\ns_cbranch_scc0 {ok}\ns_sleep 4\ns_branch {lp}")
    A(f"{ok}:")


while li < len(loads):
    if li in MARKS and li not in done_pos:
        k = MARKS.index(li) + 1
        nf = A.label("nomark")
        A(f"s_or_b32 s{sT3}, s{sWAVE}, s{sSP}\ns_cmp_eq_u32 s{sT3}, 0\ns_cbranch_scc0 {nf}")
        A(f"s_or_b32 s{sT3}, s{sID}, {k << 4}\nv_mov_b32 v{vT}, s{sT3}\ns_lshl_b64 exec, 1, s{sG}")
        A(f"buffer_store_byte v{vT}, v{vFA}, {srd(SRD_DBG)}, 0 offen offset:4 sc1\ns_mov_b64 exec, -1")
        A(f"{nf}:")
    if LEAD and (li - LEAD + 8) in MARKS[:-1] and li + 8 < NA_LOADS and li not in done_pos:
        A(flow_load)
        last_of[("FL",)] = nissued
        nissued += 1
    if LEAD and (li - LEAD) in MARKS[:-1] and li < NA_LOADS and li not in done_pos:
        k = MARKS.index(li - LEAD) + 1
        flow_wait(k, nissued - last_of[("FL",)] - 1)
    if ADAPT and (li - ADAPT) in MARKS and li + 8 < NA_LOADS and li not in done_pos:
        A(flow_load)
        last_of[("FL",)] = nissued
        nissued += 1
    if ADAPT and (li - ADAPT - 8) in MARKS and li < NA_LOADS and li not in done_pos:
        k = MARKS.index(li - ADAPT - 8) + 1
        A(f"s_waitcnt vmcnt({nissued - last_of[('FL',)] - 1})")
        A(f"v_cmp_gt_u32 vcc, {k << 4}, v{vFD}\ns_nop 0\ns_cmp_lg_u64 vcc, 0\ns_cselect_b32 s{sTHR}, 1, 0")
    if os.environ.get("PROG") and li in (30, 60, 90, 120) and li not in done_pos:
        if li == 120 and PROFILE: A("s_waitcnt lgkmcnt(0)")
        stamp(15 + (30, 60, 90, 120).index(li))
    if li == 4 and li not in done_pos:
        late_setup()
        if RATE:
            A(f"s_mov_b32 s{sTHR}, 0\ns_memrealtime s[{sRT0}:{sRT0+1}]")
    done_pos.add(li)
    if li == QPOS and NOCA:
        A(f"s_mov_b32 s{sMODE}, 1")
        A(q_loads())
        nissued += 2
        last_of[("Q",)] = nissued - 1
    if li == QPOS and not NOCA:
        n = nissued - last_of[("CA",)] - 1
        ok, lp, ck = A.label("caok"), A.label("calp"), A.label("cack")
        A(f"s_waitcnt vmcnt({n})\ns_branch {ck}")
        A(f"{lp}:")
        spin_guard(ok)
        A(f"{ca_load[0]}\ns_waitcnt vmcnt(0)")
        A(f"{ck}:\nv_readlane_b32 s{sT3}, v{vCM}, s{sG}")
        A(f"s_cmp_eq_u32 s{sT3}, s{sID}\ns_cselect_b32 s{sMODE}, 1, 0")
        A(f"s_add_u32 s{sT3}, s{sT3}, 0x7f7f7f7f\ns_and_b32 s{sT3}, s{sT3}, 0x80808080\ns_cmp_eq_u32 s{sT3}, 0x80808080\ns_cbranch_scc0 {lp}")
        A(f"{ok}:")
        clear_next(DT, vT)
        A(q_loads())
        nissued += 2
        last_of[("Q",)] = nissued - 1
    if li == QPOS + 12:
        n = nissued - last_of[("Q",)] - 1
        slow, ok = A.label("qslow"), A.label("qok")
        A(f"s_waitcnt vmcnt({n})")
        sentinel_check(range(QA, QA + 8), vT, slow)
        A(f"s_branch {ok}\n{slow}:")
        poll_q_blocking()
        A(f"{ok}:")
        stamp(1)
        A(f"s_lshl_b32 s{sW4}, s{sWAVE}, 2")
        cm_addr()
        if RATE:
            A(f"s_mov_b32 s{sTHR}, 0")
        qready = True
    t, tag, req = loads[li]
    if req is not None and req not in released:
        emit_comp(comp[ci])
        ci += 1
        continue
    A(t.replace(" nt", "") if li < VPOL else t)
    if TSCH:
        tv = [v for (p, v) in TSCH if li >= p][-1]
        if tv:
            A(f"s_waitcnt vmcnt({tv})")
    elif THR and not qready:
        A(f"s_waitcnt vmcnt({THR + (THRX if li & 1 else 0)})")
    if THR2 and qready:
        A(f"s_waitcnt vmcnt({THR2})")
    if li > (12 if RATE else 40) and not (RATE and qready):
        athr()
    if not qready:
        rate_ctl(li)
    last_of[tag] = nissued
    nissued += 1
    li += 1
    if qready:
        cnt = 0
        while ci < len(comp) and cnt < int(os.environ.get("GPL", "8")):
            need = comp[ci][1]
            if need is not None and (need not in last_of or nissued - last_of[need] - 1 < LAG or
                                     (li < len(loads) and loads[li][1] == need)):
                break
            emit_comp(comp[ci])
            ci += 1
            cnt += 1
stamp(2)
A(f"s_max_u32 s{sT3}, s{sWAVE}, 1\ns_lshl_b32 s{sT3}, s{sT3}, 10\ns_add_u32 s{sT3}, s{sT3}, {XBASE - 1024}\nv_lshl_add_u32 v{vX}, v0, 4, s{sT3}")
while ci < len(comp):
    emit_comp(comp[ci])
    ci += 1

A("L_reduce:")
A(f"v_add_f32_dpp v{vLS}, v{vLS}, v{vLS} row_half_mirror {DPPF}")
xrow_reduce("v_add_f32", vLS, vT)
A(f"v_mul_f32 v{vLS}, v{vLS}, v{vF}\ns_mov_b32 exec_lo, 1\ns_mov_b32 exec_hi, 0x100")
A(f"ds_write_b32 v{vCMw}, v{vLS} offset:32\ns_mov_b64 exec, -1")
for r in range(0, 8, 2):
    A(f"v_pk_mul_f32 v[{QA+r}:{QA+r+1}], v[{QA+r}:{QA+r+1}], v[{vF}:{vF+1}] op_sel_hi:[1,0]")
XR = 20
xr = [20, 24, 56]
A(f"s_cmp_eq_u32 s{sWAVE}, 0\ns_cbranch_scc0 L_red_n0")
for wv in range(2):
    own, give = QA + 4 * wv, QA + 4 * (1 - wv)
    if wv == 1:
        A("L_red_1:")
    A(f"ds_write_b128 v{vX}, {vr(give)} offset:{3072*(1-wv)}")
    A(f"s_add_u32 s{sT0}, s{sPOOFF}, {512*wv}\ns_cmp_eq_u32 s{sMODE}, 1")
    A("s_waitcnt lgkmcnt(0)\ns_barrier")
    for s_ in range(3):
        A(f"ds_read_b128 {vr(xr[s_])}, v{vX} offset:{3072*wv+1024*s_}")
    for s_ in range(3):
        A(f"s_waitcnt lgkmcnt({2-s_})")
        for r in (0, 2):
            A(f"v_pk_add_f32 v[{own+r}:{own+r+1}], v[{own+r}:{own+r+1}], v[{xr[s_]+r}:{xr[s_]+r+1}]")
    for r in range(4):
        A(f"v_min_u32 v{own+r}, -2, v{own+r}")
    far = A.label("far")
    A(f"s_cbranch_scc0 {far}")
    A(f"buffer_store_dwordx4 {vr(own)}, v{vPO}, {srd(SRD_WS)}, s{sT0} offen\ns_branch L_red_done")
    A(f"{far}:\nbuffer_store_dwordx4 {vr(own)}, v{vPO}, {srd(SRD_WS)}, s{sT0} offen sc1\ns_branch L_red_done")
A("L_red_n0:")
A(f"s_cmp_eq_u32 s{sWAVE}, 1\ns_cbranch_scc1 L_red_1")
A(f"ds_write_b128 v{vX}, {vr(QA)}\nds_write_b128 v{vX}, {vr(QA+4)} offset:3072")
A(f"v_lshrrev_b32 v{vT}, 5, v0\nv_lshlrev_b32 v{vT}, 12, v{vT}\nv_min_u32 v24, -2, v{vMX}")
A(f"s_cmp_eq_u32 s{sWAVE}, 2")
A("s_waitcnt lgkmcnt(0)\ns_barrier\ns_cbranch_scc0 L_red_done")
A(f"ds_read_b128 v[20:23], v{vCMr} offset:32\ns_cmp_eq_u32 s{sMODE}, 1\ns_waitcnt lgkmcnt(0)")
A("v_add_f32 v20, v20, v21\nv_add_f32 v22, v22, v23\nv_add_f32 v25, v20, v22\nv_min_u32 v25, -2, v25")
A("s_mov_b32 exec_lo, 1\ns_mov_b32 exec_hi, 1\ns_cbranch_scc0 L_ml_far")
A(f"buffer_store_dwordx2 v[24:25], v{vT}, {srd(SRD_WS)}, s{sMLOFF} offen\ns_branch L_ml_done")
A(f"L_ml_far:\nbuffer_store_dwordx2 v[24:25], v{vT}, {srd(SRD_WS)}, s{sMLOFF} offen sc1")
A("L_ml_done:\ns_mov_b64 exec, -1")
A("L_red_done:")
A("s_barrier")
A(f"s_add_u32 s{sQOFF}, s{sQOFF}, 8192\ns_add_u32 s{sPOOFF}, s{sPOOFF}, {PO_L}\ns_add_u32 s{sMLOFF}, s{sMLOFF}, {ML_L}")
A(f"s_add_u32 s{sLAYER}, s{sLAYER}, 1")
A(f"s_cmp_eq_u32 s{sLAYER}, 2\ns_cbranch_scc1 L_after2")
A(f"s_cmp_eq_u32 s{sLAYER}, 3\ns_cbranch_scc1 L_after3")
A(f"s_cmp_eq_u32 s{sLAYER}, 4\ns_cbranch_scc1 L_att_end")
stamp(3)
if GATE:
    vFA = vT
    flow_load = f"buffer_load_ubyte v{vFD}, v{vFA}, {srd(SRD_DBG)}, 0 offen offset:4 sc1"
    A(f"v_and_b32 v{vFA}, 7, v0\nv_lshlrev_b32 v{vFA}, 5, v{vFA}")
    flow_wait(7, None)
    stamp(13)


DRYS = os.environ.get("DRYS", "")


def stream_then_q(items, E, st_a, st_b, thr=0, pre=(), dry=None):
    n = len(items)
    for i, (t, tag, req) in enumerate(items):
        if i == n - E:
            A(q_loads())
        A(t)
        if thr and i < n - E:
            A(f"s_waitcnt vmcnt({thr})")
        if st_a == 4 and i < n - E and os.environ.get("ATHB"):
            athr()
            rate_ctl(NA_LOADS + NB_EARLY + i + 6)
    if dry and int(os.environ.get("CPL", "1")):
        code_prefetch(f"L_{dry}_body", 5120 if dry == "l3" else 1536, STG_A[3], STG_A[3] + 1, sT2)
    if dry and dry in DRYS:
        A(f"s_mov_b64 exec, 0\ns_branch L_{dry}_body\nL_{dry}_ret:\ns_mov_b64 exec, -1\ns_nop 7")
    if E == 0:
        qs = int(os.environ.get(f"QS{st_a}", "0"))
        if qs:
            A(f"s_sleep {qs}")
        A(q_loads())
    slow, ok = A.label("qslow"), A.label("qok")
    A(f"s_waitcnt vmcnt({E})")
    stamp(st_a)
    emit_groups(pre)
    sentinel_check(range(QA, QA + 8), vT, slow)
    A(f"s_branch {ok}\n{slow}:")
    poll_q_blocking()
    A(f"{ok}:")
    stamp(st_b)
    if dry:
        A(f"L_{dry}_body:")
    younger = {}
    for i, (t, tag, req) in enumerate(items):
        if i >= n - E:
            younger[tag] = n - 1 - i
    return younger


def emit_counted(gs, younger, extra=None, every=1):
    extra = list(extra or [])
    cnt = 0
    for g in gs:
        need = g[1]
        if need in younger:
            A(f"s_waitcnt vmcnt({younger[need]})")
            lim = younger[need]
            for k in [k for k, v in younger.items() if v >= lim]:
                del younger[k]
        A(g[0])
        if "v_mfma" in g[0]:
            cnt += 1
            if extra and cnt % every == 0:
                t, tag, req = extra.pop(0)
                A(t)
                for k in younger:
                    younger[k] += 1
                younger[tag] = 0
    assert not extra


def btext(key, q):
    nm, u, m = key
    p, o = (u // 2, (u & 1) * 2048) if u < 8 else (u - 4, 0)
    return f"buffer_load_dwordx4 {vr(q)}, v{vK if nm == 'K' else vV}, {srd(SRD_KB if nm == 'K' else SRD_VB)}, s{sBO+p} offen offset:{o+256*m}"


ring = GRing([(nm, u, m) for nm in "KV" for u in range(10) for m in range(2)], btext, RING_B)
clear_next(DT, vT)
RTH = os.environ.get("RTH", "")
for i_ in range(1, NPRE + 1):
    A(ring.issue(i_))
    if RTH:
        A(f"s_waitcnt vmcnt({RTH})")
ring.landed = NPRE
CPF = int(os.environ.get("CPF", "2"))
if CPF:
    code_prefetch("L_l2body", CPF * 4096, vPF, vJ, sT0)
ksrcB = lambda u: ("gl", ring, None)
g0, pre, body = qk_groups(10, ksrcB, sBIASB, STG_B)
emit_groups(g0)
yg = stream_then_q(BL[NB_EARLY:], int(os.environ.get("E2", "2")), 4, 5, int(os.environ.get("PTH", "0")))
A("L_l2body:")
emit_groups(body + [max_group()] + pv_groups(list(range(10)), ksrcB, STG_B, 5, 42))
A("s_branch L_reduce")

A("L_after2:")
stamp(6)
def hook3(u, m):
    j = 2 * (u - 1) + m
    if u >= 1 and j < 2 * NSLOT:
        w = "s_waitcnt lgkmcnt(6)\n" if j % 8 == 7 else ""
        return w + f"ds_read_b128 {vr(radd(half(j // 2), 4 * (j & 1)))}, v{vL} offset:{j*1024}"
    return None


g0, pre, body = qk_groups(NKA, ksrcA, sBIASA, STG_A, hook3)
vsrc3 = lambda u: ("reg", half(NKA + u) if u < NVREG else half(u - NVREG), None)
clear_next(DT, vT)
emit_groups(g0)
rl = ld_items_reg(SRD_VA, vV, sOFFA, list(range(NVREG - XD, NVREG)), lambda u: half(NKA + u)) if XD else []
yg = stream_then_q([(t, ("V", u), None) for t, u in rl], 0, 14, 7, dry="l3")
emit_counted(body, yg)
emit_groups([max_group()])
stamp(8)
HB1 = 0
b4 = []
for srdr, voff, base, nm in ((SRD_KB, vK, 0, "BK"), (SRD_VB, vV, 10, "BV")):
    b4 += [(t, (nm, u), None) for t, u in ld_items_reg(srdr, voff, sOFFB, list(range(8)), lambda u: half(base + u))]
    b4 += [(t, (nm, 8), None) for t, u in ld_items_reg(srdr, voff, sOFFB8, [0], lambda u: half(base + 8))]
    b4 += [(t, (nm, 9), None) for t, u in ld_items_reg(srdr, voff, sOFFB9, [0], lambda u: half(base + 9))]
NB4 = int(os.environ.get("NB4", "0"))
order3 = list(range(NVREG)) + [NVREG + x for x in list(range(HB1, NSLOT)) + list(range(0, HB1))]
emit_groups(pv_groups(order3, vsrc3, STG_A, 12, STG_A[0]))
stamp(15)
if "l3" in DRYS:
    A("s_cbranch_execz L_l3_ret")
A("s_branch L_reduce")

A("L_after3:")
if os.environ.get("WBL") == "2":
    A(f"s_cmp_eq_u32 s{sSP}, 27\ns_cbranch_scc0 L_wb_skip2\ns_cmp_eq_u32 s{sWAVE}, 3\ns_cbranch_scc0 L_wb_skip2")
    A("buffer_wbl2 sc1")
    A("L_wb_skip2:")
stamp(9)
ksrc4 = lambda u: ("reg", half(u), ("BK", u))
vsrc4 = lambda u: ("reg", half(10 + u), ("BV", u))
g0, pre, body = qk_groups(10, ksrc4, sBIASB, STG_B)
emit_groups(g0)
yg = stream_then_q(b4[NB4:], int(os.environ.get("E4", "0")), 10, 11, int(os.environ.get("THR4", "0")), dry="l4")
emit_counted(body + [max_group()] + pv_groups(list(range(10)), vsrc4, STG_B, 5, 42), yg)
if "l4" in DRYS:
    A("s_cbranch_execz L_l4_ret")
A("s_branch L_reduce")

A("L_att_end:")
if os.environ.get("WBL"):
    A(f"s_cmp_eq_u32 s{sSP}, 0\ns_cbranch_scc0 L_wb_skip\ns_cmp_eq_u32 s{sWAVE}, 3\ns_cbranch_scc0 L_wb_skip")
    A("buffer_wbl2 sc1\ns_waitcnt vmcnt(0)")
    A("L_wb_skip:")
stamp(12)
A("s_branch L_fin")

A("L_chain:")
cWq, cWo, cPOg, cMLg, cL16, cYg, cT = 1, 2, 3, 4, 5, 6, 7
cX = 12
cVAL, cYst, cSCR, cXw, cXa, cXs = 14, 15, 16, 17, 18, 19
cTT = [20, 24]
cACC = 28
cG = 36
cN = 68
cXA = 36
cCS = {0: 92, 1: 93}
cQst, cV56 = 94, 95
cWo1 = 91
WQ = {0: ("a", 0), 1: ("a", 112)}
WO0 = {0: ("v", 96), 1: ("v", 160)}
sYG = 52


def wo1(t):
    return ("v", 224 + 4 * t) if t < 8 else ("a", 224 + 4 * (t - 8))


CSCR = 131072
YX = CSCR
XB = CSCR + 4096
sCH = sSP
WQB = 448 * 4096 * 2

if "n" in os.environ.get("EXP", ""):
    A("s_branch L_end")
if "l" in os.environ.get("EXP", ""):
    mk_srd(SRD_KB, pBK, 67108864)
    stamp(0)
    A(f"s_lshl_b32 s{sT0}, s{sG}, 23\ns_mul_i32 s{sT1}, s{sSP}, 491520\ns_add_u32 s{sT0}, s{sT0}, s{sT1}\ns_lshl_b32 s{sT1}, s{sWAVE}, 12\ns_add_u32 s{sT0}, s{sT0}, s{sT1}\nv_lshlrev_b32 v1, 4, v0")
    for i in range(30):
        for n in range(4):
            A(f"buffer_load_dwordx4 a[{(i*16+n*4)%256}:{(i*16+n*4)%256+3}], v1, {srd(SRD_KB)}, s{sT0} offen offset:{n*1024} nt")
        A(f"s_add_u32 s{sT0}, s{sT0}, 16384")
    A("s_waitcnt vmcnt(0)")
    stamp(3)
    A("s_branch L_fin")
A("s_waitcnt lgkmcnt(0)")
common_setup()
mk_srd(SRD_WQA, pAWQ, WQB)
mk_srd(SRD_WOA, pAWO, WQB)
mk_srd(SRD_WQB, pBWQ, WQB)
mk_srd(SRD_WOB, pBWO, WQB)
mk_srd(SRD_X, pAX, 896)
A(f"s_mov_b64 s[{sOUTP}:{sOUTP+1}], s[{pOUT}:{pOUT+1}]")
A(f"s_mov_b64 s[0:1], s[{pBK}:{pBK+1}]")
A(f"s_lshl_b32 s{sT0}, s{sG}, 2\ns_add_u32 s{sCH}, s{sT0}, s{sSP}")
A("v_lshrrev_b32 v20, 4, v0       ; s / row")
A("v_and_b32 v21, 15, v0          ; j / c16")
A("v_lshlrev_b32 v22, 4, v21      ; j*16")
A(f"s_lshr_b32 s{sT0}, s{sWAVE}, 1\ns_lshl_b32 s{sT0}, s{sT0}, 2\nv_or_b32 v23, s{sT0}, v20\nv_lshlrev_b32 v23, 5, v23\nv_xor_b32 v23, v23, v22")
A(f"v_lshl_add_u32 v{cWq}, v20, 13, v23")
A(f"v_mul_u32_u24 v{cWo}, 896, v20\nv_add_u32 v{cWo}, v{cWo}, v22")
A("v_and_b32 v23, 31, v0\nv_min_u32 v23, 27, v23\nv_lshrrev_b32 v24, 5, v0")
A(f"s_mul_i32 s{sT0}, s{sWAVE}, 224\nv_lshlrev_b32 v25, 3, v23\nv_lshl_add_u32 v25, v24, 2, v25\nv_add_u32 v25, s{sT0}, v25")
A(f"buffer_load_dword v{cX}, v25, {srd(SRD_X)}, 0 offen")
A(f"v_add_u32 v{cXw}, {XB}, v25")
A(f"v_lshlrev_b32 v{cYg}, 4, v23\nv_lshl_add_u32 v{cYg}, v24, 11, v{cYg}")


def wq_dma(which):
    s_ = SRD_WQA if which == 0 else SRD_WQB
    A(f"s_lshl_b32 s{sT0}, s{sWAVE}, 15\ns_lshl_b32 s{sT1}, s{sCH}, 8\ns_add_u32 s{sT0}, s{sT0}, s{sT1}\ns_lshl_b32 s{sT2}, s{sWAVE}, 10")
    for ii in range(28):
        A(f"s_add_u32 s{sT1}, s{sT0}, {ii*131072}\ns_add_u32 s{sT3}, s{sT2}, {ii*4096}\ns_mov_b32 m0, s{sT3}\ns_nop 0")
        A(f"buffer_load_dwordx4 v{cWq}, {srd(s_)}, s{sT1} offen nt lds")


def wq_tr(which):
    A("v_lshrrev_b32 v20, 4, v0\nv_bfe_u32 v21, v0, 2, 2\nv_and_b32 v22, 1, v20\nv_lshl_add_u32 v22, v22, 2, v21")
    A(f"s_lshl_b32 s{sT0}, s{sWAVE}, 1\nv_xor_b32 v22, s{sT0}, v22\nv_lshlrev_b32 v22, 5, v22")
    A("v_lshl_add_u32 v20, v20, 3, v21\nv_lshl_add_u32 v20, v20, 8, v22\nv_and_b32 v21, 3, v0\nv_lshl_add_u32 v20, v21, 3, v20")
    A(f"v_xor_b32 v21, 32, v20\nv_add_u32 v22, {7*8192}, v20\nv_add_u32 v23, {7*8192}, v21")
    for kb in range(14):
        for cb in range(2):
            for hf in range(2):
                d = radd(WQ[which], (kb * 2 + cb) * 4 + hf * 2)
                A(f"ds_read_b64_tr_b16 {vr(d, 2)}, v{20 + cb + (0 if kb < 7 else 2)} offset:{(kb%7)*8192+hf*1024}")
        if kb % 3 == 2:
            A("s_waitcnt lgkmcnt(3)")
    A("s_waitcnt lgkmcnt(0)")


def sel_cb(dst):
    A(f"v_mov_b32 v{dst}, v{cACC}\ns_mov_b32 exec_lo, 0xffff0000\ns_mov_b32 exec_hi, 0xffff0000\nv_mov_b32 v{dst}, v{cACC+4}\ns_mov_b64 exec, -1")


def colsum(which):
    for r in range(4):
        A(f"v_mov_b32 v{20+r}, 0x3f803f80")
    A("s_nop 1")
    for kb in range(14):
        for cb in range(2):
            acc = cACC + 4 * cb
            A(f"v_mfma_f32_16x16x32_bf16 {vr(acc)}, v[20:23], {vr(radd(WQ[which], (kb*2+cb)*4))}, {'0' if kb == 0 else vr(acc)}")
    A("s_nop 7")
    sel_cb(cCS[which])


def wo_base():
    A(f"s_lshr_b32 s{sT0}, s{sCH}, 1\ns_lshl_b32 s{sT0}, s{sT0}, 2\ns_add_u32 s{sT0}, s{sT0}, s{sWAVE}\ns_mul_i32 s{sT0}, s{sT0}, {64*896}")
    A(f"s_and_b32 s{sT1}, s{sCH}, 1\ns_lshl_b32 s{sT1}, s{sT1}, 9\ns_add_u32 s{sT0}, s{sT0}, s{sT1}")


def wo0_loads(which, ts):
    s_ = SRD_WOA if which == 0 else SRD_WOB
    wo_base()
    for t in ts:
        A(f"s_add_u32 s{sT1}, s{sT0}, {4*t*896}")
        A(f"buffer_load_dwordx4 {vr(radd(WO0[which], 4*t))}, v{cWo}, {srd(s_)}, s{sT1} offen nt")


def wo1_addr():
    A(f"s_and_b32 s{sT1}, s{sCH}, 1\ns_lshl_b32 s{sT1}, s{sT1}, 7\ns_not_b32 s{sT1}, s{sT1}")
    A(f"v_lshlrev_b32 v{cWo1}, 4, v0\nv_and_b32 v{cWo1}, 0xf0, v{cWo1}\nv_sub_u32 v{cT}, v{cWo}, v{cWo1}\nv_and_b32 v{cWo1}, s{sT1}, v{cWo1}\nv_add_u32 v{cWo1}, v{cWo1}, v{cT}")


def wo1_regs(ts):
    wo1_addr()
    wo_base()
    for t in ts:
        A(f"s_add_u32 s{sT1}, s{sT0}, {4*t*896+256}")
        A(f"buffer_load_dwordx4 {vr(wo1(t))}, v{cWo1}, {srd(SRD_WOA)}, s{sT1} offen nt")


def wo1_dma(which):
    s_ = SRD_WOA if which == 0 else SRD_WOB
    wo_base()
    A(f"s_lshl_b32 s{sT2}, s{sWAVE}, 14\ns_add_u32 s{sT2}, s{sT2}, {which*65536}")
    for t in range(16):
        A(f"s_add_u32 s{sT1}, s{sT0}, {4*t*896+256}\ns_add_u32 s{sT3}, s{sT2}, {t*1024}\ns_mov_b32 m0, s{sT3}\ns_nop 0")
        A(f"buffer_load_dwordx4 v{cWo1}, {srd(s_)}, s{sT1} offen nt lds")


def lstamp(base):
    if PROFILE == 1:
        for l in range(4):
            lb = A.label("ps")
            A(f"s_cmp_eq_u32 s{sLAYER}, {l}\ns_cbranch_scc0 {lb}")
            stamp(base + 4 * l)
            A(f"{lb}:")


stamp(0)
if int(os.environ.get("PRET", "0")):
    A(f"v_lshlrev_b32 v26, 16, v0\ns_cmp_eq_u32 s{sWAVE}, 1\ns_cbranch_scc0 L_pt2")
    A(f"buffer_load_dword v27, v26, {srd(SRD_WQB)}, 0 offen nt")
    wo_base()
    A(f"s_mov_b64 exec, 0xf\nbuffer_load_dword v32, v26, {srd(SRD_WOA)}, s{sT0} offen nt\nbuffer_load_dword v33, v26, {srd(SRD_WOB)}, s{sT0} offen nt\ns_mov_b64 exec, -1")
    A("L_pt2:")
A(f"v_lshlrev_b32 v{cL16}, 4, v0")
A(f"s_lshl_b32 s{sYST}, s{sCH}, 10\ns_add_u32 s{sYST}, s{sYST}, {WS_Y}")
A(f"s_lshl_b32 s{sQST}, s{sCH}, 8")
A("v_mov_b32 v28, -1\nv_mov_b32 v29, -1\nv_mov_b32 v30, -1\nv_mov_b32 v31, -1")
A(f"s_lshl_b32 s{sT1}, s{sWAVE}, 13\ns_add_u32 s{sT1}, s{sT1}, s{sQST}")
A(f"s_cmp_eq_u32 s{sWAVE}, 0\ns_cbranch_scc0 L_ch_cl1")
A(f"buffer_store_dwordx4 v[28:31], v{cL16}, {srd(SRD_WS)}, s{sYST} offen sc1")
A("L_ch_cl1:\ns_mov_b64 exec, 0xffff")
A(f"buffer_store_dwordx4 v[28:31], v{cL16}, {srd(SRD_WS)}, s{sT1} offen sc1")
A("s_mov_b64 exec, -1")
wq_dma(0)
A(f"v_mul_u32_u24 v{cPOg}, 7168, v20\nv_add_u32 v{cPOg}, v{cPOg}, v22\ns_lshl_b32 s{sT0}, s{sWAVE}, 8\nv_add_u32 v{cPOg}, s{sT0}, v{cPOg}")
A(f"v_min_u32 v23, 6, v21\nv_mul_u32_u24 v24, 7, v20\nv_add_u32 v23, v23, v24\nv_lshlrev_b32 v{cMLg}, 7, v23")
A(f"v_cmp_gt_u32 vcc, 7, v21\ns_nop 1\nv_cndmask_b32 v{cVAL}, 0, 1.0, vcc")
A(f"v_cmp_gt_u32 vcc, 56, v0\ns_nop 1\nv_cndmask_b32 v{cV56}, 0, 1.0, vcc")
A(f"v_lshrrev_b32 v23, 5, v0\nv_lshlrev_b32 v23, 9, v23\nv_lshl_add_u32 v23, v21, 5, v23\nv_and_b32 v24, 1, v20\nv_lshl_add_u32 v{cYst}, v24, 4, v23")
A(f"s_lshl_b32 s{sT0}, s{sWAVE}, 6\nv_lshl_add_u32 v{cQst}, v0, 1, s{sT0}")
A(f"v_add_u32 v{cSCR}, {CSCR}, v{cL16}")
A(f"v_lshlrev_b32 v{cXa}, 4, v20\nv_add_u32 v{cXa}, {XB}, v{cXa}")
A(f"v_min_u32 v{cXs}, 55, v0\nv_lshlrev_b32 v{cXs}, 4, v{cXs}\nv_add_u32 v{cXs}, {XB}, v{cXs}")
A(f"s_lshr_b32 s{sT0}, s{sCH}, 1\ns_mul_i32 s{sPOOFF}, s{sT0}, 28672\ns_add_u32 s{sPOOFF}, s{sPOOFF}, {WS_PO}")
A(f"s_lshl_b32 s{sMLOFF}, s{sT0}, 12\ns_add_u32 s{sMLOFF}, s{sMLOFF}, {WS_ML}")
A(f"s_mul_i32 s{sYOFF}, s{sWAVE}, 448\ns_add_u32 s{sYOFF}, s{sYOFF}, {WS_Y}")
emit_masks(0, MASK, 20, 21)
A("s_waitcnt vmcnt(0)")
wo0_loads(0, range(8))
mk_srd(SRD_OUT, sOUTP, 896)
A(f"ds_write_b32 v{cXw}, v{cX}")
A(f"v_and_b32 v{cX+1}, 0xffff0000, v{cX}\nv_lshlrev_b32 v{cX}, 16, v{cX}")
A("s_waitcnt lgkmcnt(0)\ns_barrier")
A(f"s_cmp_eq_u32 s{sWAVE}, 3\ns_cbranch_scc0 L_ch_noflag")
A(f"s_lshl_b32 s{sT0}, s{sG}, 5\ns_and_b32 s{sT1}, s{sCH}, 3\ns_add_u32 s{sT0}, s{sT0}, s{sT1}")
A(f"v_mov_b32 v28, s{sT0}\nv_mov_b32 v29, s{sID}\ns_mov_b64 exec, 1")
A(f"buffer_store_byte v29, v28, {srd(SRD_DBG)}, 0 offen sc1\ns_mov_b64 exec, -1")
A("L_ch_noflag:")
stamp(1)
wq_tr(0)
colsum(0)
A(f"v_and_b32 v{cT}, 7, v0\nv_lshlrev_b32 v{cT}, 2, v{cT}\ns_lshl_b32 s{sT2}, s{sG}, 5")
A("L_ch_id:")
spin_guard("L_ch_id_ok")
A(f"buffer_load_dword v{cG}, v{cT}, {srd(SRD_DBG)}, s{sT2} offen sc1\ns_waitcnt vmcnt(0)")
A(f"v_and_b32 v{cG+1}, 0x0f0f0f0f, v{cG}\nv_cmp_ne_u32 s[{sT0}:{sT1}], s{sID}, v{cG+1}")
A(f"v_add_u32 v{cG+1}, 0x7f7f7f7f, v{cG}\nv_and_b32 v{cG+1}, 0x80808080, v{cG+1}\nv_cmp_ne_u32 vcc, 0x80808080, v{cG+1}")
A(f"s_cmp_eq_u64 s[{sT0}:{sT1}], 0\ns_cselect_b32 s{sMODE}, 1, 0")
A("s_cmp_lg_u64 vcc, 0\ns_cbranch_scc1 L_ch_id")
A("L_ch_id_ok:")
A("v_mov_b32 v28, -1\nv_mov_b32 v29, -1\nv_mov_b32 v30, -1\nv_mov_b32 v31, -1")
A(f"s_mul_i32 s{sT1}, s{sWAVE}, 7168\ns_add_u32 s{sT1}, s{sT1}, s{sPOOFF}\ns_add_u32 s{sT2}, s{sT1}, 4096")
A(f"s_mul_i32 s{sT0}, s{sWAVE}, {7*128}\ns_add_u32 s{sT0}, s{sT0}, s{sMLOFF}\nv_lshlrev_b32 v{cT}, 7, v0")
A(f"s_cmp_eq_u32 s{sMODE}, 1\ns_cbranch_scc0 L_ch_clf")
for fl in ("", " sc1"):
    if fl:
        A("L_ch_clf:")
    for i in range(7):
        A(f"buffer_store_dwordx4 v[28:31], v{cL16}, {srd(SRD_WS)}, s{sT1 if i < 4 else sT2} offen offset:{1024*(i%4)}{fl}")
    A(f"s_mov_b64 exec, 0x7f\nbuffer_store_dwordx2 v[28:29], v{cT}, {srd(SRD_WS)}, s{sT0} offen{fl}\ns_mov_b64 exec, -1")
    if not fl:
        A("s_branch L_ch_cld")
A("L_ch_cld:")
A("s_waitcnt vmcnt(0)\ns_barrier")
wo0_loads(0, range(8, 16))
A("s_branch L_ch_qp")


def bf16r(dst, src):
    A(f"v_cvt_pk_bf16_f32 v{dst}, 0, v{src}")


A("L_ch_stageA:")
if int(os.environ.get("DEFW", "0")):
    A(f"s_cmp_eq_u32 s{sLAYER}, 1\ns_cbranch_scc0 L_sa_nw")
    wo0_loads(1, range(16))
    A("L_sa_nw:")
A(f"s_and_b32 s{sT0}, s{sLAYER}, 1\ns_lshl_b32 s{sT0}, s{sT0}, 16\ns_lshl_b32 s{sT1}, s{sWAVE}, 14\ns_add_u32 s{sT0}, s{sT0}, s{sT1}")
A(f"v_add_u32 v{cT}, s{sT0}, v{cL16}")
for t in range(16):
    A(f"ds_read_b128 {vr(wo1(t))}, v{cT} offset:{t*1024}")
    if t == 7:
        A("s_waitcnt lgkmcnt(0)")
for i in range(8):
    A(f"s_add_u32 s{sYG+i}, s{sYOFF}, {4096*i}")
A("s_waitcnt lgkmcnt(0)")
A(f"s_cmp_eq_u32 s{sWAVE}, 0\ns_cbranch_scc0 L_sa_nc\ns_cmp_eq_u32 s{sLAYER}, 3\ns_cbranch_scc1 L_sa_nc")
A(f"v_mov_b32 v28, -1\nv_mov_b32 v29, -1\nv_mov_b32 v30, -1\nv_mov_b32 v31, -1\ns_add_u32 s{sT0}, s{sYST}, 32768")
A(f"buffer_store_dwordx4 v[28:31], v{cL16}, {srd(SRD_WS)}, s{sT0} offen sc1")
A("L_sa_nc:")
A(f"s_add_u32 s{sT0}, s{sPOOFF}, 4096")
cML = cG + 28
A("L_sa_poll:")
spin_guard("L_sa_go")
A(f"buffer_load_dwordx2 v[{cML}:{cML+1}], v{cMLg}, {srd(SRD_WS)}, s{sMLOFF} offen sc1")
for u in range(7):
    so = sPOOFF if u < 4 else sT0
    A(f"buffer_load_dwordx4 {vr(cG+4*u)}, v{cPOg}, {srd(SRD_WS)}, s{so} offen offset:{(u%4)*1024} sc1")
A("s_waitcnt vmcnt(0)")
sentinel_check(range(cG, cG + 30), cT, "L_sa_poll")
A("L_sa_go:")
lstamp(3)
mM, mW, mL = cN, cN + 1, cN + 2
A(f"v_max_f32_dpp v{mM}, v{cML}, v{cML} quad_perm:[1,0,3,2] {DPPF}")
for ctl in ("quad_perm:[2,3,0,1]", "row_half_mirror"):
    A(f"s_nop 1\nv_max_f32_dpp v{mM}, v{mM}, v{mM} {ctl} {DPPF}")
xrow_reduce("v_max_f32", mM, cT)
A(f"v_sub_f32 v{mW}, v{cML}, v{mM}\nv_exp_f32 v{mW}, v{mW}\nv_mul_f32 v{mL}, v{cML+1}, v{cVAL}\nv_mul_f32 v{mL}, v{mL}, v{mW}")
oa = cN + 4
red_steps = [f"v_add_f32_dpp v{mL}, v{mL}, v{mL} {c} {DPPF}" for c in
             ("quad_perm:[1,0,3,2]", "quad_perm:[2,3,0,1]", "row_half_mirror", "row_mirror")]
red_steps[3] += f"\nv_mov_b32 v{cT}, v{mL}"
red_steps.append(f"v_permlane32_swap_b32 v{mL}, v{cT}\nv_add_f32 v{mL}, v{mL}, v{cT}\nv_mov_b32 v{cT}, v{mL}")
red_steps.append(f"v_permlane16_swap_b32 v{mL}, v{cT}\nv_add_f32 v{mL}, v{mL}, v{cT}\nv_rcp_f32 v{mL}, v{mL}")
A("s_nop 0")
for u in range(7):
    for r in range(4):
        op = "v_mul_f32_dpp" if u == 0 else "v_fmac_f32_dpp"
        A(f"{op} v{oa+r}, v{mW}, v{cG+4*u+r} row_newbcast:{u} {DPPF}")
    if u < 6:
        A(red_steps[u])
A("s_nop 0")
A(f"v_permlane32_swap_b32 v{oa}, v{oa+2}\nv_permlane32_swap_b32 v{oa+1}, v{oa+3}")
A(f"v_add_f32 v{oa}, v{oa}, v{oa+2}\nv_add_f32 v{oa+1}, v{oa+1}, v{oa+3}\ns_nop 1")
A(f"v_permlane16_swap_b32 v{oa}, v{oa+1}\nv_add_f32 v{oa}, v{oa}, v{oa+1}")
A(f"v_mul_f32 v{oa}, v{oa}, v{mL}\nv_cvt_pk_bf16_f32 v{oa}, v{oa}, v{oa}")
A(f"s_and_b32 s{sT0}, s{sLAYER}, 1\ns_cmp_eq_u32 s{sT0}, 1\ns_cbranch_scc1 L_sa_B")
for which in range(2):
    if which == 1:
        A("L_sa_B:")

    def gmh(t, hf):
        for r in (0, 1) if hf == 0 else (2, 3):
            A(f"v_and_b32_dpp v{cTT[t&1]+r}, v{oa}, v{MASK+r} row_newbcast:{t} {DPPF}")
    gmh(0, 0)
    gmh(0, 1)
    for t in range(16):
        if t + 1 < 16:
            gmh(t + 1, 0)
        else:
            A("s_nop 0")
        A(f"v_mfma_f32_16x16x32_bf16 {vr(cACC)}, {vr(cTT[t&1])}, {vr(radd(WO0[which],4*t))}, {'0' if t == 0 else vr(cACC)}")
        if t + 1 < 16:
            gmh(t + 1, 1)
        A(f"v_mfma_f32_16x16x32_bf16 {vr(cACC+4)}, {vr(cTT[t&1])}, {vr(wo1(t))}, {'0' if t == 0 else vr(cACC+4)}")
    if which == 0:
        A("s_branch L_sa_red")
A("L_sa_red:")
A(f"s_lshl_b32 s{sT0}, s{sWAVE}, 10\nv_add_u32 v{cT}, s{sT0}, v{cSCR}")
A("s_mov_b32 exec_lo, 0\ns_nop 5")
for r in range(4):
    A(f"v_mov_b32 v{cACC+r}, v{cACC+4+r}")
A("s_mov_b32 exec_lo, -1")
A(f"s_cmp_eq_u32 s{sWAVE}, 0\ns_cbranch_scc1 L_sa_w0")
A(f"ds_write_b128 v{cT}, {vr(cACC)}\ns_waitcnt lgkmcnt(0)\ns_barrier")
H2S = int(os.environ.get("H2S", "8"))
A(f"s_sleep {H2S+2}\ns_branch L_sb")
A("L_sa_w0:\ns_barrier")
for s_ in range(1, 4):
    A(f"ds_read_b128 {vr(cG+4*s_)}, v{cSCR} offset:{1024*s_}")
for s_ in range(1, 4):
    A(f"s_waitcnt lgkmcnt({3-s_})")
    for r in range(0, 4, 2):
        A(f"v_pk_add_f32 v[{cACC+r}:{cACC+r+1}], v[{cACC+r}:{cACC+r+1}], v[{cG+4*s_+r}:{cG+4*s_+r+1}]")
for r in range(4):
    A(f"v_min_u32 v{cACC+r}, -2, v{cACC+r}")
A(f"buffer_store_dwordx4 {vr(cACC)}, v{cYst}, {srd(SRD_WS)}, s{sYST} offen sc1")
lstamp(4)
if H2S:
    A(f"s_sleep {H2S}")
A("L_sb:")
A(f"s_cmp_eq_u32 s{sLAYER}, 3\ns_cbranch_scc0 L_sb_go0\ns_cmp_eq_u32 s{sCH}, 0\ns_cbranch_scc0 L_fin\nL_sb_go0:")


def yload(i):
    return f"buffer_load_dwordx4 {vr(cG+4*i)}, v{cYg}, {srd(SRD_WS)}, s{sYG+i} offen sc1"


for i in range(8):
    A(yload(i))
A("L_sb_poll:")
for i in range(4):
    A(f"s_waitcnt vmcnt({6-2*i})")
    for r in range(0, 4, 2):
        A(f"v_pk_add_f32 v[{cN+4*i+r}:{cN+4*i+r+1}], v[{cG+8*i+r}:{cG+8*i+r+1}], v[{cG+8*i+4+r}:{cG+8*i+4+r+1}]")
    if i & 1:
        for r in range(0, 4, 2):
            A(f"v_pk_add_f32 v[{cN+4*(i-1)+r}:{cN+4*(i-1)+r+1}], v[{cN+4*(i-1)+r}:{cN+4*(i-1)+r+1}], v[{cN+4*i+r}:{cN+4*i+r+1}]")
for r in range(0, 4, 2):
    A(f"v_pk_add_f32 v[{cN+r}:{cN+r+1}], v[{cN+r}:{cN+r+1}], v[{cN+8+r}:{cN+8+r+1}]")
A("s_nop 1")
A(f"v_permlane32_swap_b32 v{cN}, v{cN+2}\nv_permlane32_swap_b32 v{cN+1}, v{cN+3}")
A(f"v_pk_add_f32 v[{cN}:{cN+1}], v[{cN}:{cN+1}], v[{cN+2}:{cN+3}]")
A(f"v_cmp_u_f32 vcc, v{cN}, v{cN+1}")
bf16r(cN, cN)
bf16r(cN + 1, cN + 1)
A("s_cmp_lg_u64 vcc, 0\ns_cbranch_scc0 L_sb_go")
spin_guard("L_sb_go")
A(f"s_mov_b32 s{sT0}, 0")
for i in range(8):
    sk = A.label("ysk")
    g_ = cG + 4 * i
    A(f"v_max3_u32 v{cT}, v{g_}, v{g_+1}, v{g_+2}\nv_max_u32 v{cT}, v{cT}, v{g_+3}\nv_cmp_eq_u32 vcc, -1, v{cT}\ns_nop 0\ns_cmp_lg_u64 vcc, 0\ns_cbranch_scc0 {sk}")
    A(yload(i))
    A(f"s_mov_b32 s{sT0}, 1\n{sk}:")
A(f"s_waitcnt vmcnt(0)\ns_cmp_eq_u32 s{sT0}, 1\ns_cbranch_scc1 L_sb_poll")
A("L_sb_go:")
lstamp(5)
A(f"v_pk_add_f32 v[{cX}:{cX+1}], v[{cX}:{cX+1}], v[{cN}:{cN+1}]")
A(f"v_cvt_pk_bf16_f32 v{cN}, v{cX}, v{cX+1}")
A(f"s_cmp_eq_u32 s{sLAYER}, 3\ns_cbranch_scc1 L_ch_out")
A(f"ds_write_b32 v{cXw}, v{cN}")
A(f"v_and_b32 v{cX+1}, 0xffff0000, v{cN}\nv_lshlrev_b32 v{cX}, 16, v{cN}")
A(f"s_add_u32 s{sLAYER}, s{sLAYER}, 1")
A(f"s_add_u32 s{sPOOFF}, s{sPOOFF}, {PO_L}\ns_add_u32 s{sMLOFF}, s{sMLOFF}, {ML_L}\ns_add_u32 s{sYOFF}, s{sYOFF}, 32768\ns_add_u32 s{sYST}, s{sYST}, 32768\ns_add_u32 s{sQST}, s{sQST}, 8192")
A("s_waitcnt lgkmcnt(0)\ns_barrier")
A("L_ch_qp:")
SV = 20
s1, s2, t0, t1 = 24, 25, 26, 27
A(f"ds_read_b128 {vr(cXA)}, v{cXa}\nds_read_b128 {vr(SV)}, v{cXs}")
for kb in range(1, 14):
    A(f"ds_read_b128 {vr(cXA+4*kb)}, v{cXa} offset:{64*kb}")
st = []
st += [f"v_readfirstlane_b32 s{sT0}, v{cXA}", f"s_lshl_b32 s{sT0}, s{sT0}, 16"]
for r in range(4):
    st += [f"v_lshlrev_b32 v{t0}, 16, v{SV+r}", f"v_and_b32 v{t1}, 0xffff0000, v{SV+r}",
           f"v_subrev_f32 v{t0}, s{sT0}, v{t0}", f"v_subrev_f32 v{t1}, s{sT0}, v{t1}"]
    if r == 0:
        st += [f"v_add_f32 v{s1}, v{t0}, v{t1}", f"v_mul_f32 v{s2}, v{t0}, v{t0}", f"v_fmac_f32 v{s2}, v{t1}, v{t1}"]
    else:
        st += [f"v_add_f32 v{s1}, v{s1}, v{t0}", f"v_fmac_f32 v{s2}, v{t0}, v{t0}", f"v_add_f32 v{s1}, v{s1}, v{t1}", f"v_fmac_f32 v{s2}, v{t1}, v{t1}"]
st += [f"v_mul_f32 v{s1}, v{s1}, v{cV56}", f"v_mul_f32 v{s2}, v{s2}, v{cV56}"]
for ctl in ("quad_perm:[1,0,3,2]", "quad_perm:[2,3,0,1]", "row_half_mirror", "row_mirror"):
    st += ["s_nop 0", f"v_add_f32_dpp v{s1}, v{s1}, v{s1} {ctl} {DPPF}", f"v_add_f32_dpp v{s2}, v{s2}, v{s2} {ctl} {DPPF}"]
for sw in ("v_permlane32_swap_b32", "v_permlane16_swap_b32"):
    st += [f"v_mov_b32 v{t0}, v{s1}", f"v_mov_b32 v{t1}, v{s2}", "s_nop 1", f"{sw} v{s1}, v{t0}", f"{sw} v{s2}, v{t1}",
           f"v_add_f32 v{s1}, v{s1}, v{t0}", f"v_add_f32 v{s2}, v{s2}, v{t1}"]
st += [f"v_mul_f32 v{s1}, {f2u(1.0/448.0)}, v{s1}", f"v_mul_f32 v{s2}, {f2u(1.0/448.0)}, v{s2}",
       f"v_fma_f32 v{s2}, -v{s1}, v{s1}, v{s2}", f"v_max_f32 v{s2}, 0, v{s2}", f"v_add_f32 v{s1}, s{sT0}, v{s1}",
       f"v_cvt_pk_bf16_f32 v{s2}, 0, v{s2}", f"v_cvt_pk_bf16_f32 v{s1}, 0, v{s1}",
       f"v_add_f32 v{s2}, {f2u(1e-5)}, v{s2}", f"v_cvt_pk_bf16_f32 v{s2}, 0, v{s2}", f"v_sqrt_f32 v{s2}, v{s2}", "s_nop 0",
       f"v_cvt_pk_bf16_f32 v{s2}, 0, v{s2}", f"v_rcp_f32 v{s2}, v{s2}"]
A(f"s_and_b32 s{sT1}, s{sLAYER}, 1\ns_cmp_eq_u32 s{sT1}, 1\ns_cbranch_scc1 L_qp_B")
for which in range(2):
    if which == 1:
        A("L_qp_B:")
    sp_ = 0
    nm = 0
    for kb in range(14):
        A(f"s_waitcnt lgkmcnt({13 if kb == 0 else 13-kb})")
        for cb in range(2):
            acc = cACC + 4 * cb
            A(f"v_mfma_f32_16x16x32_bf16 {vr(acc)}, {vr(cXA+4*kb)}, {vr(radd(WQ[which], (kb*2+cb)*4))}, {'0' if kb == 0 else vr(acc)}")
            nm += 1
            upto = min(len(st), (nm * len(st) + 26) // 27)
            while sp_ < upto:
                A(st[sp_])
                sp_ += 1
    A(f"v_mul_f32 v{s1}, v{s1}, v{cCS[which]}")
    if which == 0:
        A("s_branch L_qp_red")
A("L_qp_red:")
A("s_nop 5")
sel_cb(t0)
A(f"v_sub_f32 v{t0}, v{t0}, v{s1}\nv_mul_f32 v{t0}, v{t0}, v{s2}\ns_nop 1")
A(f"v_mov_b32_dpp v{t1}, v{t0} quad_perm:[1,1,3,3] {DPPF}")
A(f"v_cvt_pk_bf16_f32 v{t0}, v{t0}, v{t1}\nv_min_u32 v{t0}, -2, v{t0}")
A("s_mov_b32 exec_lo, 0x55555555\ns_mov_b32 exec_hi, 0")
A(f"s_cmp_eq_u32 s{sMODE}, 1\ns_cbranch_scc0 L_qp_far")
A(f"buffer_store_dword v{t0}, v{cQst}, {srd(SRD_WS)}, s{sQST} offen\ns_branch L_qp_st")
A("L_qp_far:")
A(f"buffer_store_dword v{t0}, v{cQst}, {srd(SRD_WS)}, s{sQST} offen sc1")
A("L_qp_st:")
A("s_mov_b64 exec, -1")
lstamp(2)
A(f"s_cmp_eq_u32 s{sLAYER}, 0\ns_cbranch_scc0 L_ch_stageA")
A("s_barrier")
wq_dma(1)
wo1_regs(range(16))
A("s_waitcnt vmcnt(16)\ns_barrier")
wq_tr(1)
A("s_barrier")
DEFW = int(os.environ.get("DEFW", "0"))
if not DEFW:
    wo0_loads(1, range(16))
wo1_dma(1)
colsum(1)
A(f"s_waitcnt vmcnt({16 if DEFW else 32})\ns_lshl_b32 s{sT1}, s{sWAVE}, 14\nv_add_u32 v{cT}, s{sT1}, v{cL16}")
for t in range(16):
    A(f"ds_write_b128 v{cT}, {vr(wo1(t))} offset:{t*1024}")
A("s_waitcnt lgkmcnt(0)")
if os.environ.get("EXP", ""):
    A("s_waitcnt vmcnt(0)")
    stamp(3)
    A("s_branch L_fin")
A("L_ch_cnt:")
spin_guard("L_ch_cnt_ok")
A(f"v_lshlrev_b32 v{cT}, 2, v0")
A(f"buffer_load_dword v{cG}, v{cT}, {srd(SRD_DBG)}, 0 offen sc1\ns_waitcnt vmcnt(0)")
A(f"v_add_u32 v{cG+1}, 0x7f7f7f7f, v{cG}\nv_and_b32 v{cG+1}, 0x80808080, v{cG+1}\nv_cmp_ne_u32 vcc, 0x80808080, v{cG+1}\ns_nop 0")
A("s_cmp_lg_u64 vcc, 0\ns_cbranch_scc1 L_ch_cnt")
A("L_ch_cnt_ok:")
stamp(18)
CPB = int(os.environ.get("CPB", "0"))
CPN = int(os.environ.get("CPN", "16"))
if int(os.environ.get("CPC", "1")):
    BACKWARD.add("L_ch_stageA")
if CPB:
    mk_srd(SRD_WQA, 0, KVBYTES)
    A(f"s_lshl_b32 s{sT2}, s{sG}, 23\ns_and_b32 s{sT3}, s{sCH}, 3\ns_lshl_b32 s{sT3}, s{sT3}, 2\ns_add_u32 s{sT3}, s{sT3}, s{sWAVE}\ns_lshl_b32 s{sT3}, s{sT3}, 13")
    A(f"s_add_u32 s{sT2}, s{sT2}, s{sT3}\ns_add_u32 s{sT2}, s{sT2}, {12288*512}\ns_mov_b32 s{sT3}, {CPN // CPB}\nv_lshlrev_b32 v{cG+2}, 7, v0")
A("L_ch_pre:")
spin_guard("L_ch_stageA")
if CPB:
    A(f"s_cmp_eq_u32 s{sT3}, 0\ns_cbranch_scc1 L_ch_pre_s\ns_sub_u32 s{sT3}, s{sT3}, 1")
    for i in range(CPB):
        A(f"buffer_load_dword v{cG+3}, v{cG+2}, {srd(SRD_WQA)}, s{sT2} offen\ns_add_u32 s{sT2}, s{sT2}, 131072")
    A("s_branch L_ch_pre_p")
A("L_ch_pre_s:")
if int(os.environ.get("CPC", "1")):
    code_prefetch("L_ch_stageA", 5376, cT, cG, sT0)
A("s_sleep 16     ; slow polling while the attention CUs stream")
A("L_ch_pre_p:\ns_mov_b64 exec, 1")
A(f"buffer_load_dword v{cML}, v{cMLg}, {srd(SRD_WS)}, s{sMLOFF} offen sc1\ns_waitcnt vmcnt(0)")
A(f"v_readfirstlane_b32 s{sT0}, v{cML}\ns_mov_b64 exec, -1\ns_cmp_eq_u32 s{sT0}, -1\ns_cbranch_scc1 L_ch_pre")
A("s_branch L_ch_stageA")
A("L_ch_out:")
A(f"v_subrev_u32 v{cT}, {XB}, v{cXw}")
A(f"buffer_store_dword v{cN}, v{cT}, {srd(SRD_OUT)}, 0 offen")
stamp(19)
if os.environ.get("DIAG"):
    da, db = [int(x) for x in os.environ["DIAG"].split(",")]
    ra = 100 if da == 99 else sSTAMP + 2 * da
    A(f"s_sub_u32 s{sT0}, s{sSTAMP+2*db}, s{ra}\ns_lshl_b32 s{sT0}, s{sT0}, 4\ns_min_u32 s{sT0}, s{sT0}, 200000\ns_add_u32 s{sT0}, s{sT0}, s{sSTAMP+38}")
    A(f"L_diag:\ns_memrealtime s[{sT2}:{sT3}]\ns_waitcnt lgkmcnt(0)\ns_sub_u32 s{sT1}, s{sT2}, s{sT0}\ns_cmp_lt_i32 s{sT1}, 0\ns_cbranch_scc1 L_diag")

A("L_fin:")
if PROFILE:
    A(f"s_mul_i32 s{sT0}, s2, 640\ns_mul_i32 s{sT1}, s{sWAVE}, 160\ns_add_u32 s{sT0}, s{sT0}, s{sT1}\ns_add_u32 s{sT0}, s{sT0}, {WS_STAMP}")
    A("s_mov_b64 exec, 1\nv_mov_b32 v1, 0")
    for i in range(10):
        for r in range(4):
            A(f"v_mov_b32 v{4+r}, s{sSTAMP+4*i+r}")
        A(f"buffer_store_dwordx4 v[4:7], v1, {srd(SRD_WS)}, s{sT0} offen offset:{16*i}\ns_nop 1")
if PROFILE:
    pass
A("L_end:")
A("s_endpgm")

for l in A.L:
    OUT.append(l if l.endswith(":") else "    " + l)
OUT.append('.section .rodata,"a"')
OUT.append(".p2align 6")
OUT.append(f".amdhsa_kernel {NAME}_kernel")
OUT.append("""  .amdhsa_next_free_vgpr 512
  .amdhsa_next_free_sgpr 102
  .amdhsa_accum_offset 256
  .amdhsa_group_segment_fixed_size 0
  .amdhsa_kernarg_size 104
  .amdhsa_user_sgpr_count 2
  .amdhsa_user_sgpr_kernarg_segment_ptr 1
  .amdhsa_system_sgpr_workgroup_id_x 1
  .amdhsa_float_denorm_mode_32 3
.end_amdhsa_kernel""")
out = sys.argv[1] if len(sys.argv) > 1 else f"cdna_kernels/{NAME}.s"
open(out, "w").write("\n".join(OUT) + "\n")
print("wrote", out, len(A.L), "lines")
```

```python
import sys, os, struct

PROFILE = int(os.environ.get("PROFILE", "0"))
NAME = "interleave_layers__gqa_block_cached__sliding_block_cached__decode"

WS_Q = 0
WS_Y = 49152
WS_PO = 196608
WS_ML = 196608 + 4 * 458752
ML_L = 65536
PO_L = 16 * 28 * 1024
WS_STAMP = 4 << 20
WS_SIZE = 283117312
SPIN_MAX = 1 << 18

CSCALE = struct.unpack("<I", struct.pack("<f", 1.4426950408889634 / 16.0))[0]
NEG_INF = 0xFF800000


def f2u(x):
    return struct.unpack("<I", struct.pack("<f", x))[0]


class Asm:
    def __init__(self):
        self.L = []
        self.nlabel = 0

    def __call__(self, s):
        for line in s.split("\n"):
            line = line.strip()
            if line:
                self.L.append(line)

    def label(self, base):
        self.nlabel += 1
        return f"L_{base}_{self.nlabel}"


A = Asm()


def vr(r, n=4):
    if isinstance(r, int):
        r = ("v", r)
    k, i = r
    return f"{k}[{i}:{i+n-1}]" if n > 1 else f"{k}{i}"


def radd(r, d):
    if isinstance(r, int):
        return r + d
    return (r[0], r[1] + d)


DPPF = "row_mask:0xf bank_mask:0xf"

sWAVE = 3
SRD_KA, SRD_VA, SRD_KB, SRD_VB, SRD_WS, SRD_DBG = 4, 8, 12, 16, 20, 24
SRD_WQA, SRD_WOA, SRD_WQB, SRD_WOB = 4, 8, 12, 16
SRD_X, SRD_OUT = 28, 80
sOFFA, sOFFA36, sOFFB, sOFFB9 = 28, 29, 30, 31
sBIASA, sBIASB = 32, 33
sC = 36
sLDSW = 37
sT0, sT1, sT2, sT3 = 38, 39, 40, 41
sLAYER = 42
sSPIN = 43
sQOFF, sPOOFF, sMLOFF, sYOFF = 44, 45, 46, 47
sG, sSP = 48, 49
sYST, sQST = 50, 51
sOFFB8 = 50
sCL = 47
sW4 = 58
sID, sMODE = 34, 35
KARG = 52
sSTAMP = 60
SRD_OUT = 28
sOUTP = 32

nstamp = [0]


def srd(r):
    return f"s[{r}:{r+3}]"


def stamp(idx):
    if PROFILE == 2 and idx not in (0, 5, 19):
        return
    if PROFILE:
        assert idx < 20
        if idx == 0:
            for i in range(1, 20):
                A(f"s_mov_b64 s[{sSTAMP+2*i}:{sSTAMP+2*i+1}], 0")
            A(f"s_mov_b64 s[{sSTAMP}:{sSTAMP+1}], s[100:101]")
            return
        A(f"s_memrealtime s[{sSTAMP+2*idx}:{sSTAMP+2*idx+1}]\ns_waitcnt lgkmcnt(0)")


def mk_srd(dst, ptr, size):
    A(f"s_mov_b32 s{dst}, s{ptr}\ns_and_b32 s{dst+1}, s{ptr+1}, 0xffff\ns_mov_b32 s{dst+2}, {size}\ns_mov_b32 s{dst+3}, 0x20000")


def emit_masks(vlane, m0, t0, t1):
    A(f"v_and_b32 v{t0}, 1, v{vlane}")
    A(f"v_lshlrev_b32 v{t0}, 4, v{t0}")
    A(f"v_mov_b32 v{t1}, 0xffff")
    A(f"v_lshlrev_b32 v{t0}, v{t0}, v{t1}")
    A(f"v_bfe_u32 v{t1}, v{vlane}, 1, 2")
    for r in range(4):
        A(f"v_cmp_eq_u32 vcc, {r}, v{t1}")
        A("s_nop 1")
        A(f"v_cndmask_b32 v{m0+r}, 0, v{t0}, vcc")


def xrow_reduce(op, v, t):
    A(f"v_mov_b32 v{t}, v{v}\ns_nop 1\nv_permlane32_swap_b32 v{v}, v{t}\n{op} v{v}, v{v}, v{t}")
    A(f"v_mov_b32 v{t}, v{v}\ns_nop 1\nv_permlane16_swap_b32 v{v}, v{t}\n{op} v{v}, v{v}, v{t}")


def sentinel_check(regs, t, retry_label):
    regs = list(regs)
    A(f"v_max3_u32 v{t}, v{regs[0]}, v{regs[1]}, v{regs[2]}")
    i = 3
    while i + 1 < len(regs):
        A(f"v_max3_u32 v{t}, v{t}, v{regs[i]}, v{regs[i+1]}")
        i += 2
    if i < len(regs):
        A(f"v_max_u32 v{t}, v{t}, v{regs[i]}")
    A(f"v_cmp_eq_u32 vcc, -1, v{t}")
    A("s_nop 0")
    A(f"s_cmp_lg_u64 vcc, 0\ns_cbranch_scc1 {retry_label}")


def spin_guard(giveup_label):
    A(f"s_cmp_eq_u32 s{sSPIN}, 0\ns_cbranch_scc1 {giveup_label}\ns_sub_u32 s{sSPIN}, s{sSPIN}, 1")
    if os.environ.get("PSLEEP"):
        A(f"s_sleep {os.environ['PSLEEP']}")


hdr = open(f"cdna_kernels/{NAME}.s.ref").read().split("\n")
head = [l for l in hdr if l.startswith(";") and "@launch" not in l]
OUT = list(head)
OUT += """;
; One persistent launch, 256 workgroups (one per CU), 4 waves x 512 registers, generated by a script.
;   wg>>3 <  4 : "chain" CU   - weights stay on chip; softmax combine + out-proj + residual + layernorm + q-proj
;   wg>>3 >= 4 : attention CU - its share of cache A is streamed once and stays in registers/LDS for layers 1 and 3;
;                the sliding window of cache B is parked in L2 for layers 2 and 4
; Hand-offs go through d_ws: every slot is reset to 0xffffffff by this launch before anyone polls it, data words are
; never 0xffffffff.  d_debug holds one byte per workgroup (its XCD id); producers whose consumers all share their L2
; use plain stores, otherwise write-through (sc1) stores, so any placement is correct.
;""".split("\n")
OUT.append("; @launch grid=(256,1,1) block=(256,1,1) lds=163840")
OUT.append('.amdgcn_target "amdgcn-amd-amdhsa--gfx950"')
OUT.append(".text")
OUT.append(f".globl {NAME}_kernel")
OUT.append(".p2align 8")
OUT.append(f".type {NAME}_kernel,@function")
OUT.append(f"{NAME}_kernel:")

if PROFILE:
    A("s_memrealtime s[100:101]")
A("s_cmp_ge_u32 s2, 256\ns_cbranch_scc1 L_end")
A(f"s_load_dwordx16 s[{KARG}:{KARG+15}], s[0:1], 0")
A(f"s_load_dwordx8 s[{KARG+16}:{KARG+23}], s[0:1], 64")
A(f"s_load_dwordx2 s[{KARG+24}:{KARG+25}], s[0:1], 96")
pAX, pAK, pAV, pAWQ, pAWO, pBX, pBK, pBV, pBWQ, pBWO, pOUT, pDBG, pWS = [KARG + 2 * i for i in range(13)]
A("v_lshrrev_b32 v1, 6, v0\nv_and_b32 v0, 63, v0")
if os.environ.get("PERM"):
    A(f"s_mul_i32 s2, s2, {os.environ['PERM']}\ns_lshr_b32 s4, s2, 3\ns_and_b32 s4, s4, {os.environ.get('PERMX', '1')}\ns_xor_b32 s2, s2, s4\ns_and_b32 s2, s2, 255")
A(f"s_and_b32 s{sG}, s2, 7\ns_lshr_b32 s{sSP}, s2, 3")
A(f"v_readfirstlane_b32 s{sWAVE}, v1")
A(f"s_cmp_lt_u32 s{sSP}, 4\ns_cbranch_scc1 L_chain")


def common_setup():
    A(f"s_mov_b32 s{sC}, {CSCALE}\ns_mov_b32 s{sSPIN}, {SPIN_MAX}\ns_mov_b32 s{sLAYER}, 0")
    A(f"s_getreg_b32 s{sID}, hwreg(HW_REG_XCC_ID, 0, 4)\ns_min_u32 s{sID}, s{sID}, 14\ns_add_u32 s{sID}, s{sID}, 1\ns_mul_i32 s{sID}, s{sID}, 0x01010101\ns_mov_b32 s{sMODE}, 0")
    mk_srd(SRD_WS, pWS, WS_SIZE)
    mk_srd(SRD_DBG, pDBG, 256)


vK, vV, vKd, vVd, vL, vQ, vT = 1, 2, 3, 4, 5, 6, 7
MASK = 8
QA = 12
DT = 20
vCM, vLS, vMX, vPO, vX = 32, 33, 34, 35, 36
vCMr, vCMw, vF = 3, 4, 30
vFA, vFD = 36, 3
SC = 37
STG_A = [56, 60, 64, 68]
NSLOT = 19
XBASE = 4 * NSLOT * 2048
MLBASE = XBASE + 6144


def half(h):
    return ("v", 72 + 8 * h) if h < 23 else ("a", 8 * (h - 23))


NKA = 37
NVREG = 18
KVBYTES = 67108864

PSTRIDE = 16384
sHB = 59
A(f"s_sub_u32 s{sSP}, s{sSP}, 4")
A(f"s_mul_i32 s{sT1}, s{sSP}, 36\ns_min_u32 s{sT2}, s{sSP}, 16\ns_add_u32 s{sT1}, s{sT1}, s{sT2}\ns_lshl_b32 s{sT1}, s{sT1}, 13")
A(f"s_lshl_b32 s{sT3}, s{sG}, 23\ns_add_u32 s{sOFFA36}, s{sT1}, s{sT3}")
A(f"s_lshl_b32 s{sT0}, s{sWAVE}, 12\ns_add_u32 s{sOFFA}, s{sOFFA36}, s{sT0}")
A(f"s_mul_i32 s{sLDSW}, s{sWAVE}, {NSLOT*2048}")
A(f"v_lshrrev_b32 v20, 4, v0       ; s / row")
A(f"v_and_b32 v21, 15, v0          ; j")
A(f"v_lshlrev_b32 v25, 4, v21")
A(f"v_lshl_add_u32 v{vV}, v20, 9, v25")
A(f"v_add_u32 v{vVd}, 768, v{vV}")
A("s_waitcnt lgkmcnt(0)")
mk_srd(SRD_VA, pAV, KVBYTES)


def late_setup():
    common_setup()
    mk_srd(SRD_KA, pAK, KVBYTES)
    mk_srd(SRD_KB, pBK, KVBYTES)
    mk_srd(SRD_VB, pBV, KVBYTES)
    stamp(0)
    A(f"v_and_b32 v{vFA}, 7, v0\nv_lshlrev_b32 v{vFA}, 5, v{vFA}")
    A(f"s_cmp_eq_u32 s{sWAVE}, 0\ns_cbranch_scc0 L_nc")
    A(f"v_mov_b32 v{vT}, s{sID}\ns_lshl_b64 exec, 1, s{sG}")
    A(f"buffer_store_byte v{vT}, v{vFA}, {srd(SRD_DBG)}, s{sSP} offen offset:4 sc1\ns_mov_b64 exec, -1")
    A("L_nc:")
    A(f"s_cmp_lt_u32 s{sSP}, 16")
    A(f"s_cselect_b32 s{sT2}, 36, 35")
    A(f"s_cselect_b32 s{sBIASA}, 0, {NEG_INF}")
    A(f"s_lshl_b32 s{sT2}, s{sT2}, 13\ns_lshl_b32 s{sT0}, s{sWAVE}, 11\ns_add_u32 s{sT2}, s{sT2}, s{sT0}")
    A(f"s_add_u32 s{sOFFA36}, s{sOFFA36}, s{sT2}")
    A(f"s_mul_i32 s{sT1}, s{sSP}, 9\ns_max_u32 s{sT2}, s{sSP}, 24\ns_sub_u32 s{sT2}, s{sT2}, 24\ns_add_u32 s{sT1}, s{sT1}, s{sT2}")
    A(f"s_lshl_b32 s{sT1}, s{sT1}, 13\ns_add_u32 s{sT1}, s{sT1}, s{sT3}\ns_add_u32 s{sT1}, s{sT1}, {12288*512}")
    A(f"s_lshl_b32 s{sT2}, s{sWAVE}, 12\ns_add_u32 s{sOFFB}, s{sT1}, s{sT2}")
    A(f"s_add_u32 s{sOFFB8}, s{sT1}, s{sT0}\ns_add_u32 s{sOFFB8}, s{sOFFB8}, {32*2048}")
    A(f"s_cmp_ge_u32 s{sSP}, 24")
    A(f"s_cselect_b32 s{sT1}, 1, 0")
    A(f"s_cselect_b32 s{sBIASB}, 0, {NEG_INF}")
    A(f"s_lshl_b32 s{sT1}, s{sT1}, 13")
    A(f"s_add_u32 s{sOFFB9}, s{sOFFB8}, s{sT1}")
    for p in range(4):
        A(f"s_add_u32 s{sBO+p}, s{sOFFB}, {p*PSTRIDE}")
    A(f"s_mov_b32 s{sBO+4}, s{sOFFB8}\ns_mov_b32 s{sBO+5}, s{sOFFB9}")
    A(f"v_and_b32 v22, 3, v0           ; c")
    A(f"v_bfe_u32 v23, v0, 2, 2        ; a")
    A(f"v_lshl_add_u32 v24, v20, 2, v22   ; 4s+c")
    A(f"v_lshlrev_b32 v24, 4, v24")
    A(f"v_lshl_add_u32 v{vK}, v23, 9, v24")
    A(f"v_lshl_add_u32 v{vL}, v0, 4, s{sLDSW}")
    A(f"v_lshrrev_b32 v27, 3, v21      ; head(j)")
    A(f"v_lshl_add_u32 v{vQ}, v27, 9, v24")
    A(f"v_lshrrev_b32 v27, 5, v0\nv_mul_u32_u24 v27, 28672, v27\nv_lshl_add_u32 v27, v21, 5, v27")
    A(f"v_and_b32 v28, 1, v20\nv_lshl_add_u32 v{vPO}, v28, 4, v27")
    A(f"s_lshl_b32 s{sQOFF}, s{sG}, 10")
    A(f"s_mul_i32 s{sPOOFF}, s{sG}, 56\ns_add_u32 s{sPOOFF}, s{sPOOFF}, s{sSP}\ns_lshl_b32 s{sPOOFF}, s{sPOOFF}, 10\ns_add_u32 s{sPOOFF}, s{sPOOFF}, {WS_PO}")
    A(f"s_lshl_b32 s{sMLOFF}, s{sG}, 13\ns_lshl_b32 s{sT0}, s{sSP}, 7\ns_add_u32 s{sMLOFF}, s{sMLOFF}, s{sT0}\ns_add_u32 s{sMLOFF}, s{sMLOFF}, {WS_ML}")
    emit_masks(0, MASK, 20, 21)


def ld_items_reg(srdr, voff, soff_base, ulist, regs_of):
    items = []
    i = 0
    while i < len(ulist):
        u = ulist[i]
        pair = ulist[i:i + 2]
        assert u % 2 == 0
        pre = f"s_add_u32 s{sT0}, s{soff_base}, {(u//2)*PSTRIDE}"
        first = True
        for k, uu in enumerate(pair):
            for m in range(2):
                txt = f"buffer_load_dwordx4 {vr(radd(regs_of(uu), 4*m))}, v{voff}, {srd(srdr)}, s{sT0} offen offset:{k*2048+m*256} nt"
                if first:
                    txt = pre + "\n" + txt
                    first = False
                items.append((txt, uu))
        i += 2
    return items


def ld_items_lds(srdr, voff, voffd, soff_base, ulist, slot_of):
    items = []
    i = 0
    while i < len(ulist):
        u = ulist[i]
        pair = ulist[i:i + 2]
        assert u % 2 == 0
        d = (u // 2) * PSTRIDE - 768
        pre = (f"s_add_u32 s{sT1}, s{soff_base}, {d}" if d >= 0 else f"s_sub_u32 s{sT1}, s{soff_base}, {-d}")
        pre += f"\ns_add_u32 s{sT2}, s{sLDSW}, {slot_of(u)*2048}\ns_mov_b32 m0, s{sT2}\ns_nop 0"
        first = True
        for k, uu in enumerate(pair):
            assert slot_of(uu) == slot_of(u) + k
            for m in range(2):
                v = voffd if m == 0 else voff
                txt = f"buffer_load_dwordx4 v{v}, {srd(srdr)}, s{sT1} offen offset:{k*2048+m*1024} nt lds"
                if first:
                    txt = pre + "\n" + txt
                    first = False
                items.append((txt, uu))
        i += 2
    return items


class GRing:
    def __init__(self, keys, text_of, quads):
        self.keys, self.text_of, self.quads = keys, text_of, quads
        self.pos = {k: i for i, k in enumerate(keys)}
        self.issued = 0
        self.landed = 0

    def issue(self, upto):
        out = []
        while self.issued < min(upto, len(self.keys)):
            out.append(self.text_of(self.keys[self.issued], self.quads[self.issued % len(self.quads)]))
            self.issued += 1
        return "\n".join(out)

    def consume(self, key):
        i = self.pos[key]
        w = "" if i < self.landed else f"s_waitcnt vmcnt({self.issued - i - 1})\n"
        return w, self.quads[i % len(self.quads)], i + 1 + len(self.quads)


def qk_groups(n, ksrc, bias_sgpr, stg, hook=None):
    G = []
    nC = (n + 1) // 2
    G.append((f"v_mov_b32 v{vMX}, {NEG_INF}" + (f"\nv_mov_b32 v{SC+nC-1}, {NEG_INF}" if n & 1 else ""), None))
    reads = [(u, m) for u in range(n) if ksrc(u)[0] == "lds" for m in range(2)]
    rpos = {rm: i for i, rm in enumerate(reads)}
    issued = [0]

    def issue_reads(upto, out):
        while issued[0] < min(upto, len(reads)):
            u, m = reads[issued[0]]
            q = stg[issued[0] % len(stg)]
            out.append((f"ds_read_b128 {vr(q)}, v{vL} offset:{ksrc(u)[1]*2048+m*1024}", ksrc(u)[2]))
            issued[0] += 1

    pre = []
    issue_reads(len(stg), pre)

    def bops(u):
        d = DT + 4 * (u % 3)
        c = SC + u // 2
        bm = 0x5 if (u & 1) == 0 else 0xA
        t = f"v_mov_b32_dpp v{d}, v{d} quad_perm:[0,0,0,0] {DPPF}\n"
        t += f"v_add_f32_dpp v{d}, v{d+1}, v{d} quad_perm:[1,1,1,1] {DPPF}\n"
        t += f"v_add_f32_dpp v{d}, v{d+2}, v{d} quad_perm:[2,2,2,2] {DPPF}\n"
        if u == n - 1:
            t += f"v_add_f32 v{d}, s{bias_sgpr}, v{d}\n"
        t += f"v_add_f32_dpp v{c}, v{d+3}, v{d} quad_perm:[3,3,3,3] row_mask:0xf bank_mask:{bm:#x}\n"
        if (u & 1) or u == n - 1:
            t += f"v_max_f32 v{vMX}, v{vMX}, v{c}\n"
        return t

    body = []
    for u in range(n):
        d = DT + 4 * (u % 3)
        src = ksrc(u)
        b = bops(u - 2).strip().split("\n") if u >= 2 else []
        if u == 2:
            b = ["s_nop 4"] + b
        parts = [b[:len(b) // 2], b[len(b) // 2:]]
        for m in range(2):
            cin = "0" if m == 0 else vr(d)
            if src[0] == "reg":
                t = f"v_mfma_f32_16x16x32_bf16 {vr(d)}, {vr(radd(src[1],4*m))}, {vr(QA+4*m)}, {cin}"
                if hook and hook(u, m):
                    t += "\n" + hook(u, m)
                body.append((t, src[2]))
            elif src[0] == "gl":
                w, q, upto = src[1].consume(("K", u, m))
                body.append((w + f"v_mfma_f32_16x16x32_bf16 {vr(d)}, {vr(q)}, {vr(QA+4*m)}, {cin}", None))
                if parts[m]:
                    body.append(("\n".join(parts[m]), None))
                    parts[m] = []
                body.append((src[1].issue(upto), None))
            else:
                i = rpos[(u, m)]
                q = stg[i % len(stg)]
                t = f"s_waitcnt lgkmcnt({issued[0]-i-1})\n"
                t += f"v_mfma_f32_16x16x32_bf16 {vr(d)}, {vr(q)}, {vr(QA+4*m)}, {cin}"
                body.append((t, None))
                issue_reads(i + 1 + len(stg), body)
            if parts[m]:
                body.append(("\n".join(parts[m]), None))
    body.append((bops(n - 2), None))
    body.append(("s_nop 1\n" + bops(n - 1), None))
    return G, pre, body


def max_group():
    t = "s_nop 1\n"
    t += f"v_max_f32_dpp v{vMX}, v{vMX}, v{vMX} row_half_mirror {DPPF}\n"
    t += f"v_mov_b32 v{vT}, v{vMX}\ns_nop 1\nv_permlane32_swap_b32 v{vMX}, v{vT}\nv_max_f32 v{vMX}, v{vMX}, v{vT}\n"
    t += f"v_mov_b32 v{vT}, v{vMX}\ns_nop 1\nv_permlane16_swap_b32 v{vMX}, v{vT}\nv_max_f32 v{vMX}, v{vMX}, v{vT}\n"
    t += f"v_mul_f32 v{vCM}, s{sC}, v{vMX}\nv_mov_b32 v{vLS}, 0\nds_write_b32 v{vCMw}, v{vCM}"
    return (t, None)


def pv_groups(order, vsrc, stg, bar_at, tp):
    T = [DT, DT + 4]
    PP = [DT + 8, DT + 9]
    n = len(order)
    reads = [(u, m) for u in order if vsrc(u)[0] == "lds" for m in range(2)]
    rpos = {rm: i for i, rm in enumerate(reads)}
    issued = [0]
    body = []

    def issue_reads(upto):
        while issued[0] < min(upto, len(reads)):
            u, m = reads[issued[0]]
            q = stg[issued[0] % len(stg)]
            body.append((f"ds_read_b128 {vr(q)}, v{vL} offset:{vsrc(u)[1]*2048+m*1024}", vsrc(u)[2], None))
            issued[0] += 1

    pairs = []
    for u in order:
        if u // 2 not in pairs:
            pairs.append(u // 2)
    pidx = {k: i for i, k in enumerate(pairs)}

    def E(k):
        c = SC + k
        return f"v_fma_f32 v{c}, v{c}, s{sC}, -v{vCM}\nv_exp_f32 v{c}, v{c}\n"

    def F(k):
        c = SC + k
        return f"v_add_f32 v{vLS}, v{vLS}, v{c}\nv_cvt_pk_bf16_f32 v{PP[pidx[k]&1]}, v{c}, v{c}\n"

    def Gm(i):
        u = order[i]
        pp = PP[pidx[u // 2] & 1]
        rho = u & 1
        t = ""
        for r in range(4):
            if (r >> 1) == rho:
                t += f"v_and_b32 v{T[i&1]+r}, v{pp}, v{MASK+r}\n"
        for r in range(4):
            if (r >> 1) != rho:
                sh = "row_shr:4" if rho == 0 else "row_shl:4"
                t += f"v_and_b32_dpp v{T[i&1]+r}, v{pp}, v{MASK+r} {sh} {DPPF} bound_ctrl:0\n"
        return t

    t = E(pairs[0])
    if len(pairs) > 1:
        t += E(pairs[1])
    else:
        t += "s_nop 0\n"
    t += F(pairs[0]) + Gm(0)
    body.append((t, None, None))
    edone = min(2, len(pairs))
    fdone = 1
    first_lds_started = False
    for i in range(n):
        u = order[i]
        nxt = [order[j] for j in range(i, min(n, i + 3))]
        if not first_lds_started and any(vsrc(x)[0] == "lds" for x in nxt):
            issue_reads(len(stg))
            first_lds_started = True
        t = ""
        if i + 1 < n:
            k1 = pidx[order[i + 1] // 2]
            if k1 >= fdone:
                t += F(pairs[k1])
                fdone = k1 + 1
                if edone < len(pairs):
                    t += E(pairs[edone])
                    edone += 1
            t += Gm(i + 1)
        if i == bar_at:
            body.append((f"v_add_u32 v{vT}, s{sW4}, v{vCMr}\ns_waitcnt lgkmcnt(0)\ns_barrier\n"
                         f"ds_read_b64 v[{vF}:{vF+1}], v{vCMr}\nds_read_b64 v[{tp}:{tp+1}], v{vCMr} offset:8\nds_read_b32 v{vT}, v{vT}", None, None))
        if i == min(bar_at + 2, n - 1):
            t += (f"s_waitcnt lgkmcnt(0)\nv_max3_f32 v{vMX}, v{vF}, v{vF+1}, v{tp}\nv_max_f32 v{vMX}, v{vMX}, v{tp+1}\n"
                  f"v_sub_f32 v{vF}, v{vT}, v{vMX}\nv_exp_f32 v{vF}, v{vF}\n")
        tl = [x for x in t.strip().split("\n") if x]
        parts = [tl[:len(tl) // 2], tl[len(tl) // 2:]]
        if not tl:
            parts[0] = ["s_nop 0"]
        src = vsrc(u)
        for m in range(2):
            acc = QA + 4 * m
            cin = "0" if i == 0 else vr(acc)
            if parts[m]:
                body.append(("\n".join(parts[m]), None, None))
            if src[0] == "reg":
                body.append((f"v_mfma_f32_16x16x32_bf16 {vr(acc)}, {vr(T[i&1])}, {vr(radd(src[1],4*m))}, {cin}", src[2], None))
            elif src[0] == "gl":
                w, q, upto = src[1].consume(("V", u, m))
                body.append((w + f"v_mfma_f32_16x16x32_bf16 {vr(acc)}, {vr(T[i&1])}, {vr(q)}, {cin}", None, None))
                body.append((src[1].issue(upto), None, None))
            else:
                j = rpos[(u, m)]
                q = stg[j % len(stg)]
                body.append((f"s_waitcnt lgkmcnt({issued[0]-j-1})\nv_mfma_f32_16x16x32_bf16 {vr(acc)}, {vr(T[i&1])}, {vr(q)}, {cin}", None, u if m == 1 else None))
                issue_reads(j + 1 + len(stg))
    return body


def emit_groups(gs):
    for g in gs:
        A(g[0])


def clear_next(t4, ta):
    sk, far = A.label("clsk"), A.label("clfar")
    A(f"s_cmp_lt_u32 s{sWAVE}, 2\ns_cbranch_scc1 {sk}")
    for r in range(4):
        A(f"v_mov_b32 v{t4+r}, -1")
    A(f"v_lshlrev_b32 v{ta}, 4, v0")
    A(f"s_sub_u32 s{sT3}, s{sWAVE}, 2\ns_lshl_b32 s{sCL}, s{sT3}, 12\ns_add_u32 s{sCL}, s{sCL}, s{sMLOFF}\ns_add_u32 s{sCL}, s{sCL}, {ML_L}")
    A(f"s_mul_i32 s{sT3}, s{sT3}, 28672\ns_add_u32 s{sT3}, s{sT3}, s{sPOOFF}\ns_add_u32 s{sT3}, s{sT3}, {PO_L}")
    A(f"s_cmp_eq_u32 s{sMODE}, 1\ns_cbranch_scc0 {far}")
    for fl in ("", " sc1"):
        if fl:
            A(f"{far}:")
        A(f"buffer_store_dwordx4 {vr(t4)}, v{ta}, {srd(SRD_WS)}, s{sT3} offen{fl}")
        A(f"s_mov_b64 exec, 1\nbuffer_store_dwordx2 {vr(t4, 2)}, v{ta}, {srd(SRD_WS)}, s{sCL} offen{fl}\ns_mov_b64 exec, -1")
        if not fl:
            A(f"s_branch {sk}")
    A(f"{sk}:\ns_nop 1")


def code_prefetch(lab_from, nbytes, vaddr, vjunk, sp):
    here = A.label("pc")
    A(f"s_getpc_b64 s[{sp}:{sp+1}]\n{here}:")
    A(f"s_add_u32 s{sp}, s{sp}, {lab_from}-{here}\ns_addc_u32 s{sp+1}, s{sp+1}, {'-1' if lab_from in BACKWARD else '0'}")
    A(f"v_lshlrev_b32 v{vaddr}, 6, v0")
    for o in range(0, nbytes, 4096):
        if o:
            A(f"v_add_u32 v{vaddr}, 4096, v{vaddr}")
        if nbytes - o < 4096:
            A(f"v_min_u32 v{vaddr}, {nbytes - 64}, v{vaddr}")
        A(f"global_load_dword v{vjunk}, v{vaddr}, s[{sp}:{sp+1}]")


BACKWARD = set()


def cm_addr():
    A(f"v_lshrrev_b32 v{vCMr}, 5, v0\nv_lshlrev_b32 v{vCMr}, 4, v{vCMr}\nv_add_u32 v{vCMr}, {MLBASE}, v{vCMr}")
    A(f"v_bfe_u32 v{vCMw}, v0, 3, 1\nv_lshlrev_b32 v{vCMw}, 4, v{vCMw}\nv_add_u32 v{vCMw}, s{sW4}, v{vCMw}\nv_add_u32 v{vCMw}, {MLBASE}, v{vCMw}")


def q_loads():
    return (f"buffer_load_dwordx4 {vr(QA)}, v{vQ}, {srd(SRD_WS)}, s{sQOFF} offen sc1\n"
            f"buffer_load_dwordx4 {vr(QA+4)}, v{vQ}, {srd(SRD_WS)}, s{sQOFF} offen offset:256 sc1")


def poll_q_blocking():
    lp, done = A.label("qpoll"), A.label("qdone")
    A(f"{lp}:")
    spin_guard(done)
    if os.environ.get("QPS"):
        A(f"s_sleep {os.environ['QPS']}")
    A(q_loads())
    A("s_waitcnt vmcnt(0)")
    sentinel_check(range(QA, QA + 8), vT, lp)
    A(f"{done}:")
    A("s_nop 1")


VL_UNITS = list(range(NVREG, NKA))
vslot = lambda u: u - NVREG
loads = []
it = ld_items_lds(SRD_VA, vV, vVd, sOFFA, VL_UNITS[:-1], vslot)
loads += [(t, ("V", u), None) for t, u in it]
it = ld_items_lds(SRD_VA, vV, vVd, sOFFA36, [0], lambda u: vslot(36))
loads += [(t, ("V", 36), None) for t, u in it]
it = ld_items_reg(SRD_KA, vK, sOFFA, list(range(36)), half)
kl = [(t, ("K", u), None) for t, u in it]
it = ld_items_reg(SRD_KA, vK, sOFFA36, [0], lambda u: half(36))
kl += [(t, ("K", 36), None) for t, u in it]
ca_load = (f"buffer_load_dword v{vCM}, v{vFA}, {srd(SRD_DBG)}, 0 offen sc1", ("CA",), None)
FPOS = 32
NOCA = int(os.environ.get("NOCA", "0"))
QK0 = int(os.environ.get("QK0", "40"))
loads += kl[:QK0 - 20] + ([] if NOCA else [ca_load]) + kl[QK0 - 20:QK0]
QPOS = len(loads)
loads += kl[QK0:]
it = ld_items_reg(SRD_VA, vV, sOFFA, list(range(NVREG)), lambda u: half(NKA + u))
loads += [(t, ("V", u), None) for t, u in it]
NA_LOADS = len(loads)
sBO = 52
vPF, vJ = 42, 43
XD = int(os.environ.get("XD", "4"))
STG_B = [44, 48, 52, 56, 60, 64, 68]
RING_B = STG_B + [radd(half(NKA + u), 4 * m) for u in range(NVREG - XD, NVREG) for m in range(2)]
NPRE = len(RING_B)
PFS = int(os.environ.get("PFS", "6"))
bpf = []
first = True
for srdr, nm in ((SRD_KB, "K"), (SRD_VB, "V")):
    for p in range(6):
        nbytes = 4096 if p < 4 else 2048
        per = 64 << PFS
        for o in range(0, nbytes, per):
            nbefore = (0 if nm == "K" else 20) + (4 * p if p < 4 else 16 + 2 * (p - 4))
            if nbefore + nbytes // 1024 <= NPRE:
                continue
            t = ""
            if first:
                t += f"v_lshlrev_b32 v{vPF}, {PFS}, v0\n"
                first = False
            lanes = min(64, nbytes >> PFS)
            if lanes < 64:
                t += f"s_mov_b64 exec, {(1 << lanes) - 1}\n" if lanes < 32 else "s_mov_b32 exec_hi, 0\n"
            t += f"buffer_load_dword v{vJ}, v{vPF}, {srd(srdr)}, s{sBO+p} offen offset:{o}"
            if lanes < 64:
                t += "\ns_mov_b64 exec, -1"
            bpf.append((t, ("PF", len(bpf)), None))
GATE = 0
NB_EARLY = int(os.environ.get('NBE', '0'))
BL = bpf
early = [(t.replace(f"v{vPF},", "v62,").replace(f"v{vJ},", "v63,"), tag, NSLOT - 1) for t, tag, req in BL[:NB_EARLY]]
loads += early
if NB_EARLY:
    t0_, tag0_, r0_ = BL[NB_EARLY]
    BL[NB_EARLY] = (f"v_lshlrev_b32 v{vPF}, {PFS}, v0\n" + t0_, tag0_, r0_)

ksrcA = lambda u: ("reg", half(u), ("K", u))
vsrcA = lambda u: ("reg", half(NKA + u), ("V", u)) if u < NVREG else ("lds", vslot(u), ("V", u))

g0, pre, body = qk_groups(NKA, ksrcA, sBIASA, STG_A)
comp = [(t, n, None) for t, n in g0 + pre + body] + [max_group() + (None,)]
comp += pv_groups(VL_UNITS + list(range(NVREG)), vsrcA, STG_A, 33, STG_A[0])

EXP = os.environ.get("EXP", "")
if EXP:
    order = loads[:NA_LOADS] + BL
    if "r" in EXP:
        order = [(t, ("K", u), None) for t, u in ld_items_reg(SRD_KA, vV if "v" in EXP else vK, sOFFA, list(range(36)), half)]
        order += [(t, ("V", u), None) for t, u in ld_items_reg(SRD_VA, vV, sOFFA, list(range(36)), lambda u: half(u + 18))]
        order += [(t, ("BK", u), None) for t, u in ld_items_reg(SRD_KB, vV if "v" in EXP else vK, sOFFB, list(range(8)), half)]
        order += [(t, ("BV", u), None) for t, u in ld_items_reg(SRD_VB, vV, sOFFB, list(range(8)), lambda u: half(u + 18))]
    for i, (t, tag, req) in enumerate(order):
        if tag == ("CA",): continue
        if tag == ("BK", 0) and "s_add" in t:
            stamp(3)
        if i in (30, 60, 90, 120): stamp(15 + (30, 60, 90, 120).index(i))
        A(t)
        if os.environ.get("THR"): A(f"s_waitcnt vmcnt({os.environ['THR']})")
    A("s_waitcnt vmcnt(0)")
    stamp(4)
    A("s_branch L_fin")
THR = int(os.environ.get("THR", "4"))
THRX = int(os.environ.get("THRX", "0"))
TSCH = eval(os.environ.get("TSCH", "[(0,4),(118,0)]"))
VPOL = int(os.environ.get("VPOL", "0"))
THR2 = int(os.environ.get("THR2", "0"))
THRB = int(os.environ.get("THRB", "0"))
LAG = int(os.environ.get("LAG", "10"))
last_of = {}
nissued = 0
released = set()
ci = 0


def emit_comp(g):
    t, need, rel = g
    if need is not None:
        n = nissued - last_of[need] - 1
        A(f"s_waitcnt vmcnt({min(n, 63)})")
    A(t)
    if rel is not None:
        released.add(vslot(rel))


qready = False
li = 0
done_pos = set()
LEAD = int(os.environ.get("LEAD", "0"))
ADAPT = int(os.environ.get("ADAPT", "0"))
ATHR = int(os.environ.get("ATHR", "3"))
sTHR = 51
MARKS = ([40, 56, 72, 88, 104, 120] if LEAD else [-1] * 6) + [NA_LOADS - GATE] if GATE else []
if ADAPT:
    MARKS = [34, 50, 66, 82, 98, 114, 130]
    A(f"s_mov_b32 s{sTHR}, 0")


RATE = int(os.environ.get("RATE", "0"))
sRT0, sRT = 64, 66
if RATE:
    pass


def rate_ctl(li):
    if RATE and li % 6 == 0 and 12 <= li:
        A(f"s_memrealtime s[{sRT}:{sRT+1}]")
    if RATE and li % 6 == 1 and 12 <= li:
        A(f"s_waitcnt lgkmcnt(0)\ns_sub_u32 s{sRT}, s{sRT}, s{sRT0}\ns_cmp_lt_u32 s{sRT}, {max(0, (li - int(os.environ.get('ROFF', '4'))) * RATE // 10)}\ns_cselect_b32 s{sTHR}, 1, 0")


def athr():
    if ADAPT or RATE:
        sk = A.label("nt")
        A(f"s_cmp_eq_u32 s{sTHR}, 0\ns_cbranch_scc1 {sk}\ns_waitcnt vmcnt({ATHR})\n{sk}:")


flow_load = f"buffer_load_ubyte v{vFD}, v{vFA}, {srd(SRD_DBG)}, 0 offen offset:4 sc1"


def flow_wait(k, n):
    ok, lp, ck = A.label("flok"), A.label("fllp"), A.label("flck")
    if n is not None:
        A(f"s_waitcnt vmcnt({n})\ns_branch {ck}")
    A(f"{lp}:")
    spin_guard(ok)
    A(f"{flow_load}\ns_waitcnt vmcnt(0)")
    A(f"{ck}:\nv_cmp_gt_u32 vcc, {k << 4}, v{vFD}\ns_nop 0\ns_cmp_lg_u64 vcc, 0\ns_cbranch_scc0 {ok}\ns_sleep 4\ns_branch {lp}")
    A(f"{ok}:")


while li < len(loads):
    if li in MARKS and li not in done_pos:
        k = MARKS.index(li) + 1
        nf = A.label("nomark")
        A(f"s_or_b32 s{sT3}, s{sWAVE}, s{sSP}\ns_cmp_eq_u32 s{sT3}, 0\ns_cbranch_scc0 {nf}")
        A(f"s_or_b32 s{sT3}, s{sID}, {k << 4}\nv_mov_b32 v{vT}, s{sT3}\ns_lshl_b64 exec, 1, s{sG}")
        A(f"buffer_store_byte v{vT}, v{vFA}, {srd(SRD_DBG)}, 0 offen offset:4 sc1\ns_mov_b64 exec, -1")
        A(f"{nf}:")
    if LEAD and (li - LEAD + 8) in MARKS[:-1] and li + 8 < NA_LOADS and li not in done_pos:
        A(flow_load)
        last_of[("FL",)] = nissued
        nissued += 1
    if LEAD and (li - LEAD) in MARKS[:-1] and li < NA_LOADS and li not in done_pos:
        k = MARKS.index(li - LEAD) + 1
        flow_wait(k, nissued - last_of[("FL",)] - 1)
    if ADAPT and (li - ADAPT) in MARKS and li + 8 < NA_LOADS and li not in done_pos:
        A(flow_load)
        last_of[("FL",)] = nissued
        nissued += 1
    if ADAPT and (li - ADAPT - 8) in MARKS and li < NA_LOADS and li not in done_pos:
        k = MARKS.index(li - ADAPT - 8) + 1
        A(f"s_waitcnt vmcnt({nissued - last_of[('FL',)] - 1})")
        A(f"v_cmp_gt_u32 vcc, {k << 4}, v{vFD}\ns_nop 0\ns_cmp_lg_u64 vcc, 0\ns_cselect_b32 s{sTHR}, 1, 0")
    if os.environ.get("PROG") and li in (30, 60, 90, 120) and li not in done_pos:
        if li == 120 and PROFILE: A("s_waitcnt lgkmcnt(0)")
        stamp(15 + (30, 60, 90, 120).index(li))
    if li == 4 and li not in done_pos:
        late_setup()
        if RATE:
            A(f"s_mov_b32 s{sTHR}, 0\ns_memrealtime s[{sRT0}:{sRT0+1}]")
    done_pos.add(li)
    if li == QPOS and NOCA:
        A(f"s_mov_b32 s{sMODE}, 1")
        A(q_loads())
        nissued += 2
        last_of[("Q",)] = nissued - 1
    if li == QPOS and not NOCA:
        n = nissued - last_of[("CA",)] - 1
        ok, lp, ck = A.label("caok"), A.label("calp"), A.label("cack")
        A(f"s_waitcnt vmcnt({n})\ns_branch {ck}")
        A(f"{lp}:")
        spin_guard(ok)
        A(f"{ca_load[0]}\ns_waitcnt vmcnt(0)")
        A(f"{ck}:\nv_readlane_b32 s{sT3}, v{vCM}, s{sG}")
        A(f"s_cmp_eq_u32 s{sT3}, s{sID}\ns_cselect_b32 s{sMODE}, 1, 0")
        A(f"s_add_u32 s{sT3}, s{sT3}, 0x7f7f7f7f\ns_and_b32 s{sT3}, s{sT3}, 0x80808080\ns_cmp_eq_u32 s{sT3}, 0x80808080\ns_cbranch_scc0 {lp}")
        A(f"{ok}:")
        clear_next(DT, vT)
        A(q_loads())
        nissued += 2
        last_of[("Q",)] = nissued - 1
    if li == QPOS + 12:
        n = nissued - last_of[("Q",)] - 1
        slow, ok = A.label("qslow"), A.label("qok")
        A(f"s_waitcnt vmcnt({n})")
        sentinel_check(range(QA, QA + 8), vT, slow)
        A(f"s_branch {ok}\n{slow}:")
        poll_q_blocking()
        A(f"{ok}:")
        stamp(1)
        A(f"s_lshl_b32 s{sW4}, s{sWAVE}, 2")
        cm_addr()
        if RATE:
            A(f"s_mov_b32 s{sTHR}, 0")
        qready = True
    t, tag, req = loads[li]
    if req is not None and req not in released:
        emit_comp(comp[ci])
        ci += 1
        continue
    A(t.replace(" nt", "") if li < VPOL else t)
    if TSCH:
        tv = [v for (p, v) in TSCH if li >= p][-1]
        if tv:
            A(f"s_waitcnt vmcnt({tv})")
    elif THR and not qready:
        A(f"s_waitcnt vmcnt({THR + (THRX if li & 1 else 0)})")
    if THR2 and qready:
        A(f"s_waitcnt vmcnt({THR2})")
    if li > (12 if RATE else 40) and not (RATE and qready):
        athr()
    if not qready:
        rate_ctl(li)
    last_of[tag] = nissued
    nissued += 1
    li += 1
    if qready:
        cnt = 0
        while ci < len(comp) and cnt < int(os.environ.get("GPL", "8")):
            need = comp[ci][1]
            if need is not None and (need not in last_of or nissued - last_of[need] - 1 < LAG or
                                     (li < len(loads) and loads[li][1] == need)):
                break
            emit_comp(comp[ci])
            ci += 1
            cnt += 1
stamp(2)
A(f"s_max_u32 s{sT3}, s{sWAVE}, 1\ns_lshl_b32 s{sT3}, s{sT3}, 10\ns_add_u32 s{sT3}, s{sT3}, {XBASE - 1024}\nv_lshl_add_u32 v{vX}, v0, 4, s{sT3}")
while ci < len(comp):
    emit_comp(comp[ci])
    ci += 1

A("L_reduce:")
A(f"v_add_f32_dpp v{vLS}, v{vLS}, v{vLS} row_half_mirror {DPPF}")
xrow_reduce("v_add_f32", vLS, vT)
A(f"v_mul_f32 v{vLS}, v{vLS}, v{vF}\ns_mov_b32 exec_lo, 1\ns_mov_b32 exec_hi, 0x100")
A(f"ds_write_b32 v{vCMw}, v{vLS} offset:32\ns_mov_b64 exec, -1")
for r in range(0, 8, 2):
    A(f"v_pk_mul_f32 v[{QA+r}:{QA+r+1}], v[{QA+r}:{QA+r+1}], v[{vF}:{vF+1}] op_sel_hi:[1,0]")
XR = 20
xr = [20, 24, 56]
A(f"s_cmp_eq_u32 s{sWAVE}, 0\ns_cbranch_scc0 L_red_n0")
for wv in range(2):
    own, give = QA + 4 * wv, QA + 4 * (1 - wv)
    if wv == 1:
        A("L_red_1:")
    A(f"ds_write_b128 v{vX}, {vr(give)} offset:{3072*(1-wv)}")
    A(f"s_add_u32 s{sT0}, s{sPOOFF}, {512*wv}\ns_cmp_eq_u32 s{sMODE}, 1")
    A("s_waitcnt lgkmcnt(0)\ns_barrier")
    for s_ in range(3):
        A(f"ds_read_b128 {vr(xr[s_])}, v{vX} offset:{3072*wv+1024*s_}")
    for s_ in range(3):
        A(f"s_waitcnt lgkmcnt({2-s_})")
        for r in (0, 2):
            A(f"v_pk_add_f32 v[{own+r}:{own+r+1}], v[{own+r}:{own+r+1}], v[{xr[s_]+r}:{xr[s_]+r+1}]")
    for r in range(4):
        A(f"v_min_u32 v{own+r}, -2, v{own+r}")
    far = A.label("far")
    A(f"s_cbranch_scc0 {far}")
    A(f"buffer_store_dwordx4 {vr(own)}, v{vPO}, {srd(SRD_WS)}, s{sT0} offen\ns_branch L_red_done")
    A(f"{far}:\nbuffer_store_dwordx4 {vr(own)}, v{vPO}, {srd(SRD_WS)}, s{sT0} offen sc1\ns_branch L_red_done")
A("L_red_n0:")
A(f"s_cmp_eq_u32 s{sWAVE}, 1\ns_cbranch_scc1 L_red_1")
A(f"ds_write_b128 v{vX}, {vr(QA)}\nds_write_b128 v{vX}, {vr(QA+4)} offset:3072")
A(f"v_lshrrev_b32 v{vT}, 5, v0\nv_lshlrev_b32 v{vT}, 12, v{vT}\nv_min_u32 v24, -2, v{vMX}")
A(f"s_cmp_eq_u32 s{sWAVE}, 2")
A("s_waitcnt lgkmcnt(0)\ns_barrier\ns_cbranch_scc0 L_red_done")
A(f"ds_read_b128 v[20:23], v{vCMr} offset:32\ns_cmp_eq_u32 s{sMODE}, 1\ns_waitcnt lgkmcnt(0)")
A("v_add_f32 v20, v20, v21\nv_add_f32 v22, v22, v23\nv_add_f32 v25, v20, v22\nv_min_u32 v25, -2, v25")
A("s_mov_b32 exec_lo, 1\ns_mov_b32 exec_hi, 1\ns_cbranch_scc0 L_ml_far")
A(f"buffer_store_dwordx2 v[24:25], v{vT}, {srd(SRD_WS)}, s{sMLOFF} offen\ns_branch L_ml_done")
A(f"L_ml_far:\nbuffer_store_dwordx2 v[24:25], v{vT}, {srd(SRD_WS)}, s{sMLOFF} offen sc1")
A("L_ml_done:\ns_mov_b64 exec, -1")
A("L_red_done:")
A("s_barrier")
A(f"s_add_u32 s{sQOFF}, s{sQOFF}, 8192\ns_add_u32 s{sPOOFF}, s{sPOOFF}, {PO_L}\ns_add_u32 s{sMLOFF}, s{sMLOFF}, {ML_L}")
A(f"s_add_u32 s{sLAYER}, s{sLAYER}, 1")
A(f"s_cmp_eq_u32 s{sLAYER}, 2\ns_cbranch_scc1 L_after2")
A(f"s_cmp_eq_u32 s{sLAYER}, 3\ns_cbranch_scc1 L_after3")
A(f"s_cmp_eq_u32 s{sLAYER}, 4\ns_cbranch_scc1 L_att_end")
stamp(3)
if GATE:
    vFA = vT
    flow_load = f"buffer_load_ubyte v{vFD}, v{vFA}, {srd(SRD_DBG)}, 0 offen offset:4 sc1"
    A(f"v_and_b32 v{vFA}, 7, v0\nv_lshlrev_b32 v{vFA}, 5, v{vFA}")
    flow_wait(7, None)
    stamp(13)


DRYS = os.environ.get("DRYS", "")


def stream_then_q(items, E, st_a, st_b, thr=0, pre=(), dry=None):
    n = len(items)
    for i, (t, tag, req) in enumerate(items):
        if i == n - E:
            A(q_loads())
        A(t)
        if thr and i < n - E:
            A(f"s_waitcnt vmcnt({thr})")
        if st_a == 4 and i < n - E and os.environ.get("ATHB"):
            athr()
            rate_ctl(NA_LOADS + NB_EARLY + i + 6)
    if dry and int(os.environ.get("CPL", "1")):
        code_prefetch(f"L_{dry}_body", 5120 if dry == "l3" else 1536, STG_A[3], STG_A[3] + 1, sT2)
    if dry and dry in DRYS:
        A(f"s_mov_b64 exec, 0\ns_branch L_{dry}_body\nL_{dry}_ret:\ns_mov_b64 exec, -1\ns_nop 7")
    if E == 0:
        qs = int(os.environ.get(f"QS{st_a}", "0"))
        if qs:
            A(f"s_sleep {qs}")
        A(q_loads())
    slow, ok = A.label("qslow"), A.label("qok")
    A(f"s_waitcnt vmcnt({E})")
    stamp(st_a)
    emit_groups(pre)
    sentinel_check(range(QA, QA + 8), vT, slow)
    A(f"s_branch {ok}\n{slow}:")
    poll_q_blocking()
    A(f"{ok}:")
    stamp(st_b)
    if dry:
        A(f"L_{dry}_body:")
    younger = {}
    for i, (t, tag, req) in enumerate(items):
        if i >= n - E:
            younger[tag] = n - 1 - i
    return younger


def emit_counted(gs, younger, extra=None, every=1):
    extra = list(extra or [])
    cnt = 0
    for g in gs:
        need = g[1]
        if need in younger:
            A(f"s_waitcnt vmcnt({younger[need]})")
            lim = younger[need]
            for k in [k for k, v in younger.items() if v >= lim]:
                del younger[k]
        A(g[0])
        if "v_mfma" in g[0]:
            cnt += 1
            if extra and cnt % every == 0:
                t, tag, req = extra.pop(0)
                A(t)
                for k in younger:
                    younger[k] += 1
                younger[tag] = 0
    assert not extra


def btext(key, q):
    nm, u, m = key
    p, o = (u // 2, (u & 1) * 2048) if u < 8 else (u - 4, 0)
    return f"buffer_load_dwordx4 {vr(q)}, v{vK if nm == 'K' else vV}, {srd(SRD_KB if nm == 'K' else SRD_VB)}, s{sBO+p} offen offset:{o+256*m}"


ring = GRing([(nm, u, m) for nm in "KV" for u in range(10) for m in range(2)], btext, RING_B)
clear_next(DT, vT)
RTH = os.environ.get("RTH", "")
PFF = int(os.environ.get("PFF", "0"))
for t, tag, req in BL[NB_EARLY:NB_EARLY + PFF]:
    A(t)
NB_EARLY += PFF
for i_ in range(1, NPRE + 1):
    A(ring.issue(i_) + (" nt" if i_ <= int(os.environ.get("RNT", "0")) else ""))
    if RTH:
        A(f"s_waitcnt vmcnt({RTH})")
ring.landed = NPRE
CPF = int(os.environ.get("CPF", "2"))
if CPF:
    code_prefetch("L_l2body", CPF * 4096, vT, vJ, sT0)
ksrcB = lambda u: ("gl", ring, None)
g0, pre, body = qk_groups(10, ksrcB, sBIASB, STG_B)
emit_groups(g0)
yg = stream_then_q(BL[NB_EARLY:], int(os.environ.get("E2", "2")), 4, 5, int(os.environ.get("PTH", "0")))
A("L_l2body:")
emit_groups(body + [max_group()] + pv_groups(list(range(10)), ksrcB, STG_B, 5, 42))
A("s_branch L_reduce")

A("L_after2:")
stamp(6)
def hook3(u, m):
    j = 2 * (u - 1) + m
    if u >= 1 and j < 2 * NSLOT:
        w = "s_waitcnt lgkmcnt(6)\n" if j % 8 == 7 else ""
        return w + f"ds_read_b128 {vr(radd(half(j // 2), 4 * (j & 1)))}, v{vL} offset:{j*1024}"
    return None


g0, pre, body = qk_groups(NKA, ksrcA, sBIASA, STG_A, hook3)
vsrc3 = lambda u: ("reg", half(NKA + u) if u < NVREG else half(u - NVREG), None)
clear_next(DT, vT)
emit_groups(g0)
rl = ld_items_reg(SRD_VA, vV, sOFFA, list(range(NVREG - XD, NVREG)), lambda u: half(NKA + u)) if XD else []
yg = stream_then_q([(t, ("V", u), None) for t, u in rl], 0, 14, 7, dry="l3")
emit_counted(body, yg)
emit_groups([max_group()])
stamp(8)
HB1 = 0
b4 = []
for srdr, voff, base, nm in ((SRD_KB, vK, 0, "BK"), (SRD_VB, vV, 10, "BV")):
    b4 += [(t, (nm, u), None) for t, u in ld_items_reg(srdr, voff, sOFFB, list(range(8)), lambda u: half(base + u))]
    b4 += [(t, (nm, 8), None) for t, u in ld_items_reg(srdr, voff, sOFFB8, [0], lambda u: half(base + 8))]
    b4 += [(t, (nm, 9), None) for t, u in ld_items_reg(srdr, voff, sOFFB9, [0], lambda u: half(base + 9))]
NB4 = int(os.environ.get("NB4", "0"))
order3 = list(range(NVREG)) + [NVREG + x for x in list(range(HB1, NSLOT)) + list(range(0, HB1))]
emit_groups(pv_groups(order3, vsrc3, STG_A, 12, STG_A[0]))
stamp(15)
if "l3" in DRYS:
    A("s_cbranch_execz L_l3_ret")
A("s_branch L_reduce")

A("L_after3:")
if os.environ.get("WBL") == "2":
    A(f"s_cmp_eq_u32 s{sSP}, 27\ns_cbranch_scc0 L_wb_skip2\ns_cmp_eq_u32 s{sWAVE}, 3\ns_cbranch_scc0 L_wb_skip2")
    A("buffer_wbl2 sc1")
    A("L_wb_skip2:")
stamp(9)
ksrc4 = lambda u: ("reg", half(u), ("BK", u))
vsrc4 = lambda u: ("reg", half(10 + u), ("BV", u))
g0, pre, body = qk_groups(10, ksrc4, sBIASB, STG_B)
emit_groups(g0)
yg = stream_then_q(b4[NB4:], int(os.environ.get("E4", "0")), 10, 11, int(os.environ.get("THR4", "0")), dry="l4")
emit_counted(body + [max_group()] + pv_groups(list(range(10)), vsrc4, STG_B, 5, 42), yg)
if "l4" in DRYS:
    A("s_cbranch_execz L_l4_ret")
A("s_branch L_reduce")

A("L_att_end:")
if os.environ.get("WBL"):
    A(f"s_cmp_eq_u32 s{sSP}, 0\ns_cbranch_scc0 L_wb_skip\ns_cmp_eq_u32 s{sWAVE}, 3\ns_cbranch_scc0 L_wb_skip")
    A("buffer_wbl2 sc1\ns_waitcnt vmcnt(0)")
    A("L_wb_skip:")
stamp(12)
A("s_branch L_fin")

A("L_chain:")
cWq, cWo, cPOg, cMLg, cL16, cYg, cT = 1, 2, 3, 4, 5, 6, 7
cX = 12
cVAL, cYst, cSCR, cXw, cXa, cXs = 14, 15, 16, 17, 18, 19
cTT = [20, 24]
cACC = 28
cG = 36
cN = 68
cXA = 36
cCS = {0: 92, 1: 93}
cQst, cV56 = 94, 95
cWo1 = 91
WQ = {0: ("a", 0), 1: ("a", 112)}
WO0 = {0: ("v", 96), 1: ("v", 160)}
sYG = 52


def wo1(t):
    return ("v", 224 + 4 * t) if t < 8 else ("a", 224 + 4 * (t - 8))


CSCR = 131072
YX = CSCR
XB = CSCR + 4096
sCH = sSP
WQB = 448 * 4096 * 2

if "n" in os.environ.get("EXP", ""):
    A("s_branch L_end")
if "l" in os.environ.get("EXP", ""):
    mk_srd(SRD_KB, pBK, 67108864)
    stamp(0)
    A(f"s_lshl_b32 s{sT0}, s{sG}, 23\ns_mul_i32 s{sT1}, s{sSP}, 491520\ns_add_u32 s{sT0}, s{sT0}, s{sT1}\ns_lshl_b32 s{sT1}, s{sWAVE}, 12\ns_add_u32 s{sT0}, s{sT0}, s{sT1}\nv_lshlrev_b32 v1, 4, v0")
    for i in range(30):
        for n in range(4):
            A(f"buffer_load_dwordx4 a[{(i*16+n*4)%256}:{(i*16+n*4)%256+3}], v1, {srd(SRD_KB)}, s{sT0} offen offset:{n*1024} nt")
        A(f"s_add_u32 s{sT0}, s{sT0}, 16384")
    A("s_waitcnt vmcnt(0)")
    stamp(3)
    A("s_branch L_fin")
A("s_waitcnt lgkmcnt(0)")
common_setup()
mk_srd(SRD_WQA, pAWQ, WQB)
mk_srd(SRD_WOA, pAWO, WQB)
mk_srd(SRD_WQB, pBWQ, WQB)
mk_srd(SRD_WOB, pBWO, WQB)
mk_srd(SRD_X, pAX, 896)
A(f"s_mov_b64 s[{sOUTP}:{sOUTP+1}], s[{pOUT}:{pOUT+1}]")
A(f"s_mov_b64 s[0:1], s[{pBK}:{pBK+1}]")
A(f"s_lshl_b32 s{sT0}, s{sG}, 2\ns_add_u32 s{sCH}, s{sT0}, s{sSP}")
A("v_lshrrev_b32 v20, 4, v0       ; s / row")
A("v_and_b32 v21, 15, v0          ; j / c16")
A("v_lshlrev_b32 v22, 4, v21      ; j*16")
A(f"s_lshr_b32 s{sT0}, s{sWAVE}, 1\ns_lshl_b32 s{sT0}, s{sT0}, 2\nv_or_b32 v23, s{sT0}, v20\nv_lshlrev_b32 v23, 5, v23\nv_xor_b32 v23, v23, v22")
A(f"v_lshl_add_u32 v{cWq}, v20, 13, v23")
A(f"v_mul_u32_u24 v{cWo}, 896, v20\nv_add_u32 v{cWo}, v{cWo}, v22")
A("v_and_b32 v23, 31, v0\nv_min_u32 v23, 27, v23\nv_lshrrev_b32 v24, 5, v0")
A(f"s_mul_i32 s{sT0}, s{sWAVE}, 224\nv_lshlrev_b32 v25, 3, v23\nv_lshl_add_u32 v25, v24, 2, v25\nv_add_u32 v25, s{sT0}, v25")
A(f"buffer_load_dword v{cX}, v25, {srd(SRD_X)}, 0 offen")
A(f"v_add_u32 v{cXw}, {XB}, v25")
A(f"v_lshlrev_b32 v{cYg}, 4, v23\nv_lshl_add_u32 v{cYg}, v24, 11, v{cYg}")


def wq_dma(which):
    s_ = SRD_WQA if which == 0 else SRD_WQB
    A(f"s_lshl_b32 s{sT0}, s{sWAVE}, 15\ns_lshl_b32 s{sT1}, s{sCH}, 8\ns_add_u32 s{sT0}, s{sT0}, s{sT1}\ns_lshl_b32 s{sT2}, s{sWAVE}, 10")
    for ii in range(28):
        A(f"s_add_u32 s{sT1}, s{sT0}, {ii*131072}\ns_add_u32 s{sT3}, s{sT2}, {ii*4096}\ns_mov_b32 m0, s{sT3}\ns_nop 0")
        A(f"buffer_load_dwordx4 v{cWq}, {srd(s_)}, s{sT1} offen nt lds")


def wq_tr(which):
    A("v_lshrrev_b32 v20, 4, v0\nv_bfe_u32 v21, v0, 2, 2\nv_and_b32 v22, 1, v20\nv_lshl_add_u32 v22, v22, 2, v21")
    A(f"s_lshl_b32 s{sT0}, s{sWAVE}, 1\nv_xor_b32 v22, s{sT0}, v22\nv_lshlrev_b32 v22, 5, v22")
    A("v_lshl_add_u32 v20, v20, 3, v21\nv_lshl_add_u32 v20, v20, 8, v22\nv_and_b32 v21, 3, v0\nv_lshl_add_u32 v20, v21, 3, v20")
    A(f"v_xor_b32 v21, 32, v20\nv_add_u32 v22, {7*8192}, v20\nv_add_u32 v23, {7*8192}, v21")
    for kb in range(14):
        for cb in range(2):
            for hf in range(2):
                d = radd(WQ[which], (kb * 2 + cb) * 4 + hf * 2)
                A(f"ds_read_b64_tr_b16 {vr(d, 2)}, v{20 + cb + (0 if kb < 7 else 2)} offset:{(kb%7)*8192+hf*1024}")
        if kb % 3 == 2:
            A("s_waitcnt lgkmcnt(3)")
    A("s_waitcnt lgkmcnt(0)")


def sel_cb(dst):
    A(f"v_mov_b32 v{dst}, v{cACC}\ns_mov_b32 exec_lo, 0xffff0000\ns_mov_b32 exec_hi, 0xffff0000\nv_mov_b32 v{dst}, v{cACC+4}\ns_mov_b64 exec, -1")


def colsum(which):
    for r in range(4):
        A(f"v_mov_b32 v{20+r}, 0x3f803f80")
    A("s_nop 1")
    for kb in range(14):
        for cb in range(2):
            acc = cACC + 4 * cb
            A(f"v_mfma_f32_16x16x32_bf16 {vr(acc)}, v[20:23], {vr(radd(WQ[which], (kb*2+cb)*4))}, {'0' if kb == 0 else vr(acc)}")
    A("s_nop 7")
    sel_cb(cCS[which])


def wo_base():
    A(f"s_lshr_b32 s{sT0}, s{sCH}, 1\ns_lshl_b32 s{sT0}, s{sT0}, 2\ns_add_u32 s{sT0}, s{sT0}, s{sWAVE}\ns_mul_i32 s{sT0}, s{sT0}, {64*896}")
    A(f"s_and_b32 s{sT1}, s{sCH}, 1\ns_lshl_b32 s{sT1}, s{sT1}, 9\ns_add_u32 s{sT0}, s{sT0}, s{sT1}")


def wo0_loads(which, ts):
    s_ = SRD_WOA if which == 0 else SRD_WOB
    wo_base()
    for t in ts:
        A(f"s_add_u32 s{sT1}, s{sT0}, {4*t*896}")
        A(f"buffer_load_dwordx4 {vr(radd(WO0[which], 4*t))}, v{cWo}, {srd(s_)}, s{sT1} offen nt")


def wo1_addr():
    A(f"s_and_b32 s{sT1}, s{sCH}, 1\ns_lshl_b32 s{sT1}, s{sT1}, 7\ns_not_b32 s{sT1}, s{sT1}")
    A(f"v_lshlrev_b32 v{cWo1}, 4, v0\nv_and_b32 v{cWo1}, 0xf0, v{cWo1}\nv_sub_u32 v{cT}, v{cWo}, v{cWo1}\nv_and_b32 v{cWo1}, s{sT1}, v{cWo1}\nv_add_u32 v{cWo1}, v{cWo1}, v{cT}")


def wo1_regs(ts):
    wo1_addr()
    wo_base()
    for t in ts:
        A(f"s_add_u32 s{sT1}, s{sT0}, {4*t*896+256}")
        A(f"buffer_load_dwordx4 {vr(wo1(t))}, v{cWo1}, {srd(SRD_WOA)}, s{sT1} offen nt")


def wo1_dma(which):
    s_ = SRD_WOA if which == 0 else SRD_WOB
    wo_base()
    A(f"s_lshl_b32 s{sT2}, s{sWAVE}, 14\ns_add_u32 s{sT2}, s{sT2}, {which*65536}")
    for t in range(16):
        A(f"s_add_u32 s{sT1}, s{sT0}, {4*t*896+256}\ns_add_u32 s{sT3}, s{sT2}, {t*1024}\ns_mov_b32 m0, s{sT3}\ns_nop 0")
        A(f"buffer_load_dwordx4 v{cWo1}, {srd(s_)}, s{sT1} offen nt lds")


def lstamp(base):
    if PROFILE == 1:
        for l in range(4):
            lb = A.label("ps")
            A(f"s_cmp_eq_u32 s{sLAYER}, {l}\ns_cbranch_scc0 {lb}")
            stamp(base + 4 * l)
            A(f"{lb}:")


stamp(0)
if int(os.environ.get("PRET", "0")):
    A(f"v_lshlrev_b32 v26, 16, v0\ns_cmp_eq_u32 s{sWAVE}, 1\ns_cbranch_scc0 L_pt2")
    A(f"buffer_load_dword v27, v26, {srd(SRD_WQB)}, 0 offen nt")
    wo_base()
    A(f"s_mov_b64 exec, 0xf\nbuffer_load_dword v32, v26, {srd(SRD_WOA)}, s{sT0} offen nt\nbuffer_load_dword v33, v26, {srd(SRD_WOB)}, s{sT0} offen nt\ns_mov_b64 exec, -1")
    A("L_pt2:")
A(f"v_lshlrev_b32 v{cL16}, 4, v0")
A(f"s_lshl_b32 s{sYST}, s{sCH}, 10\ns_add_u32 s{sYST}, s{sYST}, {WS_Y}")
A(f"s_lshl_b32 s{sQST}, s{sCH}, 8")
A("v_mov_b32 v28, -1\nv_mov_b32 v29, -1\nv_mov_b32 v30, -1\nv_mov_b32 v31, -1")
A(f"s_lshl_b32 s{sT1}, s{sWAVE}, 13\ns_add_u32 s{sT1}, s{sT1}, s{sQST}")
A(f"s_cmp_eq_u32 s{sWAVE}, 0\ns_cbranch_scc0 L_ch_cl1")
A(f"buffer_store_dwordx4 v[28:31], v{cL16}, {srd(SRD_WS)}, s{sYST} offen sc1")
A("L_ch_cl1:\ns_mov_b64 exec, 0xffff")
A(f"buffer_store_dwordx4 v[28:31], v{cL16}, {srd(SRD_WS)}, s{sT1} offen sc1")
A("s_mov_b64 exec, -1")
wq_dma(0)
A(f"v_mul_u32_u24 v{cPOg}, 7168, v20\nv_add_u32 v{cPOg}, v{cPOg}, v22\ns_lshl_b32 s{sT0}, s{sWAVE}, 8\nv_add_u32 v{cPOg}, s{sT0}, v{cPOg}")
A(f"v_min_u32 v23, 6, v21\nv_mul_u32_u24 v24, 7, v20\nv_add_u32 v23, v23, v24\nv_lshlrev_b32 v{cMLg}, 7, v23")
A(f"v_cmp_gt_u32 vcc, 7, v21\ns_nop 1\nv_cndmask_b32 v{cVAL}, 0, 1.0, vcc")
A(f"v_cmp_gt_u32 vcc, 56, v0\ns_nop 1\nv_cndmask_b32 v{cV56}, 0, 1.0, vcc")
A(f"v_lshrrev_b32 v23, 5, v0\nv_lshlrev_b32 v23, 9, v23\nv_lshl_add_u32 v23, v21, 5, v23\nv_and_b32 v24, 1, v20\nv_lshl_add_u32 v{cYst}, v24, 4, v23")
A(f"s_lshl_b32 s{sT0}, s{sWAVE}, 6\nv_lshl_add_u32 v{cQst}, v0, 1, s{sT0}")
A(f"v_add_u32 v{cSCR}, {CSCR}, v{cL16}")
A(f"v_lshlrev_b32 v{cXa}, 4, v20\nv_add_u32 v{cXa}, {XB}, v{cXa}")
A(f"v_min_u32 v{cXs}, 55, v0\nv_lshlrev_b32 v{cXs}, 4, v{cXs}\nv_add_u32 v{cXs}, {XB}, v{cXs}")
A(f"s_lshr_b32 s{sT0}, s{sCH}, 1\ns_mul_i32 s{sPOOFF}, s{sT0}, 28672\ns_add_u32 s{sPOOFF}, s{sPOOFF}, {WS_PO}")
A(f"s_lshl_b32 s{sMLOFF}, s{sT0}, 12\ns_add_u32 s{sMLOFF}, s{sMLOFF}, {WS_ML}")
A(f"s_mul_i32 s{sYOFF}, s{sWAVE}, 448\ns_add_u32 s{sYOFF}, s{sYOFF}, {WS_Y}")
emit_masks(0, MASK, 20, 21)
A("s_waitcnt vmcnt(0)")
wo0_loads(0, range(8))
mk_srd(SRD_OUT, sOUTP, 896)
A(f"ds_write_b32 v{cXw}, v{cX}")
A(f"v_and_b32 v{cX+1}, 0xffff0000, v{cX}\nv_lshlrev_b32 v{cX}, 16, v{cX}")
A("s_waitcnt lgkmcnt(0)\ns_barrier")
A(f"s_cmp_eq_u32 s{sWAVE}, 3\ns_cbranch_scc0 L_ch_noflag")
A(f"s_lshl_b32 s{sT0}, s{sG}, 5\ns_and_b32 s{sT1}, s{sCH}, 3\ns_add_u32 s{sT0}, s{sT0}, s{sT1}")
A(f"v_mov_b32 v28, s{sT0}\nv_mov_b32 v29, s{sID}\ns_mov_b64 exec, 1")
A(f"buffer_store_byte v29, v28, {srd(SRD_DBG)}, 0 offen sc1\ns_mov_b64 exec, -1")
A("L_ch_noflag:")
stamp(1)
wq_tr(0)
colsum(0)
A(f"v_and_b32 v{cT}, 7, v0\nv_lshlrev_b32 v{cT}, 2, v{cT}\ns_lshl_b32 s{sT2}, s{sG}, 5")
A("L_ch_id:")
spin_guard("L_ch_id_ok")
A(f"buffer_load_dword v{cG}, v{cT}, {srd(SRD_DBG)}, s{sT2} offen sc1\ns_waitcnt vmcnt(0)")
A(f"v_and_b32 v{cG+1}, 0x0f0f0f0f, v{cG}\nv_cmp_ne_u32 s[{sT0}:{sT1}], s{sID}, v{cG+1}")
A(f"v_add_u32 v{cG+1}, 0x7f7f7f7f, v{cG}\nv_and_b32 v{cG+1}, 0x80808080, v{cG+1}\nv_cmp_ne_u32 vcc, 0x80808080, v{cG+1}")
A(f"s_cmp_eq_u64 s[{sT0}:{sT1}], 0\ns_cselect_b32 s{sMODE}, 1, 0")
A("s_cmp_lg_u64 vcc, 0\ns_cbranch_scc1 L_ch_id")
A("L_ch_id_ok:")
A("v_mov_b32 v28, -1\nv_mov_b32 v29, -1\nv_mov_b32 v30, -1\nv_mov_b32 v31, -1")
A(f"s_mul_i32 s{sT1}, s{sWAVE}, 7168\ns_add_u32 s{sT1}, s{sT1}, s{sPOOFF}\ns_add_u32 s{sT2}, s{sT1}, 4096")
A(f"s_mul_i32 s{sT0}, s{sWAVE}, {7*128}\ns_add_u32 s{sT0}, s{sT0}, s{sMLOFF}\nv_lshlrev_b32 v{cT}, 7, v0")
A(f"s_cmp_eq_u32 s{sMODE}, 1\ns_cbranch_scc0 L_ch_clf")
for fl in ("", " sc1"):
    if fl:
        A("L_ch_clf:")
    for i in range(7):
        A(f"buffer_store_dwordx4 v[28:31], v{cL16}, {srd(SRD_WS)}, s{sT1 if i < 4 else sT2} offen offset:{1024*(i%4)}{fl}")
    A(f"s_mov_b64 exec, 0x7f\nbuffer_store_dwordx2 v[28:29], v{cT}, {srd(SRD_WS)}, s{sT0} offen{fl}\ns_mov_b64 exec, -1")
    if not fl:
        A("s_branch L_ch_cld")
A("L_ch_cld:")
A("s_waitcnt vmcnt(0)\ns_barrier")
wo0_loads(0, range(8, 16))
A("s_branch L_ch_qp")


def bf16r(dst, src):
    A(f"v_cvt_pk_bf16_f32 v{dst}, 0, v{src}")


A("L_ch_stageA:")
if int(os.environ.get("DEFW", "0")):
    A(f"s_cmp_eq_u32 s{sLAYER}, 1\ns_cbranch_scc0 L_sa_nw")
    wo0_loads(1, range(16))
    A("L_sa_nw:")
A(f"s_and_b32 s{sT0}, s{sLAYER}, 1\ns_lshl_b32 s{sT0}, s{sT0}, 16\ns_lshl_b32 s{sT1}, s{sWAVE}, 14\ns_add_u32 s{sT0}, s{sT0}, s{sT1}")
A(f"v_add_u32 v{cT}, s{sT0}, v{cL16}")
for t in range(16):
    A(f"ds_read_b128 {vr(wo1(t))}, v{cT} offset:{t*1024}")
    if t == 7:
        A("s_waitcnt lgkmcnt(0)")
for i in range(8):
    A(f"s_add_u32 s{sYG+i}, s{sYOFF}, {4096*i}")
A("s_waitcnt lgkmcnt(0)")
A(f"s_cmp_eq_u32 s{sWAVE}, 0\ns_cbranch_scc0 L_sa_nc\ns_cmp_eq_u32 s{sLAYER}, 3\ns_cbranch_scc1 L_sa_nc")
A(f"v_mov_b32 v28, -1\nv_mov_b32 v29, -1\nv_mov_b32 v30, -1\nv_mov_b32 v31, -1\ns_add_u32 s{sT0}, s{sYST}, 32768")
A(f"buffer_store_dwordx4 v[28:31], v{cL16}, {srd(SRD_WS)}, s{sT0} offen sc1")
A("L_sa_nc:")
A(f"s_add_u32 s{sT0}, s{sPOOFF}, 4096")
cML = cG + 28
A("s_branch L_sa_poll")
A("L_sa_again:")
spin_guard("L_sa_on")
A(f"s_waitcnt vmcnt({os.environ.get('SAW', '0')})")
A("L_sa_poll:")
A(f"buffer_load_dwordx2 v[{cML}:{cML+1}], v{cMLg}, {srd(SRD_WS)}, s{sMLOFF} offen sc1")
for u in range(7):
    so = sPOOFF if u < 4 else sT0
    A(f"buffer_load_dwordx4 {vr(cG+4*u)}, v{cPOg}, {srd(SRD_WS)}, s{so} offen offset:{(u%4)*1024} sc1")
A("s_waitcnt vmcnt(7)")
mM, mW, mL = cN, cN + 1, cN + 2
A(f"v_max_u32 v{cT}, v{cML}, v{cML+1}\nv_cmp_eq_u32 vcc, -1, v{cT}")
A(f"v_max_f32_dpp v{mM}, v{cML}, v{cML} quad_perm:[1,0,3,2] {DPPF}")
A("s_cmp_lg_u64 vcc, 0\ns_cbranch_scc1 L_sa_again\nL_sa_on:")
for ctl in ("quad_perm:[2,3,0,1]", "row_half_mirror"):
    A(f"s_nop 1\nv_max_f32_dpp v{mM}, v{mM}, v{mM} {ctl} {DPPF}")
xrow_reduce("v_max_f32", mM, cT)
A(f"v_sub_f32 v{mW}, v{cML}, v{mM}\nv_exp_f32 v{mW}, v{mW}\nv_mul_f32 v{mL}, v{cML+1}, v{cVAL}\nv_mul_f32 v{mL}, v{mL}, v{mW}")
oa = cN + 4
red_steps = [f"v_add_f32_dpp v{mL}, v{mL}, v{mL} {c} {DPPF}" for c in
             ("quad_perm:[1,0,3,2]", "quad_perm:[2,3,0,1]", "row_half_mirror", "row_mirror")]
red_steps[3] += f"\nv_mov_b32 v{cT}, v{mL}"
red_steps.append(f"v_permlane32_swap_b32 v{mL}, v{cT}\nv_add_f32 v{mL}, v{mL}, v{cT}\nv_mov_b32 v{cT}, v{mL}")
red_steps.append(f"v_permlane16_swap_b32 v{mL}, v{cT}\nv_add_f32 v{mL}, v{mL}, v{cT}\nv_rcp_f32 v{mL}, v{mL}")
for u in range(7):
    A(f"s_waitcnt vmcnt({6-u})")
    for r in (0, 2, 1, 3):
        op = "v_mul_f32_dpp" if u == 0 else "v_fmac_f32_dpp"
        A(f"{op} v{oa+r}, v{mW}, v{cG+4*u+r} row_newbcast:{u} {DPPF}")
    if u < 6:
        A(red_steps[u])
A(f"v_permlane32_swap_b32 v{oa}, v{oa+2}\ns_nop 0\nv_permlane32_swap_b32 v{oa+1}, v{oa+3}")
A(f"v_add_f32 v{oa}, v{oa}, v{oa+2}\nv_add_f32 v{oa+1}, v{oa+1}, v{oa+3}\ns_nop 1")
A(f"v_permlane16_swap_b32 v{oa}, v{oa+1}\nv_add_f32 v{oa}, v{oa}, v{oa+1}")
A(f"v_mul_f32 v{oa}, v{oa}, v{mL}\nv_cmp_u_f32 vcc, v{oa}, v{oa}\nv_cvt_pk_bf16_f32 v{oa}, v{oa}, v{oa}")
A("s_cmp_lg_u64 vcc, 0\ns_cbranch_scc0 L_sa_go")
spin_guard("L_sa_go")
sentinel_check(range(cG, cG + 30), cT, "L_sa_poll")
A("L_sa_go:")
lstamp(3)
A(f"s_and_b32 s{sT0}, s{sLAYER}, 1\ns_cmp_eq_u32 s{sT0}, 1\ns_cbranch_scc1 L_sa_B")
for which in range(2):
    if which == 1:
        A("L_sa_B:")

    def gmh(t, hf):
        for r in (0, 1) if hf == 0 else (2, 3):
            A(f"v_and_b32_dpp v{cTT[t&1]+r}, v{oa}, v{MASK+r} row_newbcast:{t} {DPPF}")
    gmh(0, 0)
    gmh(0, 1)
    for t in range(16):
        if t + 1 < 16:
            gmh(t + 1, 0)
        else:
            A("s_nop 0")
        A(f"v_mfma_f32_16x16x32_bf16 {vr(cACC)}, {vr(cTT[t&1])}, {vr(radd(WO0[which],4*t))}, {'0' if t == 0 else vr(cACC)}")
        if t + 1 < 16:
            gmh(t + 1, 1)
        A(f"v_mfma_f32_16x16x32_bf16 {vr(cACC+4)}, {vr(cTT[t&1])}, {vr(wo1(t))}, {'0' if t == 0 else vr(cACC+4)}")
    if which == 0:
        A("s_branch L_sa_red")
A("L_sa_red:")
A(f"s_lshl_b32 s{sT0}, s{sWAVE}, 10\nv_add_u32 v{cT}, s{sT0}, v{cSCR}")
A("s_mov_b32 exec_lo, 0\ns_nop 5")
for r in range(4):
    A(f"v_mov_b32 v{cACC+r}, v{cACC+4+r}")
A("s_mov_b32 exec_lo, -1")
A(f"s_cmp_eq_u32 s{sWAVE}, 0\ns_cbranch_scc1 L_sa_w0")
A(f"ds_write_b128 v{cT}, {vr(cACC)}\ns_waitcnt lgkmcnt(0)\ns_barrier")
H2S = int(os.environ.get("H2S", "8"))
A(f"s_sleep {H2S+2}\ns_branch L_sb")
A("L_sa_w0:\ns_barrier")
for s_ in range(1, 4):
    A(f"ds_read_b128 {vr(cG+4*s_)}, v{cSCR} offset:{1024*s_}")
for s_ in range(1, 4):
    A(f"s_waitcnt lgkmcnt({3-s_})")
    for r in range(0, 4, 2):
        A(f"v_pk_add_f32 v[{cACC+r}:{cACC+r+1}], v[{cACC+r}:{cACC+r+1}], v[{cG+4*s_+r}:{cG+4*s_+r+1}]")
for r in range(4):
    A(f"v_min_u32 v{cACC+r}, -2, v{cACC+r}")
A(f"buffer_store_dwordx4 {vr(cACC)}, v{cYst}, {srd(SRD_WS)}, s{sYST} offen sc1")
lstamp(4)
if H2S:
    A(f"s_sleep {H2S}")
A("L_sb:")
A(f"s_cmp_eq_u32 s{sLAYER}, 3\ns_cbranch_scc0 L_sb_go0\ns_cmp_eq_u32 s{sCH}, 0\ns_cbranch_scc0 L_fin\nL_sb_go0:")


def yload(i):
    return f"buffer_load_dwordx4 {vr(cG+4*i)}, v{cYg}, {srd(SRD_WS)}, s{sYG+i} offen sc1"


for i in range(8):
    A(yload(i))
A("L_sb_poll:")
for i in range(4):
    A(f"s_waitcnt vmcnt({6-2*i})")
    for r in range(0, 4, 2):
        A(f"v_pk_add_f32 v[{cN+4*i+r}:{cN+4*i+r+1}], v[{cG+8*i+r}:{cG+8*i+r+1}], v[{cG+8*i+4+r}:{cG+8*i+4+r+1}]")
    if i & 1:
        for r in range(0, 4, 2):
            A(f"v_pk_add_f32 v[{cN+4*(i-1)+r}:{cN+4*(i-1)+r+1}], v[{cN+4*(i-1)+r}:{cN+4*(i-1)+r+1}], v[{cN+4*i+r}:{cN+4*i+r+1}]")
for r in range(0, 4, 2):
    A(f"v_pk_add_f32 v[{cN+r}:{cN+r+1}], v[{cN+r}:{cN+r+1}], v[{cN+8+r}:{cN+8+r+1}]")
A("s_nop 1")
A(f"v_permlane32_swap_b32 v{cN}, v{cN+2}\nv_permlane32_swap_b32 v{cN+1}, v{cN+3}")
A(f"v_pk_add_f32 v[{cN}:{cN+1}], v[{cN}:{cN+1}], v[{cN+2}:{cN+3}]")
A(f"v_cmp_u_f32 vcc, v{cN}, v{cN+1}")
bf16r(cN, cN)
bf16r(cN + 1, cN + 1)
A("s_cmp_lg_u64 vcc, 0\ns_cbranch_scc0 L_sb_go")
spin_guard("L_sb_go")
A(f"s_mov_b32 s{sT0}, 0")
for i in range(8):
    sk = A.label("ysk")
    g_ = cG + 4 * i
    A(f"v_max3_u32 v{cT}, v{g_}, v{g_+1}, v{g_+2}\nv_max_u32 v{cT}, v{cT}, v{g_+3}\nv_cmp_eq_u32 vcc, -1, v{cT}\ns_nop 0\ns_cmp_lg_u64 vcc, 0\ns_cbranch_scc0 {sk}")
    A(yload(i))
    A(f"s_mov_b32 s{sT0}, 1\n{sk}:")
A(f"s_waitcnt vmcnt(0)\ns_cmp_eq_u32 s{sT0}, 1\ns_cbranch_scc1 L_sb_poll")
A("L_sb_go:")
lstamp(5)
A(f"v_pk_add_f32 v[{cX}:{cX+1}], v[{cX}:{cX+1}], v[{cN}:{cN+1}]")
A(f"v_cvt_pk_bf16_f32 v{cN}, v{cX}, v{cX+1}")
A(f"s_cmp_eq_u32 s{sLAYER}, 3\ns_cbranch_scc1 L_ch_out")
A(f"ds_write_b32 v{cXw}, v{cN}")
A(f"v_and_b32 v{cX+1}, 0xffff0000, v{cN}\nv_lshlrev_b32 v{cX}, 16, v{cN}")
A(f"s_add_u32 s{sLAYER}, s{sLAYER}, 1")
A(f"s_add_u32 s{sPOOFF}, s{sPOOFF}, {PO_L}\ns_add_u32 s{sMLOFF}, s{sMLOFF}, {ML_L}\ns_add_u32 s{sYOFF}, s{sYOFF}, 32768\ns_add_u32 s{sYST}, s{sYST}, 32768\ns_add_u32 s{sQST}, s{sQST}, 8192")
A("s_waitcnt lgkmcnt(0)\ns_barrier")
A("L_ch_qp:")
SV = 20
s1, s2, t0, t1 = 24, 25, 26, 27
A(f"ds_read_b128 {vr(cXA)}, v{cXa}\nds_read_b128 {vr(SV)}, v{cXs}")
for kb in range(1, 14):
    A(f"ds_read_b128 {vr(cXA+4*kb)}, v{cXa} offset:{64*kb}")
st = []
st += [f"v_readfirstlane_b32 s{sT0}, v{cXA}", f"s_lshl_b32 s{sT0}, s{sT0}, 16"]
for r in range(4):
    st += [f"v_lshlrev_b32 v{t0}, 16, v{SV+r}", f"v_and_b32 v{t1}, 0xffff0000, v{SV+r}",
           f"v_subrev_f32 v{t0}, s{sT0}, v{t0}", f"v_subrev_f32 v{t1}, s{sT0}, v{t1}"]
    if r == 0:
        st += [f"v_add_f32 v{s1}, v{t0}, v{t1}", f"v_mul_f32 v{s2}, v{t0}, v{t0}", f"v_fmac_f32 v{s2}, v{t1}, v{t1}"]
    else:
        st += [f"v_add_f32 v{s1}, v{s1}, v{t0}", f"v_fmac_f32 v{s2}, v{t0}, v{t0}", f"v_add_f32 v{s1}, v{s1}, v{t1}", f"v_fmac_f32 v{s2}, v{t1}, v{t1}"]
st += [f"v_mul_f32 v{s1}, v{s1}, v{cV56}", f"v_mul_f32 v{s2}, v{s2}, v{cV56}"]
for ctl in ("quad_perm:[1,0,3,2]", "quad_perm:[2,3,0,1]", "row_half_mirror", "row_mirror"):
    st += ["s_nop 0", f"v_add_f32_dpp v{s1}, v{s1}, v{s1} {ctl} {DPPF}", f"v_add_f32_dpp v{s2}, v{s2}, v{s2} {ctl} {DPPF}"]
for sw in ("v_permlane32_swap_b32", "v_permlane16_swap_b32"):
    st += [f"v_mov_b32 v{t0}, v{s1}", f"v_mov_b32 v{t1}, v{s2}", "s_nop 1", f"{sw} v{s1}, v{t0}", f"{sw} v{s2}, v{t1}",
           f"v_add_f32 v{s1}, v{s1}, v{t0}", f"v_add_f32 v{s2}, v{s2}, v{t1}"]
st += [f"v_mul_f32 v{s1}, {f2u(1.0/448.0)}, v{s1}", f"v_mul_f32 v{s2}, {f2u(1.0/448.0)}, v{s2}",
       f"v_fma_f32 v{s2}, -v{s1}, v{s1}, v{s2}", f"v_max_f32 v{s2}, 0, v{s2}", f"v_add_f32 v{s1}, s{sT0}, v{s1}",
       f"v_cvt_pk_bf16_f32 v{s2}, 0, v{s2}", f"v_cvt_pk_bf16_f32 v{s1}, 0, v{s1}",
       f"v_add_f32 v{s2}, {f2u(1e-5)}, v{s2}", f"v_cvt_pk_bf16_f32 v{s2}, 0, v{s2}", f"v_sqrt_f32 v{s2}, v{s2}", "s_nop 0",
       f"v_cvt_pk_bf16_f32 v{s2}, 0, v{s2}", f"v_rcp_f32 v{s2}, v{s2}"]
A(f"s_and_b32 s{sT1}, s{sLAYER}, 1\ns_cmp_eq_u32 s{sT1}, 1\ns_cbranch_scc1 L_qp_B")
for which in range(2):
    if which == 1:
        A("L_qp_B:")
    sp_ = 0
    nm = 0
    for kb in range(14):
        A(f"s_waitcnt lgkmcnt({13 if kb == 0 else 13-kb})")
        for cb in range(2):
            acc = cACC + 4 * cb
            A(f"v_mfma_f32_16x16x32_bf16 {vr(acc)}, {vr(cXA+4*kb)}, {vr(radd(WQ[which], (kb*2+cb)*4))}, {'0' if kb == 0 else vr(acc)}")
            nm += 1
            upto = min(len(st), (nm * len(st) + 26) // 27)
            while sp_ < upto:
                A(st[sp_])
                sp_ += 1
    A(f"v_mul_f32 v{s1}, v{s1}, v{cCS[which]}")
    if which == 0:
        A("s_branch L_qp_red")
A("L_qp_red:")
A("s_nop 5")
sel_cb(t0)
A(f"v_sub_f32 v{t0}, v{t0}, v{s1}\nv_mul_f32 v{t0}, v{t0}, v{s2}\ns_nop 1")
A(f"v_mov_b32_dpp v{t1}, v{t0} quad_perm:[1,1,3,3] {DPPF}")
A(f"v_cvt_pk_bf16_f32 v{t0}, v{t0}, v{t1}\nv_min_u32 v{t0}, -2, v{t0}")
A("s_mov_b32 exec_lo, 0x55555555\ns_mov_b32 exec_hi, 0")
A(f"s_cmp_eq_u32 s{sMODE}, 1\ns_cbranch_scc0 L_qp_far")
A(f"buffer_store_dword v{t0}, v{cQst}, {srd(SRD_WS)}, s{sQST} offen\ns_branch L_qp_st")
A("L_qp_far:")
A(f"buffer_store_dword v{t0}, v{cQst}, {srd(SRD_WS)}, s{sQST} offen sc1")
A("L_qp_st:")
A("s_mov_b64 exec, -1")
lstamp(2)
A(f"s_cmp_eq_u32 s{sLAYER}, 0\ns_cbranch_scc0 L_ch_stageA")
A("s_barrier")
wq_dma(1)
wo1_regs(range(16))
A("s_waitcnt vmcnt(16)\ns_barrier")
wq_tr(1)
A("s_barrier")
DEFW = int(os.environ.get("DEFW", "0"))
if not DEFW:
    wo0_loads(1, range(16))
wo1_dma(1)
colsum(1)
A(f"s_waitcnt vmcnt({16 if DEFW else 32})\ns_lshl_b32 s{sT1}, s{sWAVE}, 14\nv_add_u32 v{cT}, s{sT1}, v{cL16}")
for t in range(16):
    A(f"ds_write_b128 v{cT}, {vr(wo1(t))} offset:{t*1024}")
A("s_waitcnt lgkmcnt(0)")
if os.environ.get("EXP", ""):
    A("s_waitcnt vmcnt(0)")
    stamp(3)
    A("s_branch L_fin")
A("L_ch_cnt:")
spin_guard("L_ch_cnt_ok")
A(f"v_lshlrev_b32 v{cT}, 2, v0")
A(f"buffer_load_dword v{cG}, v{cT}, {srd(SRD_DBG)}, 0 offen sc1\ns_waitcnt vmcnt(0)")
A(f"v_add_u32 v{cG+1}, 0x7f7f7f7f, v{cG}\nv_and_b32 v{cG+1}, 0x80808080, v{cG+1}\nv_cmp_ne_u32 vcc, 0x80808080, v{cG+1}\ns_nop 0")
A("s_cmp_lg_u64 vcc, 0\ns_cbranch_scc1 L_ch_cnt")
A("L_ch_cnt_ok:")
stamp(18)
CPB = int(os.environ.get("CPB", "0"))
CPN = int(os.environ.get("CPN", "16"))
if int(os.environ.get("CPC", "1")):
    BACKWARD.add("L_ch_stageA")
if CPB:
    mk_srd(SRD_WQA, 0, KVBYTES)
    A(f"s_lshl_b32 s{sT2}, s{sG}, 23\ns_and_b32 s{sT3}, s{sCH}, 3\ns_lshl_b32 s{sT3}, s{sT3}, 2\ns_add_u32 s{sT3}, s{sT3}, s{sWAVE}\ns_lshl_b32 s{sT3}, s{sT3}, 13")
    A(f"s_add_u32 s{sT2}, s{sT2}, s{sT3}\ns_add_u32 s{sT2}, s{sT2}, {12288*512}\ns_mov_b32 s{sT3}, {CPN // CPB}\nv_lshlrev_b32 v{cG+2}, 7, v0")
A("L_ch_pre:")
spin_guard("L_ch_stageA")
if CPB:
    A(f"s_cmp_eq_u32 s{sT3}, 0\ns_cbranch_scc1 L_ch_pre_s\ns_sub_u32 s{sT3}, s{sT3}, 1")
    for i in range(CPB):
        A(f"buffer_load_dword v{cG+3}, v{cG+2}, {srd(SRD_WQA)}, s{sT2} offen\ns_add_u32 s{sT2}, s{sT2}, 131072")
    A("s_branch L_ch_pre_p")
A("L_ch_pre_s:")
if int(os.environ.get("CPC", "1")):
    code_prefetch("L_ch_stageA", 5376, cT, cG, sT0)
A("s_sleep 16     ; slow polling while the attention CUs stream")
A("L_ch_pre_p:\ns_mov_b64 exec, 1")
A(f"buffer_load_dword v{cML}, v{cMLg}, {srd(SRD_WS)}, s{sMLOFF} offen sc1\ns_waitcnt vmcnt(0)")
A(f"v_readfirstlane_b32 s{sT0}, v{cML}\ns_mov_b64 exec, -1\ns_cmp_eq_u32 s{sT0}, -1\ns_cbranch_scc1 L_ch_pre")
A("s_branch L_ch_stageA")
A("L_ch_out:")
A(f"v_subrev_u32 v{cT}, {XB}, v{cXw}")
A(f"buffer_store_dword v{cN}, v{cT}, {srd(SRD_OUT)}, 0 offen")
stamp(19)
if os.environ.get("DIAG"):
    da, db = [int(x) for x in os.environ["DIAG"].split(",")]
    ra = 100 if da == 99 else sSTAMP + 2 * da
    A(f"s_sub_u32 s{sT0}, s{sSTAMP+2*db}, s{ra}\ns_lshl_b32 s{sT0}, s{sT0}, 4\ns_min_u32 s{sT0}, s{sT0}, 200000\ns_add_u32 s{sT0}, s{sT0}, s{sSTAMP+38}")
    A(f"L_diag:\ns_memrealtime s[{sT2}:{sT3}]\ns_waitcnt lgkmcnt(0)\ns_sub_u32 s{sT1}, s{sT2}, s{sT0}\ns_cmp_lt_i32 s{sT1}, 0\ns_cbranch_scc1 L_diag")

A("L_fin:")
if PROFILE:
    A(f"s_mul_i32 s{sT0}, s2, 640\ns_mul_i32 s{sT1}, s{sWAVE}, 160\ns_add_u32 s{sT0}, s{sT0}, s{sT1}\ns_add_u32 s{sT0}, s{sT0}, {WS_STAMP}")
    A("s_mov_b64 exec, 1\nv_mov_b32 v1, 0")
    for i in range(10):
        for r in range(4):
            A(f"v_mov_b32 v{4+r}, s{sSTAMP+4*i+r}")
        A(f"buffer_store_dwordx4 v[4:7], v1, {srd(SRD_WS)}, s{sT0} offen offset:{16*i}\ns_nop 1")
if PROFILE:
    pass
A("L_end:")
A("s_endpgm")

for l in A.L:
    OUT.append(l if l.endswith(":") else "    " + l)
OUT.append('.section .rodata,"a"')
OUT.append(".p2align 6")
OUT.append(f".amdhsa_kernel {NAME}_kernel")
OUT.append("""  .amdhsa_next_free_vgpr 512
  .amdhsa_next_free_sgpr 102
  .amdhsa_accum_offset 256
  .amdhsa_group_segment_fixed_size 0
  .amdhsa_kernarg_size 104
  .amdhsa_user_sgpr_count 2
  .amdhsa_user_sgpr_kernarg_segment_ptr 1
  .amdhsa_system_sgpr_workgroup_id_x 1
  .amdhsa_float_denorm_mode_32 3
.end_amdhsa_kernel""")
out = sys.argv[1] if len(sys.argv) > 1 else f"cdna_kernels/{NAME}.s"
open(out, "w").write("\n".join(OUT) + "\n")
print("wrote", out, len(A.L), "lines")
```
